```python
import torch

def _softmax(x, axis=-1):
    return torch.softmax(x, dim=axis)
def _gelu(x):
    return torch.nn.functional.gelu(x, approximate="tanh")
def _silu(x):
    return torch.nn.functional.silu(x)
def _sigmoid(x):
    return torch.sigmoid(x)
def _layernorm(x, axis=-1, eps=1e-5):
    m = x.mean(dim=axis, keepdim=True)
    v = x.var(dim=axis, keepdim=True, unbiased=False)
    return (x - m) / torch.sqrt(v + eps)
def _scatter_add(tgt, idx, src, axis=0):
    return tgt.clone().index_add_(axis, idx, src)
def _segment_sum(src, seg, n):
    out = torch.zeros((n,) + src.shape[1:], dtype=src.dtype)
    return out.index_add_(0, seg, src)
def _pad(x, pw):
    flat = tuple(v for pair in reversed(pw) for v in pair)
    return torch.nn.functional.pad(x, flat)

kernel_name = 'concat_heads__gqa_block_cached__mha_block_cached__near_ridge'

def setup_inputs():

    _w = (lambda a: (lambda t: t.to(torch.bfloat16) if t.is_floating_point() else t)(torch.as_tensor(a)))
    def _A_setup():
        B, Sq, D = 32, 32, 640
        Hq, Hkv, Sk, Dh = 32, 32, 32, 128
        assert Hq % Hkv == 0, (Hq, Hkv)
        return {
            "x": _w((lambda *s: torch.randn(*s, dtype=torch.bfloat16) * 0.8)(B, Sq, D)),
            "k_cache": _w((lambda *s: torch.randn(*s, dtype=torch.bfloat16) * 0.8)(B, Hkv, Sk, Dh)),
            "v_cache": _w((lambda *s: torch.randn(*s, dtype=torch.bfloat16) * 0.05)(B, Hkv, Sk, Dh)),
            "wq": _w((lambda *s: torch.randn(*s, dtype=torch.bfloat16) * 0.8)(D, Hq * Dh) * (D ** -0.5)),
            "wo": _w((lambda *s: torch.randn(*s, dtype=torch.bfloat16) * 0.05)(Hq * Dh, D) * ((Hq * Dh) ** -0.5)),
        }
    _A_in = _A_setup()

    def _B_setup():
        B, Sq, D = 32, 32, 640
        H, Sk, Dh = 32, 32, 128
        return {
            "x": _w((lambda *s: torch.randn(*s, dtype=torch.bfloat16) * 0.8)(B, Sq, D)),
            "k_cache": _w((lambda *s: torch.randn(*s, dtype=torch.bfloat16) * 0.8)(B, H, Sk, Dh)),
            "v_cache": _w((lambda *s: torch.randn(*s, dtype=torch.bfloat16) * 0.05)(B, H, Sk, Dh)),
            "wq": _w((lambda *s: torch.randn(*s, dtype=torch.bfloat16) * 0.8)(D, H * Dh) * (D ** -0.5)),
            "wo": _w((lambda *s: torch.randn(*s, dtype=torch.bfloat16) * 0.05)(H * Dh, D) * ((H * Dh) ** -0.5)),
        }
    _B_in = _B_setup()

    return {
        "A_x": _A_in["x"],
        "A_k_cache": _A_in["k_cache"],
        "A_v_cache": _A_in["v_cache"],
        "A_wq": _A_in["wq"],
        "A_wo": _A_in["wo"],
        "B_x": _B_in["x"],
        "B_k_cache": _B_in["k_cache"],
        "B_v_cache": _B_in["v_cache"],
        "B_wq": _B_in["wq"],
        "B_wo": _B_in["wo"],
    }

def reference(A_x, A_k_cache, A_v_cache, A_wq, A_wo, B_x, B_k_cache, B_v_cache, B_wq, B_wo):
    def _A_ref(x, k_cache, v_cache, wq, wo):
        B, Sq, D = x.shape
        Hq, Dh = 32, 128
        Hkv = k_cache.shape[1]
        rep = Hq // Hkv
        q = (lambda x, *d: x.permute(*d))((x @ wq).reshape(B, Sq, Hq, Dh), 0, 2, 1, 3)
        k = (lambda x, n, axis: torch.repeat_interleave(x, n, dim=axis))(k_cache, rep, axis=1)
        v = (lambda x, n, axis: torch.repeat_interleave(x, n, dim=axis))(v_cache, rep, axis=1)
        scores = torch.einsum("bhqd,bhkd->bhqk", q, k) * (Dh ** -0.5)
        p = _softmax(scores, axis=-1)
        o = torch.einsum("bhqk,bhkd->bhqd", p, v)
        return (lambda x, *d: x.permute(*d))(o, 0, 2, 1, 3).reshape(B, Sq, Hq * Dh) @ wo

    def _B_ref(x, k_cache, v_cache, wq, wo):
        B, Sq, D = x.shape
        H, Dh = 32, 128
        q = (lambda x, *d: x.permute(*d))((x @ wq).reshape(B, Sq, H, Dh), 0, 2, 1, 3)
        scores = torch.einsum("bhqd,bhkd->bhqk", q, k_cache) * (Dh ** -0.5)
        p = _softmax(scores, axis=-1)
        o = torch.einsum("bhqk,bhkd->bhqd", p, v_cache)
        return (lambda x, *d: x.permute(*d))(o, 0, 2, 1, 3).reshape(B, Sq, H * Dh) @ wo

    a = _A_ref(A_x, A_k_cache, A_v_cache, A_wq, A_wo)
    b = _B_ref(B_x, B_k_cache, B_v_cache, B_wq, B_wo)
    return torch.concatenate([a, b], axis=-1)
```

```python
import sys, argparse

NAME = "concat_heads__gqa_block_cached__mha_block_cached__near_ridge"

V_TID = 0
V_TMP = 1
V_W = 2
V_B = 10
V_LX = 11
V_KG = 12
V_VG = 13
V_WO0 = 14
V_WO1 = 15
PERM = 16
RING = 32
ACC = 128
A_V = 0
A_B = 64
A_K = 128
A_C4 = 128

S_X, S_K, S_V, S_WQ, S_WO, S_WS = 8, 12, 16, 20, 24, 28
S_W = 3
S_BP = 4
S_HQ = 5
S_T0, S_T1 = 6, 7
S_KS = 32
S_CW = 52
S_CL = 72
S_KV = 88
S_ST = 92
S_PLO, S_PHI = 93, 94
S_WOFF = 95
S_KLDS = 96
S_SC = 97
S_C4U = 98
S_STMP = 99
S_TS = 100
S_G = 95

LDS_O = 0
LDS_X = 65536
LDS_R = 65536
LDS_BYTES = 163840
GFUN = [0, 2, 3, 1]


class Gen:
    def __init__(self, o):
        self.o = o
        self.L = []
        self.vq = []
        self.nstamp = 0

    def A(self, s):
        if s:
            self.L.append("    " + s)

    def lab(self, s):
        self.L.append(s + ":")

    def vm(self, s, tag):
        self.vq.append(tag)
        assert len(self.vq) <= 63, "vmcnt overflow"
        return s

    def waitvm(self, tag):
        idx = max((i for i, t in enumerate(self.vq) if t == tag), default=-1)
        if idx < 0:
            return None
        n = len(self.vq) - 1 - idx
        self.vq = self.vq[idx + 1:]
        return f"s_waitcnt vmcnt({n})"

    def stamp(self, k):
        if not self.o.diag:
            return
        A = self.A
        A(f"s_memtime s[{S_TS}:{S_TS+1}]")
        A("s_waitcnt lgkmcnt(0)")
        A(f"v_writelane_b32 v{V_TID}, s{S_TS}, {k}")


def mfma(d, a, b, c):
    return f"v_mfma_f32_16x16x32_bf16 {d}, {a}, {b}, {c}"


def vr(n, k=4):
    return f"v[{n}:{n+k-1}]"


def ar(n, k=4):
    return f"a[{n}:{n+k-1}]"


def perms(src_rows, t, dst):
    out = []
    for e in range(2):
        for p in range(4):
            sel = S_PLO if e == 0 else S_PHI
            out.append(f"v_perm_b32 v{dst+e*4+p}, v{src_rows[2*p+1]+t}, v{src_rows[2*p]+t}, s{sel}")
    return out


def slot_rows(s):
    return [RING + (s % 3) * 32 + r * 4 for r in range(8)]


def gen_main(g):
    o = g.o
    A = g.A
    K = f"{NAME}_kernel"
    g.L.append(f".globl {K}\n.p2align 8\n.type {K},@function")
    g.lab(K)
    A("s_cmp_ge_u32 s2, 256")
    A("s_cbranch_scc1 L_main_end")
    A("s_load_dwordx16 s[32:47], s[0:1], 0")
    A("s_load_dwordx4 s[48:51], s[0:1], 64")
    A("s_load_dwordx2 s[28:29], s[0:1], 96")
    A(f"v_lshrrev_b32 v{V_TMP}, 6, v0")
    A(f"v_and_b32 v0, 63, v0")
    A(f"v_readfirstlane_b32 s{S_W}, v{V_TMP}")
    A(f"s_lshr_b32 s{S_T0}, s2, 3")
    if o.warm:
        A("s_getpc_b64 s[52:53]")
        g.lab("L_pc")
        A(f"s_sub_u32 s52, s52, L_pc-{K}")
        A("s_subb_u32 s53, s53, 0")
        A(f"s_lshl_b32 s{S_T1}, s{S_T0}, 2")
        A(f"s_add_u32 s{S_T1}, s{S_T1}, s{S_W}")
        A(f"s_min_u32 s{S_T1}, s{S_T1}, (L_code_end-{K})/1024-1")
        A(f"s_lshl_b32 s{S_T1}, s{S_T1}, 10")
        A(f"v_lshl_add_u32 v{V_TMP}, v0, 4, s{S_T1}")
        A(g.vm(f"global_load_dwordx4 {vr(PERM)}, v{V_TMP}, s[52:53]", "warm"))
    A(f"s_lshr_b32 s{S_BP}, s{S_T0}, 1")
    A(f"s_and_b32 s{S_T0}, s{S_T0}, 1")
    A(f"s_and_b32 s{S_HQ}, s2, 3")
    A(f"s_lshl_b32 s{S_HQ}, s{S_HQ}, 1")
    A(f"s_add_u32 s{S_HQ}, s{S_HQ}, s{S_T0}")
    vi, vG, vt, vt2 = 20, 21, 22, 23
    A(f"s_movk_i32 s{S_G}, 0x78")
    A(f"v_and_b32 v{vi}, 15, v0")
    A(f"v_lshrrev_b32 v{vG}, 4, v0")
    A(f"v_lshlrev_b32 v{vt}, 1, v{vG}")
    A(f"v_lshrrev_b32 v{vt}, v{vt}, s{S_G}")
    A(f"v_xor_b32 v{vt}, v{vt}, v0")
    A(f"v_and_b32 v{vt}, 3, v{vt}")
    A(f"v_lshlrev_b32 v{vt}, 4, v{vt}")
    A(f"v_lshrrev_b32 v{vt2}, 2, v0")
    A(f"v_mul_u32_u24 v{vt2}, 1280, v{vt2}")
    A(f"v_add_u32 v{V_B}, v{vt}, v{vt2}")
    A(f"v_lshlrev_b32 v{vt}, 4, v{vi}")
    A(f"v_lshl_add_u32 v{V_W}, v{vG}, 16, v{vt}")
    for r in range(1, 8):
        A(f"v_add_u32 v{V_W+r}, {r*8192}, v{V_W}")
    A("s_bitcmp1_b32 s2, 2")
    A("s_waitcnt lgkmcnt(0)")
    for dst, a, b in ((S_X, 32, 42), (S_K, 34, 44), (S_V, 36, 46), (S_WQ, 38, 48), (S_WO, 40, 50)):
        A(f"s_cselect_b32 s{dst}, s{b}, s{a}")
        A(f"s_cselect_b32 s{dst+1}, s{b+1}, s{a+1}")
    for dst, n in ((S_X, 1310720), (S_K, 8388608), (S_V, 8388608), (S_WQ, 5242880), (S_WO, 5242880), (S_WS, 268435456)):
        A(f"s_mov_b32 s{dst+2}, {n}")
        A(f"s_mov_b32 s{dst+3}, 0x20000")
    A(f"s_lshl_b32 s{S_T0}, s{S_BP}, 2")
    A(f"s_add_u32 s{S_T0}, s{S_T0}, s{S_W}")
    A(f"s_mul_i32 s{S_T0}, s{S_T0}, {16*1280}")
    A(f"s_lshl_b32 s{S_T1}, s{S_W}, 10")
    A(f"s_add_u32 m0, s{S_T1}, {LDS_X}")
    A(f"s_mul_i32 s{S_KS}, s{S_BP}, 5")
    A(f"s_lshr_b32 s{S_KS}, s{S_KS}, 2")
    if not o.rot:
        A(f"s_mov_b32 s{S_KS}, 0")
    for ks in range(20):
        A(g.vm(f"buffer_load_dwordx4 v{V_B}, s[{S_X}:{S_X+3}], s{S_T0} offen offset:{ks*64} {o.px} lds", "x"))
        if ks < 19:
            A(f"s_add_u32 m0, m0, {4096-64}")
            A(f"s_add_u32 s{S_KS+ks+1}, s{S_KS+ks}, 1")
            A(f"s_cmp_eq_u32 s{S_KS+ks+1}, 20")
            A(f"s_cselect_b32 s{S_KS+ks+1}, 0, s{S_KS+ks+1}")
    A(f"s_lshl_b32 s{S_T0}, s{S_HQ}, 2")
    A(f"s_add_u32 s{S_T0}, s{S_T0}, s{S_W}")
    A(f"s_lshl_b32 s{S_T1}, s{S_T0}, 8")
    for r in range(8):
        A(f"v_add_u32 v{V_W+r}, s{S_T1}, v{V_W+r}")

    def wload(s, r):
        dst = vr(slot_rows(s)[r])
        if s < 20:
            return g.vm(f"buffer_load_dwordx4 {dst}, v{V_W+r}, s[{S_WQ}:{S_WQ+3}], s{S_WOFF} offen {o.pwq}", f"w{s}")
        v = V_WO0 if r < 4 else V_WO1
        return g.vm(f"buffer_load_dwordx4 {dst}, v{v}, s[{S_WO}:{S_WO+3}], s{S_CW+s-20} offen offset:{(r%4)*1280} {o.pwo}", f"w{s}")

    def wsoff(s):
        return f"s_lshl_b32 s{S_WOFF}, s{S_KS+s}, 18" if s < 20 else None

    for s in range(3):
        A(wsoff(s))
        for r in range(8):
            A(wload(s, r))
    A(f"s_lshl_b32 s{S_KV}, s{S_BP}, 6")
    A(f"s_add_u32 s{S_KV}, s{S_KV}, s{S_T0}")
    A(f"s_lshl_b32 s{S_KV}, s{S_KV}, 13")
    A(f"s_add_u32 s{S_KV+1}, s{S_KV}, 4096")
    A(f"s_add_u32 s{S_KV+2}, s{S_KV}, 262144")
    A(f"s_add_u32 s{S_KV+3}, s{S_KV}, {262144+4096}")
    A(f"s_lshl_b32 s{S_KLDS}, s{S_W}, 14")
    A(f"s_mov_b32 s{S_PLO}, 0x05040100")
    A(f"s_mov_b32 s{S_PHI}, 0x07060302")
    A(f"s_mov_b32 s{S_SC}, 0x3e0293ee")
    A(f"s_mul_i32 s{S_T0}, s{S_HQ}, {512*1280}")
    A(f"s_lshl_b32 s{S_T1}, s{S_W}, 8")
    A(f"s_add_u32 s{S_T1}, s{S_T1}, s{S_T0}")
    for n in range(16):
        if o.rot:
            A(f"s_add_u32 s{S_STMP}, s{S_BP}, {n}")
            A(f"s_and_b32 s{S_STMP}, s{S_STMP}, 15")
        else:
            A(f"s_mov_b32 s{S_STMP}, {n}")
        A(f"s_lshl_b32 s{S_CL+n}, s{S_STMP}, 12")
        A(f"s_and_b32 s{S_C4U}, s{S_STMP}, 3")
        A(f"s_lshr_b32 s{S_STMP}, s{S_STMP}, 2")
        A(f"s_lshl_b32 s{S_STMP}, s{S_STMP}, 4")
        A(f"s_add_u32 s{S_STMP}, s{S_STMP}, s{S_C4U}")
        A(f"s_mul_i32 s{S_STMP}, s{S_STMP}, {8*1280}")
        A(f"s_add_u32 s{S_CW+n}, s{S_STMP}, s{S_T1}")
    A(f"s_mul_i32 s{S_T1}, s{S_W}, {128*1280}")
    A(f"s_add_u32 s{S_T1}, s{S_T1}, s{S_T0}")
    A(f"s_add_u32 s{S_T1}, s{S_T1}, 1024")
    for n in range(4):
        A(f"s_add_u32 s{S_CW+16+n}, s{S_T1}, {n*8*1280}")
    A(f"s_lshr_b32 s{S_T0}, s2, 2")
    A(f"s_and_b32 s{S_T0}, s{S_T0}, 1")
    A(f"s_lshl_b32 s{S_T0}, s{S_T0}, 4")
    A(f"s_add_u32 s{S_T0}, s{S_T0}, s{S_BP}")
    A(f"s_lshl_b32 s{S_T0}, s{S_T0}, 3")
    A(f"s_add_u32 s{S_T0}, s{S_T0}, s{S_HQ}")
    A(f"s_mul_i32 s{S_ST}, s{S_T0}, 81920")
    A(f"v_xor_b32 v{vt}, v{vi}, v{vG}")
    A(f"v_lshlrev_b32 v{vt}, 4, v{vt}")
    A(f"v_lshl_add_u32 v{V_KG}, v{vG}, 8, v{vt}")
    A(f"v_lshlrev_b32 v{vt}, 4, v{vi}")
    A(f"v_lshl_add_u32 v{V_VG}, v{vG}, 10, v{vt}")
    A(f"v_mul_u32_u24 v{V_WO0}, {32*1280}, v{vG}")
    A(f"v_add_u32 v{V_WO0}, v{V_WO0}, v{vt}")
    A(f"v_add_u32 v{V_WO1}, {4*1280}, v{V_WO0}")
    A(f"s_movk_i32 s{S_G}, 0x78")
    A(f"v_lshrrev_b32 v{vt}, 2, v{vi}")
    A(f"v_lshlrev_b32 v{vt}, 1, v{vt}")
    A(f"v_lshrrev_b32 v{vt}, v{vt}, s{S_G}")
    A(f"v_xor_b32 v{vt}, v{vt}, v{vG}")
    A(f"v_and_b32 v{vt}, 3, v{vt}")
    A(f"v_lshlrev_b32 v{vt}, 4, v{vt}")
    A(f"v_lshl_add_u32 v{vt}, v{vi}, 6, v{vt}")
    A(f"v_add_u32 v{V_LX}, {LDS_X}, v{vt}")
    if o.diag:
        A(f"v_mov_b32 v{V_TID}, 0")
        g.stamp(0)

    def kload(n):
        bt, m = n // 8, n % 8
        ins = []
        if m % 4 == 0:
            ins.append(f"s_add_u32 m0, s{S_KLDS}, {bt*8192 + (m//4)*4096}")
        ins.append(f"v_xor_b32 v{V_TMP}, {GFUN[m%4] << 6}, v{V_KG}")
        ins.append(("vm", f"buffer_load_dwordx4 v{V_TMP}, s[{S_K}:{S_K+3}], s{S_KV+bt*2+m//4} offen offset:{(m%4)*1024} {o.pk} lds", "k"))
        return ins

    def vload(n):
        bt, r = n // 8, n % 8
        return [("vm", f"buffer_load_dwordx4 {ar(A_V+n*4)}, v{V_VG}, s[{S_V}:{S_V+3}], s{S_KV+bt*2+r//4} offen offset:{(r%4)*256} {o.pv}", "v")]

    def bread(s):
        buf = A_B + (s % 2) * 16
        if s < 20:
            ins = [f"v_lshl_add_u32 v{V_B}, s{S_KS+s}, 12, v{V_LX}"]
            ins += [f"ds_read_b128 {ar(buf+q*4)}, v{V_B} offset:{q*1024}" for q in range(4)]
        elif s < 36:
            ins = [f"v_add_u32 v{V_B}, s{S_CL+s-20}, v{V_LX}"]
            ins += [f"ds_read_b128 {ar(buf+q*4)}, v{V_B} offset:{q*1024}" for q in range(4)]
        else:
            ins = [f"ds_read_b128 {ar(buf+q*4)}, v{V_W+q} offset:{(s-36)*4096}" for q in range(4)]
        return ins

    def emit(ins):
        if isinstance(ins, tuple):
            A(g.vm(ins[1], ins[2]))
        elif callable(ins):
            r = ins()
            if r:
                A(r)
        else:
            A(ins)

    def step(s, first, last, extra, preperm=True, prefetchB=True):
        fill = [[] for _ in range(32)]
        rows = slot_rows(s)
        buf = A_B + (s % 2) * 16
        for t in range(3):
            for n, p in enumerate(perms(rows, t + 1, PERM + ((t + 1) % 2) * 8)):
                fill[t * 8 + n].append(p)
        if not last:
            b = bread(s + 1)
            for n, x in enumerate(b):
                fill[1 + n * 2].append(x)
            fill[23].append(lambda: g.waitvm(f"w{s+1}"))
            for n, p in enumerate(perms(slot_rows(s + 1), 0, PERM)):
                fill[24 + n].append(p)
            fill[31].append("s_waitcnt lgkmcnt(0)")
        if s + 3 < 40:
            so = wsoff(s + 3)
            if o.spread:
                if so:
                    fill[22].append(so)
                for r in range(o.spread):
                    fill[24 + r * (8 // o.spread)].append(lambda r=r: wload(s + 3, r))
            else:
                if so:
                    fill[22].append(so)
                for r in range(8):
                    fill[24 + r].append(lambda r=r: wload(s + 3, r))
        if o.spread and s >= 1 and s + 2 < 40 and s != 20:
            rest = list(range(o.spread, 8))
            for n, r in enumerate(rest):
                fill[2 + n * (20 // len(rest))].append(lambda r=r: wload(s + 2, r))
        for k, v in extra.items():
            fill[k] = fill[k] + v
        n = 0
        for t in range(4):
            for e in range(2):
                for q in range(4):
                    j = 2 * t + e
                    if s < 36:
                        d = vr(ACC + q * 32 + j * 4)
                    else:
                        d = ar(A_C4 + q * 32 + j * 4)
                    A(mfma(d, vr(PERM + (t % 2) * 8 + e * 4), ar(buf + q * 4), "0" if first else d))
                    for x in fill[n]:
                        emit(x)
                    n += 1

    A(g.waitvm("x"))
    A("s_barrier")
    for x in bread(0):
        A(x)
    A(g.waitvm("w0"))
    for p in perms(slot_rows(0), 0, PERM):
        A(p)
    A("s_waitcnt lgkmcnt(0)")
    g.stamp(1)
    kvn = 0
    for s in range(20):
        extra = {}
        if o.kv0 <= s and kvn < 16:
            for c in range(o.kvper):
                if kvn < 16:
                    extra.setdefault(10 + c * 6, []).extend(kload(kvn))
                    extra.setdefault(13 + c * 6, []).extend(vload(kvn))
                    kvn += 1
        step(s, s == 0, s == 19, extra)
    assert kvn == 16
    if o.spread:
        for r in range(o.spread, 8):
            A(wload(22, r))
    g.stamp(2)

    vi, vG, vt, KA = 6, 7, 8, 2
    A(f"s_movk_i32 s{S_G}, 0x78")
    A(f"v_lshrrev_b32 v{vG}, 10, v{V_VG}")
    A(f"v_bfe_u32 v{vi}, v{V_VG}, 4, 4")
    A(f"v_lshrrev_b32 v{vt}, 2, v{vi}")
    A(f"v_lshlrev_b32 v{vt}, 1, v{vt}")
    A(f"v_lshrrev_b32 v{vt}, v{vt}, s{S_G}")
    A(f"v_xor_b32 v{vt}, v{vt}, v{vG}")
    A(f"v_and_b32 v{vt}, 3, v{vt}")
    A(f"v_lshlrev_b32 v{vt}, 2, v{vt}")
    A(f"v_and_or_b32 v{vt}, v{vi}, 3, v{vt}")
    A(f"v_lshlrev_b32 v{vt}, 4, v{vt}")
    A(f"v_lshl_add_u32 v{vt}, v{vi}, 8, v{vt}")
    A(f"v_add_u32 v{KA}, s{S_KLDS}, v{vt}")
    for u in range(1, 4):
        A(f"v_xor_b32 v{KA+u}, {u*16}, v{KA}")
    A(f"v_lshlrev_b32 v{V_LX}, 8, v{vG}")
    A(f"v_lshl_add_u32 v{V_LX}, v{vi}, 4, v{V_LX}")
    A(g.waitvm("k"))

    def kread(bt):
        for kb in range(2):
            for u in range(4):
                A(f"ds_read_b128 {ar(A_K+((bt*2+kb)*4+u)*4)}, v{KA+u} offset:{bt*8192+kb*4096}")
    QB = [PERM, 128, 144, 160]
    SA = 176
    cv = []
    for q in range(4):
        c = []
        for t in range(4):
            for u in range(4):
                c.append(f"v_cvt_pk_bf16_f32 v{QB[q]+u*4+t}, v{ACC+q*32+(2*t)*4+u}, v{ACC+q*32+(2*t+1)*4+u}")
        cv.append(c)
    kread(0)
    for x in cv[0]:
        A(x)
    A("s_waitcnt lgkmcnt(4)")
    kread(1)
    for x in cv[1]:
        A(x)
    A("s_waitcnt lgkmcnt(8)")

    def smfma(bt):
        r = []
        for u in range(4):
            for kb in range(2):
                for qq in range(2):
                    d = vr(SA + ((bt * 2 + kb) * 2 + qq) * 4)
                    r.append(mfma(d, ar(A_K + ((bt * 2 + kb) * 4 + u) * 4), vr(QB[bt * 2 + qq] + u * 4), "0" if u == 0 else d))
        return r
    s0 = smfma(0)
    rest = cv[2] + cv[3]
    A("s_nop 1")
    for n in range(16):
        A(s0[n])
        A(rest[2 * n])
        A(rest[2 * n + 1])
    A("s_waitcnt lgkmcnt(0)")
    A("s_nop 1")
    s1 = smfma(1)

    PB = 208
    TM = 224

    def softmax(q):
        bt, qq = q // 2, q % 2
        sv = [SA + ((bt * 2 + kb) * 2 + qq) * 4 + r for kb in range(2) for r in range(4)]
        m, t2 = TM + q * 4, TM + q * 4 + 1
        ph = []
        ph.append([f"v_max3_f32 v{m}, v{sv[0]}, v{sv[1]}, v{sv[2]}",
                   f"v_max3_f32 v{t2}, v{sv[3]}, v{sv[4]}, v{sv[5]}",
                   f"v_max3_f32 v{m}, v{m}, v{sv[6]}, v{sv[7]}",
                   f"v_max_f32 v{m}, v{m}, v{t2}",
                   f"v_mov_b32 v{t2}, v{m}"])
        ph.append([f"v_permlane32_swap_b32 v{m}, v{t2}"])
        ph.append([f"v_max_f32 v{m}, v{m}, v{t2}", f"v_mov_b32 v{t2}, v{m}"])
        ph.append([f"v_permlane16_swap_b32 v{m}, v{t2}"])
        ph.append([f"v_max_f32 v{m}, v{m}, v{t2}", f"v_mul_f32 v{m}, s{S_SC}, v{m}"] +
                  [f"v_fma_f32 v{x}, v{x}, s{S_SC}, -v{m}" for x in sv] +
                  [f"v_exp_f32 v{x}, v{x}" for x in sv])
        ph.append([f"v_add_f32 v{m}, v{sv[0]}, v{sv[1]}", f"v_add_f32 v{t2}, v{sv[2]}, v{sv[3]}",
                   f"v_add_f32 v{m}, v{m}, v{sv[4]}", f"v_add_f32 v{t2}, v{t2}, v{sv[5]}",
                   f"v_add_f32 v{m}, v{m}, v{sv[6]}", f"v_add_f32 v{t2}, v{t2}, v{sv[7]}",
                   f"v_add_f32 v{m}, v{m}, v{t2}", f"v_mov_b32 v{t2}, v{m}"])
        ph.append([f"v_permlane32_swap_b32 v{m}, v{t2}"])
        ph.append([f"v_add_f32 v{m}, v{m}, v{t2}", f"v_mov_b32 v{t2}, v{m}"])
        ph.append([f"v_permlane16_swap_b32 v{m}, v{t2}"])
        ph.append([f"v_add_f32 v{m}, v{m}, v{t2}"])
        ph.append([f"v_rcp_f32 v{m}, v{m}"])
        ph.append([f"v_mul_f32 v{x}, v{x}, v{m}" for x in sv])
        ph.append([f"v_cvt_pk_bf16_f32 v{PB+q*4+p}, v{sv[2*p]}, v{sv[2*p+1]}" for p in range(4)])
        return ph

    def softmax_pair(q0):
        a, b = softmax(q0), softmax(q0 + 1)
        out = []
        for pa, pb in zip(a, b):
            if pa[0].startswith("v_permlane"):
                out.append("s_nop 1")
            out += pa + pb
            if pa[0].startswith("v_rcp") or pa[0].startswith("v_permlane"):
                out.append("s_nop 0")
        return out
    sm0 = softmax_pair(0)
    for n in range(16):
        A(s1[n])
        if n >= 4:
            for _ in range(2):
                A(sm0.pop(0))
    for x in sm0:
        A(x)
    for x in softmax_pair(2):
        A(x)
    g.stamp(3)
    A(g.waitvm("v"))
    OA = 128
    VT = 192
    VP1 = 224
    STG = 200

    def vperm(bt, t, dst):
        r = [f"v_accvgpr_read_b32 v{VT+x}, a{A_V+bt*32+x*4+t}" for x in range(8)]
        for e in range(2):
            for p in range(4):
                r.append(f"v_perm_b32 v{dst+e*4+p}, v{VT+2*p+1}, v{VT+2*p}, s{S_PLO if e == 0 else S_PHI}")
        return r
    for x in vperm(0, 0, PERM):
        A(x)
    for t in range(4):
        nxt = vperm(0, t + 1, PERM + ((t + 1) % 2) * 8) if t < 3 else vperm(1, 0, VP1)
        A("s_nop 1") if t == 0 else None
        k = 0
        for e in range(2):
            for qq in range(2):
                A(mfma(vr(OA + qq * 32 + (2 * t + e) * 4), vr(PERM + (t % 2) * 8 + e * 4), vr(PB + qq * 4), "0"))
                for x in nxt[k * 4:k * 4 + 4]:
                    A(x)
                k += 1
        A("s_nop 0")
    for t in range(1, 4):
        for x in vperm(1, t, VP1 + t * 8):
            A(x)
    A(f"v_add_u32 v{V_B}, s{S_KLDS}, v{V_LX}")

    def ocvt(bt, qq):
        r = []
        for u in range(4):
            st = STG + (u % 2) * 4
            for t in range(4):
                r.append(f"v_cvt_pk_bf16_f32 v{st+t}, v{OA+qq*32+(2*t)*4+u}, v{OA+qq*32+(2*t+1)*4+u}")
            r.append(f"ds_write_b128 v{V_B}, {vr(st)} offset:{u*4096+(bt*2+qq)*1024}")
        return r

    def pv1(qq):
        return [mfma(vr(OA + qq * 32 + j * 4), vr(VP1 + j * 4), vr(PB + (2 + qq) * 4), "0") for j in range(8)]
    for x in ocvt(0, 0):
        A(x)
    c = ocvt(0, 1)
    for mm in pv1(0):
        A(mm)
        for _ in range(3):
            if c:
                A(c.pop(0))
    assert not c
    m1 = pv1(1)
    c = ocvt(1, 0)
    for n, mm in enumerate(m1):
        A(mm)
    A("s_waitcnt lgkmcnt(4)")
    for x in c:
        A(x)
    for x in ocvt(1, 1):
        A(x)
    A(f"s_lshl_b32 s{S_T0}, s{S_W}, 10")
    A(f"v_add_u32 v{V_W}, s{S_T0}, v{V_B}")
    for x in range(1, 4):
        A(f"v_xor_b32 v{V_W+x}, {x*1024}, v{V_W}")
    A(g.waitvm("w20"))
    for p in perms(slot_rows(20), 0, PERM):
        A(p)
    A("s_waitcnt lgkmcnt(0)")
    A("s_barrier")
    for x in bread(20):
        A(x)
    A("s_waitcnt lgkmcnt(0)")
    g.stamp(4)

    for s in range(20, 36):
        step(s, s == 20, False, {})
    g.stamp(5)
    ST2 = V_W + 4
    stg = [6, 12]
    outs = []
    A(f"s_lshl_b32 s{S_T0}, s{S_W}, 14")
    A(f"s_add_u32 s{S_T0}, s{S_T0}, s{S_ST}")
    for q in range(4):
        A(f"s_add_u32 s{S_KS+q}, s{S_T0}, {q*4096}")
    for q in range(4):
        for r in range(4):
            st = stg[r % 2]
            for t in range(4):
                outs.append(f"v_cvt_pk_bf16_f32 v{st+t}, v{ACC+q*32+(2*t)*4+r}, v{ACC+q*32+(2*t+1)*4+r}")
            outs.append(("vm", f"buffer_store_dwordx4 {vr(st)}, v{V_LX}, s[{S_WS}:{S_WS+3}], s{S_KS+q} offen offset:{r*1024} {o.pst}", "st"))
    step(36, True, False, {})
    for s in range(37, 40):
        extra = {}
        lo = 22 if (s == 37 and o.spread) else 0
        for k in range(lo, 32):
            if outs:
                extra[k] = [outs.pop(0)]
                if s == 39 and k >= 24 and outs:
                    extra[k].append(outs.pop(0))
        step(s, False, s == 39, extra)
    for x in outs:
        emit(x)
    g.stamp(6)
    for x in range(1, 4):
        A(f"s_xor_b32 s{S_T0}, s{S_W}, {x}")
        A(f"s_mul_i32 s{S_T0}, s{S_T0}, {3*8192}")
        A(f"s_add_u32 s{S_T0}, s{S_T0}, {LDS_R + (x-1)*8192}")
        A(f"v_add_u32 v{V_W+x}, s{S_T0}, v{V_LX}")
    A(f"s_mul_i32 s{S_T0}, s{S_W}, {3*8192}")
    A(f"s_add_u32 s{S_T0}, s{S_T0}, {LDS_R}")
    A(f"v_add_u32 v{V_W}, s{S_T0}, v{V_LX}")
    A("s_nop 7")
    for x in range(1, 4):
        for j in range(8):
            A(f"ds_write_b128 v{V_W+x}, {ar(A_C4+x*32+j*4)} offset:{j*1024}")
        A("s_waitcnt lgkmcnt(6)")
    for n in range(32):
        A(f"v_accvgpr_read_b32 v{ACC+n}, a{A_C4+n}")
    A(f"s_lshl_b32 s{S_T0}, s{S_W}, 12")
    A(f"s_add_u32 s{S_T0}, s{S_T0}, s{S_ST}")
    A(f"s_add_u32 s{S_T0}, s{S_T0}, 65536")
    A("s_waitcnt lgkmcnt(0)")
    A("s_barrier")
    for x in range(3):
        for j in range(8):
            A(f"ds_read_b128 {vr(RING+x*32+j*4)}, v{V_W} offset:{x*8192+j*1024}")
            if x >= 1 and j == 3:
                A("s_waitcnt lgkmcnt(4)")
                for n in range(32):
                    A(f"v_add_f32 v{ACC+n}, v{ACC+n}, v{RING+(x-1)*32+n}")
    A("s_waitcnt lgkmcnt(0)")
    for n in range(32):
        A(f"v_add_f32 v{ACC+n}, v{ACC+n}, v{RING+64+n}")
    for r in range(4):
        st = PERM + r * 4
        for t in range(4):
            A(f"v_cvt_pk_bf16_f32 v{st+t}, v{ACC+(2*t)*4+r}, v{ACC+(2*t+1)*4+r}")
        A(g.vm(f"buffer_store_dwordx4 {vr(st)}, v{V_LX}, s[{S_WS}:{S_WS+3}], s{S_T0} offen offset:{r*1024} {o.pst}", "st"))
    if o.diag:
        g.stamp(7)
        A("s_waitcnt vmcnt(0)")
        g.stamp(8)
        A(f"s_memrealtime s[{S_TS}:{S_TS+1}]")
        A("s_waitcnt lgkmcnt(0)")
        A(f"v_writelane_b32 v{V_TID}, s{S_TS}, 9")
        A(f"s_lshl_b32 s{S_T0}, s2, 2")
        A(f"s_add_u32 s{S_T0}, s{S_T0}, s{S_W}")
        A(f"s_lshl_b32 s{S_T0}, s{S_T0}, 8")
        A(f"s_add_u32 s{S_T0}, s{S_T0}, 0x8000000")
        A(f"v_lshrrev_b32 v{V_TMP}, 2, v{V_LX}")
        A(f"buffer_store_dword v{V_TID}, v{V_TMP}, s[{S_WS}:{S_WS+3}], s{S_T0} offen")
    g.lab("L_main_end")
    A("s_endpgm")


def gen_reduce(g):
    o = g.o
    A = g.A
    K = "reduce_kernel"
    g.L.append(f".globl {K}\n.p2align 8\n.type {K},@function")
    g.lab(K)
    A("s_cmp_ge_u32 s2, 640")
    A("s_cbranch_scc1 L_red_end")
    A("s_load_dwordx2 s[4:5], s[0:1], 80")
    A("s_load_dwordx2 s[8:9], s[0:1], 96")
    A("v_lshrrev_b32 v1, 6, v0")
    A("v_and_b32 v0, 63, v0")
    A("v_readfirstlane_b32 s3, v1")
    A("s_lshl_b32 s12, s2, 2")
    A("s_mov_b32 s6, 2621440")
    A("s_mov_b32 s7, 0x20000")
    A("s_mov_b32 s10, 268435456")
    A("s_mov_b32 s11, 0x20000")
    A("s_add_u32 s12, s12, s3")
    A("s_mul_i32 s13, s12, 52429")
    A("s_lshr_b32 s13, s13, 22")
    A("s_mul_i32 s14, s13, 80")
    A("s_sub_u32 s14, s12, s14")
    A("s_mul_i32 s15, s13, 655360")
    A("s_lshl_b32 s16, s14, 10")
    A("s_add_u32 s15, s15, s16")
    A("v_lshlrev_b32 v1, 4, v0")
    A("s_waitcnt lgkmcnt(0)")
    for h in range(8):
        A(f"buffer_load_dwordx4 {vr(4+h*4)}, v1, s[8:11], s15 offen {o.pld}")
        if h < 7:
            A("s_add_u32 s15, s15, 81920")
    A("s_and_b32 s16, s13, 15")
    A("s_lshl_b32 s16, s16, 2")
    A("s_bfe_u32 s17, s14, 0x20002")
    A("s_add_u32 s16, s16, s17")
    A("s_mul_i32 s16, s16, 40960")
    A("s_lshr_b32 s17, s13, 4")
    A("s_mul_i32 s17, s17, 1280")
    A("s_add_u32 s16, s16, s17")
    A("s_lshr_b32 s17, s14, 4")
    A("s_lshl_b32 s17, s17, 8")
    A("s_add_u32 s16, s16, s17")
    A("s_and_b32 s17, s14, 3")
    A("s_lshl_b32 s17, s17, 4")
    A("s_add_u32 s16, s16, s17")
    A("v_and_b32 v2, 15, v0")
    A("v_lshrrev_b32 v3, 4, v0")
    A("v_mul_u32_u24 v2, 2560, v2")
    A("v_lshl_add_u32 v2, v3, 6, v2")
    A("s_mov_b32 s18, 0xffff0000")
    for h in range(8):
        A(f"s_waitcnt vmcnt({7-h})")
        for t in range(4):
            src = 4 + h * 4 + t
            if h == 0:
                A(f"v_lshlrev_b32 v{40+2*t}, 16, v{src}")
                A(f"v_and_b32 v{41+2*t}, s18, v{src}")
            else:
                A(f"v_lshlrev_b32 v{48+2*t}, 16, v{src}")
                A(f"v_and_b32 v{49+2*t}, s18, v{src}")
        if h:
            for n in range(8):
                A(f"v_add_f32 v{40+n}, v{40+n}, v{48+n}")
    for t in range(4):
        A(f"v_cvt_pk_bf16_f32 v{4+t}, v{40+2*t}, v{41+2*t}")
    A(f"buffer_store_dwordx4 {vr(4)}, v2, s[4:7], s16 offen")
    g.lab("L_red_end")
    A("s_endpgm")


def desc(name, vg, acc, sg):
    return f""".amdhsa_kernel {name}
  .amdhsa_next_free_vgpr {vg}
  .amdhsa_next_free_sgpr {sg}
  .amdhsa_accum_offset {acc}
  .amdhsa_group_segment_fixed_size 0
  .amdhsa_kernarg_size 104
  .amdhsa_user_sgpr_count 2
  .amdhsa_user_sgpr_kernarg_segment_ptr 1
  .amdhsa_system_sgpr_workgroup_id_x 1
.end_amdhsa_kernel"""


def build(o):
    g = Gen(o)
    head = [l.rstrip("\n") for l in open(f"cdna_kernels/{NAME}.s.ref") if l.startswith(";   offset") or l.startswith("; Kernarg")]
    head.append(f"; @launch kernel={NAME}_kernel grid=(256,1,1) block=(256,1,1) lds={LDS_BYTES}")
    head.append(f"; @launch kernel=reduce_kernel grid=(640,1,1) block=(256,1,1) lds=0")
    head.append('.amdgcn_target "amdgcn-amd-amdhsa--gfx950"')
    head.append(".text")
    gen_main(g)
    gen_reduce(g)
    g.lab("L_code_end")
    tail = ['.section .rodata,"a"', ".p2align 6", desc(f"{NAME}_kernel", 512, 256, 102), ".p2align 6", desc("reduce_kernel", 64, 64, 32)]
    return "\n".join(head + g.L + tail) + "\n"


def opts(argv=None):
    p = argparse.ArgumentParser()
    p.add_argument("-o", default=f"cdna_kernels/{NAME}.s")
    p.add_argument("--diag", type=int, default=0)
    p.add_argument("--warm", type=int, default=1)
    p.add_argument("--rot", type=int, default=1)
    p.add_argument("--spread", type=int, default=0)
    p.add_argument("--kv0", type=int, default=0)
    p.add_argument("--kvper", type=int, default=1)
    for k, d in (("px", ""), ("pwq", ""), ("pwo", ""), ("pk", "nt"), ("pv", "nt"), ("pst", "sc1"), ("pld", "")):
        p.add_argument("--" + k, default=d)
    return p.parse_args(argv)


if __name__ == "__main__":
    o = opts()
    open(o.o, "w").write(build(o))
```

```python
import sys, argparse

NAME = "concat_heads__gqa_block_cached__mha_block_cached__near_ridge"

V_TID = 0
V_TMP = 1
V_W = 2
V_B = 10
V_LX = 11
V_KG = 12
V_VG = 13
V_WO0 = 14
V_WO1 = 15
PERM = 16
RING = 32
ACC = 128
A_V = 0
A_B = 64
A_K = 128
A_C4 = 128

S_X, S_K, S_V, S_WQ, S_WO, S_WS = 8, 12, 16, 20, 24, 28
S_W = 3
S_BP = 4
S_HQ = 5
S_T0, S_T1 = 6, 7
S_KS = 32
S_CW = 52
S_CL = 72
S_KV = 88
S_ST = 92
S_PLO, S_PHI = 93, 94
S_WOFF = 95
S_KLDS = 96
S_SC = 97
S_C4U = 98
S_STMP = 99
S_TS = 100
S_G = 95

LDS_O = 0
LDS_X = 65536
LDS_R = 65536
LDS_BYTES = 163840
GFUN = [0, 2, 3, 1]


class Gen:
    def __init__(self, o):
        self.o = o
        self.L = []
        self.vq = []
        self.nstamp = 0

    def A(self, s):
        if s:
            self.L.append("    " + s)

    def lab(self, s):
        self.L.append(s + ":")

    def vm(self, s, tag):
        self.vq.append(tag)
        assert len(self.vq) <= 63, "vmcnt overflow"
        return s

    def waitvm(self, tag):
        idx = max((i for i, t in enumerate(self.vq) if t == tag), default=-1)
        if idx < 0:
            return None
        n = len(self.vq) - 1 - idx
        self.vq = self.vq[idx + 1:]
        return f"s_waitcnt vmcnt({n})"

    def stamp(self, k):
        if not self.o.diag:
            return
        A = self.A
        A(f"{'s_memtime' if self.o.diag == 1 else 's_memrealtime'} s[{S_TS}:{S_TS+1}]")
        A("s_waitcnt lgkmcnt(0)")
        A(f"v_writelane_b32 v{V_TID}, s{S_TS}, {k}")


def mfma(d, a, b, c):
    return f"v_mfma_f32_16x16x32_bf16 {d}, {a}, {b}, {c}"


def vr(n, k=4):
    return f"v[{n}:{n+k-1}]"


def ar(n, k=4):
    return f"a[{n}:{n+k-1}]"


def perms(src_rows, t, dst):
    out = []
    for e in range(2):
        for p in range(4):
            sel = S_PLO if e == 0 else S_PHI
            out.append(f"v_perm_b32 v{dst+e*4+p}, v{src_rows[2*p+1]+t}, v{src_rows[2*p]+t}, s{sel}")
    return out


def slot_rows(s):
    return [RING + (s % 3) * 32 + r * 4 for r in range(8)]


def gen_main(g):
    o = g.o
    A = g.A
    K = f"{NAME}_kernel"
    g.L.append(f".globl {K}\n.p2align 8\n.type {K},@function")
    g.lab(K)
    A("s_cmp_ge_u32 s2, 256")
    A("s_cbranch_scc1 L_main_end")
    if o.diag:
        A(f"{'s_memtime' if o.diag == 1 else 's_memrealtime'} s[54:55]")
    A("s_load_dwordx16 s[32:47], s[0:1], 0")
    A("s_load_dwordx4 s[48:51], s[0:1], 64")
    A("s_load_dwordx2 s[28:29], s[0:1], 96")
    A(f"v_lshrrev_b32 v{V_TMP}, 6, v0")
    A(f"v_and_b32 v0, 63, v0")
    A(f"v_readfirstlane_b32 s{S_W}, v{V_TMP}")
    A(f"s_lshr_b32 s{S_T0}, s2, 3")
    if o.warm:
        A("s_getpc_b64 s[52:53]")
        g.lab("L_pc")
        A(f"s_sub_u32 s52, s52, L_pc-{K}")
        A("s_subb_u32 s53, s53, 0")
        A(f"s_lshl_b32 s{S_T1}, s{S_T0}, 2")
        A(f"s_add_u32 s{S_T1}, s{S_T1}, s{S_W}")
        A(f"s_min_u32 s{S_T1}, s{S_T1}, (L_code_end-{K})/1024-1")
        A(f"s_lshl_b32 s{S_T1}, s{S_T1}, 10")
        A(f"v_lshl_add_u32 v{V_TMP}, v0, 4, s{S_T1}")
        A(g.vm(f"global_load_dwordx4 {vr(PERM)}, v{V_TMP}, s[52:53]", "warm"))
    A(f"s_lshr_b32 s{S_BP}, s{S_T0}, 1")
    A(f"s_and_b32 s{S_T0}, s{S_T0}, 1")
    A(f"s_and_b32 s{S_HQ}, s2, 3")
    A(f"s_lshl_b32 s{S_HQ}, s{S_HQ}, 1")
    A(f"s_add_u32 s{S_HQ}, s{S_HQ}, s{S_T0}")
    vi, vG, vt, vt2 = 20, 21, 22, 23
    A(f"s_movk_i32 s{S_G}, 0x78")
    A(f"v_and_b32 v{vi}, 15, v0")
    A(f"v_lshrrev_b32 v{vG}, 4, v0")
    A(f"v_lshlrev_b32 v{vt}, 1, v{vG}")
    A(f"v_lshrrev_b32 v{vt}, v{vt}, s{S_G}")
    A(f"v_xor_b32 v{vt}, v{vt}, v0")
    A(f"v_and_b32 v{vt}, 3, v{vt}")
    A(f"v_lshlrev_b32 v{vt}, 4, v{vt}")
    A(f"v_lshrrev_b32 v{vt2}, 2, v0")
    A(f"v_mul_u32_u24 v{vt2}, 1280, v{vt2}")
    A(f"v_add_u32 v{V_B}, v{vt}, v{vt2}")
    A(f"v_lshlrev_b32 v{vt}, 4, v{vi}")
    A(f"v_lshl_add_u32 v{V_W}, v{vG}, 16, v{vt}")
    for r in range(1, 8):
        A(f"v_add_u32 v{V_W+r}, {r*8192}, v{V_W}")
    A("s_bitcmp1_b32 s2, 2")
    A("s_waitcnt lgkmcnt(0)")
    if o.diag:
        A(f"s_mov_b32 s{S_TS}, s54")
    for dst, a, b in ((S_X, 32, 42), (S_K, 34, 44), (S_V, 36, 46), (S_WQ, 38, 48), (S_WO, 40, 50)):
        A(f"s_cselect_b32 s{dst}, s{b}, s{a}")
        A(f"s_cselect_b32 s{dst+1}, s{b+1}, s{a+1}")
    for dst, n in ((S_X, 1310720), (S_K, 8388608), (S_V, 8388608), (S_WQ, 5242880), (S_WO, 5242880), (S_WS, 268435456)):
        A(f"s_mov_b32 s{dst+2}, {n}")
        A(f"s_mov_b32 s{dst+3}, 0x20000")
    A(f"s_lshl_b32 s{S_T0}, s{S_BP}, 2")
    A(f"s_add_u32 s{S_T0}, s{S_T0}, s{S_W}")
    A(f"s_mul_i32 s{S_T0}, s{S_T0}, {16*1280}")
    A(f"s_lshl_b32 s{S_T1}, s{S_W}, 10")
    A(f"s_add_u32 m0, s{S_T1}, {LDS_X}")
    A(f"s_mul_i32 s{S_KS}, s{S_BP}, 5")
    A(f"s_lshr_b32 s{S_KS}, s{S_KS}, 2")
    if not o.rot:
        A(f"s_mov_b32 s{S_KS}, 0")
    for ks in range(20):
        A(g.vm(f"buffer_load_dwordx4 v{V_B}, s[{S_X}:{S_X+3}], s{S_T0} offen offset:{ks*64} {o.px} lds", "x"))
        if ks < 19:
            A(f"s_add_u32 m0, m0, {4096-64}")
            A(f"s_add_u32 s{S_KS+ks+1}, s{S_KS+ks}, 1")
            A(f"s_cmp_eq_u32 s{S_KS+ks+1}, 20")
            A(f"s_cselect_b32 s{S_KS+ks+1}, 0, s{S_KS+ks+1}")
    A(f"s_lshl_b32 s{S_T0}, s{S_HQ}, 2")
    A(f"s_add_u32 s{S_T0}, s{S_T0}, s{S_W}")
    A(f"s_lshl_b32 s{S_T1}, s{S_T0}, 8")
    for r in range(8):
        A(f"v_add_u32 v{V_W+r}, s{S_T1}, v{V_W+r}")

    def wload(s, r):
        dst = vr(slot_rows(s)[r])
        if s < 20:
            return g.vm(f"buffer_load_dwordx4 {dst}, v{V_W+r}, s[{S_WQ}:{S_WQ+3}], s{S_WOFF} offen {o.pwq}", f"w{s}")
        v = V_WO0 if r < 4 else V_WO1
        return g.vm(f"buffer_load_dwordx4 {dst}, v{v}, s[{S_WO}:{S_WO+3}], s{S_CW+s-20} offen offset:{(r%4)*1280} {o.pwo}", f"w{s}")

    def wsoff(s):
        return f"s_lshl_b32 s{S_WOFF}, s{S_KS+s}, 18" if s < 20 else None

    for s in range(3):
        A(wsoff(s))
        for r in range(8):
            A(wload(s, r))
    A(f"s_lshl_b32 s{S_KV}, s{S_BP}, 6")
    A(f"s_add_u32 s{S_KV}, s{S_KV}, s{S_T0}")
    A(f"s_lshl_b32 s{S_KV}, s{S_KV}, 13")
    A(f"s_add_u32 s{S_KV+1}, s{S_KV}, 4096")
    A(f"s_add_u32 s{S_KV+2}, s{S_KV}, 262144")
    A(f"s_add_u32 s{S_KV+3}, s{S_KV}, {262144+4096}")
    A(f"s_lshl_b32 s{S_KLDS}, s{S_W}, 14")
    A(f"s_mov_b32 s{S_PLO}, 0x05040100")
    A(f"s_mov_b32 s{S_PHI}, 0x07060302")
    A(f"s_mov_b32 s{S_SC}, 0x3e0293ee")
    A(f"s_mul_i32 s{S_T0}, s{S_HQ}, {512*1280}")
    A(f"s_lshl_b32 s{S_T1}, s{S_W}, 8")
    A(f"s_add_u32 s{S_T1}, s{S_T1}, s{S_T0}")
    for n in range(16):
        if o.rot:
            A(f"s_add_u32 s{S_STMP}, s{S_BP}, {n}")
            A(f"s_and_b32 s{S_STMP}, s{S_STMP}, 15")
        else:
            A(f"s_mov_b32 s{S_STMP}, {n}")
        A(f"s_lshl_b32 s{S_CL+n}, s{S_STMP}, 12")
        A(f"s_and_b32 s{S_C4U}, s{S_STMP}, 3")
        A(f"s_lshr_b32 s{S_STMP}, s{S_STMP}, 2")
        A(f"s_lshl_b32 s{S_STMP}, s{S_STMP}, 4")
        A(f"s_add_u32 s{S_STMP}, s{S_STMP}, s{S_C4U}")
        A(f"s_mul_i32 s{S_STMP}, s{S_STMP}, {8*1280}")
        A(f"s_add_u32 s{S_CW+n}, s{S_STMP}, s{S_T1}")
    A(f"s_mul_i32 s{S_T1}, s{S_W}, {128*1280}")
    A(f"s_add_u32 s{S_T1}, s{S_T1}, s{S_T0}")
    A(f"s_add_u32 s{S_T1}, s{S_T1}, 1024")
    for n in range(4):
        A(f"s_add_u32 s{S_CW+16+n}, s{S_T1}, {n*8*1280}")
    A(f"s_lshr_b32 s{S_T0}, s2, 2")
    A(f"s_and_b32 s{S_T0}, s{S_T0}, 1")
    A(f"s_lshl_b32 s{S_T0}, s{S_T0}, 4")
    A(f"s_add_u32 s{S_T0}, s{S_T0}, s{S_BP}")
    A(f"s_lshl_b32 s{S_T0}, s{S_T0}, 3")
    A(f"s_add_u32 s{S_T0}, s{S_T0}, s{S_HQ}")
    A(f"s_mul_i32 s{S_ST}, s{S_T0}, 81920")
    A(f"v_xor_b32 v{vt}, v{vi}, v{vG}")
    A(f"v_lshlrev_b32 v{vt}, 4, v{vt}")
    A(f"v_lshl_add_u32 v{V_KG}, v{vG}, 8, v{vt}")
    A(f"v_lshlrev_b32 v{vt}, 4, v{vi}")
    A(f"v_lshl_add_u32 v{V_VG}, v{vG}, 10, v{vt}")
    A(f"v_mul_u32_u24 v{V_WO0}, {32*1280}, v{vG}")
    A(f"v_add_u32 v{V_WO0}, v{V_WO0}, v{vt}")
    A(f"v_add_u32 v{V_WO1}, {4*1280}, v{V_WO0}")
    A(f"s_movk_i32 s{S_G}, 0x78")
    A(f"v_lshrrev_b32 v{vt}, 2, v{vi}")
    A(f"v_lshlrev_b32 v{vt}, 1, v{vt}")
    A(f"v_lshrrev_b32 v{vt}, v{vt}, s{S_G}")
    A(f"v_xor_b32 v{vt}, v{vt}, v{vG}")
    A(f"v_and_b32 v{vt}, 3, v{vt}")
    A(f"v_lshlrev_b32 v{vt}, 4, v{vt}")
    A(f"v_lshl_add_u32 v{vt}, v{vi}, 6, v{vt}")
    A(f"v_add_u32 v{V_LX}, {LDS_X}, v{vt}")
    if o.diag:
        A(f"v_mov_b32 v{V_TID}, 0")
        A(f"v_writelane_b32 v{V_TID}, s{S_TS}, 10")
        g.stamp(0)

    def kload(n):
        bt, m = n // 8, n % 8
        ins = []
        if m % 4 == 0:
            ins.append(f"s_add_u32 m0, s{S_KLDS}, {bt*8192 + (m//4)*4096}")
        ins.append(f"v_xor_b32 v{V_TMP}, {GFUN[m%4] << 6}, v{V_KG}")
        ins.append(("vm", f"buffer_load_dwordx4 v{V_TMP}, s[{S_K}:{S_K+3}], s{S_KV+bt*2+m//4} offen offset:{(m%4)*1024} {o.pk} lds", "k"))
        return ins

    def vload(n):
        bt, r = n // 8, n % 8
        return [("vm", f"buffer_load_dwordx4 {ar(A_V+n*4)}, v{V_VG}, s[{S_V}:{S_V+3}], s{S_KV+bt*2+r//4} offen offset:{(r%4)*256} {o.pv}", "v")]

    def bread(s):
        buf = A_B + (s % 2) * 16
        if s < 20:
            ins = [f"v_lshl_add_u32 v{V_B}, s{S_KS+s}, 12, v{V_LX}"]
            ins += [f"ds_read_b128 {ar(buf+q*4)}, v{V_B} offset:{q*1024}" for q in range(4)]
        elif s < 36:
            ins = [f"v_add_u32 v{V_B}, s{S_CL+s-20}, v{V_LX}"]
            ins += [f"ds_read_b128 {ar(buf+q*4)}, v{V_B} offset:{q*1024}" for q in range(4)]
        else:
            ins = [f"ds_read_b128 {ar(buf+q*4)}, v{V_W+q} offset:{(s-36)*4096}" for q in range(4)]
        return ins

    def emit(ins):
        if isinstance(ins, tuple):
            A(g.vm(ins[1], ins[2]))
        elif callable(ins):
            r = ins()
            if r:
                A(r)
        else:
            A(ins)

    def step(s, first, last, extra, preperm=True, prefetchB=True):
        fill = [[] for _ in range(32)]
        rows = slot_rows(s)
        buf = A_B + (s % 2) * 16
        for t in range(3):
            for n, p in enumerate(perms(rows, t + 1, PERM + ((t + 1) % 2) * 8)):
                fill[t * 8 + n].append(p)
        if not last:
            b = bread(s + 1)
            for n, x in enumerate(b):
                fill[1 + n * 2].append(x)
            fill[23].append(lambda: g.waitvm(f"w{s+1}"))
            for n, p in enumerate(perms(slot_rows(s + 1), 0, PERM)):
                fill[24 + n].append(p)
            fill[31].append("s_waitcnt lgkmcnt(0)")
        if s + 3 < 40:
            so = wsoff(s + 3)
            if o.spread:
                if so:
                    fill[22].append(so)
                for r in range(o.spread):
                    fill[24 + r * (8 // o.spread)].append(lambda r=r: wload(s + 3, r))
            else:
                if so:
                    fill[22].append(so)
                for r in range(8):
                    fill[24 + r].append(lambda r=r: wload(s + 3, r))
        if o.spread and s >= 1 and s + 2 < 40 and s != 20:
            rest = list(range(o.spread, 8))
            for n, r in enumerate(rest):
                fill[2 + n * (20 // len(rest))].append(lambda r=r: wload(s + 2, r))
        for k, v in extra.items():
            fill[k] = fill[k] + v
        n = 0
        for t in range(4):
            for e in range(2):
                for q in range(4):
                    j = 2 * t + e
                    if s < 36:
                        d = vr(ACC + q * 32 + j * 4)
                    else:
                        d = ar(A_C4 + q * 32 + j * 4)
                    A(mfma(d, vr(PERM + (t % 2) * 8 + e * 4), ar(buf + q * 4), "0" if first else d))
                    for x in fill[n]:
                        emit(x)
                    n += 1

    A(g.waitvm("x"))
    A("s_barrier")
    for x in bread(0):
        A(x)
    A(g.waitvm("w0"))
    for p in perms(slot_rows(0), 0, PERM):
        A(p)
    A("s_waitcnt lgkmcnt(0)")
    g.stamp(1)
    kvn = 0
    for s in range(20):
        extra = {}
        if o.kv0 <= s and kvn < 16:
            for c in range(o.kvper):
                if kvn < 16:
                    extra.setdefault(10 + c * 6, []).extend(kload(kvn))
                    extra.setdefault(13 + c * 6, []).extend(vload(kvn))
                    kvn += 1
        step(s, s == 0, s == 19, extra)
    assert kvn == 16
    if o.spread:
        for r in range(o.spread, 8):
            A(wload(22, r))
    g.stamp(2)

    vi, vG, vt, KA = 6, 7, 8, 2
    A(f"s_movk_i32 s{S_G}, 0x78")
    A(f"v_lshrrev_b32 v{vG}, 10, v{V_VG}")
    A(f"v_bfe_u32 v{vi}, v{V_VG}, 4, 4")
    A(f"v_lshrrev_b32 v{vt}, 2, v{vi}")
    A(f"v_lshlrev_b32 v{vt}, 1, v{vt}")
    A(f"v_lshrrev_b32 v{vt}, v{vt}, s{S_G}")
    A(f"v_xor_b32 v{vt}, v{vt}, v{vG}")
    A(f"v_and_b32 v{vt}, 3, v{vt}")
    A(f"v_lshlrev_b32 v{vt}, 2, v{vt}")
    A(f"v_and_or_b32 v{vt}, v{vi}, 3, v{vt}")
    A(f"v_lshlrev_b32 v{vt}, 4, v{vt}")
    A(f"v_lshl_add_u32 v{vt}, v{vi}, 8, v{vt}")
    A(f"v_add_u32 v{KA}, s{S_KLDS}, v{vt}")
    for u in range(1, 4):
        A(f"v_xor_b32 v{KA+u}, {u*16}, v{KA}")
    A(f"v_lshlrev_b32 v{V_LX}, 8, v{vG}")
    A(f"v_lshl_add_u32 v{V_LX}, v{vi}, 4, v{V_LX}")
    A(g.waitvm("k"))

    def kread(bt):
        for kb in range(2):
            for u in range(4):
                A(f"ds_read_b128 {ar(A_K+((bt*2+kb)*4+u)*4)}, v{KA+u} offset:{bt*8192+kb*4096}")
    QB = [PERM, 128, 144, 160]
    SA = 176
    cv = []
    for q in range(4):
        c = []
        for t in range(4):
            for u in range(4):
                c.append(f"v_cvt_pk_bf16_f32 v{QB[q]+u*4+t}, v{ACC+q*32+(2*t)*4+u}, v{ACC+q*32+(2*t+1)*4+u}")
        cv.append(c)
    kread(0)
    for x in cv[0]:
        A(x)
    A("s_waitcnt lgkmcnt(4)")
    kread(1)
    for x in cv[1]:
        A(x)
    A("s_waitcnt lgkmcnt(8)")

    def smfma(bt):
        r = []
        for u in range(4):
            for kb in range(2):
                for qq in range(2):
                    d = vr(SA + ((bt * 2 + kb) * 2 + qq) * 4)
                    r.append(mfma(d, ar(A_K + ((bt * 2 + kb) * 4 + u) * 4), vr(QB[bt * 2 + qq] + u * 4), "0" if u == 0 else d))
        return r
    s0 = smfma(0)
    rest = cv[2] + cv[3]
    A("s_nop 1")
    for n in range(16):
        A(s0[n])
        A(rest[2 * n])
        A(rest[2 * n + 1])
    A("s_waitcnt lgkmcnt(0)")
    A("s_nop 1")
    s1 = smfma(1)

    PB = 208
    TM = 224

    def softmax(q):
        bt, qq = q // 2, q % 2
        sv = [SA + ((bt * 2 + kb) * 2 + qq) * 4 + r for kb in range(2) for r in range(4)]
        m, t2 = TM + q * 4, TM + q * 4 + 1
        ph = []
        ph.append([f"v_max3_f32 v{m}, v{sv[0]}, v{sv[1]}, v{sv[2]}",
                   f"v_max3_f32 v{t2}, v{sv[3]}, v{sv[4]}, v{sv[5]}",
                   f"v_max3_f32 v{m}, v{m}, v{sv[6]}, v{sv[7]}",
                   f"v_max_f32 v{m}, v{m}, v{t2}",
                   f"v_mov_b32 v{t2}, v{m}"])
        ph.append([f"v_permlane32_swap_b32 v{m}, v{t2}"])
        ph.append([f"v_max_f32 v{m}, v{m}, v{t2}", f"v_mov_b32 v{t2}, v{m}"])
        ph.append([f"v_permlane16_swap_b32 v{m}, v{t2}"])
        ph.append([f"v_max_f32 v{m}, v{m}, v{t2}", f"v_mul_f32 v{m}, s{S_SC}, v{m}"] +
                  [f"v_fma_f32 v{x}, v{x}, s{S_SC}, -v{m}" for x in sv] +
                  [f"v_exp_f32 v{x}, v{x}" for x in sv])
        ph.append([f"v_add_f32 v{m}, v{sv[0]}, v{sv[1]}", f"v_add_f32 v{t2}, v{sv[2]}, v{sv[3]}",
                   f"v_add_f32 v{m}, v{m}, v{sv[4]}", f"v_add_f32 v{t2}, v{t2}, v{sv[5]}",
                   f"v_add_f32 v{m}, v{m}, v{sv[6]}", f"v_add_f32 v{t2}, v{t2}, v{sv[7]}",
                   f"v_add_f32 v{m}, v{m}, v{t2}", f"v_mov_b32 v{t2}, v{m}"])
        ph.append([f"v_permlane32_swap_b32 v{m}, v{t2}"])
        ph.append([f"v_add_f32 v{m}, v{m}, v{t2}", f"v_mov_b32 v{t2}, v{m}"])
        ph.append([f"v_permlane16_swap_b32 v{m}, v{t2}"])
        ph.append([f"v_add_f32 v{m}, v{m}, v{t2}"])
        ph.append([f"v_rcp_f32 v{m}, v{m}"])
        ph.append([f"v_mul_f32 v{x}, v{x}, v{m}" for x in sv])
        ph.append([f"v_cvt_pk_bf16_f32 v{PB+q*4+p}, v{sv[2*p]}, v{sv[2*p+1]}" for p in range(4)])
        return ph

    def softmax_pair(q0):
        a, b = softmax(q0), softmax(q0 + 1)
        out = []
        for pa, pb in zip(a, b):
            if pa[0].startswith("v_permlane"):
                out.append("s_nop 1")
            out += pa + pb
            if pa[0].startswith("v_rcp") or pa[0].startswith("v_permlane"):
                out.append("s_nop 0")
        return out
    sm0 = softmax_pair(0)
    for n in range(16):
        A(s1[n])
        if n >= 4:
            for _ in range(2):
                A(sm0.pop(0))
    for x in sm0:
        A(x)
    for x in softmax_pair(2):
        A(x)
    g.stamp(3)
    A(g.waitvm("v"))
    OA = 128
    VT = 192
    VP1 = 224
    STG = 200

    def vperm(bt, t, dst):
        r = [f"v_accvgpr_read_b32 v{VT+x}, a{A_V+bt*32+x*4+t}" for x in range(8)]
        for e in range(2):
            for p in range(4):
                r.append(f"v_perm_b32 v{dst+e*4+p}, v{VT+2*p+1}, v{VT+2*p}, s{S_PLO if e == 0 else S_PHI}")
        return r
    for x in vperm(0, 0, PERM):
        A(x)
    for t in range(4):
        nxt = vperm(0, t + 1, PERM + ((t + 1) % 2) * 8) if t < 3 else vperm(1, 0, VP1)
        A("s_nop 1") if t == 0 else None
        k = 0
        for e in range(2):
            for qq in range(2):
                A(mfma(vr(OA + qq * 32 + (2 * t + e) * 4), vr(PERM + (t % 2) * 8 + e * 4), vr(PB + qq * 4), "0"))
                for x in nxt[k * 4:k * 4 + 4]:
                    A(x)
                k += 1
        A("s_nop 0")
    for t in range(1, 4):
        for x in vperm(1, t, VP1 + t * 8):
            A(x)
    A(f"v_add_u32 v{V_B}, s{S_KLDS}, v{V_LX}")

    def ocvt(bt, qq):
        r = []
        for u in range(4):
            st = STG + (u % 2) * 4
            for t in range(4):
                r.append(f"v_cvt_pk_bf16_f32 v{st+t}, v{OA+qq*32+(2*t)*4+u}, v{OA+qq*32+(2*t+1)*4+u}")
            r.append(f"ds_write_b128 v{V_B}, {vr(st)} offset:{u*4096+(bt*2+qq)*1024}")
        return r

    def pv1(qq):
        return [mfma(vr(OA + qq * 32 + j * 4), vr(VP1 + j * 4), vr(PB + (2 + qq) * 4), "0") for j in range(8)]
    for x in ocvt(0, 0):
        A(x)
    c = ocvt(0, 1)
    for mm in pv1(0):
        A(mm)
        for _ in range(3):
            if c:
                A(c.pop(0))
    assert not c
    m1 = pv1(1)
    c = ocvt(1, 0)
    for n, mm in enumerate(m1):
        A(mm)
    A("s_waitcnt lgkmcnt(4)")
    for x in c:
        A(x)
    for x in ocvt(1, 1):
        A(x)
    A(f"s_lshl_b32 s{S_T0}, s{S_W}, 10")
    A(f"v_add_u32 v{V_W}, s{S_T0}, v{V_B}")
    for x in range(1, 4):
        A(f"v_xor_b32 v{V_W+x}, {x*1024}, v{V_W}")
    A(g.waitvm("w20"))
    for p in perms(slot_rows(20), 0, PERM):
        A(p)
    A("s_waitcnt lgkmcnt(0)")
    A("s_barrier")
    for x in bread(20):
        A(x)
    A("s_waitcnt lgkmcnt(0)")
    g.stamp(4)

    for s in range(20, 36):
        step(s, s == 20, False, {})
    g.stamp(5)
    ST2 = V_W + 4
    stg = [6, 12]
    outs = []
    A(f"s_lshl_b32 s{S_T0}, s{S_W}, 14")
    A(f"s_add_u32 s{S_T0}, s{S_T0}, s{S_ST}")
    for q in range(4):
        A(f"s_add_u32 s{S_KS+q}, s{S_T0}, {q*4096}")
    for q in range(4):
        for r in range(4):
            st = stg[r % 2]
            for t in range(4):
                outs.append(f"v_cvt_pk_bf16_f32 v{st+t}, v{ACC+q*32+(2*t)*4+r}, v{ACC+q*32+(2*t+1)*4+r}")
            outs.append(("vm", f"buffer_store_dwordx4 {vr(st)}, v{V_LX}, s[{S_WS}:{S_WS+3}], s{S_KS+q} offen offset:{r*1024} {o.pst}", "st"))
    step(36, True, False, {})
    for s in range(37, 40):
        extra = {}
        lo = 22 if (s == 37 and o.spread) else 0
        for k in range(lo, 32):
            if outs:
                extra[k] = [outs.pop(0)]
                if s == 39 and k >= 24 and outs:
                    extra[k].append(outs.pop(0))
        step(s, False, s == 39, extra)
    for x in outs:
        emit(x)
    g.stamp(6)
    for x in range(1, 4):
        A(f"s_xor_b32 s{S_T0}, s{S_W}, {x}")
        A(f"s_mul_i32 s{S_T0}, s{S_T0}, {3*8192}")
        A(f"s_add_u32 s{S_T0}, s{S_T0}, {LDS_R + (x-1)*8192}")
        A(f"v_add_u32 v{V_W+x}, s{S_T0}, v{V_LX}")
    A(f"s_mul_i32 s{S_T0}, s{S_W}, {3*8192}")
    A(f"s_add_u32 s{S_T0}, s{S_T0}, {LDS_R}")
    A(f"v_add_u32 v{V_W}, s{S_T0}, v{V_LX}")
    A("s_nop 7")
    for x in range(1, 4):
        for j in range(8):
            A(f"ds_write_b128 v{V_W+x}, {ar(A_C4+x*32+j*4)} offset:{j*1024}")
        A("s_waitcnt lgkmcnt(6)")
    for n in range(32):
        A(f"v_accvgpr_read_b32 v{ACC+n}, a{A_C4+n}")
    A(f"s_lshl_b32 s{S_T0}, s{S_W}, 12")
    A(f"s_add_u32 s{S_T0}, s{S_T0}, s{S_ST}")
    A(f"s_add_u32 s{S_T0}, s{S_T0}, 65536")
    A("s_waitcnt lgkmcnt(0)")
    A("s_barrier")
    for x in range(3):
        for j in range(8):
            A(f"ds_read_b128 {vr(RING+x*32+j*4)}, v{V_W} offset:{x*8192+j*1024}")
            if x >= 1 and j == 3:
                A("s_waitcnt lgkmcnt(4)")
                for n in range(32):
                    A(f"v_add_f32 v{ACC+n}, v{ACC+n}, v{RING+(x-1)*32+n}")
    A("s_waitcnt lgkmcnt(0)")
    for n in range(32):
        A(f"v_add_f32 v{ACC+n}, v{ACC+n}, v{RING+64+n}")
    for r in range(4):
        st = PERM + r * 4
        for t in range(4):
            A(f"v_cvt_pk_bf16_f32 v{st+t}, v{ACC+(2*t)*4+r}, v{ACC+(2*t+1)*4+r}")
        A(g.vm(f"buffer_store_dwordx4 {vr(st)}, v{V_LX}, s[{S_WS}:{S_WS+3}], s{S_T0} offen offset:{r*1024} {o.pst}", "st"))
    if o.diag:
        g.stamp(7)
        A("s_waitcnt vmcnt(0)")
        g.stamp(8)
        A(f"s_memrealtime s[{S_TS}:{S_TS+1}]")
        A("s_waitcnt lgkmcnt(0)")
        A(f"v_writelane_b32 v{V_TID}, s{S_TS}, 9")
        A(f"s_lshl_b32 s{S_T0}, s2, 2")
        A(f"s_add_u32 s{S_T0}, s{S_T0}, s{S_W}")
        A(f"s_lshl_b32 s{S_T0}, s{S_T0}, 8")
        A(f"s_add_u32 s{S_T0}, s{S_T0}, 0x8000000")
        A(f"v_lshrrev_b32 v{V_TMP}, 2, v{V_LX}")
        A(f"buffer_store_dword v{V_TID}, v{V_TMP}, s[{S_WS}:{S_WS+3}], s{S_T0} offen")
        if o.diag == 2:
            A("s_load_dwordx2 s[32:33], s[0:1], 88")
            A("v_readlane_b32 s36, v0, 10")
            A("v_readlane_b32 s37, v0, 8")
            A("s_mov_b32 s34, 64")
            A("s_mov_b32 s35, 0x20000")
            A("s_not_b32 s36, s36")
            A("s_not_b32 s37, s37")
            A("v_writelane_b32 v0, s36, 11")
            A("v_writelane_b32 v0, s37, 12")
            A("s_waitcnt lgkmcnt(0)")
            A(f"buffer_atomic_umax v0, v{V_TMP}, s[32:35], 0 offen sc1")
    g.lab("L_main_end")
    A("s_endpgm")


def gen_reduce(g):
    o = g.o
    A = g.A
    K = "reduce_kernel"
    g.L.append(f".globl {K}\n.p2align 8\n.type {K},@function")
    g.lab(K)
    A("s_cmp_ge_u32 s2, 640")
    A("s_cbranch_scc1 L_red_end")
    if o.diag == 2:
        A("s_memrealtime s[20:21]")
    A("s_load_dwordx2 s[4:5], s[0:1], 80")
    A("s_load_dwordx2 s[8:9], s[0:1], 96")
    A("v_lshrrev_b32 v1, 6, v0")
    A("v_and_b32 v0, 63, v0")
    A("v_readfirstlane_b32 s3, v1")
    A("s_lshl_b32 s12, s2, 2")
    A("s_mov_b32 s6, 2621440")
    A("s_mov_b32 s7, 0x20000")
    A("s_mov_b32 s10, 268435456")
    A("s_mov_b32 s11, 0x20000")
    A("s_add_u32 s12, s12, s3")
    A("s_mul_i32 s13, s12, 52429")
    A("s_lshr_b32 s13, s13, 22")
    A("s_mul_i32 s14, s13, 80")
    A("s_sub_u32 s14, s12, s14")
    A("s_mul_i32 s15, s13, 655360")
    A("s_lshl_b32 s16, s14, 10")
    A("s_add_u32 s15, s15, s16")
    A("v_lshlrev_b32 v1, 4, v0")
    A("s_waitcnt lgkmcnt(0)")
    for h in range(8):
        A(f"buffer_load_dwordx4 {vr(4+h*4)}, v1, s[8:11], s15 offen {o.pld}")
        if h < 7:
            A("s_add_u32 s15, s15, 81920")
    A("s_and_b32 s16, s13, 15")
    A("s_lshl_b32 s16, s16, 2")
    A("s_bfe_u32 s17, s14, 0x20002")
    A("s_add_u32 s16, s16, s17")
    A("s_mul_i32 s16, s16, 40960")
    A("s_lshr_b32 s17, s13, 4")
    A("s_mul_i32 s17, s17, 1280")
    A("s_add_u32 s16, s16, s17")
    A("s_lshr_b32 s17, s14, 4")
    A("s_lshl_b32 s17, s17, 8")
    A("s_add_u32 s16, s16, s17")
    A("s_and_b32 s17, s14, 3")
    A("s_lshl_b32 s17, s17, 4")
    A("s_add_u32 s16, s16, s17")
    A("v_and_b32 v2, 15, v0")
    A("v_lshrrev_b32 v3, 4, v0")
    A("v_mul_u32_u24 v2, 2560, v2")
    A("v_lshl_add_u32 v2, v3, 6, v2")
    A("s_mov_b32 s18, 0xffff0000")
    for h in range(8):
        A(f"s_waitcnt vmcnt({7-h})")
        for t in range(4):
            src = 4 + h * 4 + t
            if h == 0:
                A(f"v_lshlrev_b32 v{40+2*t}, 16, v{src}")
                A(f"v_and_b32 v{41+2*t}, s18, v{src}")
            else:
                A(f"v_lshlrev_b32 v{48+2*t}, 16, v{src}")
                A(f"v_and_b32 v{49+2*t}, s18, v{src}")
        if h:
            for n in range(8):
                A(f"v_add_f32 v{40+n}, v{40+n}, v{48+n}")
    for t in range(4):
        A(f"v_cvt_pk_bf16_f32 v{4+t}, v{40+2*t}, v{41+2*t}")
    A(f"buffer_store_dwordx4 {vr(4)}, v2, s[4:7], s16 offen")
    if o.diag == 2:
        A("s_waitcnt vmcnt(0)")
        A("s_memrealtime s[22:23]")
        A("s_load_dwordx2 s[24:25], s[0:1], 88")
        A("s_mov_b32 s26, 64")
        A("s_mov_b32 s27, 0x20000")
        A("s_waitcnt lgkmcnt(0)")
        A("v_mov_b32 v8, 0")
        A("s_not_b32 s21, s20")
        A("v_writelane_b32 v8, s20, 13")
        A("v_writelane_b32 v8, s21, 14")
        A("v_writelane_b32 v8, s22, 15")
        A("v_lshlrev_b32 v9, 2, v0")
        A("buffer_atomic_umax v8, v9, s[24:27], 0 offen sc1")
    g.lab("L_red_end")
    A("s_endpgm")


def desc(name, vg, acc, sg):
    return f""".amdhsa_kernel {name}
  .amdhsa_next_free_vgpr {vg}
  .amdhsa_next_free_sgpr {sg}
  .amdhsa_accum_offset {acc}
  .amdhsa_group_segment_fixed_size 0
  .amdhsa_kernarg_size 104
  .amdhsa_user_sgpr_count 2
  .amdhsa_user_sgpr_kernarg_segment_ptr 1
  .amdhsa_system_sgpr_workgroup_id_x 1
.end_amdhsa_kernel"""


def build(o):
    g = Gen(o)
    head = [l.rstrip("\n") for l in open(f"cdna_kernels/{NAME}.s.ref") if l.startswith(";   offset") or l.startswith("; Kernarg")]
    head.append(f"; @launch kernel={NAME}_kernel grid=(256,1,1) block=(256,1,1) lds={LDS_BYTES}")
    head.append(f"; @launch kernel=reduce_kernel grid=(640,1,1) block=(256,1,1) lds=0")
    head.append('.amdgcn_target "amdgcn-amd-amdhsa--gfx950"')
    head.append(".text")
    gen_main(g)
    gen_reduce(g)
    g.lab("L_code_end")
    tail = ['.section .rodata,"a"', ".p2align 6", desc(f"{NAME}_kernel", 512, 256, 102), ".p2align 6", desc("reduce_kernel", 64, 64, 32)]
    return "\n".join(head + g.L + tail) + "\n"


def opts(argv=None):
    p = argparse.ArgumentParser()
    p.add_argument("-o", default=f"cdna_kernels/{NAME}.s")
    p.add_argument("--diag", type=int, default=0)
    p.add_argument("--warm", type=int, default=1)
    p.add_argument("--rot", type=int, default=1)
    p.add_argument("--spread", type=int, default=0)
    p.add_argument("--kv0", type=int, default=0)
    p.add_argument("--kvper", type=int, default=1)
    for k, d in (("px", ""), ("pwq", ""), ("pwo", ""), ("pk", "nt"), ("pv", "nt"), ("pst", "sc1"), ("pld", "")):
        p.add_argument("--" + k, default=d)
    return p.parse_args(argv)


if __name__ == "__main__":
    o = opts()
    open(o.o, "w").write(build(o))
```

```python
import sys, argparse

NAME = "concat_heads__gqa_block_cached__mha_block_cached__near_ridge"

V_TID = 0
V_TMP = 1
V_W = 2
V_B = 10
V_LX = 11
V_KG = 12
V_VG = 13
V_WO0 = 14
V_WO1 = 15
PERM = 16
RING = 32
ACC = 128
A_V = 0
A_B = 64
A_K = 128
A_C4 = 128

S_X, S_K, S_V, S_WQ, S_WO, S_WS = 8, 12, 16, 20, 24, 28
S_W = 3
S_BP = 4
S_HQ = 5
S_T0, S_T1 = 6, 7
S_KS = 32
S_CW = 52
S_CL = 72
S_KV = 88
S_ST = 92
S_PLO, S_PHI = 93, 94
S_WOFF = 95
S_KLDS = 96
S_SC = 97
S_C4U = 98
S_STMP = 99
S_TS = 100
S_G = 95

LDS_O = 0
LDS_X = 65536
LDS_R = 65536
LDS_BYTES = 163840
GFUN = [0, 2, 3, 1]


class Gen:
    def __init__(self, o):
        self.o = o
        self.L = []
        self.vq = []
        self.nstamp = 0

    def A(self, s):
        if s:
            self.L.append("    " + s)

    def lab(self, s):
        self.L.append(s + ":")

    def vm(self, s, tag):
        self.vq.append(tag)
        assert len(self.vq) <= 63, "vmcnt overflow"
        return s

    def waitvm(self, tag):
        idx = max((i for i, t in enumerate(self.vq) if t == tag), default=-1)
        if idx < 0:
            return None
        n = len(self.vq) - 1 - idx
        self.vq = self.vq[idx + 1:]
        return f"s_waitcnt vmcnt({n})"

    def stamp(self, k):
        if not self.o.diag:
            return
        A = self.A
        A(f"{'s_memtime' if self.o.diag == 1 else 's_memrealtime'} s[{S_TS}:{S_TS+1}]")
        A("s_waitcnt lgkmcnt(0)")
        A(f"v_writelane_b32 v{V_TID}, s{S_TS}, {k}")


def mfma(d, a, b, c):
    return f"v_mfma_f32_16x16x32_bf16 {d}, {a}, {b}, {c}"


def vr(n, k=4):
    return f"v[{n}:{n+k-1}]"


def ar(n, k=4):
    return f"a[{n}:{n+k-1}]"


def perms(src_rows, t, dst):
    out = []
    for e in range(2):
        for p in range(4):
            sel = S_PLO if e == 0 else S_PHI
            out.append(f"v_perm_b32 v{dst+e*4+p}, v{src_rows[2*p+1]+t}, v{src_rows[2*p]+t}, s{sel}")
    return out


def slot_rows(s):
    return [RING + (s % 3) * 32 + r * 4 for r in range(8)]


def gen_main(g):
    o = g.o
    A = g.A
    K = f"{NAME}_kernel"
    g.L.append(f".globl {K}\n.p2align 8\n.type {K},@function")
    g.lab(K)
    A("s_cmp_ge_u32 s2, 256")
    A("s_cbranch_scc1 L_main_end")
    if o.diag:
        A(f"{'s_memtime' if o.diag == 1 else 's_memrealtime'} s[54:55]")
        A(f"s_memrealtime s[56:57]")
    A("s_load_dwordx16 s[32:47], s[0:1], 0")
    A("s_load_dwordx4 s[48:51], s[0:1], 64")
    A("s_load_dwordx2 s[28:29], s[0:1], 96")
    A(f"v_lshrrev_b32 v{V_TMP}, 6, v0")
    A(f"v_and_b32 v0, 63, v0")
    A(f"v_readfirstlane_b32 s{S_W}, v{V_TMP}")
    A(f"s_lshr_b32 s{S_T0}, s2, 3")
    if o.warm:
        A("s_getpc_b64 s[52:53]")
        g.lab("L_pc")
        A(f"s_sub_u32 s52, s52, L_pc-{K}")
        A("s_subb_u32 s53, s53, 0")
        A(f"s_lshl_b32 s{S_T1}, s{S_T0}, 2")
        A(f"s_add_u32 s{S_T1}, s{S_T1}, s{S_W}")
        A(f"s_min_u32 s{S_T1}, s{S_T1}, (L_code_end-{K})/1024-1")
        A(f"s_lshl_b32 s{S_T1}, s{S_T1}, 10")
        A(f"v_lshl_add_u32 v{V_TMP}, v0, 4, s{S_T1}")
        A(g.vm(f"global_load_dwordx4 {vr(PERM)}, v{V_TMP}, s[52:53]", "warm"))
    A(f"s_lshr_b32 s{S_BP}, s{S_T0}, 1")
    A(f"s_and_b32 s{S_T0}, s{S_T0}, 1")
    A(f"s_and_b32 s{S_HQ}, s2, 3")
    A(f"s_lshl_b32 s{S_HQ}, s{S_HQ}, 1")
    A(f"s_add_u32 s{S_HQ}, s{S_HQ}, s{S_T0}")
    vi, vG, vt, vt2 = 20, 21, 22, 23
    A(f"s_movk_i32 s{S_G}, 0x78")
    A(f"v_and_b32 v{vi}, 15, v0")
    A(f"v_lshrrev_b32 v{vG}, 4, v0")
    A(f"v_lshlrev_b32 v{vt}, 1, v{vG}")
    A(f"v_lshrrev_b32 v{vt}, v{vt}, s{S_G}")
    A(f"v_xor_b32 v{vt}, v{vt}, v0")
    A(f"v_and_b32 v{vt}, 3, v{vt}")
    A(f"v_lshlrev_b32 v{vt}, 4, v{vt}")
    A(f"v_lshrrev_b32 v{vt2}, 2, v0")
    A(f"v_mul_u32_u24 v{vt2}, 1280, v{vt2}")
    A(f"v_add_u32 v{V_B}, v{vt}, v{vt2}")
    A(f"v_lshlrev_b32 v{vt}, 4, v{vi}")
    A(f"v_lshl_add_u32 v{V_W}, v{vG}, 16, v{vt}")
    for r in range(1, 8):
        A(f"v_add_u32 v{V_W+r}, {r*8192}, v{V_W}")
    A("s_bitcmp1_b32 s2, 2")
    A("s_waitcnt lgkmcnt(0)")
    if o.diag:
        A(f"s_mov_b32 s{S_TS}, s54")
        A(f"s_mov_b32 s{S_TS+1}, s56")
    for dst, a, b in ((S_X, 32, 42), (S_K, 34, 44), (S_V, 36, 46), (S_WQ, 38, 48), (S_WO, 40, 50)):
        A(f"s_cselect_b32 s{dst}, s{b}, s{a}")
        A(f"s_cselect_b32 s{dst+1}, s{b+1}, s{a+1}")
    for dst, n in ((S_X, 1310720), (S_K, 8388608), (S_V, 8388608), (S_WQ, 5242880), (S_WO, 5242880), (S_WS, 268435456)):
        A(f"s_mov_b32 s{dst+2}, {n}")
        A(f"s_mov_b32 s{dst+3}, 0x20000")
    A(f"s_lshl_b32 s{S_T0}, s{S_BP}, 2")
    A(f"s_add_u32 s{S_T0}, s{S_T0}, s{S_W}")
    A(f"s_mul_i32 s{S_T0}, s{S_T0}, {16*1280}")
    A(f"s_lshl_b32 s{S_T1}, s{S_W}, 10")
    A(f"s_add_u32 m0, s{S_T1}, {LDS_X}")
    A(f"s_mul_i32 s{S_KS}, s{S_BP}, 5")
    A(f"s_lshr_b32 s{S_KS}, s{S_KS}, 2")
    if not o.rot:
        A(f"s_mov_b32 s{S_KS}, 0")
    for ks in range(20):
        A(g.vm(f"buffer_load_dwordx4 v{V_B}, s[{S_X}:{S_X+3}], s{S_T0} offen offset:{ks*64} {o.px} lds", "x"))
        if ks < 19:
            A(f"s_add_u32 m0, m0, {4096-64}")
            A(f"s_add_u32 s{S_KS+ks+1}, s{S_KS+ks}, 1")
            A(f"s_cmp_eq_u32 s{S_KS+ks+1}, 20")
            A(f"s_cselect_b32 s{S_KS+ks+1}, 0, s{S_KS+ks+1}")
    A(f"s_lshl_b32 s{S_T0}, s{S_HQ}, 2")
    A(f"s_add_u32 s{S_T0}, s{S_T0}, s{S_W}")
    A(f"s_lshl_b32 s{S_T1}, s{S_T0}, 8")
    for r in range(8):
        A(f"v_add_u32 v{V_W+r}, s{S_T1}, v{V_W+r}")

    def wload(s, r):
        dst = vr(slot_rows(s)[r])
        if s < 20:
            return g.vm(f"buffer_load_dwordx4 {dst}, v{V_W+r}, s[{S_WQ}:{S_WQ+3}], s{S_WOFF} offen {o.pwq}", f"w{s}")
        v = V_WO0 if r < 4 else V_WO1
        return g.vm(f"buffer_load_dwordx4 {dst}, v{v}, s[{S_WO}:{S_WO+3}], s{S_CW+s-20} offen offset:{(r%4)*1280} {o.pwo}", f"w{s}")

    def wsoff(s):
        return f"s_lshl_b32 s{S_WOFF}, s{S_KS+s}, 18" if s < 20 else None

    for s in range(3):
        A(wsoff(s))
        for r in range(8):
            A(wload(s, r))
    A(f"s_lshl_b32 s{S_KV}, s{S_BP}, 6")
    A(f"s_add_u32 s{S_KV}, s{S_KV}, s{S_T0}")
    A(f"s_lshl_b32 s{S_KV}, s{S_KV}, 13")
    A(f"s_add_u32 s{S_KV+1}, s{S_KV}, 4096")
    A(f"s_add_u32 s{S_KV+2}, s{S_KV}, 262144")
    A(f"s_add_u32 s{S_KV+3}, s{S_KV}, {262144+4096}")
    A(f"s_lshl_b32 s{S_KLDS}, s{S_W}, 14")
    A(f"s_mov_b32 s{S_PLO}, 0x05040100")
    A(f"s_mov_b32 s{S_PHI}, 0x07060302")
    A(f"s_mov_b32 s{S_SC}, 0x3e0293ee")
    A(f"s_mul_i32 s{S_T0}, s{S_HQ}, {512*1280}")
    A(f"s_lshl_b32 s{S_T1}, s{S_W}, 8")
    A(f"s_add_u32 s{S_T1}, s{S_T1}, s{S_T0}")
    for n in range(16):
        if o.rot:
            A(f"s_add_u32 s{S_STMP}, s{S_BP}, {n}")
            A(f"s_and_b32 s{S_STMP}, s{S_STMP}, 15")
        else:
            A(f"s_mov_b32 s{S_STMP}, {n}")
        A(f"s_lshl_b32 s{S_CL+n}, s{S_STMP}, 12")
        A(f"s_and_b32 s{S_C4U}, s{S_STMP}, 3")
        A(f"s_lshr_b32 s{S_STMP}, s{S_STMP}, 2")
        A(f"s_lshl_b32 s{S_STMP}, s{S_STMP}, 4")
        A(f"s_add_u32 s{S_STMP}, s{S_STMP}, s{S_C4U}")
        A(f"s_mul_i32 s{S_STMP}, s{S_STMP}, {8*1280}")
        A(f"s_add_u32 s{S_CW+n}, s{S_STMP}, s{S_T1}")
    A(f"s_mul_i32 s{S_T1}, s{S_W}, {128*1280}")
    A(f"s_add_u32 s{S_T1}, s{S_T1}, s{S_T0}")
    A(f"s_add_u32 s{S_T1}, s{S_T1}, 1024")
    for n in range(4):
        A(f"s_add_u32 s{S_CW+16+n}, s{S_T1}, {n*8*1280}")
    A(f"s_lshr_b32 s{S_T0}, s2, 2")
    A(f"s_and_b32 s{S_T0}, s{S_T0}, 1")
    A(f"s_lshl_b32 s{S_T0}, s{S_T0}, 4")
    A(f"s_add_u32 s{S_T0}, s{S_T0}, s{S_BP}")
    A(f"s_lshl_b32 s{S_T0}, s{S_T0}, 3")
    A(f"s_add_u32 s{S_T0}, s{S_T0}, s{S_HQ}")
    A(f"s_mul_i32 s{S_ST}, s{S_T0}, 81920")
    A(f"v_xor_b32 v{vt}, v{vi}, v{vG}")
    A(f"v_lshlrev_b32 v{vt}, 4, v{vt}")
    A(f"v_lshl_add_u32 v{V_KG}, v{vG}, 8, v{vt}")
    A(f"v_lshlrev_b32 v{vt}, 4, v{vi}")
    A(f"v_lshl_add_u32 v{V_VG}, v{vG}, 10, v{vt}")
    A(f"v_mul_u32_u24 v{V_WO0}, {32*1280}, v{vG}")
    A(f"v_add_u32 v{V_WO0}, v{V_WO0}, v{vt}")
    A(f"v_add_u32 v{V_WO1}, {4*1280}, v{V_WO0}")
    A(f"s_movk_i32 s{S_G}, 0x78")
    A(f"v_lshrrev_b32 v{vt}, 2, v{vi}")
    A(f"v_lshlrev_b32 v{vt}, 1, v{vt}")
    A(f"v_lshrrev_b32 v{vt}, v{vt}, s{S_G}")
    A(f"v_xor_b32 v{vt}, v{vt}, v{vG}")
    A(f"v_and_b32 v{vt}, 3, v{vt}")
    A(f"v_lshlrev_b32 v{vt}, 4, v{vt}")
    A(f"v_lshl_add_u32 v{vt}, v{vi}, 6, v{vt}")
    A(f"v_add_u32 v{V_LX}, {LDS_X}, v{vt}")
    if o.diag:
        A(f"v_mov_b32 v{V_TID}, 0")
        A(f"v_writelane_b32 v{V_TID}, s{S_TS}, 10")
        A(f"v_writelane_b32 v{V_TID}, s{S_TS+1}, 13")
        g.stamp(0)

    def kload(n):
        bt, m = n // 8, n % 8
        ins = []
        if m % 4 == 0:
            ins.append(f"s_add_u32 m0, s{S_KLDS}, {bt*8192 + (m//4)*4096}")
        ins.append(f"v_xor_b32 v{V_TMP}, {GFUN[m%4] << 6}, v{V_KG}")
        ins.append(("vm", f"buffer_load_dwordx4 v{V_TMP}, s[{S_K}:{S_K+3}], s{S_KV+bt*2+m//4} offen offset:{(m%4)*1024} {o.pk} lds", "k"))
        return ins

    def vload(n):
        bt, r = n // 8, n % 8
        return [("vm", f"buffer_load_dwordx4 {ar(A_V+n*4)}, v{V_VG}, s[{S_V}:{S_V+3}], s{S_KV+bt*2+r//4} offen offset:{(r%4)*256} {o.pv}", "v")]

    def bread(s):
        buf = A_B + (s % 2) * 16
        if s < 20:
            ins = [f"v_lshl_add_u32 v{V_B}, s{S_KS+s}, 12, v{V_LX}"]
            ins += [f"ds_read_b128 {ar(buf+q*4)}, v{V_B} offset:{q*1024}" for q in range(4)]
        elif s < 36:
            ins = [f"v_add_u32 v{V_B}, s{S_CL+s-20}, v{V_LX}"]
            ins += [f"ds_read_b128 {ar(buf+q*4)}, v{V_B} offset:{q*1024}" for q in range(4)]
        else:
            ins = [f"ds_read_b128 {ar(buf+q*4)}, v{V_W+q} offset:{(s-36)*4096}" for q in range(4)]
        return ins

    def emit(ins):
        if isinstance(ins, tuple):
            A(g.vm(ins[1], ins[2]))
        elif callable(ins):
            r = ins()
            if r:
                A(r)
        else:
            A(ins)

    def step(s, first, last, extra, preperm=True, prefetchB=True):
        fill = [[] for _ in range(32)]
        rows = slot_rows(s)
        buf = A_B + (s % 2) * 16
        for t in range(3):
            for n, p in enumerate(perms(rows, t + 1, PERM + ((t + 1) % 2) * 8)):
                fill[t * 8 + n].append(p)
        if not last:
            b = bread(s + 1)
            for n, x in enumerate(b):
                fill[1 + n * 2].append(x)
            fill[23].append(lambda: g.waitvm(f"w{s+1}"))
            for n, p in enumerate(perms(slot_rows(s + 1), 0, PERM)):
                fill[24 + n].append(p)
            fill[31].append("s_waitcnt lgkmcnt(0)")
        if s + 3 < 40:
            so = wsoff(s + 3)
            if o.spread:
                if so:
                    fill[22].append(so)
                for r in range(o.spread):
                    fill[24 + r * (8 // o.spread)].append(lambda r=r: wload(s + 3, r))
            else:
                if so:
                    fill[22].append(so)
                for r in range(8):
                    fill[24 + r].append(lambda r=r: wload(s + 3, r))
        if o.spread and s >= 1 and s + 2 < 40 and s != 20:
            rest = list(range(o.spread, 8))
            for n, r in enumerate(rest):
                fill[2 + n * (20 // len(rest))].append(lambda r=r: wload(s + 2, r))
        for k, v in extra.items():
            fill[k] = fill[k] + v
        n = 0
        for t in range(4):
            for e in range(2):
                for q in range(4):
                    j = 2 * t + e
                    if s < 36:
                        d = vr(ACC + q * 32 + j * 4)
                    else:
                        d = ar(A_C4 + q * 32 + j * 4)
                    A(mfma(d, vr(PERM + (t % 2) * 8 + e * 4), ar(buf + q * 4), "0" if first else d))
                    for x in fill[n]:
                        emit(x)
                    n += 1

    A(g.waitvm("x"))
    A("s_barrier")
    for x in bread(0):
        A(x)
    A(g.waitvm("w0"))
    for p in perms(slot_rows(0), 0, PERM):
        A(p)
    A("s_waitcnt lgkmcnt(0)")
    g.stamp(1)
    kvn = 0
    for s in range(20):
        extra = {}
        if o.kv0 <= s and kvn < 16:
            for c in range(o.kvper):
                if kvn < 16:
                    extra.setdefault(10 + c * 6, []).extend(kload(kvn))
                    extra.setdefault(13 + c * 6, []).extend(vload(kvn))
                    kvn += 1
        step(s, s == 0, s == 19, extra)
    assert kvn == 16
    if o.spread:
        for r in range(o.spread, 8):
            A(wload(22, r))
    g.stamp(2)

    vi, vG, vt, KA = 6, 7, 8, 2
    A(f"s_movk_i32 s{S_G}, 0x78")
    A(f"v_lshrrev_b32 v{vG}, 10, v{V_VG}")
    A(f"v_bfe_u32 v{vi}, v{V_VG}, 4, 4")
    A(f"v_lshrrev_b32 v{vt}, 2, v{vi}")
    A(f"v_lshlrev_b32 v{vt}, 1, v{vt}")
    A(f"v_lshrrev_b32 v{vt}, v{vt}, s{S_G}")
    A(f"v_xor_b32 v{vt}, v{vt}, v{vG}")
    A(f"v_and_b32 v{vt}, 3, v{vt}")
    A(f"v_lshlrev_b32 v{vt}, 2, v{vt}")
    A(f"v_and_or_b32 v{vt}, v{vi}, 3, v{vt}")
    A(f"v_lshlrev_b32 v{vt}, 4, v{vt}")
    A(f"v_lshl_add_u32 v{vt}, v{vi}, 8, v{vt}")
    A(f"v_add_u32 v{KA}, s{S_KLDS}, v{vt}")
    for u in range(1, 4):
        A(f"v_xor_b32 v{KA+u}, {u*16}, v{KA}")
    A(f"v_lshlrev_b32 v{V_LX}, 8, v{vG}")
    A(f"v_lshl_add_u32 v{V_LX}, v{vi}, 4, v{V_LX}")
    A(g.waitvm("k"))

    def kread(bt):
        for kb in range(2):
            for u in range(4):
                A(f"ds_read_b128 {ar(A_K+((bt*2+kb)*4+u)*4)}, v{KA+u} offset:{bt*8192+kb*4096}")
    QB = [PERM, 128, 144, 160]
    SA = 176
    cv = []
    for q in range(4):
        c = []
        for t in range(4):
            for u in range(4):
                c.append(f"v_cvt_pk_bf16_f32 v{QB[q]+u*4+t}, v{ACC+q*32+(2*t)*4+u}, v{ACC+q*32+(2*t+1)*4+u}")
        cv.append(c)
    kread(0)
    for x in cv[0]:
        A(x)
    A("s_waitcnt lgkmcnt(4)")
    kread(1)
    for x in cv[1]:
        A(x)
    A("s_waitcnt lgkmcnt(8)")

    def smfma(bt):
        r = []
        for u in range(4):
            for kb in range(2):
                for qq in range(2):
                    d = vr(SA + ((bt * 2 + kb) * 2 + qq) * 4)
                    r.append(mfma(d, ar(A_K + ((bt * 2 + kb) * 4 + u) * 4), vr(QB[bt * 2 + qq] + u * 4), "0" if u == 0 else d))
        return r
    s0 = smfma(0)
    rest = cv[2] + cv[3]
    A("s_nop 1")
    for n in range(16):
        A(s0[n])
        A(rest[2 * n])
        A(rest[2 * n + 1])
    A("s_waitcnt lgkmcnt(0)")
    A("s_nop 1")
    s1 = smfma(1)

    PB = 208
    TM = 224

    def softmax(q):
        bt, qq = q // 2, q % 2
        sv = [SA + ((bt * 2 + kb) * 2 + qq) * 4 + r for kb in range(2) for r in range(4)]
        m, t2 = TM + q * 4, TM + q * 4 + 1
        ph = []
        ph.append([f"v_max3_f32 v{m}, v{sv[0]}, v{sv[1]}, v{sv[2]}",
                   f"v_max3_f32 v{t2}, v{sv[3]}, v{sv[4]}, v{sv[5]}",
                   f"v_max3_f32 v{m}, v{m}, v{sv[6]}, v{sv[7]}",
                   f"v_max_f32 v{m}, v{m}, v{t2}",
                   f"v_mov_b32 v{t2}, v{m}"])
        ph.append([f"v_permlane32_swap_b32 v{m}, v{t2}"])
        ph.append([f"v_max_f32 v{m}, v{m}, v{t2}", f"v_mov_b32 v{t2}, v{m}"])
        ph.append([f"v_permlane16_swap_b32 v{m}, v{t2}"])
        ph.append([f"v_max_f32 v{m}, v{m}, v{t2}", f"v_mul_f32 v{m}, s{S_SC}, v{m}"] +
                  [f"v_fma_f32 v{x}, v{x}, s{S_SC}, -v{m}" for x in sv] +
                  [f"v_exp_f32 v{x}, v{x}" for x in sv])
        ph.append([f"v_add_f32 v{m}, v{sv[0]}, v{sv[1]}", f"v_add_f32 v{t2}, v{sv[2]}, v{sv[3]}",
                   f"v_add_f32 v{m}, v{m}, v{sv[4]}", f"v_add_f32 v{t2}, v{t2}, v{sv[5]}",
                   f"v_add_f32 v{m}, v{m}, v{sv[6]}", f"v_add_f32 v{t2}, v{t2}, v{sv[7]}",
                   f"v_add_f32 v{m}, v{m}, v{t2}", f"v_mov_b32 v{t2}, v{m}"])
        ph.append([f"v_permlane32_swap_b32 v{m}, v{t2}"])
        ph.append([f"v_add_f32 v{m}, v{m}, v{t2}", f"v_mov_b32 v{t2}, v{m}"])
        ph.append([f"v_permlane16_swap_b32 v{m}, v{t2}"])
        ph.append([f"v_add_f32 v{m}, v{m}, v{t2}"])
        ph.append([f"v_rcp_f32 v{m}, v{m}"])
        ph.append([f"v_mul_f32 v{x}, v{x}, v{m}" for x in sv])
        ph.append([f"v_cvt_pk_bf16_f32 v{PB+q*4+p}, v{sv[2*p]}, v{sv[2*p+1]}" for p in range(4)])
        return ph

    def softmax_pair(q0):
        a, b = softmax(q0), softmax(q0 + 1)
        out = []
        for pa, pb in zip(a, b):
            if pa[0].startswith("v_permlane"):
                out.append("s_nop 1")
            out += pa + pb
            if pa[0].startswith("v_rcp") or pa[0].startswith("v_permlane"):
                out.append("s_nop 0")
        return out
    sm0 = softmax_pair(0)
    for n in range(16):
        A(s1[n])
        if n >= 4:
            for _ in range(2):
                A(sm0.pop(0))
    for x in sm0:
        A(x)
    for x in softmax_pair(2):
        A(x)
    g.stamp(3)
    A(g.waitvm("v"))
    OA = 128
    VT = 192
    VP1 = 224
    STG = 200

    def vperm(bt, t, dst):
        r = [f"v_accvgpr_read_b32 v{VT+x}, a{A_V+bt*32+x*4+t}" for x in range(8)]
        for e in range(2):
            for p in range(4):
                r.append(f"v_perm_b32 v{dst+e*4+p}, v{VT+2*p+1}, v{VT+2*p}, s{S_PLO if e == 0 else S_PHI}")
        return r
    for x in vperm(0, 0, PERM):
        A(x)
    for t in range(4):
        nxt = vperm(0, t + 1, PERM + ((t + 1) % 2) * 8) if t < 3 else vperm(1, 0, VP1)
        A("s_nop 1") if t == 0 else None
        k = 0
        for e in range(2):
            for qq in range(2):
                A(mfma(vr(OA + qq * 32 + (2 * t + e) * 4), vr(PERM + (t % 2) * 8 + e * 4), vr(PB + qq * 4), "0"))
                for x in nxt[k * 4:k * 4 + 4]:
                    A(x)
                k += 1
        A("s_nop 0")
    for t in range(1, 4):
        for x in vperm(1, t, VP1 + t * 8):
            A(x)
    A(f"v_add_u32 v{V_B}, s{S_KLDS}, v{V_LX}")

    def ocvt(bt, qq):
        r = []
        for u in range(4):
            st = STG + (u % 2) * 4
            for t in range(4):
                r.append(f"v_cvt_pk_bf16_f32 v{st+t}, v{OA+qq*32+(2*t)*4+u}, v{OA+qq*32+(2*t+1)*4+u}")
            r.append(f"ds_write_b128 v{V_B}, {vr(st)} offset:{u*4096+(bt*2+qq)*1024}")
        return r

    def pv1(qq):
        return [mfma(vr(OA + qq * 32 + j * 4), vr(VP1 + j * 4), vr(PB + (2 + qq) * 4), "0") for j in range(8)]
    for x in ocvt(0, 0):
        A(x)
    c = ocvt(0, 1)
    for mm in pv1(0):
        A(mm)
        for _ in range(3):
            if c:
                A(c.pop(0))
    assert not c
    m1 = pv1(1)
    c = ocvt(1, 0)
    for n, mm in enumerate(m1):
        A(mm)
    A("s_waitcnt lgkmcnt(4)")
    for x in c:
        A(x)
    for x in ocvt(1, 1):
        A(x)
    A(f"s_lshl_b32 s{S_T0}, s{S_W}, 10")
    A(f"v_add_u32 v{V_W}, s{S_T0}, v{V_B}")
    for x in range(1, 4):
        A(f"v_xor_b32 v{V_W+x}, {x*1024}, v{V_W}")
    A(g.waitvm("w20"))
    for p in perms(slot_rows(20), 0, PERM):
        A(p)
    A("s_waitcnt lgkmcnt(0)")
    A("s_barrier")
    for x in bread(20):
        A(x)
    A("s_waitcnt lgkmcnt(0)")
    g.stamp(4)

    for s in range(20, 36):
        step(s, s == 20, False, {})
    g.stamp(5)
    ST2 = V_W + 4
    stg = [6, 12]
    outs = []
    A(f"s_lshl_b32 s{S_T0}, s{S_W}, 14")
    A(f"s_add_u32 s{S_T0}, s{S_T0}, s{S_ST}")
    for q in range(4):
        A(f"s_add_u32 s{S_KS+q}, s{S_T0}, {q*4096}")
    for q in range(4):
        for r in range(4):
            st = stg[r % 2]
            for t in range(4):
                outs.append(f"v_cvt_pk_bf16_f32 v{st+t}, v{ACC+q*32+(2*t)*4+r}, v{ACC+q*32+(2*t+1)*4+r}")
            outs.append(("vm", f"buffer_store_dwordx4 {vr(st)}, v{V_LX}, s[{S_WS}:{S_WS+3}], s{S_KS+q} offen offset:{r*1024} {o.pst}", "st"))
    step(36, True, False, {})
    for s in range(37, 40):
        extra = {}
        lo = 22 if (s == 37 and o.spread) else 0
        for k in range(lo, 32):
            if outs:
                extra[k] = [outs.pop(0)]
                if s == 39 and k >= 24 and outs:
                    extra[k].append(outs.pop(0))
        step(s, False, s == 39, extra)
    for x in outs:
        emit(x)
    g.stamp(6)
    for x in range(1, 4):
        A(f"s_xor_b32 s{S_T0}, s{S_W}, {x}")
        A(f"s_mul_i32 s{S_T0}, s{S_T0}, {3*8192}")
        A(f"s_add_u32 s{S_T0}, s{S_T0}, {LDS_R + (x-1)*8192}")
        A(f"v_add_u32 v{V_W+x}, s{S_T0}, v{V_LX}")
    A(f"s_mul_i32 s{S_T0}, s{S_W}, {3*8192}")
    A(f"s_add_u32 s{S_T0}, s{S_T0}, {LDS_R}")
    A(f"v_add_u32 v{V_W}, s{S_T0}, v{V_LX}")
    A("s_nop 7")
    for x in range(1, 4):
        for j in range(8):
            A(f"ds_write_b128 v{V_W+x}, {ar(A_C4+x*32+j*4)} offset:{j*1024}")
        A("s_waitcnt lgkmcnt(6)")
    for n in range(32):
        A(f"v_accvgpr_read_b32 v{ACC+n}, a{A_C4+n}")
    A(f"s_lshl_b32 s{S_T0}, s{S_W}, 12")
    A(f"s_add_u32 s{S_T0}, s{S_T0}, s{S_ST}")
    A(f"s_add_u32 s{S_T0}, s{S_T0}, 65536")
    A("s_waitcnt lgkmcnt(0)")
    A("s_barrier")
    for x in range(3):
        for j in range(8):
            A(f"ds_read_b128 {vr(RING+x*32+j*4)}, v{V_W} offset:{x*8192+j*1024}")
            if x >= 1 and j == 3:
                A("s_waitcnt lgkmcnt(4)")
                for n in range(32):
                    A(f"v_add_f32 v{ACC+n}, v{ACC+n}, v{RING+(x-1)*32+n}")
    A("s_waitcnt lgkmcnt(0)")
    for n in range(32):
        A(f"v_add_f32 v{ACC+n}, v{ACC+n}, v{RING+64+n}")
    for r in range(4):
        st = PERM + r * 4
        for t in range(4):
            A(f"v_cvt_pk_bf16_f32 v{st+t}, v{ACC+(2*t)*4+r}, v{ACC+(2*t+1)*4+r}")
        A(g.vm(f"buffer_store_dwordx4 {vr(st)}, v{V_LX}, s[{S_WS}:{S_WS+3}], s{S_T0} offen offset:{r*1024} {o.pst}", "st"))
    if o.diag:
        g.stamp(7)
        A("s_waitcnt vmcnt(0)")
        g.stamp(8)
        A(f"s_memrealtime s[{S_TS}:{S_TS+1}]")
        A("s_waitcnt lgkmcnt(0)")
        A(f"v_writelane_b32 v{V_TID}, s{S_TS}, 9")
        A(f"s_lshl_b32 s{S_T0}, s2, 2")
        A(f"s_add_u32 s{S_T0}, s{S_T0}, s{S_W}")
        A(f"s_lshl_b32 s{S_T0}, s{S_T0}, 8")
        A(f"s_add_u32 s{S_T0}, s{S_T0}, 0x8000000")
        A(f"v_lshrrev_b32 v{V_TMP}, 2, v{V_LX}")
        A(f"buffer_store_dword v{V_TID}, v{V_TMP}, s[{S_WS}:{S_WS+3}], s{S_T0} offen")
        if o.diag == 2:
            A("s_load_dwordx2 s[32:33], s[0:1], 88")
            A("v_readlane_b32 s36, v0, 10")
            A("v_readlane_b32 s37, v0, 8")
            A("s_mov_b32 s34, 64")
            A("s_mov_b32 s35, 0x20000")
            A("s_not_b32 s36, s36")
            A("s_not_b32 s37, s37")
            A("v_writelane_b32 v0, s36, 11")
            A("v_writelane_b32 v0, s37, 12")
            A("s_waitcnt lgkmcnt(0)")
            A(f"buffer_atomic_umax v0, v{V_TMP}, s[32:35], 0 offen sc1")
    g.lab("L_main_end")
    A("s_endpgm")


def gen_reduce(g):
    o = g.o
    A = g.A
    K = "reduce_kernel"
    g.L.append(f".globl {K}\n.p2align 8\n.type {K},@function")
    g.lab(K)
    A("s_cmp_ge_u32 s2, 640")
    A("s_cbranch_scc1 L_red_end")
    if o.diag == 2:
        A("s_memrealtime s[20:21]")
    A("s_load_dwordx2 s[4:5], s[0:1], 80")
    A("s_load_dwordx2 s[8:9], s[0:1], 96")
    A("v_lshrrev_b32 v1, 6, v0")
    A("v_and_b32 v0, 63, v0")
    A("v_readfirstlane_b32 s3, v1")
    A("s_lshl_b32 s12, s2, 2")
    A("s_mov_b32 s6, 2621440")
    A("s_mov_b32 s7, 0x20000")
    A("s_mov_b32 s10, 268435456")
    A("s_mov_b32 s11, 0x20000")
    A("s_add_u32 s12, s12, s3")
    A("s_mul_i32 s13, s12, 52429")
    A("s_lshr_b32 s13, s13, 22")
    A("s_mul_i32 s14, s13, 80")
    A("s_sub_u32 s14, s12, s14")
    A("s_mul_i32 s15, s13, 655360")
    A("s_lshl_b32 s16, s14, 10")
    A("s_add_u32 s15, s15, s16")
    A("v_lshlrev_b32 v1, 4, v0")
    A("s_waitcnt lgkmcnt(0)")
    for h in range(8):
        A(f"buffer_load_dwordx4 {vr(4+h*4)}, v1, s[8:11], s15 offen {o.pld}")
        if h < 7:
            A("s_add_u32 s15, s15, 81920")
    A("s_and_b32 s16, s13, 15")
    A("s_lshl_b32 s16, s16, 2")
    A("s_bfe_u32 s17, s14, 0x20002")
    A("s_add_u32 s16, s16, s17")
    A("s_mul_i32 s16, s16, 40960")
    A("s_lshr_b32 s17, s13, 4")
    A("s_mul_i32 s17, s17, 1280")
    A("s_add_u32 s16, s16, s17")
    A("s_lshr_b32 s17, s14, 4")
    A("s_lshl_b32 s17, s17, 8")
    A("s_add_u32 s16, s16, s17")
    A("s_and_b32 s17, s14, 3")
    A("s_lshl_b32 s17, s17, 4")
    A("s_add_u32 s16, s16, s17")
    A("v_and_b32 v2, 15, v0")
    A("v_lshrrev_b32 v3, 4, v0")
    A("v_mul_u32_u24 v2, 2560, v2")
    A("v_lshl_add_u32 v2, v3, 6, v2")
    A("s_mov_b32 s18, 0xffff0000")
    for h in range(8):
        A(f"s_waitcnt vmcnt({7-h})")
        for t in range(4):
            src = 4 + h * 4 + t
            if h == 0:
                A(f"v_lshlrev_b32 v{40+2*t}, 16, v{src}")
                A(f"v_and_b32 v{41+2*t}, s18, v{src}")
            else:
                A(f"v_lshlrev_b32 v{48+2*t}, 16, v{src}")
                A(f"v_and_b32 v{49+2*t}, s18, v{src}")
        if h:
            for n in range(8):
                A(f"v_add_f32 v{40+n}, v{40+n}, v{48+n}")
    for t in range(4):
        A(f"v_cvt_pk_bf16_f32 v{4+t}, v{40+2*t}, v{41+2*t}")
    A(f"buffer_store_dwordx4 {vr(4)}, v2, s[4:7], s16 offen")
    if o.diag == 2:
        A("s_waitcnt vmcnt(0)")
        A("s_memrealtime s[22:23]")
        A("s_load_dwordx2 s[24:25], s[0:1], 88")
        A("s_mov_b32 s26, 64")
        A("s_mov_b32 s27, 0x20000")
        A("s_waitcnt lgkmcnt(0)")
        A("v_mov_b32 v8, 0")
        A("s_not_b32 s21, s20")
        A("v_writelane_b32 v8, s20, 13")
        A("v_writelane_b32 v8, s21, 14")
        A("v_writelane_b32 v8, s22, 15")
        A("v_lshlrev_b32 v9, 2, v0")
        A("buffer_atomic_umax v8, v9, s[24:27], 0 offen sc1")
    g.lab("L_red_end")
    A("s_endpgm")


def desc(name, vg, acc, sg):
    return f""".amdhsa_kernel {name}
  .amdhsa_next_free_vgpr {vg}
  .amdhsa_next_free_sgpr {sg}
  .amdhsa_accum_offset {acc}
  .amdhsa_group_segment_fixed_size 0
  .amdhsa_kernarg_size 104
  .amdhsa_user_sgpr_count 2
  .amdhsa_user_sgpr_kernarg_segment_ptr 1
  .amdhsa_system_sgpr_workgroup_id_x 1
.end_amdhsa_kernel"""


def build(o):
    g = Gen(o)
    head = [l.rstrip("\n") for l in open(f"cdna_kernels/{NAME}.s.ref") if l.startswith(";   offset") or l.startswith("; Kernarg")]
    head.append(f"; @launch kernel={NAME}_kernel grid=(256,1,1) block=(256,1,1) lds={LDS_BYTES}")
    head.append(f"; @launch kernel=reduce_kernel grid=(640,1,1) block=(256,1,1) lds=0")
    for _ in range(o.noop):
        head.append(f"; @launch kernel=noop_kernel grid=(1,1,1) block=(64,1,1) lds=0")
    head.append('.amdgcn_target "amdgcn-amd-amdhsa--gfx950"')
    head.append(".text")
    gen_main(g)
    gen_reduce(g)
    g.lab("L_code_end")
    if o.noop:
        g.L.append(".globl noop_kernel\n.p2align 8\n.type noop_kernel,@function\nnoop_kernel:\n    s_endpgm")
    tail = ['.section .rodata,"a"', ".p2align 6", desc(f"{NAME}_kernel", 512, 256, 102), ".p2align 6", desc("reduce_kernel", 64, 64, 32)]
    if o.noop:
        tail += [".p2align 6", desc("noop_kernel", 64, 64, 32)]
    return "\n".join(head + g.L + tail) + "\n"


def opts(argv=None):
    p = argparse.ArgumentParser()
    p.add_argument("-o", default=f"cdna_kernels/{NAME}.s")
    p.add_argument("--diag", type=int, default=0)
    p.add_argument("--warm", type=int, default=1)
    p.add_argument("--noop", type=int, default=0)
    p.add_argument("--rot", type=int, default=1)
    p.add_argument("--spread", type=int, default=0)
    p.add_argument("--kv0", type=int, default=0)
    p.add_argument("--kvper", type=int, default=1)
    for k, d in (("px", ""), ("pwq", ""), ("pwo", ""), ("pk", "nt"), ("pv", "nt"), ("pst", "sc1"), ("pld", "")):
        p.add_argument("--" + k, default=d)
    return p.parse_args(argv)


if __name__ == "__main__":
    o = opts()
    open(o.o, "w").write(build(o))
```

```python
import sys, argparse

NAME = "concat_heads__gqa_block_cached__mha_block_cached__near_ridge"

V_TID = 0
V_TMP = 1
V_W = 2
V_B = 10
V_LX = 11
V_KG = 12
V_VG = 13
V_WO0 = 14
V_WO1 = 15
PERM = 16
RING = 32
ACC = 128
A_V = 0
A_B = 64
A_K = 128
A_C4 = 128

S_X, S_K, S_V, S_WQ, S_WO, S_WS = 8, 12, 16, 20, 24, 28
S_W = 3
S_BP = 4
S_HQ = 5
S_T0, S_T1 = 6, 7
S_KS = 32
S_CW = 52
S_CL = 72
S_KV = 88
S_ST = 92
S_PLO, S_PHI = 93, 94
S_WOFF = 95
S_KLDS = 96
S_SC = 97
S_C4U = 98
S_STMP = 99
S_TS = 100
S_G = 95

LDS_O = 0
LDS_X = 65536
LDS_R = 65536
LDS_BYTES = 163840
GFUN = [0, 2, 3, 1]


class Gen:
    def __init__(self, o):
        self.o = o
        self.L = []
        self.vq = []
        self.nstamp = 0

    def A(self, s):
        if s:
            self.L.append("    " + s)

    def lab(self, s):
        self.L.append(s + ":")

    def vm(self, s, tag):
        self.vq.append(tag)
        assert len(self.vq) <= 63, "vmcnt overflow"
        return s

    def waitvm(self, tag):
        idx = max((i for i, t in enumerate(self.vq) if t == tag), default=-1)
        if idx < 0:
            return None
        n = len(self.vq) - 1 - idx
        self.vq = self.vq[idx + 1:]
        return f"s_waitcnt vmcnt({n})"

    def stamp(self, k):
        if not self.o.diag:
            return
        A = self.A
        A(f"{'s_memtime' if self.o.diag != 2 else 's_memrealtime'} s[{S_TS}:{S_TS+1}]")
        A("s_waitcnt lgkmcnt(0)")
        A(f"v_writelane_b32 v{V_TID}, s{S_TS}, {k}")


def mfma(d, a, b, c):
    return f"v_mfma_f32_16x16x32_bf16 {d}, {a}, {b}, {c}"


def vr(n, k=4):
    return f"v[{n}:{n+k-1}]"


def ar(n, k=4):
    return f"a[{n}:{n+k-1}]"


def perms(src_rows, t, dst):
    out = []
    for e in range(2):
        for p in range(4):
            sel = S_PLO if e == 0 else S_PHI
            out.append(f"v_perm_b32 v{dst+e*4+p}, v{src_rows[2*p+1]+t}, v{src_rows[2*p]+t}, s{sel}")
    return out


def slot_rows(s):
    return [RING + (s % 3) * 32 + r * 4 for r in range(8)]


def gen_main(g):
    o = g.o
    A = g.A
    K = f"{NAME}_kernel"
    g.L.append(f".globl {K}\n.p2align 8\n.type {K},@function")
    g.lab(K)
    A("s_cmp_ge_u32 s2, 256")
    A("s_cbranch_scc1 L_main_end")
    if o.diag:
        A(f"{'s_memtime' if o.diag != 2 else 's_memrealtime'} s[54:55]")
        A(f"s_memrealtime s[56:57]")
    A("s_load_dwordx16 s[32:47], s[0:1], 0")
    A("s_load_dwordx4 s[48:51], s[0:1], 64")
    A("s_load_dwordx2 s[28:29], s[0:1], 96")
    A(f"v_lshrrev_b32 v{V_TMP}, 6, v0")
    A(f"v_and_b32 v0, 63, v0")
    A(f"v_readfirstlane_b32 s{S_W}, v{V_TMP}")
    A(f"s_lshr_b32 s{S_T0}, s2, 3")
    if o.warm:
        A("s_getpc_b64 s[52:53]")
        g.lab("L_pc")
        A(f"s_sub_u32 s52, s52, L_pc-{K}")
        A("s_subb_u32 s53, s53, 0")
        A(f"s_lshl_b32 s{S_T1}, s{S_T0}, 2")
        A(f"s_add_u32 s{S_T1}, s{S_T1}, s{S_W}")
        A(f"s_min_u32 s{S_T1}, s{S_T1}, (L_code_end-{K})/1024-1")
        A(f"s_lshl_b32 s{S_T1}, s{S_T1}, 10")
        A(f"v_lshl_add_u32 v{V_TMP}, v0, 4, s{S_T1}")
        A(g.vm(f"global_load_dwordx4 {vr(PERM)}, v{V_TMP}, s[52:53]", "warm"))
    A(f"s_lshr_b32 s{S_BP}, s{S_T0}, 1")
    A(f"s_and_b32 s{S_T0}, s{S_T0}, 1")
    A(f"s_and_b32 s{S_HQ}, s2, 3")
    A(f"s_lshl_b32 s{S_HQ}, s{S_HQ}, 1")
    A(f"s_add_u32 s{S_HQ}, s{S_HQ}, s{S_T0}")
    vi, vG, vt, vt2 = 20, 21, 22, 23
    A(f"s_movk_i32 s{S_G}, 0x78")
    A(f"v_and_b32 v{vi}, 15, v0")
    A(f"v_lshrrev_b32 v{vG}, 4, v0")
    A(f"v_lshlrev_b32 v{vt}, 1, v{vG}")
    A(f"v_lshrrev_b32 v{vt}, v{vt}, s{S_G}")
    A(f"v_xor_b32 v{vt}, v{vt}, v0")
    A(f"v_and_b32 v{vt}, 3, v{vt}")
    A(f"v_lshlrev_b32 v{vt}, 4, v{vt}")
    A(f"v_lshrrev_b32 v{vt2}, 2, v0")
    A(f"v_mul_u32_u24 v{vt2}, 1280, v{vt2}")
    A(f"v_add_u32 v{V_B}, v{vt}, v{vt2}")
    A(f"v_lshlrev_b32 v{vt}, 4, v{vi}")
    A(f"v_lshl_add_u32 v{V_W}, v{vG}, 16, v{vt}")
    for r in range(1, 8):
        A(f"v_add_u32 v{V_W+r}, {r*8192}, v{V_W}")
    A("s_bitcmp1_b32 s2, 2")
    A("s_waitcnt lgkmcnt(0)")
    if o.diag:
        A(f"s_mov_b32 s{S_TS}, s54")
        A(f"s_mov_b32 s{S_TS+1}, s56")
    for dst, a, b in ((S_X, 32, 42), (S_K, 34, 44), (S_V, 36, 46), (S_WQ, 38, 48), (S_WO, 40, 50)):
        A(f"s_cselect_b32 s{dst}, s{b}, s{a}")
        A(f"s_cselect_b32 s{dst+1}, s{b+1}, s{a+1}")
    for dst, n in ((S_X, 1310720), (S_K, 8388608), (S_V, 8388608), (S_WQ, 5242880), (S_WO, 5242880), (S_WS, 268435456)):
        A(f"s_mov_b32 s{dst+2}, {n}")
        A(f"s_mov_b32 s{dst+3}, 0x20000")
    A(f"s_lshl_b32 s{S_T0}, s{S_BP}, 2")
    A(f"s_add_u32 s{S_T0}, s{S_T0}, s{S_W}")
    A(f"s_mul_i32 s{S_T0}, s{S_T0}, {16*1280}")
    A(f"s_lshl_b32 s{S_T1}, s{S_W}, 10")
    A(f"s_add_u32 m0, s{S_T1}, {LDS_X}")
    A(f"s_mul_i32 s{S_KS}, s{S_BP}, 5")
    A(f"s_lshr_b32 s{S_KS}, s{S_KS}, 2")
    if not o.rot:
        A(f"s_mov_b32 s{S_KS}, 0")
    for ks in range(20):
        A(g.vm(f"buffer_load_dwordx4 v{V_B}, s[{S_X}:{S_X+3}], s{S_T0} offen offset:{ks*64} {o.px} lds", "x"))
        if ks < 19:
            A(f"s_add_u32 m0, m0, {4096-64}")
            A(f"s_add_u32 s{S_KS+ks+1}, s{S_KS+ks}, 1")
            A(f"s_cmp_eq_u32 s{S_KS+ks+1}, 20")
            A(f"s_cselect_b32 s{S_KS+ks+1}, 0, s{S_KS+ks+1}")
    A(f"s_lshl_b32 s{S_T0}, s{S_HQ}, 2")
    A(f"s_add_u32 s{S_T0}, s{S_T0}, s{S_W}")
    A(f"s_lshl_b32 s{S_T1}, s{S_T0}, 8")
    for r in range(8):
        A(f"v_add_u32 v{V_W+r}, s{S_T1}, v{V_W+r}")

    def wload(s, r):
        dst = vr(slot_rows(s)[r])
        if s < 20:
            return g.vm(f"buffer_load_dwordx4 {dst}, v{V_W+r}, s[{S_WQ}:{S_WQ+3}], s{S_WOFF} offen {o.pwq}", f"w{s}")
        v = V_WO0 if r < 4 else V_WO1
        return g.vm(f"buffer_load_dwordx4 {dst}, v{v}, s[{S_WO}:{S_WO+3}], s{S_CW+s-20} offen offset:{(r%4)*1280} {o.pwo}", f"w{s}")

    def wsoff(s):
        return f"s_lshl_b32 s{S_WOFF}, s{S_KS+s}, 18" if s < 20 else None

    for s in range(3):
        A(wsoff(s))
        for r in range(8):
            A(wload(s, r))
    A(f"s_lshl_b32 s{S_KV}, s{S_BP}, 6")
    A(f"s_add_u32 s{S_KV}, s{S_KV}, s{S_T0}")
    A(f"s_lshl_b32 s{S_KV}, s{S_KV}, 13")
    A(f"s_add_u32 s{S_KV+1}, s{S_KV}, 4096")
    A(f"s_add_u32 s{S_KV+2}, s{S_KV}, 262144")
    A(f"s_add_u32 s{S_KV+3}, s{S_KV}, {262144+4096}")
    A(f"s_lshl_b32 s{S_KLDS}, s{S_W}, 14")
    A(f"s_mov_b32 s{S_PLO}, 0x05040100")
    A(f"s_mov_b32 s{S_PHI}, 0x07060302")
    A(f"s_mov_b32 s{S_SC}, 0x3e0293ee")
    A(f"s_mul_i32 s{S_T0}, s{S_HQ}, {512*1280}")
    A(f"s_lshl_b32 s{S_T1}, s{S_W}, 8")
    A(f"s_add_u32 s{S_T1}, s{S_T1}, s{S_T0}")
    for n in range(16):
        if o.rot:
            A(f"s_add_u32 s{S_STMP}, s{S_BP}, {n}")
            A(f"s_and_b32 s{S_STMP}, s{S_STMP}, 15")
        else:
            A(f"s_mov_b32 s{S_STMP}, {n}")
        A(f"s_lshl_b32 s{S_CL+n}, s{S_STMP}, 12")
        A(f"s_and_b32 s{S_C4U}, s{S_STMP}, 3")
        A(f"s_lshr_b32 s{S_STMP}, s{S_STMP}, 2")
        A(f"s_lshl_b32 s{S_STMP}, s{S_STMP}, 4")
        A(f"s_add_u32 s{S_STMP}, s{S_STMP}, s{S_C4U}")
        A(f"s_mul_i32 s{S_STMP}, s{S_STMP}, {8*1280}")
        A(f"s_add_u32 s{S_CW+n}, s{S_STMP}, s{S_T1}")
    A(f"s_mul_i32 s{S_T1}, s{S_W}, {128*1280}")
    A(f"s_add_u32 s{S_T1}, s{S_T1}, s{S_T0}")
    A(f"s_add_u32 s{S_T1}, s{S_T1}, 1024")
    for n in range(4):
        A(f"s_add_u32 s{S_CW+16+n}, s{S_T1}, {n*8*1280}")
    A(f"s_lshr_b32 s{S_T0}, s2, 2")
    A(f"s_and_b32 s{S_T0}, s{S_T0}, 1")
    A(f"s_lshl_b32 s{S_T0}, s{S_T0}, 4")
    A(f"s_add_u32 s{S_T0}, s{S_T0}, s{S_BP}")
    A(f"s_lshl_b32 s{S_T0}, s{S_T0}, 3")
    A(f"s_add_u32 s{S_T0}, s{S_T0}, s{S_HQ}")
    A(f"s_mul_i32 s{S_ST}, s{S_T0}, 81920")
    A(f"v_xor_b32 v{vt}, v{vi}, v{vG}")
    A(f"v_lshlrev_b32 v{vt}, 4, v{vt}")
    A(f"v_lshl_add_u32 v{V_KG}, v{vG}, 8, v{vt}")
    A(f"v_lshlrev_b32 v{vt}, 4, v{vi}")
    A(f"v_lshl_add_u32 v{V_VG}, v{vG}, 10, v{vt}")
    A(f"v_mul_u32_u24 v{V_WO0}, {32*1280}, v{vG}")
    A(f"v_add_u32 v{V_WO0}, v{V_WO0}, v{vt}")
    A(f"v_add_u32 v{V_WO1}, {4*1280}, v{V_WO0}")
    A(f"s_movk_i32 s{S_G}, 0x78")
    A(f"v_lshrrev_b32 v{vt}, 2, v{vi}")
    A(f"v_lshlrev_b32 v{vt}, 1, v{vt}")
    A(f"v_lshrrev_b32 v{vt}, v{vt}, s{S_G}")
    A(f"v_xor_b32 v{vt}, v{vt}, v{vG}")
    A(f"v_and_b32 v{vt}, 3, v{vt}")
    A(f"v_lshlrev_b32 v{vt}, 4, v{vt}")
    A(f"v_lshl_add_u32 v{vt}, v{vi}, 6, v{vt}")
    A(f"v_add_u32 v{V_LX}, {LDS_X}, v{vt}")
    if o.diag:
        A(f"v_mov_b32 v{V_TID}, 0")
        A(f"v_writelane_b32 v{V_TID}, s{S_TS}, 10")
        A(f"v_writelane_b32 v{V_TID}, s{S_TS+1}, 13")
        g.stamp(0)

    def kload(n):
        bt, m = n // 8, n % 8
        ins = []
        if m % 4 == 0:
            ins.append(f"s_add_u32 m0, s{S_KLDS}, {bt*8192 + (m//4)*4096}")
        ins.append(f"v_xor_b32 v{V_TMP}, {GFUN[m%4] << 6}, v{V_KG}")
        ins.append(("vm", f"buffer_load_dwordx4 v{V_TMP}, s[{S_K}:{S_K+3}], s{S_KV+bt*2+m//4} offen offset:{(m%4)*1024} {o.pk} lds", "k"))
        return ins

    def vload(n):
        bt, r = n // 8, n % 8
        return [("vm", f"buffer_load_dwordx4 {ar(A_V+n*4)}, v{V_VG}, s[{S_V}:{S_V+3}], s{S_KV+bt*2+r//4} offen offset:{(r%4)*256} {o.pv}", "v")]

    def bread(s):
        buf = A_B + (s % 2) * 16
        if s < 20:
            ins = [f"v_lshl_add_u32 v{V_B}, s{S_KS+s}, 12, v{V_LX}"]
            ins += [f"ds_read_b128 {ar(buf+q*4)}, v{V_B} offset:{q*1024}" for q in range(4)]
        elif s < 36:
            ins = [f"v_add_u32 v{V_B}, s{S_CL+s-20}, v{V_LX}"]
            ins += [f"ds_read_b128 {ar(buf+q*4)}, v{V_B} offset:{q*1024}" for q in range(4)]
        else:
            ins = [f"ds_read_b128 {ar(buf+q*4)}, v{V_W+q} offset:{(s-36)*4096}" for q in range(4)]
        return ins

    def emit(ins):
        if isinstance(ins, tuple):
            A(g.vm(ins[1], ins[2]))
        elif callable(ins):
            r = ins()
            if r:
                A(r)
        else:
            A(ins)

    def step(s, first, last, extra, preperm=True, prefetchB=True):
        fill = [[] for _ in range(32)]
        rows = slot_rows(s)
        buf = A_B + (s % 2) * 16
        for t in range(3):
            for n, p in enumerate(perms(rows, t + 1, PERM + ((t + 1) % 2) * 8)):
                fill[t * 8 + n].append(p)
        if not last:
            b = bread(s + 1)
            for n, x in enumerate(b):
                fill[1 + n * 2].append(x)
            fill[23].append(lambda: g.waitvm(f"w{s+1}"))
            for n, p in enumerate(perms(slot_rows(s + 1), 0, PERM)):
                fill[24 + n].append(p)
            fill[31].append("s_waitcnt lgkmcnt(0)")
        if s + 3 < 40:
            so = wsoff(s + 3)
            if o.spread:
                if so:
                    fill[22].append(so)
                for r in range(o.spread):
                    fill[24 + r * (8 // o.spread)].append(lambda r=r: wload(s + 3, r))
            else:
                if so:
                    fill[22].append(so)
                for r in range(8):
                    fill[24 + r].append(lambda r=r: wload(s + 3, r))
        if o.spread and s >= 1 and s + 2 < 40 and s != 20:
            rest = list(range(o.spread, 8))
            for n, r in enumerate(rest):
                fill[2 + n * (20 // len(rest))].append(lambda r=r: wload(s + 2, r))
        for k, v in extra.items():
            fill[k] = fill[k] + v
        n = 0
        for t in range(4):
            for e in range(2):
                for q in range(4):
                    j = 2 * t + e
                    if s < 36:
                        d = vr(ACC + q * 32 + j * 4)
                    else:
                        d = ar(A_C4 + q * 32 + j * 4)
                    A(mfma(d, vr(PERM + (t % 2) * 8 + e * 4), ar(buf + q * 4), "0" if first else d))
                    for x in fill[n]:
                        emit(x)
                    n += 1

    A(g.waitvm("x"))
    A("s_barrier")
    for x in bread(0):
        A(x)
    A(g.waitvm("w0"))
    for p in perms(slot_rows(0), 0, PERM):
        A(p)
    A("s_waitcnt lgkmcnt(0)")
    g.stamp(1)
    kvn = 0
    for s in range(20):
        extra = {}
        if o.kv0 <= s and kvn < 16:
            for c in range(o.kvper):
                if kvn < 16:
                    extra.setdefault(10 + c * 6, []).extend(kload(kvn))
                    extra.setdefault(13 + c * 6, []).extend(vload(kvn))
                    kvn += 1
        step(s, s == 0, s == 19, extra)
    assert kvn == 16
    if o.spread:
        for r in range(o.spread, 8):
            A(wload(22, r))
    g.stamp(2)

    vi, vG, vt, KA = 6, 7, 8, 2
    A(f"s_movk_i32 s{S_G}, 0x78")
    A(f"v_lshrrev_b32 v{vG}, 10, v{V_VG}")
    A(f"v_bfe_u32 v{vi}, v{V_VG}, 4, 4")
    A(f"v_lshrrev_b32 v{vt}, 2, v{vi}")
    A(f"v_lshlrev_b32 v{vt}, 1, v{vt}")
    A(f"v_lshrrev_b32 v{vt}, v{vt}, s{S_G}")
    A(f"v_xor_b32 v{vt}, v{vt}, v{vG}")
    A(f"v_and_b32 v{vt}, 3, v{vt}")
    A(f"v_lshlrev_b32 v{vt}, 2, v{vt}")
    A(f"v_and_or_b32 v{vt}, v{vi}, 3, v{vt}")
    A(f"v_lshlrev_b32 v{vt}, 4, v{vt}")
    A(f"v_lshl_add_u32 v{vt}, v{vi}, 8, v{vt}")
    A(f"v_add_u32 v{KA}, s{S_KLDS}, v{vt}")
    for u in range(1, 4):
        A(f"v_xor_b32 v{KA+u}, {u*16}, v{KA}")
    A(f"v_lshlrev_b32 v{V_LX}, 8, v{vG}")
    A(f"v_lshl_add_u32 v{V_LX}, v{vi}, 4, v{V_LX}")
    A(g.waitvm("k"))

    def kread(bt):
        for kb in range(2):
            for u in range(4):
                A(f"ds_read_b128 {ar(A_K+((bt*2+kb)*4+u)*4)}, v{KA+u} offset:{bt*8192+kb*4096}")
    QB = [PERM, 128, 144, 160]
    SA = 176
    cv = []
    for q in range(4):
        c = []
        for t in range(4):
            for u in range(4):
                c.append(f"v_cvt_pk_bf16_f32 v{QB[q]+u*4+t}, v{ACC+q*32+(2*t)*4+u}, v{ACC+q*32+(2*t+1)*4+u}")
        cv.append(c)
    kread(0)
    for x in cv[0]:
        A(x)
    A("s_waitcnt lgkmcnt(4)")
    kread(1)
    for x in cv[1]:
        A(x)
    A("s_waitcnt lgkmcnt(8)")

    def smfma(bt):
        r = []
        for u in range(4):
            for kb in range(2):
                for qq in range(2):
                    d = vr(SA + ((bt * 2 + kb) * 2 + qq) * 4)
                    r.append(mfma(d, ar(A_K + ((bt * 2 + kb) * 4 + u) * 4), vr(QB[bt * 2 + qq] + u * 4), "0" if u == 0 else d))
        return r
    s0 = smfma(0)
    rest = cv[2] + cv[3]
    A("s_nop 1")
    for n in range(16):
        A(s0[n])
        A(rest[2 * n])
        A(rest[2 * n + 1])
    A("s_waitcnt lgkmcnt(0)")
    A("s_nop 1")
    s1 = smfma(1)

    PB = 208
    TM = 224

    def softmax(q):
        bt, qq = q // 2, q % 2
        sv = [SA + ((bt * 2 + kb) * 2 + qq) * 4 + r for kb in range(2) for r in range(4)]
        m, t2 = TM + q * 4, TM + q * 4 + 1
        ph = []
        ph.append([f"v_max3_f32 v{m}, v{sv[0]}, v{sv[1]}, v{sv[2]}",
                   f"v_max3_f32 v{t2}, v{sv[3]}, v{sv[4]}, v{sv[5]}",
                   f"v_max3_f32 v{m}, v{m}, v{sv[6]}, v{sv[7]}",
                   f"v_max_f32 v{m}, v{m}, v{t2}",
                   f"v_mov_b32 v{t2}, v{m}"])
        ph.append([f"v_permlane32_swap_b32 v{m}, v{t2}"])
        ph.append([f"v_max_f32 v{m}, v{m}, v{t2}", f"v_mov_b32 v{t2}, v{m}"])
        ph.append([f"v_permlane16_swap_b32 v{m}, v{t2}"])
        ph.append([f"v_max_f32 v{m}, v{m}, v{t2}", f"v_mul_f32 v{m}, s{S_SC}, v{m}"] +
                  [f"v_fma_f32 v{x}, v{x}, s{S_SC}, -v{m}" for x in sv] +
                  [f"v_exp_f32 v{x}, v{x}" for x in sv])
        ph.append([f"v_add_f32 v{m}, v{sv[0]}, v{sv[1]}", f"v_add_f32 v{t2}, v{sv[2]}, v{sv[3]}",
                   f"v_add_f32 v{m}, v{m}, v{sv[4]}", f"v_add_f32 v{t2}, v{t2}, v{sv[5]}",
                   f"v_add_f32 v{m}, v{m}, v{sv[6]}", f"v_add_f32 v{t2}, v{t2}, v{sv[7]}",
                   f"v_add_f32 v{m}, v{m}, v{t2}", f"v_mov_b32 v{t2}, v{m}"])
        ph.append([f"v_permlane32_swap_b32 v{m}, v{t2}"])
        ph.append([f"v_add_f32 v{m}, v{m}, v{t2}", f"v_mov_b32 v{t2}, v{m}"])
        ph.append([f"v_permlane16_swap_b32 v{m}, v{t2}"])
        ph.append([f"v_add_f32 v{m}, v{m}, v{t2}"])
        ph.append([f"v_rcp_f32 v{m}, v{m}"])
        ph.append([f"v_mul_f32 v{x}, v{x}, v{m}" for x in sv])
        ph.append([f"v_cvt_pk_bf16_f32 v{PB+q*4+p}, v{sv[2*p]}, v{sv[2*p+1]}" for p in range(4)])
        return ph

    def softmax_pair(q0):
        a, b = softmax(q0), softmax(q0 + 1)
        out = []
        for pa, pb in zip(a, b):
            if pa[0].startswith("v_permlane"):
                out.append("s_nop 1")
            out += pa + pb
            if pa[0].startswith("v_rcp") or pa[0].startswith("v_permlane"):
                out.append("s_nop 0")
        return out
    sm0 = softmax_pair(0)
    for n in range(16):
        A(s1[n])
        if n >= 4:
            for _ in range(2):
                A(sm0.pop(0))
    for x in sm0:
        A(x)
    for x in softmax_pair(2):
        A(x)
    g.stamp(3)
    A(g.waitvm("v"))
    OA = 128
    VT = 192
    VP1 = 224
    STG = 200

    def vperm(bt, t, dst):
        r = [f"v_accvgpr_read_b32 v{VT+x}, a{A_V+bt*32+x*4+t}" for x in range(8)]
        for e in range(2):
            for p in range(4):
                r.append(f"v_perm_b32 v{dst+e*4+p}, v{VT+2*p+1}, v{VT+2*p}, s{S_PLO if e == 0 else S_PHI}")
        return r
    for x in vperm(0, 0, PERM):
        A(x)
    for t in range(4):
        nxt = vperm(0, t + 1, PERM + ((t + 1) % 2) * 8) if t < 3 else vperm(1, 0, VP1)
        A("s_nop 1") if t == 0 else None
        k = 0
        for e in range(2):
            for qq in range(2):
                A(mfma(vr(OA + qq * 32 + (2 * t + e) * 4), vr(PERM + (t % 2) * 8 + e * 4), vr(PB + qq * 4), "0"))
                for x in nxt[k * 4:k * 4 + 4]:
                    A(x)
                k += 1
        A("s_nop 0")
    for t in range(1, 4):
        for x in vperm(1, t, VP1 + t * 8):
            A(x)
    A(f"v_add_u32 v{V_B}, s{S_KLDS}, v{V_LX}")

    def ocvt(bt, qq):
        r = []
        for u in range(4):
            st = STG + (u % 2) * 4
            for t in range(4):
                r.append(f"v_cvt_pk_bf16_f32 v{st+t}, v{OA+qq*32+(2*t)*4+u}, v{OA+qq*32+(2*t+1)*4+u}")
            r.append(f"ds_write_b128 v{V_B}, {vr(st)} offset:{u*4096+(bt*2+qq)*1024}")
        return r

    def pv1(qq):
        return [mfma(vr(OA + qq * 32 + j * 4), vr(VP1 + j * 4), vr(PB + (2 + qq) * 4), "0") for j in range(8)]
    for x in ocvt(0, 0):
        A(x)
    c = ocvt(0, 1)
    for mm in pv1(0):
        A(mm)
        for _ in range(3):
            if c:
                A(c.pop(0))
    assert not c
    m1 = pv1(1)
    c = ocvt(1, 0)
    for n, mm in enumerate(m1):
        A(mm)
    A("s_waitcnt lgkmcnt(4)")
    for x in c:
        A(x)
    for x in ocvt(1, 1):
        A(x)
    A(f"s_lshl_b32 s{S_T0}, s{S_W}, 10")
    A(f"v_add_u32 v{V_W}, s{S_T0}, v{V_B}")
    for x in range(1, 4):
        A(f"v_xor_b32 v{V_W+x}, {x*1024}, v{V_W}")
    A(g.waitvm("w20"))
    for p in perms(slot_rows(20), 0, PERM):
        A(p)
    A("s_waitcnt lgkmcnt(0)")
    A("s_barrier")
    for x in bread(20):
        A(x)
    A("s_waitcnt lgkmcnt(0)")
    g.stamp(4)

    for s in range(20, 36):
        step(s, s == 20, False, {})
    g.stamp(5)
    ST2 = V_W + 4
    stg = [6, 12]
    outs = []
    A(f"s_lshl_b32 s{S_T0}, s{S_W}, 14")
    A(f"s_add_u32 s{S_T0}, s{S_T0}, s{S_ST}")
    for q in range(4):
        A(f"s_add_u32 s{S_KS+q}, s{S_T0}, {q*4096}")
    for q in range(4):
        for r in range(4):
            st = stg[r % 2]
            for t in range(4):
                outs.append(f"v_cvt_pk_bf16_f32 v{st+t}, v{ACC+q*32+(2*t)*4+r}, v{ACC+q*32+(2*t+1)*4+r}")
            outs.append(("vm", f"buffer_store_dwordx4 {vr(st)}, v{V_LX}, s[{S_WS}:{S_WS+3}], s{S_KS+q} offen offset:{r*1024} {o.pst}", "st"))
    step(36, True, False, {})
    for s in range(37, 40):
        extra = {}
        lo = 22 if (s == 37 and o.spread) else 0
        for k in range(lo, 32):
            if outs:
                extra[k] = [outs.pop(0)]
                if s == 39 and k >= 24 and outs:
                    extra[k].append(outs.pop(0))
        step(s, False, s == 39, extra)
    for x in outs:
        emit(x)
    g.stamp(6)
    for x in range(1, 4):
        A(f"s_xor_b32 s{S_T0}, s{S_W}, {x}")
        A(f"s_mul_i32 s{S_T0}, s{S_T0}, {3*8192}")
        A(f"s_add_u32 s{S_T0}, s{S_T0}, {LDS_R + (x-1)*8192}")
        A(f"v_add_u32 v{V_W+x}, s{S_T0}, v{V_LX}")
    A(f"s_mul_i32 s{S_T0}, s{S_W}, {3*8192}")
    A(f"s_add_u32 s{S_T0}, s{S_T0}, {LDS_R}")
    A(f"v_add_u32 v{V_W}, s{S_T0}, v{V_LX}")
    A("s_nop 7")
    for x in range(1, 4):
        for j in range(8):
            A(f"ds_write_b128 v{V_W+x}, {ar(A_C4+x*32+j*4)} offset:{j*1024}")
        A("s_waitcnt lgkmcnt(6)")
    for n in range(32):
        A(f"v_accvgpr_read_b32 v{ACC+n}, a{A_C4+n}")
    A(f"s_lshl_b32 s{S_T0}, s{S_W}, 12")
    A(f"s_add_u32 s{S_T0}, s{S_T0}, s{S_ST}")
    A(f"s_add_u32 s{S_T0}, s{S_T0}, 65536")
    A("s_waitcnt lgkmcnt(0)")
    A("s_barrier")
    for x in range(3):
        for j in range(8):
            A(f"ds_read_b128 {vr(RING+x*32+j*4)}, v{V_W} offset:{x*8192+j*1024}")
            if x >= 1 and j == 3:
                A("s_waitcnt lgkmcnt(4)")
                for n in range(32):
                    A(f"v_add_f32 v{ACC+n}, v{ACC+n}, v{RING+(x-1)*32+n}")
    A("s_waitcnt lgkmcnt(0)")
    for n in range(32):
        A(f"v_add_f32 v{ACC+n}, v{ACC+n}, v{RING+64+n}")
    for r in range(4):
        st = PERM + r * 4
        for t in range(4):
            A(f"v_cvt_pk_bf16_f32 v{st+t}, v{ACC+(2*t)*4+r}, v{ACC+(2*t+1)*4+r}")
        A(g.vm(f"buffer_store_dwordx4 {vr(st)}, v{V_LX}, s[{S_WS}:{S_WS+3}], s{S_T0} offen offset:{r*1024} {o.pst}", "st"))
    if o.diag:
        g.stamp(7)
        A("s_waitcnt vmcnt(0)")
        g.stamp(8)
        A(f"s_memrealtime s[{S_TS}:{S_TS+1}]")
        A("s_waitcnt lgkmcnt(0)")
        A(f"v_writelane_b32 v{V_TID}, s{S_TS}, 9")
        A(f"s_lshl_b32 s{S_T0}, s2, 2")
        A(f"s_add_u32 s{S_T0}, s{S_T0}, s{S_W}")
        A(f"s_lshl_b32 s{S_T0}, s{S_T0}, 8")
        A(f"s_add_u32 s{S_T0}, s{S_T0}, 0x8000000")
        A(f"v_lshrrev_b32 v{V_TMP}, 2, v{V_LX}")
        A(f"buffer_store_dword v{V_TID}, v{V_TMP}, s[{S_WS}:{S_WS+3}], s{S_T0} offen")
        if o.diag == 2:
            A("s_load_dwordx2 s[32:33], s[0:1], 88")
            A("v_readlane_b32 s36, v0, 10")
            A("v_readlane_b32 s37, v0, 8")
            A("s_mov_b32 s34, 64")
            A("s_mov_b32 s35, 0x20000")
            A("s_not_b32 s36, s36")
            A("s_not_b32 s37, s37")
            A("v_writelane_b32 v0, s36, 11")
            A("v_writelane_b32 v0, s37, 12")
            A("s_waitcnt lgkmcnt(0)")
            A(f"buffer_atomic_umax v0, v{V_TMP}, s[32:35], 0 offen sc1")
    g.lab("L_main_end")
    A("s_endpgm")


def gen_reduce(g):
    o = g.o
    A = g.A
    K = "reduce_kernel"
    g.L.append(f".globl {K}\n.p2align 8\n.type {K},@function")
    g.lab(K)
    A("s_cmp_ge_u32 s2, 640")
    A("s_cbranch_scc1 L_red_end")
    if o.diag >= 2:
        A("s_memrealtime s[20:21]")
    A("s_load_dwordx2 s[4:5], s[0:1], 80")
    A("s_load_dwordx2 s[8:9], s[0:1], 96")
    A("v_lshrrev_b32 v1, 6, v0")
    A("v_and_b32 v0, 63, v0")
    A("v_readfirstlane_b32 s3, v1")
    A("s_lshl_b32 s12, s2, 2")
    A("s_mov_b32 s6, 2621440")
    A("s_mov_b32 s7, 0x20000")
    A("s_mov_b32 s10, 268435456")
    A("s_mov_b32 s11, 0x20000")
    A("s_add_u32 s12, s12, s3")
    A("s_mul_i32 s13, s12, 52429")
    A("s_lshr_b32 s13, s13, 22")
    A("s_mul_i32 s14, s13, 80")
    A("s_sub_u32 s14, s12, s14")
    A("s_mul_i32 s15, s13, 655360")
    A("s_lshl_b32 s16, s14, 10")
    A("s_add_u32 s15, s15, s16")
    A("v_lshlrev_b32 v1, 4, v0")
    A("s_waitcnt lgkmcnt(0)")
    for h in range(8):
        A(f"buffer_load_dwordx4 {vr(4+h*4)}, v1, s[8:11], s15 offen {o.pld}")
        if h < 7:
            A("s_add_u32 s15, s15, 81920")
    A("s_and_b32 s16, s13, 15")
    A("s_lshl_b32 s16, s16, 2")
    A("s_bfe_u32 s17, s14, 0x20002")
    A("s_add_u32 s16, s16, s17")
    A("s_mul_i32 s16, s16, 40960")
    A("s_lshr_b32 s17, s13, 4")
    A("s_mul_i32 s17, s17, 1280")
    A("s_add_u32 s16, s16, s17")
    A("s_lshr_b32 s17, s14, 4")
    A("s_lshl_b32 s17, s17, 8")
    A("s_add_u32 s16, s16, s17")
    A("s_and_b32 s17, s14, 3")
    A("s_lshl_b32 s17, s17, 4")
    A("s_add_u32 s16, s16, s17")
    A("v_and_b32 v2, 15, v0")
    A("v_lshrrev_b32 v3, 4, v0")
    A("v_mul_u32_u24 v2, 2560, v2")
    A("v_lshl_add_u32 v2, v3, 6, v2")
    A("s_mov_b32 s18, 0xffff0000")
    for h in range(8):
        A(f"s_waitcnt vmcnt({7-h})")
        for t in range(4):
            src = 4 + h * 4 + t
            if h == 0:
                A(f"v_lshlrev_b32 v{40+2*t}, 16, v{src}")
                A(f"v_and_b32 v{41+2*t}, s18, v{src}")
            else:
                A(f"v_lshlrev_b32 v{48+2*t}, 16, v{src}")
                A(f"v_and_b32 v{49+2*t}, s18, v{src}")
        if h:
            for n in range(8):
                A(f"v_add_f32 v{40+n}, v{40+n}, v{48+n}")
    for t in range(4):
        A(f"v_cvt_pk_bf16_f32 v{4+t}, v{40+2*t}, v{41+2*t}")
    A(f"buffer_store_dwordx4 {vr(4)}, v2, s[4:7], s16 offen")
    if o.diag == 2:
        A("s_waitcnt vmcnt(0)")
        A("s_memrealtime s[22:23]")
        A("s_load_dwordx2 s[24:25], s[0:1], 88")
        A("s_mov_b32 s26, 64")
        A("s_mov_b32 s27, 0x20000")
        A("s_waitcnt lgkmcnt(0)")
        A("v_mov_b32 v8, 0")
        A("s_not_b32 s21, s20")
        A("v_writelane_b32 v8, s20, 13")
        A("v_writelane_b32 v8, s21, 14")
        A("v_writelane_b32 v8, s22, 15")
        A("v_lshlrev_b32 v9, 2, v0")
        A("buffer_atomic_umax v8, v9, s[24:27], 0 offen sc1")
    if o.diag == 3:
        A("s_cmp_lg_u32 s12, 2000")
        A("s_cbranch_scc1 L_red_end")
        A("s_waitcnt vmcnt(0)")
        A("s_memrealtime s[22:23]")
        A("s_load_dwordx2 s[24:25], s[0:1], 88")
        A("s_mov_b32 s26, 64")
        A("s_mov_b32 s27, 0x20000")
        A("v_lshlrev_b32 v9, 2, v0")
        A(f"s_mov_b32 s15, {0x8000000 + o.sel*256}")
        A("buffer_load_dword v8, v9, s[8:11], s15 offen sc1")
        A("s_waitcnt vmcnt(0) lgkmcnt(0)")
        A("v_writelane_b32 v8, s20, 14")
        A("v_writelane_b32 v8, s22, 15")
        A("buffer_store_dword v8, v9, s[24:27], 0 offen")
    g.lab("L_red_end")
    A("s_endpgm")


def desc(name, vg, acc, sg):
    return f""".amdhsa_kernel {name}
  .amdhsa_next_free_vgpr {vg}
  .amdhsa_next_free_sgpr {sg}
  .amdhsa_accum_offset {acc}
  .amdhsa_group_segment_fixed_size 0
  .amdhsa_kernarg_size 104
  .amdhsa_user_sgpr_count 2
  .amdhsa_user_sgpr_kernarg_segment_ptr 1
  .amdhsa_system_sgpr_workgroup_id_x 1
.end_amdhsa_kernel"""


def build(o):
    g = Gen(o)
    head = [l.rstrip("\n") for l in open(f"cdna_kernels/{NAME}.s.ref") if l.startswith(";   offset") or l.startswith("; Kernarg")]
    head.append(f"; @launch kernel={NAME}_kernel grid=(256,1,1) block=(256,1,1) lds={LDS_BYTES}")
    head.append(f"; @launch kernel=reduce_kernel grid=(640,1,1) block=(256,1,1) lds=0")
    for _ in range(o.noop):
        head.append(f"; @launch kernel=noop_kernel grid=(1,1,1) block=(64,1,1) lds=0")
    head.append('.amdgcn_target "amdgcn-amd-amdhsa--gfx950"')
    head.append(".text")
    gen_main(g)
    gen_reduce(g)
    g.lab("L_code_end")
    if o.noop:
        g.L.append(".globl noop_kernel\n.p2align 8\n.type noop_kernel,@function\nnoop_kernel:\n    s_endpgm")
    tail = ['.section .rodata,"a"', ".p2align 6", desc(f"{NAME}_kernel", 512, 256, 102), ".p2align 6", desc("reduce_kernel", 64, 64, 32)]
    if o.noop:
        tail += [".p2align 6", desc("noop_kernel", 64, 64, 32)]
    return "\n".join(head + g.L + tail) + "\n"


def opts(argv=None):
    p = argparse.ArgumentParser()
    p.add_argument("-o", default=f"cdna_kernels/{NAME}.s")
    p.add_argument("--diag", type=int, default=0)
    p.add_argument("--warm", type=int, default=1)
    p.add_argument("--noop", type=int, default=0)
    p.add_argument("--sel", type=int, default=401)
    p.add_argument("--rot", type=int, default=1)
    p.add_argument("--spread", type=int, default=0)
    p.add_argument("--kv0", type=int, default=0)
    p.add_argument("--kvper", type=int, default=1)
    for k, d in (("px", ""), ("pwq", ""), ("pwo", ""), ("pk", "nt"), ("pv", "nt"), ("pst", "sc1"), ("pld", "")):
        p.add_argument("--" + k, default=d)
    return p.parse_args(argv)


if __name__ == "__main__":
    o = opts()
    open(o.o, "w").write(build(o))
```

```python
import sys, argparse

NAME = "concat_heads__gqa_block_cached__mha_block_cached__near_ridge"

V_TID = 0
V_TMP = 1
V_W = 2
V_B = 10
V_LX = 11
V_KG = 12
V_VG = 13
V_WO0 = 14
V_WO1 = 15
PERM = 16
RING = 32
ACC = 128
A_V = 0
A_B = 64
A_K = 128
A_C4 = 128

S_X, S_K, S_V, S_WQ, S_WO, S_WS = 8, 12, 16, 20, 24, 28
S_W = 3
S_BP = 4
S_HQ = 5
S_T0, S_T1 = 6, 7
S_KS = 32
S_CW = 52
S_XC = 72
S_KV = 8
S_CL = 95
S_ST = 92
S_PLO, S_PHI = 93, 94
S_KLDS = 96
S_SC = 97
S_C4U = 98
S_GRP = 7
S_STMP = 99
S_TS = 100
S_G = 95

LDS_O = 0
LDS_X = 65536
LDS_R = 65536
LDS_BYTES = 163840
GFUN = [0, 2, 3, 1]


class Gen:
    def __init__(self, o):
        self.o = o
        self.L = []
        self.ng = o.ng
        self.vq = [[] for _ in range(self.ng)]
        self.nlab = 0

    def A(self, s):
        if s:
            self.L.append("    " + s)

    def lab(self, s):
        self.L.append(s + ":")

    def vm(self, s, tag, grp=None):
        for k, q in enumerate(self.vq):
            if grp is None or grp == k:
                q.append(tag)
                assert len(q) <= 63, "vmcnt overflow"
        return s

    def waitvm(self, tag):
        ns = []
        for k, q in enumerate(self.vq):
            idx = max((i for i, t in enumerate(q) if t == tag), default=-1)
            ns.append(None if idx < 0 else len(q) - 1 - idx)
            self.vq[k] = q[idx + 1:]
        vals = sorted(set(n for n in ns if n is not None))
        if not vals:
            return None
        lo = vals[0]
        big = [k for k, n in enumerate(ns) if n is not None and n > lo]
        if len(big) != 1:
            return f"s_waitcnt vmcnt({lo})"
        self.nlab += 1
        return (f"s_cmp_eq_u32 s{S_GRP}, {big[0]}\n    s_cbranch_scc1 L_w{self.nlab}\n    s_waitcnt vmcnt({lo})\n"
                f"L_w{self.nlab}:\n    s_waitcnt vmcnt({ns[big[0]]})")

    def stamp(self, k):
        if not self.o.diag:
            return
        A = self.A
        A(f"{'s_memtime' if self.o.diag != 2 else 's_memrealtime'} s[{S_TS}:{S_TS+1}]")
        A("s_waitcnt lgkmcnt(0)")
        A(f"v_writelane_b32 v{V_TID}, s{S_TS}, {k}")


def mfma(d, a, b, c):
    return f"v_mfma_f32_16x16x32_bf16 {d}, {a}, {b}, {c}"


def vr(n, k=4):
    return f"v[{n}:{n+k-1}]"


def ar(n, k=4):
    return f"a[{n}:{n+k-1}]"


def perms(src_rows, t, dst):
    out = []
    for e in range(2):
        for p in range(4):
            sel = S_PLO if e == 0 else S_PHI
            out.append(f"v_perm_b32 v{dst+e*4+p}, v{src_rows[2*p+1]+t}, v{src_rows[2*p]+t}, s{sel}")
    return out


def slot_rows(s):
    return [RING + (s % 3) * 32 + r * 4 for r in range(8)]


def gen_main(g):
    o = g.o
    A = g.A
    K = f"{NAME}_kernel"
    g.L.append(f".globl {K}\n.p2align 8\n.type {K},@function")
    g.lab(K)
    A("s_cmp_ge_u32 s2, 256")
    A("s_cbranch_scc1 L_main_end")
    if o.diag:
        A(f"{'s_memtime' if o.diag != 2 else 's_memrealtime'} s[54:55]")
        A(f"s_memrealtime s[56:57]")
    A("s_load_dwordx16 s[32:47], s[0:1], 0")
    A("s_load_dwordx4 s[48:51], s[0:1], 64")
    A("s_load_dwordx2 s[28:29], s[0:1], 96")
    A(f"v_lshrrev_b32 v{V_TMP}, 6, v0")
    A(f"v_and_b32 v0, 63, v0")
    A(f"v_readfirstlane_b32 s{S_W}, v{V_TMP}")
    A(f"s_lshr_b32 s{S_T0}, s2, 3")
    if o.warm:
        A("s_getpc_b64 s[52:53]")
        g.lab("L_pc")
        A(f"s_sub_u32 s52, s52, L_pc-{K}")
        A("s_subb_u32 s53, s53, 0")
        A(f"s_lshl_b32 s{S_T1}, s{S_T0}, 2")
        A(f"s_add_u32 s{S_T1}, s{S_T1}, s{S_W}")
        A(f"s_min_u32 s{S_T1}, s{S_T1}, (L_code_end-{K})/1024-1")
        A(f"s_lshl_b32 s{S_T1}, s{S_T1}, 10")
        A(f"v_lshl_add_u32 v{V_TMP}, v0, 4, s{S_T1}")
        A(g.vm(f"global_load_dwordx4 {vr(PERM)}, v{V_TMP}, s[52:53]", "warm"))
    A(f"s_lshr_b32 s{S_BP}, s{S_T0}, 1")
    A(f"s_and_b32 s{S_T0}, s{S_T0}, 1")
    A(f"s_and_b32 s{S_HQ}, s2, 3")
    A(f"s_lshl_b32 s{S_HQ}, s{S_HQ}, 1")
    A(f"s_add_u32 s{S_HQ}, s{S_HQ}, s{S_T0}")
    vi, vG, vt, vt2 = 20, 21, 22, 23
    A(f"s_movk_i32 s{S_G}, 0x78")
    A(f"v_and_b32 v{vi}, 15, v0")
    A(f"v_lshrrev_b32 v{vG}, 4, v0")
    A(f"v_xor_b32 v{vt}, v{vG}, v0")
    A(f"v_and_b32 v{vt}, 7, v{vt}")
    A(f"v_lshlrev_b32 v{vt}, 4, v{vt}")
    A(f"v_lshrrev_b32 v{vt2}, 3, v0")
    A(f"v_mul_u32_u24 v{vt2}, 1280, v{vt2}")
    A(f"v_add_u32 v{V_B}, v{vt}, v{vt2}")
    A(f"v_xor_b32 v{vt}, 64, v{vt}")
    A(f"v_add_u32 v{vt2}, {8*1280}, v{vt2}")
    A(f"v_add_u32 v{V_LX}, v{vt}, v{vt2}")
    A(f"v_lshlrev_b32 v{vt}, 4, v{vi}")
    A(f"v_lshl_add_u32 v{V_W}, v{vG}, 16, v{vt}")
    for r in range(1, 8):
        A(f"v_add_u32 v{V_W+r}, {r*8192}, v{V_W}")
    A("s_bitcmp1_b32 s2, 2")
    A("s_waitcnt lgkmcnt(0)")
    if o.diag:
        A(f"s_mov_b32 s{S_TS}, s54")
        A(f"s_mov_b32 s{S_TS+1}, s56")
        A("s_memtime s[88:89]")
    for dst, a, b in ((S_X, 32, 42), (S_K, 34, 44), (S_V, 36, 46), (S_WQ, 38, 48), (S_WO, 40, 50)):
        A(f"s_cselect_b32 s{dst}, s{b}, s{a}")
        A(f"s_cselect_b32 s{dst+1}, s{b+1}, s{a+1}")
    for dst, n in ((S_X, 1310720), (S_K, 8388608), (S_V, 8388608), (S_WQ, 5242880), (S_WO, 5242880), (S_WS, 268435456)):
        A(f"s_mov_b32 s{dst+2}, {n}")
        A(f"s_mov_b32 s{dst+3}, 0x20000")
    A(f"s_lshl_b32 s{S_C4U}, s{S_HQ}, 2")
    A(f"s_add_u32 s{S_C4U}, s{S_C4U}, s{S_W}")
    A(f"s_lshl_b32 s{S_T1}, s{S_C4U}, 8")
    for r in range(8):
        A(f"v_add_u32 v{V_W+r}, s{S_T1}, v{V_W+r}")
    A(f"s_mul_i32 s{S_KS}, s{S_BP}, 5")
    A(f"s_lshr_b32 s{S_KS}, s{S_KS}, 2")
    if not o.rot:
        A(f"s_mov_b32 s{S_KS}, 0")
    A(f"s_lshl_b32 s{S_KS}, s{S_KS}, 18")
    tab = []
    for ks in range(19):
        tab.append([f"s_add_u32 s{S_KS+ks+1}, s{S_KS+ks}, {1<<18}", f"s_cmp_eq_u32 s{S_KS+ks+1}, {20<<18}", f"s_cselect_b32 s{S_KS+ks+1}, 0, s{S_KS+ks+1}"])
    for t in tab[:2]:
        for x in t:
            A(x)
    tab = tab[2:]

    def wload(s, r):
        dst = vr(slot_rows(s)[r])
        if s < 20:
            pol = o.pw0 if s < o.nfirst else o.pwq
            return g.vm(f"buffer_load_dwordx4 {dst}, v{V_W+r}, s[{S_WQ}:{S_WQ+3}], s{S_KS+s} offen {pol}", f"w{s}")
        v = V_WO0 if r < 4 else V_WO1
        pol = o.pw0 if (s - 20 < o.nfirst or (s >= 36 and o.c4first)) else o.pwo
        return g.vm(f"buffer_load_dwordx4 {dst}, v{v}, s[{S_WO}:{S_WO+3}], s{S_CW+s-20} offen offset:{(r%4)*1280} {pol}", f"w{s}")

    def wsoff(s):
        return None

    def xhalf(second):
        A(f"s_and_b32 s{S_T1}, s{S_HQ}, 1")
        if second:
            A(f"s_xor_b32 s{S_T1}, s{S_T1}, 1")
        if not o.coop:
            A(f"s_mov_b32 s{S_T1}, {second}")
        A(f"s_lshl_b32 s{S_T0}, s{S_BP}, 2")
        A(f"s_add_u32 s{S_T0}, s{S_T0}, s{S_W}")
        A(f"s_mul_i32 s{S_T0}, s{S_T0}, {16*1280}")
        A(f"s_mul_i32 s{S_STMP}, s{S_T1}, 640")
        A(f"s_add_u32 s{S_T0}, s{S_T0}, s{S_STMP}")
        A(f"s_mul_i32 s{S_T1}, s{S_T1}, 20")
        A(f"s_add_u32 s{S_T1}, s{S_T1}, s{S_W}")
        A(f"s_lshl_b32 s{S_T1}, s{S_T1}, 11")
        A(f"s_add_u32 m0, s{S_T1}, {LDS_X}")
        A("s_nop 0")
        for n in range(10):
            kb, m = n // 2, n % 2
            A(g.vm(f"buffer_load_dwordx4 v{V_LX if m else V_B}, s[{S_X}:{S_X+3}], s{S_T0} offen offset:{kb*128} {o.pxb if second else o.px} lds", "x"))
            if n < 9:
                A(f"s_add_u32 m0, m0, {1024 if m == 0 else 8192-128-1024}")
                if tab:
                    for x in tab.pop(0):
                        A(x)
                else:
                    A("s_nop 0")
    for ni, item in enumerate(o.order.split(",")):
        if o.diag and ni in (1, 2, 3):
            A(f"s_memtime s[{88+2*ni}:{89+2*ni}]") if ni < 2 else A(f"s_memtime s[{68+2*ni}:{69+2*ni}]")
        if item == "xa":
            xhalf(0)
        elif item == "xb":
            xhalf(1)
        else:
            sw = int(item[1:])
            A(wsoff(sw))
            for r in range(8):
                A(wload(sw, r))
    assert not tab
    A(f"s_mov_b32 s{S_T0}, s{S_C4U}")
    if o.diag:
        A("s_waitcnt lgkmcnt(0)")
        A("v_mov_b32 v24, 0")
        for k, sr in ((11, 88), (12, 90), (14, 72), (15, 74)):
            A(f"v_writelane_b32 v24, s{sr}, {k}")
    A(f"s_lshl_b32 s{S_KV}, s{S_BP}, 6")
    A(f"s_add_u32 s{S_KV}, s{S_KV}, s{S_T0}")
    A(f"s_lshl_b32 s{S_KV}, s{S_KV}, 13")
    A(f"s_add_u32 s{S_KV+1}, s{S_KV}, 4096")
    A(f"s_add_u32 s{S_KV+2}, s{S_KV}, 262144")
    A(f"s_add_u32 s{S_KV+3}, s{S_KV}, {262144+4096}")
    A(f"s_lshl_b32 s{S_KLDS}, s{S_W}, 14")
    A(f"s_mov_b32 s{S_PLO}, 0x05040100")
    A(f"s_mov_b32 s{S_PHI}, 0x07060302")
    A(f"s_mov_b32 s{S_SC}, 0x3e0293ee")
    A(f"s_mul_i32 s{S_T0}, s{S_HQ}, {512*1280}")
    A(f"s_lshl_b32 s{S_T1}, s{S_W}, 8")
    A(f"s_add_u32 s{S_T1}, s{S_T1}, s{S_T0}")
    for n in range(16):
        if o.rot:
            A(f"s_add_u32 s{S_STMP}, s{S_BP}, {n}")
            A(f"s_and_b32 s{S_STMP}, s{S_STMP}, 15")
        else:
            A(f"s_mov_b32 s{S_STMP}, {n}")
        A(f"s_and_b32 s{S_C4U}, s{S_STMP}, 3")
        A(f"s_lshr_b32 s{S_STMP}, s{S_STMP}, 2")
        A(f"s_lshl_b32 s{S_STMP}, s{S_STMP}, 4")
        A(f"s_add_u32 s{S_STMP}, s{S_STMP}, s{S_C4U}")
        A(f"s_mul_i32 s{S_STMP}, s{S_STMP}, {8*1280}")
        A(f"s_add_u32 s{S_CW+n}, s{S_STMP}, s{S_T1}")
    A(f"s_mul_i32 s{S_T1}, s{S_W}, {128*1280}")
    A(f"s_add_u32 s{S_T1}, s{S_T1}, s{S_T0}")
    A(f"s_add_u32 s{S_T1}, s{S_T1}, 1024")
    for n in range(4):
        A(f"s_add_u32 s{S_CW+16+n}, s{S_T1}, {n*8*1280}")
    A(f"s_lshr_b32 s{S_T0}, s2, 2")
    A(f"s_and_b32 s{S_T0}, s{S_T0}, 1")
    A(f"s_lshl_b32 s{S_T0}, s{S_T0}, 4")
    A(f"s_add_u32 s{S_T0}, s{S_T0}, s{S_BP}")
    A(f"s_lshl_b32 s{S_T0}, s{S_T0}, 3")
    A(f"s_add_u32 s{S_T0}, s{S_T0}, s{S_HQ}")
    A(f"s_mul_i32 s{S_ST}, s{S_T0}, 81920")
    A(f"v_xor_b32 v{vt}, v{vi}, v{vG}")
    A(f"v_lshlrev_b32 v{vt}, 4, v{vt}")
    A(f"v_lshl_add_u32 v{V_KG}, v{vG}, 8, v{vt}")
    A(f"v_lshlrev_b32 v{vt}, 4, v{vi}")
    A(f"v_lshl_add_u32 v{V_VG}, v{vG}, 10, v{vt}")
    A(f"v_mul_u32_u24 v{V_WO0}, {32*1280}, v{vG}")
    A(f"v_add_u32 v{V_WO0}, v{V_WO0}, v{vt}")
    A(f"v_add_u32 v{V_WO1}, {4*1280}, v{V_WO0}")
    A(f"v_lshrrev_b32 v{vt}, 1, v{vi}")
    A(f"v_xor_b32 v{vt}, v{vt}, v{vG}")
    A(f"v_lshlrev_b32 v{vt}, 4, v{vt}")
    A(f"v_lshl_add_u32 v{V_LX}, v{vi}, 7, v{vt}")
    for n in range(20):
        A(f"s_lshr_b32 s{S_STMP}, s{S_KS+n}, 19")
        A(f"s_lshl_b32 s{S_STMP}, s{S_STMP}, 13")
        A(f"s_bfe_u32 s{S_C4U}, s{S_KS+n}, 0x10012")
        A(f"s_lshl_b32 s{S_C4U}, s{S_C4U}, 6")
        A(f"s_add_u32 s{S_STMP}, s{S_STMP}, {LDS_X}")
        A(f"s_or_b32 s{S_XC+n}, s{S_STMP}, s{S_C4U}")
    A(f"s_and_b32 s{S_GRP}, s{S_BP}, {o.ng-1}")
    if o.diag:
        A(f"v_mov_b32 v{V_TID}, v24")
        A(f"v_writelane_b32 v{V_TID}, s{S_TS}, 10")
        A(f"v_writelane_b32 v{V_TID}, s{S_TS+1}, 13")
        g.stamp(0)

    def kload(n):
        bt, m = n // 8, n % 8
        ins = []
        if m % 4 == 0:
            ins.append(f"s_add_u32 m0, s{S_KLDS}, {bt*8192 + (m//4)*4096}")
        ins.append(f"v_xor_b32 v{V_TMP}, {GFUN[m%4] << 6}, v{V_KG}")
        ins.append(("vm", f"buffer_load_dwordx4 v{V_TMP}, s[{S_K}:{S_K+3}], s{S_KV+bt*2+m//4} offen offset:{(m%4)*1024} {o.pk} lds", "k"))
        return ins

    def vload(n):
        bt, r = n // 8, n % 8
        return [("vm", f"buffer_load_dwordx4 {ar(A_V+n*4)}, v{V_VG}, s[{S_V}:{S_V+3}], s{S_KV+bt*2+r//4} offen offset:{(r%4)*256} {o.pv}", "v")]

    def baddr(s):
        if s < 20:
            return [f"v_xor_b32 v{V_B}, s{S_XC+s}, v{V_LX}"]
        if s < 36:
            return [f"v_add_u32 v{V_B}, s{S_CL}, v{V_LX}", f"s_add_u32 s{S_CL}, s{S_CL}, 4096", f"s_and_b32 s{S_CL}, s{S_CL}, 0xffff"]
        return []

    def breads(s):
        buf = A_B + (s % 2) * 16
        if s < 20:
            return [f"ds_read_b128 {ar(buf+q*4)}, v{V_B} offset:{q*2048}" for q in range(4)]
        if s < 36:
            return [f"ds_read_b128 {ar(buf+q*4)}, v{V_B} offset:{q*1024}" for q in range(4)]
        return [f"ds_read_b128 {ar(buf+q*4)}, v{V_W+q} offset:{(s-36)*4096}" for q in range(4)]

    def bread(s):
        return baddr(s) + breads(s)

    def emit(ins):
        if isinstance(ins, tuple):
            A(g.vm(ins[1], ins[2]))
        elif callable(ins):
            r = ins()
            if r:
                A(r)
        else:
            A(ins)

    def step(s, first, last, extra, preperm=True, prefetchB=True):
        fill = [[] for _ in range(32)]
        rows = slot_rows(s)
        buf = A_B + (s % 2) * 16
        for t in range(3):
            for n, p in enumerate(perms(rows, t + 1, PERM + ((t + 1) % 2) * 8)):
                fill[t * 8 + (n // 2) * 2].append(p)
        late = o.spread
        if late and s >= 1 and s + 2 < 40 and s != 20:
            for n, r in enumerate(range(8 - late, 8)):
                fill[11 + 2 * n].append(lambda r=r: wload(s + 2, r))
        if not last:
            ba = baddr(s + 1)
            g0 = 1
            if ba:
                fill[g0].append(ba[0])
                fill[g0] += ba[1:2]
                fill[17] += ba[2:]
                g0 += 2
            for n, x in enumerate(breads(s + 1)):
                fill[g0 + n * 2].append(x)
            fill[21].append(lambda: g.waitvm(f"w{s+1}"))
            for n, p in enumerate(perms(slot_rows(s + 1), 0, PERM)):
                fill[24 + (n // 2) * 2].append(p)
            fill[19].append("s_waitcnt lgkmcnt(0)")
        if s + 3 < 40:
            gaps = [23, 25, 27, 29, 31] if late >= 3 else [23, 24, 25, 26, 27, 28, 29, 31]
            for r in range(8 - late):
                fill[gaps[r]].append(lambda r=r: wload(s + 3, r))
        if o.diag and o.steps:
            fill[28].append(f"s_memtime s[{S_TS}:{S_TS+1}]")
            fill[31].append("s_waitcnt lgkmcnt(0)")
            fill[31].append(f"v_writelane_b32 v{V_TID}, s{S_TS}, {16+s}")
        for k, v in extra.items():
            fill[k] = fill[k] + v
        n = 0
        for t in range(4):
            for e in range(2):
                for q in range(4):
                    j = 2 * t + e
                    if s < 36:
                        d = vr(ACC + q * 32 + j * 4)
                    else:
                        d = ar(A_C4 + q * 32 + j * 4)
                    A(mfma(d, vr(PERM + (t % 2) * 8 + e * 4), ar(buf + q * 4), "0" if first else d))
                    for x in fill[n]:
                        if o.exp and 24 <= s < 34:
                            if isinstance(x, str) and "noperm" in o.exp and x.startswith("v_perm"):
                                continue
                            if isinstance(x, str) and "nods" in o.exp and x.startswith("ds_read"):
                                continue
                            if callable(x) and "noload" in o.exp:
                                r = x()
                                if not (r and r.startswith("buffer_load")):
                                    A(r)
                                continue
                        emit(x)
                    n += 1

    A(g.waitvm("x"))
    A("s_barrier")
    for x in bread(0):
        A(x)
    A(g.waitvm("w0"))
    for p in perms(slot_rows(0), 0, PERM):
        A(p)
    A("s_waitcnt lgkmcnt(0)")
    g.stamp(1)
    kvn = 0
    kst = [int(x) for x in o.kst.split(",")] if o.kst else []
    vst = [int(x) for x in o.vst.split(",")] if o.vst else []

    def burst(grp, fn, name):
        def f():
            out = []
            if o.ng > 1:
                out += [f"s_cmp_lg_u32 s{S_GRP}, {grp}", f"s_cbranch_scc1 L_{name}{grp}"]
            for n in range(16):
                for x in fn(n):
                    out.append(g.vm(x[1], x[2], grp) if isinstance(x, tuple) else x)
            t = "\n    ".join(out)
            if o.ng > 1:
                t += f"\nL_{name}{grp}:"
            return t
        return f
    for s in range(20):
        extra = {}
        if kst:
            for grp in range(o.ng):
                if kst[grp] == s:
                    extra.setdefault(31, []).append(burst(grp, kload, "kb"))
                if vst[grp] == s:
                    extra.setdefault(31, []).append(burst(grp, vload, "vb"))
        elif o.kv0 <= s and kvn < 16:
            for c in range(o.kvper):
                if kvn < 16:
                    extra.setdefault(10 + c * 6, []).extend(kload(kvn))
                    extra.setdefault(13 + c * 6, []).extend(vload(kvn))
                    kvn += 1
        step(s, s == 0, s == 19, extra)
    assert kvn == 16 or kst
    for r in range(8 - o.spread, 8):
        A(wload(22, r))
    g.stamp(2)

    vi, vG, vt, KA = 6, 7, 8, 2
    A(f"s_movk_i32 s{S_G}, 0x78")
    A(f"v_lshrrev_b32 v{vG}, 10, v{V_VG}")
    A(f"v_bfe_u32 v{vi}, v{V_VG}, 4, 4")
    A(f"v_lshrrev_b32 v{vt}, 2, v{vi}")
    A(f"v_lshlrev_b32 v{vt}, 1, v{vt}")
    A(f"v_lshrrev_b32 v{vt}, v{vt}, s{S_G}")
    A(f"v_xor_b32 v{vt}, v{vt}, v{vG}")
    A(f"v_and_b32 v{vt}, 3, v{vt}")
    A(f"v_lshlrev_b32 v{vt}, 2, v{vt}")
    A(f"v_and_or_b32 v{vt}, v{vi}, 3, v{vt}")
    A(f"v_lshlrev_b32 v{vt}, 4, v{vt}")
    A(f"v_lshl_add_u32 v{vt}, v{vi}, 8, v{vt}")
    A(f"v_add_u32 v{KA}, s{S_KLDS}, v{vt}")
    for u in range(1, 4):
        A(f"v_xor_b32 v{KA+u}, {u*16}, v{KA}")
    A(f"v_lshlrev_b32 v{V_LX}, 8, v{vG}")
    A(f"v_lshl_add_u32 v{V_LX}, v{vi}, 4, v{V_LX}")
    A(g.waitvm("k"))

    def kread(bt):
        for kb in range(2):
            for u in range(4):
                A(f"ds_read_b128 {ar(A_K+((bt*2+kb)*4+u)*4)}, v{KA+u} offset:{bt*8192+kb*4096}")
    QB = [PERM, 128, 144, 160]
    SA = 176
    cv = []
    for q in range(4):
        c = []
        for t in range(4):
            for u in range(4):
                c.append(f"v_cvt_pk_bf16_f32 v{QB[q]+u*4+t}, v{ACC+q*32+(2*t)*4+u}, v{ACC+q*32+(2*t+1)*4+u}")
        cv.append(c)
    kread(0)
    for x in cv[0]:
        A(x)
    A("s_waitcnt lgkmcnt(4)")
    kread(1)
    for x in cv[1]:
        A(x)
    A("s_waitcnt lgkmcnt(8)")

    def smfma(bt):
        r = []
        for u in range(4):
            for kb in range(2):
                for qq in range(2):
                    d = vr(SA + ((bt * 2 + kb) * 2 + qq) * 4)
                    r.append(mfma(d, ar(A_K + ((bt * 2 + kb) * 4 + u) * 4), vr(QB[bt * 2 + qq] + u * 4), "0" if u == 0 else d))
        return r
    s0 = smfma(0)
    rest = cv[2] + cv[3]
    A("s_nop 1")
    for n in range(16):
        A(s0[n])
        A(rest[2 * n])
        A(rest[2 * n + 1])
    A("s_waitcnt lgkmcnt(0)")
    A("s_nop 1")
    s1 = smfma(1)

    PB = 208
    TM = 224

    def softmax(q):
        bt, qq = q // 2, q % 2
        sv = [SA + ((bt * 2 + kb) * 2 + qq) * 4 + r for kb in range(2) for r in range(4)]
        m, t2 = TM + q * 4, TM + q * 4 + 1
        ph = []
        ph.append([f"v_max3_f32 v{m}, v{sv[0]}, v{sv[1]}, v{sv[2]}",
                   f"v_max3_f32 v{t2}, v{sv[3]}, v{sv[4]}, v{sv[5]}",
                   f"v_max3_f32 v{m}, v{m}, v{sv[6]}, v{sv[7]}",
                   f"v_max_f32 v{m}, v{m}, v{t2}",
                   f"v_mov_b32 v{t2}, v{m}"])
        ph.append([f"v_permlane32_swap_b32 v{m}, v{t2}"])
        ph.append([f"v_max_f32 v{m}, v{m}, v{t2}", f"v_mov_b32 v{t2}, v{m}"])
        ph.append([f"v_permlane16_swap_b32 v{m}, v{t2}"])
        ph.append([f"v_max_f32 v{m}, v{m}, v{t2}", f"v_mul_f32 v{m}, s{S_SC}, v{m}"] +
                  [f"v_fma_f32 v{x}, v{x}, s{S_SC}, -v{m}" for x in sv] +
                  [f"v_exp_f32 v{x}, v{x}" for x in sv])
        ph.append([f"v_add_f32 v{m}, v{sv[0]}, v{sv[1]}", f"v_add_f32 v{t2}, v{sv[2]}, v{sv[3]}",
                   f"v_add_f32 v{m}, v{m}, v{sv[4]}", f"v_add_f32 v{t2}, v{t2}, v{sv[5]}",
                   f"v_add_f32 v{m}, v{m}, v{sv[6]}", f"v_add_f32 v{t2}, v{t2}, v{sv[7]}",
                   f"v_add_f32 v{m}, v{m}, v{t2}", f"v_mov_b32 v{t2}, v{m}"])
        ph.append([f"v_permlane32_swap_b32 v{m}, v{t2}"])
        ph.append([f"v_add_f32 v{m}, v{m}, v{t2}", f"v_mov_b32 v{t2}, v{m}"])
        ph.append([f"v_permlane16_swap_b32 v{m}, v{t2}"])
        ph.append([f"v_add_f32 v{m}, v{m}, v{t2}"])
        ph.append([f"v_rcp_f32 v{m}, v{m}"])
        ph.append([f"v_mul_f32 v{x}, v{x}, v{m}" for x in sv])
        ph.append([f"v_cvt_pk_bf16_f32 v{PB+q*4+p}, v{sv[2*p]}, v{sv[2*p+1]}" for p in range(4)])
        return ph

    def softmax_pair(q0):
        a, b = softmax(q0), softmax(q0 + 1)
        out = []
        for pa, pb in zip(a, b):
            if pa[0].startswith("v_permlane"):
                out.append("s_nop 1")
            out += pa + pb
            if pa[0].startswith("v_rcp") or pa[0].startswith("v_permlane"):
                out.append("s_nop 0")
        return out
    sm0 = softmax_pair(0)
    for n in range(16):
        A(s1[n])
        if n >= 4:
            for _ in range(2):
                A(sm0.pop(0))
    for x in sm0:
        A(x)
    for x in softmax_pair(2):
        A(x)
    g.stamp(3)
    A(g.waitvm("v"))
    OA = 128
    VT = 192
    VP1 = 224
    STG = 200

    def vperm(bt, t, dst):
        r = [f"v_accvgpr_read_b32 v{VT+x}, a{A_V+bt*32+x*4+t}" for x in range(8)]
        for e in range(2):
            for p in range(4):
                r.append(f"v_perm_b32 v{dst+e*4+p}, v{VT+2*p+1}, v{VT+2*p}, s{S_PLO if e == 0 else S_PHI}")
        return r
    for x in vperm(0, 0, PERM):
        A(x)
    for t in range(4):
        nxt = vperm(0, t + 1, PERM + ((t + 1) % 2) * 8) if t < 3 else vperm(1, 0, VP1)
        A("s_nop 1") if t == 0 else None
        k = 0
        for e in range(2):
            for qq in range(2):
                A(mfma(vr(OA + qq * 32 + (2 * t + e) * 4), vr(PERM + (t % 2) * 8 + e * 4), vr(PB + qq * 4), "0"))
                for x in nxt[k * 4:k * 4 + 4]:
                    A(x)
                k += 1
        A("s_nop 0")
    for t in range(1, 4):
        for x in vperm(1, t, VP1 + t * 8):
            A(x)
    A(f"v_add_u32 v{V_B}, s{S_KLDS}, v{V_LX}")

    def ocvt(bt, qq):
        r = []
        for u in range(4):
            st = STG + (u % 2) * 4
            for t in range(4):
                r.append(f"v_cvt_pk_bf16_f32 v{st+t}, v{OA+qq*32+(2*t)*4+u}, v{OA+qq*32+(2*t+1)*4+u}")
            r.append(f"ds_write_b128 v{V_B}, {vr(st)} offset:{u*4096+(bt*2+qq)*1024}")
        return r

    def pv1(qq):
        return [mfma(vr(OA + qq * 32 + j * 4), vr(VP1 + j * 4), vr(PB + (2 + qq) * 4), "0") for j in range(8)]
    for x in ocvt(0, 0):
        A(x)
    c = ocvt(0, 1)
    for mm in pv1(0):
        A(mm)
        for _ in range(3):
            if c:
                A(c.pop(0))
    assert not c
    m1 = pv1(1)
    c = ocvt(1, 0)
    for n, mm in enumerate(m1):
        A(mm)
    A("s_waitcnt lgkmcnt(4)")
    for x in c:
        A(x)
    for x in ocvt(1, 1):
        A(x)
    A(f"s_lshl_b32 s{S_T0}, s{S_W}, 10")
    A(f"v_add_u32 v{V_W}, s{S_T0}, v{V_B}")
    for x in range(1, 4):
        A(f"v_xor_b32 v{V_W+x}, {x*1024}, v{V_W}")
    A(f"s_lshl_b32 s{S_CL}, s{S_BP}, 12" if o.rot else f"s_mov_b32 s{S_CL}, 0")
    A(g.waitvm("w20"))
    for p in perms(slot_rows(20), 0, PERM):
        A(p)
    A("s_waitcnt lgkmcnt(0)")
    A("s_barrier")
    for x in bread(20):
        A(x)
    A("s_waitcnt lgkmcnt(0)")
    g.stamp(4)

    for s in range(20, 36):
        extra = {}
        if o.c4pre and s == o.c4pre:
            extra[17] = [f"s_mul_i32 s{S_T0}, s{S_BP}, {8*1280}", f"s_add_u32 s{S_T0}, s{S_T0}, s{S_CW+16}"]
            extra[19] = [f"v_lshrrev_b32 v{V_TMP}, 8, v{V_LX}", f"v_mul_u32_u24 v{V_TMP}, {1280-256}, v{V_TMP}"]
            extra[21] = [f"v_add_u32 v{V_TMP}, v{V_TMP}, v{V_LX}"]
            extra[31] = [("vm", f"buffer_load_dwordx4 {ar(0)}, v{V_TMP}, s[{S_WO}:{S_WO+3}], s{S_T0} offen", "pre"),
                         f"s_add_u32 s{S_T0}, s{S_T0}, {4*1280}",
                         ("vm", f"buffer_load_dwordx4 {ar(4)}, v{V_TMP}, s[{S_WO}:{S_WO+3}], s{S_T0} offen", "pre")]
        step(s, s == 20, False, extra)
    g.stamp(5)
    ST2 = V_W + 4
    stg = [6, 12]
    outs = []
    A(f"s_lshl_b32 s{S_T0}, s{S_W}, 14")
    A(f"s_add_u32 s{S_T0}, s{S_T0}, s{S_ST}")
    for q in range(4):
        A(f"s_add_u32 s{S_KS+q}, s{S_T0}, {q*4096}")
    for q in range(4):
        for r in range(4):
            st = stg[r % 2]
            for t in range(4):
                outs.append(f"v_cvt_pk_bf16_f32 v{st+t}, v{ACC+q*32+(2*t)*4+r}, v{ACC+q*32+(2*t+1)*4+r}")
            outs.append(("vm", f"buffer_store_dwordx4 {vr(st)}, v{V_LX}, s[{S_WS}:{S_WS+3}], s{S_KS+q} offen offset:{r*1024} {o.pst}", "st"))
    step(36, True, False, {})
    for s in range(37, 40):
        extra = {}
        lo = 11 + 2 * o.spread if (s == 37 and o.spread) else 0
        for k in range(lo, 32):
            if outs:
                extra[k] = [outs.pop(0)]
                if s == 39 and k >= 24 and outs:
                    extra[k].append(outs.pop(0))
        step(s, False, s == 39, extra)
    for x in outs:
        emit(x)
    g.stamp(6)
    for x in range(1, 4):
        A(f"s_xor_b32 s{S_T0}, s{S_W}, {x}")
        A(f"s_mul_i32 s{S_T0}, s{S_T0}, {3*8192}")
        A(f"s_add_u32 s{S_T0}, s{S_T0}, {LDS_R + (x-1)*8192}")
        A(f"v_add_u32 v{V_W+x}, s{S_T0}, v{V_LX}")
    A(f"s_mul_i32 s{S_T0}, s{S_W}, {3*8192}")
    A(f"s_add_u32 s{S_T0}, s{S_T0}, {LDS_R}")
    A(f"v_add_u32 v{V_W}, s{S_T0}, v{V_LX}")
    A("s_nop 7")
    for x in range(1, 4):
        for j in range(8):
            A(f"ds_write_b128 v{V_W+x}, {ar(A_C4+x*32+j*4)} offset:{j*1024}")
        A("s_waitcnt lgkmcnt(6)")
    for n in range(32):
        A(f"v_accvgpr_read_b32 v{ACC+n}, a{A_C4+n}")
    A(f"s_lshl_b32 s{S_T0}, s{S_W}, 12")
    A(f"s_add_u32 s{S_T0}, s{S_T0}, s{S_ST}")
    A(f"s_add_u32 s{S_T0}, s{S_T0}, 65536")
    A("s_waitcnt lgkmcnt(0)")
    A("s_barrier")
    for x in range(3):
        for j in range(8):
            A(f"ds_read_b128 {vr(RING+x*32+j*4)}, v{V_W} offset:{x*8192+j*1024}")
            if x >= 1 and j == 3:
                A("s_waitcnt lgkmcnt(4)")
                for n in range(32):
                    A(f"v_add_f32 v{ACC+n}, v{ACC+n}, v{RING+(x-1)*32+n}")
    A("s_waitcnt lgkmcnt(0)")
    for n in range(32):
        A(f"v_add_f32 v{ACC+n}, v{ACC+n}, v{RING+64+n}")
    for r in range(4):
        st = PERM + r * 4
        for t in range(4):
            A(f"v_cvt_pk_bf16_f32 v{st+t}, v{ACC+(2*t)*4+r}, v{ACC+(2*t+1)*4+r}")
        A(g.vm(f"buffer_store_dwordx4 {vr(st)}, v{V_LX}, s[{S_WS}:{S_WS+3}], s{S_T0} offen offset:{r*1024} {o.pst}", "st"))
    if o.diag:
        g.stamp(7)
        A("s_waitcnt vmcnt(0)")
        g.stamp(8)
        A(f"s_memrealtime s[{S_TS}:{S_TS+1}]")
        A("s_waitcnt lgkmcnt(0)")
        A(f"v_writelane_b32 v{V_TID}, s{S_TS}, 9")
        A(f"s_lshl_b32 s{S_T0}, s2, 2")
        A(f"s_add_u32 s{S_T0}, s{S_T0}, s{S_W}")
        A(f"s_lshl_b32 s{S_T0}, s{S_T0}, 8")
        A(f"s_add_u32 s{S_T0}, s{S_T0}, 0x8000000")
        A(f"v_lshrrev_b32 v{V_TMP}, 2, v{V_LX}")
        A(f"buffer_store_dword v{V_TID}, v{V_TMP}, s[{S_WS}:{S_WS+3}], s{S_T0} offen")
        if o.diag == 2:
            A("s_load_dwordx2 s[32:33], s[0:1], 88")
            A("v_readlane_b32 s36, v0, 10")
            A("v_readlane_b32 s37, v0, 8")
            A("s_mov_b32 s34, 64")
            A("s_mov_b32 s35, 0x20000")
            A("s_not_b32 s36, s36")
            A("s_not_b32 s37, s37")
            A("v_writelane_b32 v0, s36, 11")
            A("v_writelane_b32 v0, s37, 12")
            A("s_waitcnt lgkmcnt(0)")
            A(f"buffer_atomic_umax v0, v{V_TMP}, s[32:35], 0 offen sc1")
    g.lab("L_main_end")
    A("s_endpgm")


def gen_reduce(g):
    o = g.o
    A = g.A
    K = "reduce_kernel"
    g.L.append(f".globl {K}\n.p2align 8\n.type {K},@function")
    g.lab(K)
    A("s_cmp_ge_u32 s2, 640")
    A("s_cbranch_scc1 L_red_end")
    if o.diag >= 2:
        A("s_memrealtime s[20:21]")
    A("s_load_dwordx2 s[4:5], s[0:1], 80")
    A("s_load_dwordx2 s[8:9], s[0:1], 96")
    A("v_lshrrev_b32 v1, 6, v0")
    A("v_and_b32 v0, 63, v0")
    A("v_readfirstlane_b32 s3, v1")
    A("s_lshl_b32 s12, s2, 2")
    A("s_mov_b32 s6, 2621440")
    A("s_mov_b32 s7, 0x20000")
    A("s_mov_b32 s10, 268435456")
    A("s_mov_b32 s11, 0x20000")
    A("s_add_u32 s12, s12, s3")
    A("s_mul_i32 s13, s12, 52429")
    A("s_lshr_b32 s13, s13, 22")
    A("s_mul_i32 s14, s13, 80")
    A("s_sub_u32 s14, s12, s14")
    A("s_mul_i32 s15, s13, 655360")
    A("s_lshl_b32 s16, s14, 10")
    A("s_add_u32 s15, s15, s16")
    A("v_lshlrev_b32 v1, 4, v0")
    A("s_waitcnt lgkmcnt(0)")
    for h in range(8):
        A(f"buffer_load_dwordx4 {vr(4+h*4)}, v1, s[8:11], s15 offen {o.pld}")
        if h < 7:
            A("s_add_u32 s15, s15, 81920")
    A("s_and_b32 s16, s13, 15")
    A("s_lshl_b32 s16, s16, 2")
    A("s_bfe_u32 s17, s14, 0x20002")
    A("s_add_u32 s16, s16, s17")
    A("s_mul_i32 s16, s16, 40960")
    A("s_lshr_b32 s17, s13, 4")
    A("s_mul_i32 s17, s17, 1280")
    A("s_add_u32 s16, s16, s17")
    A("s_lshr_b32 s17, s14, 4")
    A("s_lshl_b32 s17, s17, 8")
    A("s_add_u32 s16, s16, s17")
    A("s_and_b32 s17, s14, 3")
    A("s_lshl_b32 s17, s17, 4")
    A("s_add_u32 s16, s16, s17")
    A("v_and_b32 v2, 15, v0")
    A("v_lshrrev_b32 v3, 4, v0")
    A("v_mul_u32_u24 v2, 2560, v2")
    A("v_lshl_add_u32 v2, v3, 6, v2")
    A("s_mov_b32 s18, 0xffff0000")
    for h in range(8):
        A(f"s_waitcnt vmcnt({7-h})")
        for t in range(4):
            src = 4 + h * 4 + t
            if h == 0:
                A(f"v_lshlrev_b32 v{40+2*t}, 16, v{src}")
                A(f"v_and_b32 v{41+2*t}, s18, v{src}")
            else:
                A(f"v_lshlrev_b32 v{48+2*t}, 16, v{src}")
                A(f"v_and_b32 v{49+2*t}, s18, v{src}")
        if h:
            for n in range(8):
                A(f"v_add_f32 v{40+n}, v{40+n}, v{48+n}")
    for t in range(4):
        A(f"v_cvt_pk_bf16_f32 v{4+t}, v{40+2*t}, v{41+2*t}")
    A(f"buffer_store_dwordx4 {vr(4)}, v2, s[4:7], s16 offen")
    if o.diag == 2:
        A("s_waitcnt vmcnt(0)")
        A("s_memrealtime s[22:23]")
        A("s_load_dwordx2 s[24:25], s[0:1], 88")
        A("s_mov_b32 s26, 64")
        A("s_mov_b32 s27, 0x20000")
        A("s_waitcnt lgkmcnt(0)")
        A("v_mov_b32 v8, 0")
        A("s_not_b32 s21, s20")
        A("v_writelane_b32 v8, s20, 13")
        A("v_writelane_b32 v8, s21, 14")
        A("v_writelane_b32 v8, s22, 15")
        A("v_lshlrev_b32 v9, 2, v0")
        A("buffer_atomic_umax v8, v9, s[24:27], 0 offen sc1")
    if o.diag == 3:
        A("s_cmp_lg_u32 s12, 2000")
        A("s_cbranch_scc1 L_red_end")
        A("s_waitcnt vmcnt(0)")
        A("s_memrealtime s[22:23]")
        A("s_load_dwordx2 s[24:25], s[0:1], 88")
        A("s_mov_b32 s26, 64")
        A("s_mov_b32 s27, 0x20000")
        A("v_lshlrev_b32 v9, 2, v0")
        A(f"s_mov_b32 s15, {0x8000000 + o.sel*256}")
        A("buffer_load_dword v8, v9, s[8:11], s15 offen sc1")
        A("s_waitcnt vmcnt(0) lgkmcnt(0)")
        A("v_writelane_b32 v8, s20, 14")
        A("v_writelane_b32 v8, s22, 15")
        A("buffer_store_dword v8, v9, s[24:27], 0 offen")
    g.lab("L_red_end")
    A("s_endpgm")


def desc(name, vg, acc, sg):
    return f""".amdhsa_kernel {name}
  .amdhsa_next_free_vgpr {vg}
  .amdhsa_next_free_sgpr {sg}
  .amdhsa_accum_offset {acc}
  .amdhsa_group_segment_fixed_size 0
  .amdhsa_kernarg_size 104
  .amdhsa_user_sgpr_count 2
  .amdhsa_user_sgpr_kernarg_segment_ptr 1
  .amdhsa_system_sgpr_workgroup_id_x 1
.end_amdhsa_kernel"""


def build(o):
    g = Gen(o)
    head = [l.rstrip("\n") for l in open(f"cdna_kernels/{NAME}.s.ref") if l.startswith(";   offset") or l.startswith("; Kernarg")]
    head.append(f"; @launch kernel={NAME}_kernel grid=(256,1,1) block=(256,1,1) lds={LDS_BYTES}")
    head.append(f"; @launch kernel=reduce_kernel grid=(640,1,1) block=(256,1,1) lds=0")
    for _ in range(o.noop):
        head.append(f"; @launch kernel=noop_kernel grid=(1,1,1) block=(64,1,1) lds=0")
    head.append('.amdgcn_target "amdgcn-amd-amdhsa--gfx950"')
    head.append(".text")
    gen_main(g)
    gen_reduce(g)
    g.lab("L_code_end")
    if o.noop:
        g.L.append(".globl noop_kernel\n.p2align 8\n.type noop_kernel,@function\nnoop_kernel:\n    s_endpgm")
    tail = ['.section .rodata,"a"', ".p2align 6", desc(f"{NAME}_kernel", 512, 256, 102), ".p2align 6", desc("reduce_kernel", 64, 64, 32)]
    if o.noop:
        tail += [".p2align 6", desc("noop_kernel", 64, 64, 32)]
    return "\n".join(head + g.L + tail) + "\n"


def opts(argv=None):
    p = argparse.ArgumentParser()
    p.add_argument("-o", default=f"cdna_kernels/{NAME}.s")
    p.add_argument("--diag", type=int, default=0)
    p.add_argument("--warm", type=int, default=1)
    p.add_argument("--noop", type=int, default=0)
    p.add_argument("--c4pre", type=int, default=0)
    p.add_argument("--exp", default="")
    p.add_argument("--steps", type=int, default=0)
    p.add_argument("--ng", type=int, default=1)
    p.add_argument("--kst", default="")
    p.add_argument("--vst", default="")
    p.add_argument("--order", default="xa,xb,w0,w1,w2")
    p.add_argument("--coop", type=int, default=0)
    p.add_argument("--nfirst", type=int, default=0)
    p.add_argument("--c4first", type=int, default=0)
    p.add_argument("--sel", type=int, default=401)
    p.add_argument("--rot", type=int, default=1)
    p.add_argument("--spread", type=int, default=3)
    p.add_argument("--kv0", type=int, default=0)
    p.add_argument("--kvper", type=int, default=1)
    for k, d in (("px", ""), ("pxb", ""), ("pw0", "nt"), ("pwq", ""), ("pwo", ""), ("pk", "nt"), ("pv", "nt"), ("pst", "sc1"), ("pld", "")):
        p.add_argument("--" + k, default=d)
    return p.parse_args(argv)


if __name__ == "__main__":
    o = opts()
    open(o.o, "w").write(build(o))
```

```python
import sys, argparse

NAME = "concat_heads__gqa_block_cached__mha_block_cached__near_ridge"

V_TID = 0
V_TMP = 1
V_W = 2
V_B = 10
V_LX = 11
V_KG = 12
V_VG = 13
V_WO0 = 14
V_WO1 = 15
PERM = 16
RING = 32
ACC = 128
A_V = 0
A_B = 64
A_K = 128
A_C4 = 128

S_X, S_K, S_V, S_WQ, S_WO, S_WS = 8, 12, 16, 20, 24, 28
S_W = 3
S_BP = 4
S_HQ = 5
S_T0, S_T1 = 6, 7
S_KS = 32
S_CW = 52
S_XC = 72
S_KV = 8
S_CL = 95
S_ST = 92
S_PLO, S_PHI = 93, 94
S_KLDS = 96
S_SC = 97
S_C4U = 98
S_GRP = 7
S_STMP = 99
S_TS = 100
S_G = 95

S_OUT, S_DBG = 12, 16
WS_FLAG = 256 * 81920
LDS_O = 0
LDS_X = 65536
LDS_R = 65536
LDS_BYTES = 163840
GFUN = [0, 2, 3, 1]


class Gen:
    def __init__(self, o):
        self.o = o
        self.L = []
        self.ng = o.ng
        self.vq = [[] for _ in range(self.ng)]
        self.nlab = 0

    def A(self, s):
        if s:
            self.L.append("    " + s)

    def lab(self, s):
        self.L.append(s + ":")

    def vm(self, s, tag, grp=None):
        for k, q in enumerate(self.vq):
            if grp is None or grp == k:
                q.append(tag)
                assert len(q) <= 63, "vmcnt overflow"
        return s

    def waitvm(self, tag):
        ns = []
        for k, q in enumerate(self.vq):
            idx = max((i for i, t in enumerate(q) if t == tag), default=-1)
            ns.append(None if idx < 0 else len(q) - 1 - idx)
            self.vq[k] = q[idx + 1:]
        vals = sorted(set(n for n in ns if n is not None))
        if not vals:
            return None
        lo = vals[0]
        big = [k for k, n in enumerate(ns) if n is not None and n > lo]
        if len(big) != 1:
            return f"s_waitcnt vmcnt({lo})"
        self.nlab += 1
        return (f"s_cmp_eq_u32 s{S_GRP}, {big[0]}\n    s_cbranch_scc1 L_w{self.nlab}\n    s_waitcnt vmcnt({lo})\n"
                f"L_w{self.nlab}:\n    s_waitcnt vmcnt({ns[big[0]]})")

    def stamp(self, k):
        if not self.o.diag:
            return
        A = self.A
        A(f"{'s_memtime' if self.o.diag != 2 else 's_memrealtime'} s[{S_TS}:{S_TS+1}]")
        A("s_waitcnt lgkmcnt(0)")
        A(f"v_writelane_b32 v{V_TID}, s{S_TS}, {k}")


def mfma(d, a, b, c):
    return f"v_mfma_f32_16x16x32_bf16 {d}, {a}, {b}, {c}"


def vr(n, k=4):
    return f"v[{n}:{n+k-1}]"


def ar(n, k=4):
    return f"a[{n}:{n+k-1}]"


def perms(src_rows, t, dst):
    out = []
    for e in range(2):
        for p in range(4):
            sel = S_PLO if e == 0 else S_PHI
            out.append(f"v_perm_b32 v{dst+e*4+p}, v{src_rows[2*p+1]+t}, v{src_rows[2*p]+t}, s{sel}")
    return out


def slot_rows(s):
    return [RING + (s % 3) * 32 + r * 4 for r in range(8)]


def gen_main(g):
    o = g.o
    A = g.A
    K = f"{NAME}_kernel"
    g.L.append(f".globl {K}\n.p2align 8\n.type {K},@function")
    g.lab(K)
    A("s_cmp_ge_u32 s2, 256")
    A("s_cbranch_scc1 L_main_end")
    if o.diag:
        A(f"{'s_memtime' if o.diag != 2 else 's_memrealtime'} s[54:55]")
        A(f"s_memrealtime s[56:57]")
    A("s_load_dwordx16 s[32:47], s[0:1], 0")
    A("s_load_dwordx4 s[48:51], s[0:1], 64")
    A("s_load_dwordx2 s[28:29], s[0:1], 96")
    A(f"v_lshrrev_b32 v{V_TMP}, 6, v0")
    A(f"v_and_b32 v0, 63, v0")
    A(f"v_readfirstlane_b32 s{S_W}, v{V_TMP}")
    A(f"s_lshr_b32 s{S_T0}, s2, 3")
    if o.warm:
        A("s_getpc_b64 s[52:53]")
        g.lab("L_pc")
        A(f"s_sub_u32 s52, s52, L_pc-{K}")
        A("s_subb_u32 s53, s53, 0")
        A(f"s_lshl_b32 s{S_T1}, s{S_T0}, 2")
        A(f"s_add_u32 s{S_T1}, s{S_T1}, s{S_W}")
        A(f"s_min_u32 s{S_T1}, s{S_T1}, (L_code_end-{K})/1024-1")
        A(f"s_lshl_b32 s{S_T1}, s{S_T1}, 10")
        A(f"v_lshl_add_u32 v{V_TMP}, v0, 4, s{S_T1}")
        A(g.vm(f"global_load_dwordx4 {vr(PERM)}, v{V_TMP}, s[52:53]", "warm"))
    A(f"s_lshr_b32 s{S_BP}, s{S_T0}, 1")
    A(f"s_and_b32 s{S_T0}, s{S_T0}, 1")
    A(f"s_and_b32 s{S_HQ}, s2, 3")
    A(f"s_lshl_b32 s{S_HQ}, s{S_HQ}, 1")
    A(f"s_add_u32 s{S_HQ}, s{S_HQ}, s{S_T0}")
    vi, vG, vt, vt2 = 20, 21, 22, 23
    A(f"s_movk_i32 s{S_G}, 0x78")
    A(f"v_and_b32 v{vi}, 15, v0")
    A(f"v_lshrrev_b32 v{vG}, 4, v0")
    A(f"v_xor_b32 v{vt}, v{vG}, v0")
    A(f"v_and_b32 v{vt}, 7, v{vt}")
    A(f"v_lshlrev_b32 v{vt}, 4, v{vt}")
    A(f"v_lshrrev_b32 v{vt2}, 3, v0")
    A(f"v_mul_u32_u24 v{vt2}, 1280, v{vt2}")
    A(f"v_add_u32 v{V_B}, v{vt}, v{vt2}")
    A(f"v_xor_b32 v{vt}, 64, v{vt}")
    A(f"v_add_u32 v{vt2}, {8*1280}, v{vt2}")
    A(f"v_add_u32 v{V_LX}, v{vt}, v{vt2}")
    A(f"v_lshlrev_b32 v{vt}, 4, v{vi}")
    A(f"v_lshl_add_u32 v{V_W}, v{vG}, 16, v{vt}")
    for r in range(1, 8):
        A(f"v_add_u32 v{V_W+r}, {r*8192}, v{V_W}")
    A("s_bitcmp1_b32 s2, 2")
    A("s_waitcnt lgkmcnt(0)")
    if o.diag:
        A(f"s_mov_b32 s{S_TS}, s54")
        A(f"s_mov_b32 s{S_TS+1}, s56")
        A("s_memtime s[88:89]")
    for dst, a, b in ((S_X, 32, 42), (S_K, 34, 44), (S_V, 36, 46), (S_WQ, 38, 48), (S_WO, 40, 50)):
        A(f"s_cselect_b32 s{dst}, s{b}, s{a}")
        A(f"s_cselect_b32 s{dst+1}, s{b+1}, s{a+1}")
    for dst, n in ((S_X, 1310720), (S_K, 8388608), (S_V, 8388608), (S_WQ, 5242880), (S_WO, 5242880), (S_WS, 268435456)):
        A(f"s_mov_b32 s{dst+2}, {n}")
        A(f"s_mov_b32 s{dst+3}, 0x20000")
    A(f"s_lshl_b32 s{S_C4U}, s{S_HQ}, 2")
    A(f"s_add_u32 s{S_C4U}, s{S_C4U}, s{S_W}")
    A(f"s_lshl_b32 s{S_T1}, s{S_C4U}, 8")
    for r in range(8):
        A(f"v_add_u32 v{V_W+r}, s{S_T1}, v{V_W+r}")
    A(f"s_mul_i32 s{S_KS}, s{S_BP}, 5")
    A(f"s_lshr_b32 s{S_KS}, s{S_KS}, 2")
    if not o.rot:
        A(f"s_mov_b32 s{S_KS}, 0")
    A(f"s_lshl_b32 s{S_KS}, s{S_KS}, 18")
    tab = []
    for ks in range(19):
        tab.append([f"s_add_u32 s{S_KS+ks+1}, s{S_KS+ks}, {1<<18}", f"s_cmp_eq_u32 s{S_KS+ks+1}, {20<<18}", f"s_cselect_b32 s{S_KS+ks+1}, 0, s{S_KS+ks+1}"])
    for t in tab[:2]:
        for x in t:
            A(x)
    tab = tab[2:]

    def wload(s, r):
        dst = vr(slot_rows(s)[r])
        if s < 20:
            pol = o.pw0 if s < o.nfirst else o.pwq
            return g.vm(f"buffer_load_dwordx4 {dst}, v{V_W+r}, s[{S_WQ}:{S_WQ+3}], s{S_KS+s} offen {pol}", f"w{s}")
        v = V_WO0 if r < 4 else V_WO1
        pol = o.pw0 if (s - 20 < o.nfirst or (s >= 36 and o.c4first)) else o.pwo
        return g.vm(f"buffer_load_dwordx4 {dst}, v{v}, s[{S_WO}:{S_WO+3}], s{S_CW+s-20} offen offset:{(r%4)*1280} {pol}", f"w{s}")

    def wsoff(s):
        return None

    def xhalf(second):
        A(f"s_and_b32 s{S_T1}, s{S_HQ}, 1")
        if second:
            A(f"s_xor_b32 s{S_T1}, s{S_T1}, 1")
        if not o.coop:
            A(f"s_mov_b32 s{S_T1}, {second}")
        A(f"s_lshl_b32 s{S_T0}, s{S_BP}, 2")
        A(f"s_add_u32 s{S_T0}, s{S_T0}, s{S_W}")
        A(f"s_mul_i32 s{S_T0}, s{S_T0}, {16*1280}")
        A(f"s_mul_i32 s{S_STMP}, s{S_T1}, 640")
        A(f"s_add_u32 s{S_T0}, s{S_T0}, s{S_STMP}")
        A(f"s_mul_i32 s{S_T1}, s{S_T1}, 20")
        A(f"s_add_u32 s{S_T1}, s{S_T1}, s{S_W}")
        A(f"s_lshl_b32 s{S_T1}, s{S_T1}, 11")
        A(f"s_add_u32 m0, s{S_T1}, {LDS_X}")
        A("s_nop 0")
        for n in range(10):
            kb, m = n // 2, n % 2
            A(g.vm(f"buffer_load_dwordx4 v{V_LX if m else V_B}, s[{S_X}:{S_X+3}], s{S_T0} offen offset:{kb*128} {o.pxb if second else o.px} lds", "x"))
            if n < 9:
                A(f"s_add_u32 m0, m0, {1024 if m == 0 else 8192-128-1024}")
                if tab:
                    for x in tab.pop(0):
                        A(x)
                else:
                    A("s_nop 0")
    for ni, item in enumerate(o.order.split(",")):
        if o.diag and ni in (1, 2, 3):
            A(f"s_memtime s[{88+2*ni}:{89+2*ni}]") if ni < 2 else A(f"s_memtime s[{68+2*ni}:{69+2*ni}]")
        if item == "xa":
            xhalf(0)
        elif item == "xb":
            xhalf(1)
        else:
            sw = int(item[1:])
            A(wsoff(sw))
            for r in range(8):
                A(wload(sw, r))
    assert not tab
    A(f"s_mov_b32 s{S_T0}, s{S_C4U}")
    if o.diag:
        A("s_waitcnt lgkmcnt(0)")
        A("v_mov_b32 v24, 0")
        for k, sr in ((11, 88), (12, 90), (14, 72), (15, 74)):
            A(f"v_writelane_b32 v24, s{sr}, {k}")
    A(f"s_lshl_b32 s{S_KV}, s{S_BP}, 6")
    A(f"s_add_u32 s{S_KV}, s{S_KV}, s{S_T0}")
    A(f"s_lshl_b32 s{S_KV}, s{S_KV}, 13")
    A(f"s_add_u32 s{S_KV+1}, s{S_KV}, 4096")
    A(f"s_add_u32 s{S_KV+2}, s{S_KV}, 262144")
    A(f"s_add_u32 s{S_KV+3}, s{S_KV}, {262144+4096}")
    A(f"s_lshl_b32 s{S_KLDS}, s{S_W}, 14")
    A(f"s_mov_b32 s{S_PLO}, 0x05040100")
    A(f"s_mov_b32 s{S_PHI}, 0x07060302")
    A(f"s_mov_b32 s{S_SC}, 0x3e0293ee")
    A(f"s_mul_i32 s{S_T0}, s{S_HQ}, {512*1280}")
    A(f"s_lshl_b32 s{S_T1}, s{S_W}, 8")
    A(f"s_add_u32 s{S_T1}, s{S_T1}, s{S_T0}")
    for n in range(16):
        if o.rot:
            A(f"s_add_u32 s{S_STMP}, s{S_BP}, {n}")
            A(f"s_and_b32 s{S_STMP}, s{S_STMP}, 15")
        else:
            A(f"s_mov_b32 s{S_STMP}, {n}")
        A(f"s_and_b32 s{S_C4U}, s{S_STMP}, 3")
        A(f"s_lshr_b32 s{S_STMP}, s{S_STMP}, 2")
        A(f"s_lshl_b32 s{S_STMP}, s{S_STMP}, 4")
        A(f"s_add_u32 s{S_STMP}, s{S_STMP}, s{S_C4U}")
        A(f"s_mul_i32 s{S_STMP}, s{S_STMP}, {8*1280}")
        A(f"s_add_u32 s{S_CW+n}, s{S_STMP}, s{S_T1}")
    A(f"s_mul_i32 s{S_T1}, s{S_W}, {128*1280}")
    A(f"s_add_u32 s{S_T1}, s{S_T1}, s{S_T0}")
    A(f"s_add_u32 s{S_T1}, s{S_T1}, 1024")
    for n in range(4):
        A(f"s_add_u32 s{S_CW+16+n}, s{S_T1}, {n*8*1280}")
    A(f"s_lshr_b32 s{S_T0}, s2, 2")
    A(f"s_and_b32 s{S_T0}, s{S_T0}, 1")
    A(f"s_lshl_b32 s{S_T0}, s{S_T0}, 4")
    A(f"s_add_u32 s{S_T0}, s{S_T0}, s{S_BP}")
    A(f"s_lshl_b32 s{S_T0}, s{S_T0}, 3")
    A(f"s_add_u32 s{S_T0}, s{S_T0}, s{S_HQ}")
    A(f"s_mul_i32 s{S_ST}, s{S_T0}, 81920")
    if o.fuse:
        if o.diag:
            A(f"s_mov_b32 vcc_hi, s2")
        A(f"s_mov_b32 s2, s{S_T0}")
        A(f"s_cmp_lg_u32 s{S_W}, 0")
        A("s_cbranch_scc1 L_noclr")
        A(f"s_lshl_b32 s{S_T0}, s2, 7")
        A(f"s_add_u32 s{S_T0}, s{S_T0}, {WS_FLAG}")
        A(f"v_mov_b32 v{V_TMP}, 0")
        A("s_mov_b64 exec, 1")
        A(f"buffer_store_dword v{V_TMP}, off, s[{S_WS}:{S_WS+3}], s{S_T0} sc1")
        A("s_mov_b64 exec, -1")
        g.lab("L_noclr")
    A(f"v_xor_b32 v{vt}, v{vi}, v{vG}")
    A(f"v_lshlrev_b32 v{vt}, 4, v{vt}")
    A(f"v_lshl_add_u32 v{V_KG}, v{vG}, 8, v{vt}")
    A(f"v_lshlrev_b32 v{vt}, 4, v{vi}")
    A(f"v_lshl_add_u32 v{V_VG}, v{vG}, 10, v{vt}")
    A(f"v_mul_u32_u24 v{V_WO0}, {32*1280}, v{vG}")
    A(f"v_add_u32 v{V_WO0}, v{V_WO0}, v{vt}")
    A(f"v_add_u32 v{V_WO1}, {4*1280}, v{V_WO0}")
    A(f"v_lshrrev_b32 v{vt}, 1, v{vi}")
    A(f"v_xor_b32 v{vt}, v{vt}, v{vG}")
    A(f"v_lshlrev_b32 v{vt}, 4, v{vt}")
    A(f"v_lshl_add_u32 v{V_LX}, v{vi}, 7, v{vt}")
    for n in range(20):
        A(f"s_lshr_b32 s{S_STMP}, s{S_KS+n}, 19")
        A(f"s_lshl_b32 s{S_STMP}, s{S_STMP}, 13")
        A(f"s_bfe_u32 s{S_C4U}, s{S_KS+n}, 0x10012")
        A(f"s_lshl_b32 s{S_C4U}, s{S_C4U}, 6")
        A(f"s_add_u32 s{S_STMP}, s{S_STMP}, {LDS_X}")
        A(f"s_or_b32 s{S_XC+n}, s{S_STMP}, s{S_C4U}")
    A(f"s_and_b32 s{S_GRP}, s{S_BP}, {o.ng-1}")
    if o.diag:
        A(f"v_mov_b32 v{V_TID}, v24")
        A(f"v_writelane_b32 v{V_TID}, s{S_TS}, 10")
        A(f"v_writelane_b32 v{V_TID}, s{S_TS+1}, 13")
        g.stamp(0)

    def kload(n):
        bt, m = n // 8, n % 8
        ins = []
        if m % 4 == 0:
            ins.append(f"s_add_u32 m0, s{S_KLDS}, {bt*8192 + (m//4)*4096}")
        ins.append(f"v_xor_b32 v{V_TMP}, {GFUN[m%4] << 6}, v{V_KG}")
        ins.append(("vm", f"buffer_load_dwordx4 v{V_TMP}, s[{S_K}:{S_K+3}], s{S_KV+bt*2+m//4} offen offset:{(m%4)*1024} {o.pk} lds", "k"))
        return ins

    def vload(n):
        bt, r = n // 8, n % 8
        return [("vm", f"buffer_load_dwordx4 {ar(A_V+n*4)}, v{V_VG}, s[{S_V}:{S_V+3}], s{S_KV+bt*2+r//4} offen offset:{(r%4)*256} {o.pv}", "v")]

    def baddr(s):
        if s < 20:
            return [f"v_xor_b32 v{V_B}, s{S_XC+s}, v{V_LX}"]
        if s < 36:
            return [f"v_add_u32 v{V_B}, s{S_CL}, v{V_LX}", f"s_add_u32 s{S_CL}, s{S_CL}, 4096", f"s_and_b32 s{S_CL}, s{S_CL}, 0xffff"]
        return []

    def breads(s):
        buf = A_B + (s % 2) * 16
        if s < 20:
            return [f"ds_read_b128 {ar(buf+q*4)}, v{V_B} offset:{q*2048}" for q in range(4)]
        if s < 36:
            return [f"ds_read_b128 {ar(buf+q*4)}, v{V_B} offset:{q*1024}" for q in range(4)]
        return [f"ds_read_b128 {ar(buf+q*4)}, v{V_W+q} offset:{(s-36)*4096}" for q in range(4)]

    def bread(s):
        return baddr(s) + breads(s)

    def emit(ins):
        if isinstance(ins, tuple):
            A(g.vm(ins[1], ins[2]))
        elif callable(ins):
            r = ins()
            if r:
                A(r)
        else:
            A(ins)

    def step(s, first, last, extra, preperm=True, prefetchB=True):
        fill = [[] for _ in range(32)]
        rows = slot_rows(s)
        buf = A_B + (s % 2) * 16
        for t in range(3):
            for n, p in enumerate(perms(rows, t + 1, PERM + ((t + 1) % 2) * 8)):
                fill[t * 8 + (n // 2) * 2].append(p)
        late = o.spread
        if late and s >= 1 and s + 2 < 40 and s != 20:
            for n, r in enumerate(range(8 - late, 8)):
                fill[11 + 2 * n].append(lambda r=r: wload(s + 2, r))
        if not last:
            ba = baddr(s + 1)
            g0 = 1
            if ba:
                fill[g0].append(ba[0])
                fill[g0] += ba[1:2]
                fill[17] += ba[2:]
                g0 += 2
            for n, x in enumerate(breads(s + 1)):
                fill[g0 + n * 2].append(x)
            fill[21].append(lambda: g.waitvm(f"w{s+1}"))
            for n, p in enumerate(perms(slot_rows(s + 1), 0, PERM)):
                fill[24 + (n // 2) * 2].append(p)
            fill[19].append("s_waitcnt lgkmcnt(0)")
        if s + 3 < 40:
            gaps = [23, 25, 27, 29, 31] if late >= 3 else [23, 24, 25, 26, 27, 28, 29, 31]
            for r in range(8 - late):
                fill[gaps[r]].append(lambda r=r: wload(s + 3, r))
        if o.diag and o.steps:
            fill[28].append(f"s_memtime s[{S_TS}:{S_TS+1}]")
            fill[31].append("s_waitcnt lgkmcnt(0)")
            fill[31].append(f"v_writelane_b32 v{V_TID}, s{S_TS}, {16+s}")
        for k, v in extra.items():
            fill[k] = fill[k] + v
        n = 0
        for t in range(4):
            for e in range(2):
                for q in range(4):
                    j = 2 * t + e
                    if s < 36:
                        d = vr(ACC + q * 32 + j * 4)
                    else:
                        d = ar(A_C4 + q * 32 + j * 4)
                    A(mfma(d, vr(PERM + (t % 2) * 8 + e * 4), ar(buf + q * 4), "0" if first else d))
                    for x in fill[n]:
                        if o.exp and 24 <= s < 34:
                            if isinstance(x, str) and "noperm" in o.exp and x.startswith("v_perm"):
                                continue
                            if isinstance(x, str) and "nods" in o.exp and x.startswith("ds_read"):
                                continue
                            if callable(x) and "noload" in o.exp:
                                r = x()
                                if not (r and r.startswith("buffer_load")):
                                    A(r)
                                continue
                        emit(x)
                    n += 1

    A(g.waitvm("x"))
    A("s_barrier")
    for x in bread(0):
        A(x)
    A(g.waitvm("w0"))
    for p in perms(slot_rows(0), 0, PERM):
        A(p)
    A("s_waitcnt lgkmcnt(0)")
    g.stamp(1)
    kvn = 0
    kst = [int(x) for x in o.kst.split(",")] if o.kst else []
    vst = [int(x) for x in o.vst.split(",")] if o.vst else []

    def burst(grp, fn, name):
        def f():
            out = []
            if o.ng > 1:
                out += [f"s_cmp_lg_u32 s{S_GRP}, {grp}", f"s_cbranch_scc1 L_{name}{grp}"]
            for n in range(16):
                for x in fn(n):
                    out.append(g.vm(x[1], x[2], grp) if isinstance(x, tuple) else x)
            t = "\n    ".join(out)
            if o.ng > 1:
                t += f"\nL_{name}{grp}:"
            return t
        return f
    for s in range(20):
        extra = {}
        if kst:
            for grp in range(o.ng):
                if kst[grp] == s:
                    extra.setdefault(31, []).append(burst(grp, kload, "kb"))
                if vst[grp] == s:
                    extra.setdefault(31, []).append(burst(grp, vload, "vb"))
        elif o.kv0 <= s and kvn < 16:
            for c in range(o.kvper):
                if kvn < 16:
                    extra.setdefault(10 + c * 6, []).extend(kload(kvn))
                    extra.setdefault(13 + c * 6, []).extend(vload(kvn))
                    kvn += 1
        step(s, s == 0, s == 19, extra)
    assert kvn == 16 or kst
    for r in range(8 - o.spread, 8):
        A(wload(22, r))
    g.stamp(2)

    vi, vG, vt, KA = 6, 7, 8, 2
    if o.fuse:
        A(f"s_load_dwordx2 s[{S_OUT}:{S_OUT+1}], s[0:1], 80")
        A(f"s_load_dwordx2 s[{S_DBG}:{S_DBG+1}], s[0:1], 88")
        A(f"s_mov_b32 s{S_OUT+2}, 2621440")
        A(f"s_mov_b32 s{S_DBG+2}, 256")
    A(f"s_movk_i32 s{S_G}, 0x78")
    A(f"v_lshrrev_b32 v{vG}, 10, v{V_VG}")
    A(f"v_bfe_u32 v{vi}, v{V_VG}, 4, 4")
    A(f"v_lshrrev_b32 v{vt}, 2, v{vi}")
    A(f"v_lshlrev_b32 v{vt}, 1, v{vt}")
    A(f"v_lshrrev_b32 v{vt}, v{vt}, s{S_G}")
    A(f"v_xor_b32 v{vt}, v{vt}, v{vG}")
    A(f"v_and_b32 v{vt}, 3, v{vt}")
    A(f"v_lshlrev_b32 v{vt}, 2, v{vt}")
    A(f"v_and_or_b32 v{vt}, v{vi}, 3, v{vt}")
    A(f"v_lshlrev_b32 v{vt}, 4, v{vt}")
    A(f"v_lshl_add_u32 v{vt}, v{vi}, 8, v{vt}")
    A(f"v_add_u32 v{KA}, s{S_KLDS}, v{vt}")
    for u in range(1, 4):
        A(f"v_xor_b32 v{KA+u}, {u*16}, v{KA}")
    A(f"v_lshlrev_b32 v{V_LX}, 8, v{vG}")
    A(f"v_lshl_add_u32 v{V_LX}, v{vi}, 4, v{V_LX}")
    A(g.waitvm("k"))
    if o.fuse:
        A("s_waitcnt lgkmcnt(0)")

    def kread(bt):
        for kb in range(2):
            for u in range(4):
                A(f"ds_read_b128 {ar(A_K+((bt*2+kb)*4+u)*4)}, v{KA+u} offset:{bt*8192+kb*4096}")
    QB = [PERM, 128, 144, 160]
    SA = 176
    cv = []
    for q in range(4):
        c = []
        for t in range(4):
            for u in range(4):
                c.append(f"v_cvt_pk_bf16_f32 v{QB[q]+u*4+t}, v{ACC+q*32+(2*t)*4+u}, v{ACC+q*32+(2*t+1)*4+u}")
        cv.append(c)
    kread(0)
    for x in cv[0]:
        A(x)
    A("s_waitcnt lgkmcnt(4)")
    kread(1)
    for x in cv[1]:
        A(x)
    A("s_waitcnt lgkmcnt(8)")

    def smfma(bt):
        r = []
        for u in range(4):
            for kb in range(2):
                for qq in range(2):
                    d = vr(SA + ((bt * 2 + kb) * 2 + qq) * 4)
                    r.append(mfma(d, ar(A_K + ((bt * 2 + kb) * 4 + u) * 4), vr(QB[bt * 2 + qq] + u * 4), "0" if u == 0 else d))
        return r
    s0 = smfma(0)
    rest = cv[2] + cv[3]
    A("s_nop 1")
    for n in range(16):
        A(s0[n])
        A(rest[2 * n])
        A(rest[2 * n + 1])
    A("s_waitcnt lgkmcnt(0)")
    A("s_nop 1")
    s1 = smfma(1)

    PB = 208
    TM = 224

    def softmax(q):
        bt, qq = q // 2, q % 2
        sv = [SA + ((bt * 2 + kb) * 2 + qq) * 4 + r for kb in range(2) for r in range(4)]
        m, t2 = TM + q * 4, TM + q * 4 + 1
        ph = []
        ph.append([f"v_max3_f32 v{m}, v{sv[0]}, v{sv[1]}, v{sv[2]}",
                   f"v_max3_f32 v{t2}, v{sv[3]}, v{sv[4]}, v{sv[5]}",
                   f"v_max3_f32 v{m}, v{m}, v{sv[6]}, v{sv[7]}",
                   f"v_max_f32 v{m}, v{m}, v{t2}",
                   f"v_mov_b32 v{t2}, v{m}"])
        ph.append([f"v_permlane32_swap_b32 v{m}, v{t2}"])
        ph.append([f"v_max_f32 v{m}, v{m}, v{t2}", f"v_mov_b32 v{t2}, v{m}"])
        ph.append([f"v_permlane16_swap_b32 v{m}, v{t2}"])
        ph.append([f"v_max_f32 v{m}, v{m}, v{t2}", f"v_mul_f32 v{m}, s{S_SC}, v{m}"] +
                  [f"v_fma_f32 v{x}, v{x}, s{S_SC}, -v{m}" for x in sv] +
                  [f"v_exp_f32 v{x}, v{x}" for x in sv])
        ph.append([f"v_add_f32 v{m}, v{sv[0]}, v{sv[1]}", f"v_add_f32 v{t2}, v{sv[2]}, v{sv[3]}",
                   f"v_add_f32 v{m}, v{m}, v{sv[4]}", f"v_add_f32 v{t2}, v{t2}, v{sv[5]}",
                   f"v_add_f32 v{m}, v{m}, v{sv[6]}", f"v_add_f32 v{t2}, v{t2}, v{sv[7]}",
                   f"v_add_f32 v{m}, v{m}, v{t2}", f"v_mov_b32 v{t2}, v{m}"])
        ph.append([f"v_permlane32_swap_b32 v{m}, v{t2}"])
        ph.append([f"v_add_f32 v{m}, v{m}, v{t2}", f"v_mov_b32 v{t2}, v{m}"])
        ph.append([f"v_permlane16_swap_b32 v{m}, v{t2}"])
        ph.append([f"v_add_f32 v{m}, v{m}, v{t2}"])
        ph.append([f"v_rcp_f32 v{m}, v{m}"])
        ph.append([f"v_mul_f32 v{x}, v{x}, v{m}" for x in sv])
        ph.append([f"v_cvt_pk_bf16_f32 v{PB+q*4+p}, v{sv[2*p]}, v{sv[2*p+1]}" for p in range(4)])
        return ph

    def softmax_pair(q0):
        a, b = softmax(q0), softmax(q0 + 1)
        out = []
        for pa, pb in zip(a, b):
            if pa[0].startswith("v_permlane"):
                out.append("s_nop 1")
            out += pa + pb
            if pa[0].startswith("v_rcp") or pa[0].startswith("v_permlane"):
                out.append("s_nop 0")
        return out
    sm0 = softmax_pair(0)
    for n in range(16):
        A(s1[n])
        if n >= 4:
            for _ in range(2):
                A(sm0.pop(0))
    for x in sm0:
        A(x)
    for x in softmax_pair(2):
        A(x)
    g.stamp(3)
    A(g.waitvm("v"))
    OA = 128
    VT = 192
    VP1 = 224
    STG = 200

    def vperm(bt, t, dst):
        r = [f"v_accvgpr_read_b32 v{VT+x}, a{A_V+bt*32+x*4+t}" for x in range(8)]
        for e in range(2):
            for p in range(4):
                r.append(f"v_perm_b32 v{dst+e*4+p}, v{VT+2*p+1}, v{VT+2*p}, s{S_PLO if e == 0 else S_PHI}")
        return r
    for x in vperm(0, 0, PERM):
        A(x)
    for t in range(4):
        nxt = vperm(0, t + 1, PERM + ((t + 1) % 2) * 8) if t < 3 else vperm(1, 0, VP1)
        A("s_nop 1") if t == 0 else None
        k = 0
        for e in range(2):
            for qq in range(2):
                A(mfma(vr(OA + qq * 32 + (2 * t + e) * 4), vr(PERM + (t % 2) * 8 + e * 4), vr(PB + qq * 4), "0"))
                for x in nxt[k * 4:k * 4 + 4]:
                    A(x)
                k += 1
        A("s_nop 0")
    for t in range(1, 4):
        for x in vperm(1, t, VP1 + t * 8):
            A(x)
    A(f"v_add_u32 v{V_B}, s{S_KLDS}, v{V_LX}")

    def ocvt(bt, qq):
        r = []
        for u in range(4):
            st = STG + (u % 2) * 4
            for t in range(4):
                r.append(f"v_cvt_pk_bf16_f32 v{st+t}, v{OA+qq*32+(2*t)*4+u}, v{OA+qq*32+(2*t+1)*4+u}")
            r.append(f"ds_write_b128 v{V_B}, {vr(st)} offset:{u*4096+(bt*2+qq)*1024}")
        return r

    def pv1(qq):
        return [mfma(vr(OA + qq * 32 + j * 4), vr(VP1 + j * 4), vr(PB + (2 + qq) * 4), "0") for j in range(8)]
    for x in ocvt(0, 0):
        A(x)
    c = ocvt(0, 1)
    for mm in pv1(0):
        A(mm)
        for _ in range(3):
            if c:
                A(c.pop(0))
    assert not c
    m1 = pv1(1)
    c = ocvt(1, 0)
    for n, mm in enumerate(m1):
        A(mm)
    A("s_waitcnt lgkmcnt(4)")
    for x in c:
        A(x)
    for x in ocvt(1, 1):
        A(x)
    A(f"s_lshl_b32 s{S_T0}, s{S_W}, 10")
    A(f"v_add_u32 v{V_W}, s{S_T0}, v{V_B}")
    for x in range(1, 4):
        A(f"v_xor_b32 v{V_W+x}, {x*1024}, v{V_W}")
    A(f"s_lshl_b32 s{S_CL}, s{S_BP}, 12" if o.rot else f"s_mov_b32 s{S_CL}, 0")
    A(g.waitvm("w20"))
    if o.fuse:
        A(f"s_cmp_lg_u32 s{S_W}, 0")
        A("s_cbranch_scc1 L_noann")
        A(f"s_lshr_b32 s{S_T0}, s2, 3")
        A(f"s_lshl_b32 s{S_T0}, s{S_T0}, 2")
        A(f"s_add_u32 s{S_T0}, s{S_T0}, 128")
        A(f"v_mov_b32 v{V_TMP}, 1")
        A("s_mov_b64 exec, 1")
        A(f"buffer_atomic_add v{V_TMP}, off, s[{S_DBG}:{S_DBG+3}], s{S_T0} sc1")
        A("s_mov_b64 exec, -1")
        g.lab("L_noann")
    for p in perms(slot_rows(20), 0, PERM):
        A(p)
    A("s_waitcnt lgkmcnt(0)")
    A("s_barrier")
    for x in bread(20):
        A(x)
    A("s_waitcnt lgkmcnt(0)")
    g.stamp(4)

    for s in range(20, 36):
        extra = {}
        if o.c4pre and s == o.c4pre:
            extra[17] = [f"s_mul_i32 s{S_T0}, s{S_BP}, {8*1280}", f"s_add_u32 s{S_T0}, s{S_T0}, s{S_CW+16}"]
            extra[19] = [f"v_lshrrev_b32 v{V_TMP}, 8, v{V_LX}", f"v_mul_u32_u24 v{V_TMP}, {1280-256}, v{V_TMP}"]
            extra[21] = [f"v_add_u32 v{V_TMP}, v{V_TMP}, v{V_LX}"]
            extra[31] = [("vm", f"buffer_load_dwordx4 {ar(0)}, v{V_TMP}, s[{S_WO}:{S_WO+3}], s{S_T0} offen", "pre"),
                         f"s_add_u32 s{S_T0}, s{S_T0}, {4*1280}",
                         ("vm", f"buffer_load_dwordx4 {ar(4)}, v{V_TMP}, s[{S_WO}:{S_WO+3}], s{S_T0} offen", "pre")]
        step(s, s == 20, False, extra)
    g.stamp(5)
    ST2 = V_W + 4
    stg = [6, 12]
    outs = []
    A(f"s_lshl_b32 s{S_T0}, s{S_W}, 14")
    A(f"s_add_u32 s{S_T0}, s{S_T0}, s{S_ST}")
    for q in range(4):
        A(f"s_add_u32 s{S_KS+q}, s{S_T0}, {q*4096}")
    for q in range(4):
        for r in range(4):
            st = stg[r % 2]
            for t in range(4):
                outs.append(f"v_cvt_pk_bf16_f32 v{st+t}, v{ACC+q*32+(2*t)*4+r}, v{ACC+q*32+(2*t+1)*4+r}")
            outs.append(("vm", f"buffer_store_dwordx4 {vr(st)}, v{V_LX}, s[{S_WS}:{S_WS+3}], s{S_KS+q} offen offset:{r*1024} {o.pst}", "st"))
    ex36 = {}
    if o.fuse:
        ex36 = {13: [f"s_lshr_b32 s{S_KS+4}, s2, 3"], 15: [f"s_lshl_b32 s{S_KS+4}, s{S_KS+4}, 2"], 17: [f"s_add_u32 s{S_KS+4}, s{S_KS+4}, 128"],
                31: [("vm", f"buffer_load_dword v{V_B}, off, s[{S_DBG}:{S_DBG+3}], s{S_KS+4} sc1", "clr")]}
    step(36, True, False, ex36)
    for s in range(37, 40):
        extra = {}
        lo = 11 + 2 * o.spread if (s == 37 and o.spread) else 0
        for k in range(lo, 32):
            if outs:
                extra[k] = [outs.pop(0)]
                if s == 39 and k >= 24 and outs:
                    extra[k].append(outs.pop(0))
        step(s, False, s == 39, extra)
    for x in outs:
        emit(x)
    g.stamp(6)
    for x in range(1, 4):
        A(f"s_xor_b32 s{S_T0}, s{S_W}, {x}")
        A(f"s_mul_i32 s{S_T0}, s{S_T0}, {3*8192}")
        A(f"s_add_u32 s{S_T0}, s{S_T0}, {LDS_R + (x-1)*8192}")
        A(f"v_add_u32 v{V_W+x}, s{S_T0}, v{V_LX}")
    A(f"s_mul_i32 s{S_T0}, s{S_W}, {3*8192}")
    A(f"s_add_u32 s{S_T0}, s{S_T0}, {LDS_R}")
    A(f"v_add_u32 v{V_W}, s{S_T0}, v{V_LX}")
    A("s_nop 7")
    for x in range(1, 4):
        for j in range(8):
            A(f"ds_write_b128 v{V_W+x}, {ar(A_C4+x*32+j*4)} offset:{j*1024}")
        A("s_waitcnt lgkmcnt(6)")
    for n in range(32):
        A(f"v_accvgpr_read_b32 v{ACC+n}, a{A_C4+n}")
    A(f"s_lshl_b32 s{S_T0}, s{S_W}, 12")
    A(f"s_add_u32 s{S_T0}, s{S_T0}, s{S_ST}")
    A(f"s_add_u32 s{S_T0}, s{S_T0}, 65536")
    A("s_waitcnt lgkmcnt(0)")
    A("s_barrier")
    for x in range(3):
        for j in range(8):
            A(f"ds_read_b128 {vr(RING+x*32+j*4)}, v{V_W} offset:{x*8192+j*1024}")
            if x >= 1 and j == 3:
                A("s_waitcnt lgkmcnt(4)")
                for n in range(32):
                    A(f"v_add_f32 v{ACC+n}, v{ACC+n}, v{RING+(x-1)*32+n}")
    A("s_waitcnt lgkmcnt(0)")
    for n in range(32):
        A(f"v_add_f32 v{ACC+n}, v{ACC+n}, v{RING+64+n}")
    for r in range(4):
        st = PERM + r * 4
        for t in range(4):
            A(f"v_cvt_pk_bf16_f32 v{st+t}, v{ACC+(2*t)*4+r}, v{ACC+(2*t+1)*4+r}")
        A(g.vm(f"buffer_store_dwordx4 {vr(st)}, v{V_LX}, s[{S_WS}:{S_WS+3}], s{S_T0} offen offset:{r*1024} {o.pst}", "st"))
    if o.fuse:
        fused_tail(g)
    if o.diag:
        g.stamp(7) if not o.fuse else None
        A("s_waitcnt vmcnt(0)")
        g.stamp(8)
        if o.fuse:
            A("s_mov_b32 s2, vcc_hi")
        A(f"s_memrealtime s[{S_TS}:{S_TS+1}]")
        A("s_waitcnt lgkmcnt(0)")
        A(f"v_writelane_b32 v{V_TID}, s{S_TS}, 9")
        A(f"s_lshl_b32 s{S_T0}, s2, 2")
        A(f"s_add_u32 s{S_T0}, s{S_T0}, s{S_W}")
        A(f"s_lshl_b32 s{S_T0}, s{S_T0}, 8")
        A(f"s_add_u32 s{S_T0}, s{S_T0}, 0x8000000")
        A(f"v_lshrrev_b32 v{V_TMP}, 2, v{V_LX}")
        A(f"buffer_store_dword v{V_TID}, v{V_TMP}, s[{S_WS}:{S_WS+3}], s{S_T0} offen")
        if o.diag == 3 and o.fuse:
            A(f"s_lshl_b32 s{S_T0}, s2, 2")
            A(f"s_add_u32 s{S_T0}, s{S_T0}, s{S_W}")
            A(f"s_cmp_lg_u32 s{S_T0}, {o.sel}")
            A("s_cbranch_scc1 L_main_end")
            A(f"v_readlane_b32 s{S_T0}, v{V_TID}, 56")
            A(f"v_readlane_b32 s{S_T1}, v{V_TID}, 57")
            A(f"v_readlane_b32 s{S_STMP}, v{V_TID}, 58")
            A("s_nop 3")
            A(f"v_writelane_b32 v{V_TID}, s{S_T0}, 12")
            A(f"v_writelane_b32 v{V_TID}, s{S_T1}, 14")
            A(f"v_writelane_b32 v{V_TID}, s{S_STMP}, 15")
            A("s_mov_b64 exec, 0xffff")
            A(f"buffer_store_dword v{V_TID}, v{V_TMP}, s[{S_DBG}:{S_DBG+3}], 0 offen")
        if o.diag == 2:
            A("s_load_dwordx2 s[32:33], s[0:1], 88")
            A("v_readlane_b32 s36, v0, 10")
            A("v_readlane_b32 s37, v0, 8")
            A("s_mov_b32 s34, 64")
            A("s_mov_b32 s35, 0x20000")
            A("s_not_b32 s36, s36")
            A("s_not_b32 s37, s37")
            A("v_writelane_b32 v0, s36, 11")
            A("v_writelane_b32 v0, s37, 12")
            A("s_waitcnt lgkmcnt(0)")
            A(f"buffer_atomic_umax v0, v{V_TMP}, s[32:35], 0 offen sc1")
    g.lab("L_main_end")
    A("s_endpgm")


def fused_tail(g):
    o = g.o
    A = g.A
    T = S_KS
    g.stamp(7)
    A(f"s_lshr_b32 s{T+5}, s2, 3")
    A(f"s_and_b32 s{T+6}, s2, 7")
    A(f"s_mul_i32 s{T+7}, s{T+5}, 655360")
    A(f"s_lshl_b32 s{T+8}, s{T+6}, 3")
    A(f"s_lshl_b32 s{T+9}, s{S_W}, 1")
    A(f"s_add_u32 s{T+8}, s{T+8}, s{T+9}")
    A(f"s_lshl_b32 s{T+9}, s{T+6}, 1")
    A(f"s_lshr_b32 s{T+10}, s{S_W}, 1")
    A(f"s_add_u32 s{T+9}, s{T+9}, s{T+10}")
    A(f"s_add_u32 s{T+9}, s{T+9}, 64")
    A(f"s_lshl_b32 s{T+10}, s{T+8}, 10")
    A(f"s_add_u32 s{T+10}, s{T+10}, s{T+7}")
    A(f"s_lshl_b32 s{T+11}, s{T+9}, 10")
    A(f"s_add_u32 s{T+11}, s{T+11}, s{T+7}")
    A(f"s_and_b32 s{T+12}, s{T+5}, 15")
    A(f"s_mul_i32 s{T+12}, s{T+12}, {4*40960}")
    A(f"s_lshr_b32 s{T+13}, s{T+5}, 4")
    A(f"s_mul_i32 s{T+13}, s{T+13}, 1280")
    A(f"s_add_u32 s{T+12}, s{T+12}, s{T+13}")
    for blk, dst in ((T+8, T+14), (T+9, T+15)):
        A(f"s_bfe_u32 s{T+13}, s{blk}, 0x20002")
        A(f"s_mul_i32 s{T+13}, s{T+13}, 40960")
        A(f"s_add_u32 s{dst}, s{T+12}, s{T+13}")
        A(f"s_lshr_b32 s{T+13}, s{blk}, 4")
        A(f"s_lshl_b32 s{T+13}, s{T+13}, 8")
        A(f"s_add_u32 s{dst}, s{dst}, s{T+13}")
        A(f"s_and_b32 s{T+13}, s{blk}, 3")
        A(f"s_lshl_b32 s{T+13}, s{T+13}, 4")
        A(f"s_add_u32 s{dst}, s{dst}, s{T+13}")
    A(f"s_bitcmp1_b32 s{S_W}, 0")
    A(f"s_cselect_b32 s{T+16}, 0, -1")
    A(f"s_cselect_b32 s{T+17}, -1, 0")
    A(f"s_mov_b32 s{T+18}, 0x3f80")
    A(f"s_mov_b32 s{T+19}, 0x3f800000")
    A(f"s_mov_b32 s{T+20}, 0xffff0000")
    VO, VF, VP = 2, 3, 4
    A(f"v_bfe_u32 v{VO}, v{V_LX}, 4, 4")
    A(f"v_lshrrev_b32 v{VF}, 8, v{V_LX}")
    A(f"v_mul_u32_u24 v{VO}, 2560, v{VO}")
    A(f"v_lshl_add_u32 v{VO}, v{VF}, 6, v{VO}")
    A(f"v_lshlrev_b32 v{VF}, 3, v{V_LX}")
    A(f"s_lshl_b32 s{T+21}, s2, 7")
    A(f"s_add_u32 s{T+21}, s{T+21}, {WS_FLAG}")
    A(f"s_lshl_b32 s{T+22}, s{T+5}, 10")
    A(f"s_add_u32 s{T+22}, s{T+22}, {WS_FLAG}")
    A(f"s_mov_b32 s{T+23}, {1<<20}")
    A(f"v_mov_b32 v{VP}, 1")
    A("s_waitcnt vmcnt(0)")
    A("s_barrier")
    g.stamp(56)
    A(f"s_cmp_lg_u32 s{S_W}, 0")
    A("s_cbranch_scc1 L_polled")
    A("s_mov_b64 exec, 1")
    A(f"buffer_store_dword v{VP}, off, s[{S_WS}:{S_WS+3}], s{T+21} sc1")
    g.lab("L_clr")
    A(f"v_readfirstlane_b32 s{T+24}, v{V_B}")
    A(f"s_sub_u32 s{T+23}, s{T+23}, 1")
    A("s_cbranch_scc1 L_polled")
    A(f"s_cmp_eq_u32 s{T+24}, 8")
    A("s_cbranch_scc1 L_poll0")
    A(f"buffer_load_dword v{V_B}, off, s[{S_DBG}:{S_DBG+3}], s{S_KS+4} sc1")
    A("s_waitcnt vmcnt(0)")
    A("s_branch L_clr")
    g.lab("L_poll0")
    A("s_mov_b64 exec, 0xff")
    g.lab("L_poll")
    A(f"buffer_load_dword v{VP}, v{VF}, s[{S_WS}:{S_WS+3}], s{T+22} offen sc1")
    A(f"s_sub_u32 s{T+23}, s{T+23}, 1")
    A("s_cbranch_scc1 L_polled")
    A("s_waitcnt vmcnt(0)")
    A(f"v_cmp_ne_u32 s[{T+24}:{T+25}], 1, v{VP}")
    A("s_nop 3")
    A(f"s_cmp_lg_u32 s{T+24}, 0")
    A("s_cbranch_scc1 L_poll")
    g.lab("L_polled")
    A("s_mov_b64 exec, -1")
    A("s_waitcnt vmcnt(0)")
    A("s_barrier")
    g.stamp(57)
    R = RING
    for h in range(8):
        A(f"buffer_load_dwordx4 {vr(R+h*12)}, v{V_LX}, s[{S_WS}:{S_WS+3}], s{T+10} offen sc1")
        A(f"buffer_load_dwordx4 {vr(R+h*12+4)}, v{V_LX}, s[{S_WS}:{S_WS+3}], s{T+10} offen offset:1024 sc1")
        A(f"s_mov_b64 exec, s[{T+16}:{T+17}]")
        A(f"buffer_load_dwordx4 {vr(R+h*12+8)}, v{V_LX}, s[{S_WS}:{S_WS+3}], s{T+11} offen sc1")
        A("s_mov_b64 exec, -1")
        if h < 7:
            A(f"s_add_u32 s{T+10}, s{T+10}, 81920")
            A(f"s_add_u32 s{T+11}, s{T+11}, 81920")
    for h in range(8):
        for b in range(3):
            A(f"s_waitcnt vmcnt({23-h*3-b})")
            for t in range(4):
                src = R + h * 12 + b * 4 + t
                d = ACC + b * 8 + 2 * t
                if h == 0:
                    A(f"v_lshlrev_b32 v{d}, 16, v{src}")
                    A(f"v_and_b32 v{d+1}, s{T+20}, v{src}")
                else:
                    A(f"v_dot2c_f32_bf16 v{d}, s{T+18}, v{src}")
                    A(f"v_dot2c_f32_bf16 v{d+1}, s{T+19}, v{src}")
    g.stamp(58)
    A("s_nop 1")
    for b in range(3):
        for t in range(4):
            A(f"v_cvt_pk_bf16_f32 v{PERM+b*4+t}, v{ACC+b*8+2*t}, v{ACC+b*8+2*t+1}")
        if b == 2:
            A(f"s_mov_b64 exec, s[{T+16}:{T+17}]")
        A(f"buffer_store_dwordx4 {vr(PERM+b*4)}, v{VO}, s[{S_OUT}:{S_OUT+3}], s{T+14+b//2} offen offset:{16*(b%2)} {o.pout}")
    if o.diag:
        A("s_mov_b64 exec, -1")


def gen_reduce(g):
    o = g.o
    A = g.A
    K = "reduce_kernel"
    g.L.append(f".globl {K}\n.p2align 8\n.type {K},@function")
    g.lab(K)
    A("s_cmp_ge_u32 s2, 640")
    A("s_cbranch_scc1 L_red_end")
    if o.diag >= 2:
        A("s_memrealtime s[20:21]")
    A("s_load_dwordx2 s[4:5], s[0:1], 80")
    A("s_load_dwordx2 s[8:9], s[0:1], 96")
    A("v_lshrrev_b32 v1, 6, v0")
    A("v_and_b32 v0, 63, v0")
    A("v_readfirstlane_b32 s3, v1")
    A("s_lshl_b32 s12, s2, 2")
    A("s_mov_b32 s6, 2621440")
    A("s_mov_b32 s7, 0x20000")
    A("s_mov_b32 s10, 268435456")
    A("s_mov_b32 s11, 0x20000")
    A("s_add_u32 s12, s12, s3")
    A("s_mul_i32 s13, s12, 52429")
    A("s_lshr_b32 s13, s13, 22")
    A("s_mul_i32 s14, s13, 80")
    A("s_sub_u32 s14, s12, s14")
    A("s_mul_i32 s15, s13, 655360")
    A("s_lshl_b32 s16, s14, 10")
    A("s_add_u32 s15, s15, s16")
    A("v_lshlrev_b32 v1, 4, v0")
    A("s_waitcnt lgkmcnt(0)")
    for h in range(8):
        A(f"buffer_load_dwordx4 {vr(4+h*4)}, v1, s[8:11], s15 offen {o.pld}")
        if h < 7:
            A("s_add_u32 s15, s15, 81920")
    A("s_and_b32 s16, s13, 15")
    A("s_lshl_b32 s16, s16, 2")
    A("s_bfe_u32 s17, s14, 0x20002")
    A("s_add_u32 s16, s16, s17")
    A("s_mul_i32 s16, s16, 40960")
    A("s_lshr_b32 s17, s13, 4")
    A("s_mul_i32 s17, s17, 1280")
    A("s_add_u32 s16, s16, s17")
    A("s_lshr_b32 s17, s14, 4")
    A("s_lshl_b32 s17, s17, 8")
    A("s_add_u32 s16, s16, s17")
    A("s_and_b32 s17, s14, 3")
    A("s_lshl_b32 s17, s17, 4")
    A("s_add_u32 s16, s16, s17")
    A("v_and_b32 v2, 15, v0")
    A("v_lshrrev_b32 v3, 4, v0")
    A("v_mul_u32_u24 v2, 2560, v2")
    A("v_lshl_add_u32 v2, v3, 6, v2")
    A("s_mov_b32 s18, 0xffff0000")
    for h in range(8):
        A(f"s_waitcnt vmcnt({7-h})")
        for t in range(4):
            src = 4 + h * 4 + t
            if h == 0:
                A(f"v_lshlrev_b32 v{40+2*t}, 16, v{src}")
                A(f"v_and_b32 v{41+2*t}, s18, v{src}")
            else:
                A(f"v_lshlrev_b32 v{48+2*t}, 16, v{src}")
                A(f"v_and_b32 v{49+2*t}, s18, v{src}")
        if h:
            for n in range(8):
                A(f"v_add_f32 v{40+n}, v{40+n}, v{48+n}")
    for t in range(4):
        A(f"v_cvt_pk_bf16_f32 v{4+t}, v{40+2*t}, v{41+2*t}")
    A(f"buffer_store_dwordx4 {vr(4)}, v2, s[4:7], s16 offen")
    if o.diag == 2:
        A("s_waitcnt vmcnt(0)")
        A("s_memrealtime s[22:23]")
        A("s_load_dwordx2 s[24:25], s[0:1], 88")
        A("s_mov_b32 s26, 64")
        A("s_mov_b32 s27, 0x20000")
        A("s_waitcnt lgkmcnt(0)")
        A("v_mov_b32 v8, 0")
        A("s_not_b32 s21, s20")
        A("v_writelane_b32 v8, s20, 13")
        A("v_writelane_b32 v8, s21, 14")
        A("v_writelane_b32 v8, s22, 15")
        A("v_lshlrev_b32 v9, 2, v0")
        A("buffer_atomic_umax v8, v9, s[24:27], 0 offen sc1")
    if o.diag == 3:
        A("s_cmp_lg_u32 s12, 2000")
        A("s_cbranch_scc1 L_red_end")
        A("s_waitcnt vmcnt(0)")
        A("s_memrealtime s[22:23]")
        A("s_load_dwordx2 s[24:25], s[0:1], 88")
        A("s_mov_b32 s26, 64")
        A("s_mov_b32 s27, 0x20000")
        A("v_lshlrev_b32 v9, 2, v0")
        A(f"s_mov_b32 s15, {0x8000000 + o.sel*256}")
        A("buffer_load_dword v8, v9, s[8:11], s15 offen sc1")
        A("s_waitcnt vmcnt(0) lgkmcnt(0)")
        A("v_writelane_b32 v8, s20, 14")
        A("v_writelane_b32 v8, s22, 15")
        A("buffer_store_dword v8, v9, s[24:27], 0 offen")
    g.lab("L_red_end")
    A("s_endpgm")


def desc(name, vg, acc, sg):
    return f""".amdhsa_kernel {name}
  .amdhsa_next_free_vgpr {vg}
  .amdhsa_next_free_sgpr {sg}
  .amdhsa_accum_offset {acc}
  .amdhsa_group_segment_fixed_size 0
  .amdhsa_kernarg_size 104
  .amdhsa_user_sgpr_count 2
  .amdhsa_user_sgpr_kernarg_segment_ptr 1
  .amdhsa_system_sgpr_workgroup_id_x 1
.end_amdhsa_kernel"""


def build(o):
    g = Gen(o)
    head = [l.rstrip("\n") for l in open(f"cdna_kernels/{NAME}.s.ref") if l.startswith(";   offset") or l.startswith("; Kernarg")]
    if o.fuse:
        head.append(f"; @launch grid=(256,1,1) block=(256,1,1) lds={LDS_BYTES}")
    else:
        head.append(f"; @launch kernel={NAME}_kernel grid=(256,1,1) block=(256,1,1) lds={LDS_BYTES}")
        head.append(f"; @launch kernel=reduce_kernel grid=(640,1,1) block=(256,1,1) lds=0")
    for _ in range(o.noop):
        head.append(f"; @launch kernel=noop_kernel grid=(1,1,1) block=(64,1,1) lds=0")
    head.append('.amdgcn_target "amdgcn-amd-amdhsa--gfx950"')
    head.append(".text")
    gen_main(g)
    if not o.fuse:
        gen_reduce(g)
    g.lab("L_code_end")
    if o.noop:
        g.L.append(".globl noop_kernel\n.p2align 8\n.type noop_kernel,@function\nnoop_kernel:\n    s_endpgm")
    tail = ['.section .rodata,"a"', ".p2align 6", desc(f"{NAME}_kernel", 512, 256, 102)]
    if not o.fuse:
        tail += [".p2align 6", desc("reduce_kernel", 64, 64, 32)]
    if o.noop:
        tail += [".p2align 6", desc("noop_kernel", 64, 64, 32)]
    return "\n".join(head + g.L + tail) + "\n"


def opts(argv=None):
    p = argparse.ArgumentParser()
    p.add_argument("-o", default=f"cdna_kernels/{NAME}.s")
    p.add_argument("--diag", type=int, default=0)
    p.add_argument("--warm", type=int, default=1)
    p.add_argument("--noop", type=int, default=0)
    p.add_argument("--fuse", type=int, default=0)
    p.add_argument("--c4pre", type=int, default=0)
    p.add_argument("--exp", default="")
    p.add_argument("--steps", type=int, default=0)
    p.add_argument("--ng", type=int, default=1)
    p.add_argument("--kst", default="")
    p.add_argument("--vst", default="")
    p.add_argument("--order", default="xa,xb,w0,w1,w2")
    p.add_argument("--coop", type=int, default=0)
    p.add_argument("--nfirst", type=int, default=0)
    p.add_argument("--c4first", type=int, default=0)
    p.add_argument("--sel", type=int, default=401)
    p.add_argument("--rot", type=int, default=1)
    p.add_argument("--spread", type=int, default=3)
    p.add_argument("--kv0", type=int, default=0)
    p.add_argument("--kvper", type=int, default=1)
    for k, d in (("px", ""), ("pxb", ""), ("pw0", "nt"), ("pwq", ""), ("pwo", ""), ("pk", "nt"), ("pv", "nt"), ("pst", "sc1"), ("pld", ""), ("pout", "")):
        p.add_argument("--" + k, default=d)
    return p.parse_args(argv)


if __name__ == "__main__":
    o = opts()
    open(o.o, "w").write(build(o))
```

```python
import sys, argparse

NAME = "concat_heads__gqa_block_cached__mha_block_cached__near_ridge"

V_TID = 0
V_TMP = 1
V_W = 2
V_B = 10
V_LX = 11
V_KG = 12
V_VG = 13
V_WO0 = 14
V_WO1 = 15
PERM = 16
RING = 32
ACC = 128
A_V = 0
A_B = 64
A_K = 128
A_C4 = 128

S_X, S_K, S_V, S_WQ, S_WO, S_WS = 8, 12, 16, 20, 24, 28
S_W = 3
S_BP = 4
S_HQ = 5
S_T0, S_T1 = 6, 7
S_KS = 32
S_CW = 52
S_XC = 72
S_KV = 8
S_CL = 95
S_ST = 92
S_PLO, S_PHI = 93, 94
S_KLDS = 96
S_SC = 97
S_C4U = 98
S_GRP = 7
S_STMP = 99
S_TS = 100
S_G = 95

S_OUT, S_DBG = 12, 16
WS_FLAG = 0x2000000
LDS_O = 0
LDS_X = 65536
LDS_R = 65536
LDS_BYTES = 163840
GFUN = [0, 2, 3, 1]


class Gen:
    def __init__(self, o):
        self.o = o
        self.L = []
        self.ng = o.ng
        self.vq = [[] for _ in range(self.ng)]
        self.nlab = 0
        self.dq = []

    def A(self, s):
        if s:
            self.L.append("    " + s)

    def lab(self, s):
        self.L.append(s + ":")

    def vm(self, s, tag, grp=None):
        for k, q in enumerate(self.vq):
            if grp is None or grp == k:
                q.append(tag)
                assert len(q) <= 63, "vmcnt overflow"
        return s

    def waitvm(self, tag):
        ns = []
        for k, q in enumerate(self.vq):
            idx = max((i for i, t in enumerate(q) if t == tag), default=-1)
            ns.append(None if idx < 0 else len(q) - 1 - idx)
            self.vq[k] = q[idx + 1:]
        vals = sorted(set(n for n in ns if n is not None))
        if not vals:
            return None
        lo = vals[0]
        big = [k for k, n in enumerate(ns) if n is not None and n > lo]
        if len(big) != 1:
            return f"s_waitcnt vmcnt({lo})"
        self.nlab += 1
        return (f"s_cmp_eq_u32 s{S_GRP}, {big[0]}\n    s_cbranch_scc1 L_w{self.nlab}\n    s_waitcnt vmcnt({lo})\n"
                f"L_w{self.nlab}:\n    s_waitcnt vmcnt({ns[big[0]]})")

    def ds(self, s, tag):
        self.dq.append(tag)
        return s

    def waitds(self, tag):
        idx = max((i for i, t in enumerate(self.dq) if t == tag), default=-1)
        if idx < 0:
            return None
        n = len(self.dq) - 1 - idx
        self.dq = self.dq[idx + 1:]
        return f"s_waitcnt lgkmcnt({min(n, 15)})"

    def stamp(self, k):
        if not self.o.diag:
            return
        A = self.A
        A(f"{'s_memtime' if self.o.diag != 2 else 's_memrealtime'} s[{S_TS}:{S_TS+1}]")
        A("s_waitcnt lgkmcnt(0)")
        A(f"v_writelane_b32 v{V_TID}, s{S_TS}, {k}")


def mfma(d, a, b, c):
    return f"v_mfma_f32_16x16x32_bf16 {d}, {a}, {b}, {c}"


def vr(n, k=4):
    return f"v[{n}:{n+k-1}]"


def ar(n, k=4):
    return f"a[{n}:{n+k-1}]"


def perms(src_rows, t, dst):
    out = []
    for e in range(2):
        for p in range(4):
            sel = S_PLO if e == 0 else S_PHI
            out.append(f"v_perm_b32 v{dst+e*4+p}, v{src_rows[2*p+1]+t}, v{src_rows[2*p]+t}, s{sel}")
    return out


def slot_rows(s):
    return [RING + (s % 3) * 32 + r * 4 for r in range(8)]


def gen_main(g):
    o = g.o
    A = g.A
    K = f"{NAME}_kernel"
    g.L.append(f".globl {K}\n.p2align 8\n.type {K},@function")
    g.lab(K)
    A("s_cmp_ge_u32 s2, 256")
    A("s_cbranch_scc1 L_main_end")
    if o.diag:
        A(f"{'s_memtime' if o.diag != 2 else 's_memrealtime'} s[54:55]")
        A(f"s_memrealtime s[56:57]")
    A("s_load_dwordx16 s[32:47], s[0:1], 0")
    A("s_load_dwordx4 s[48:51], s[0:1], 64")
    A("s_load_dwordx2 s[28:29], s[0:1], 96")
    A(f"v_lshrrev_b32 v{V_TMP}, 6, v0")
    A(f"v_and_b32 v0, 63, v0")
    A(f"v_readfirstlane_b32 s{S_W}, v{V_TMP}")
    A(f"s_lshr_b32 s{S_T0}, s2, 3")
    if o.warm:
        A("s_getpc_b64 s[52:53]")
        g.lab("L_pc")
        A(f"s_sub_u32 s52, s52, L_pc-{K}")
        A("s_subb_u32 s53, s53, 0")
        A(f"s_lshl_b32 s{S_T1}, s{S_T0}, 2")
        A(f"s_add_u32 s{S_T1}, s{S_T1}, s{S_W}")
        A(f"s_min_u32 s{S_T1}, s{S_T1}, (L_code_end-{K})/1024-1")
        A(f"s_lshl_b32 s{S_T1}, s{S_T1}, 10")
        A(f"v_lshl_add_u32 v{V_TMP}, v0, 4, s{S_T1}")
        A(g.vm(f"global_load_dwordx4 {vr(PERM)}, v{V_TMP}, s[52:53]", "warm"))
    A(f"s_lshr_b32 s{S_BP}, s{S_T0}, 1")
    A(f"s_and_b32 s{S_T0}, s{S_T0}, 1")
    A(f"s_and_b32 s{S_HQ}, s2, 3")
    A(f"s_lshl_b32 s{S_HQ}, s{S_HQ}, 1")
    A(f"s_add_u32 s{S_HQ}, s{S_HQ}, s{S_T0}")
    vi, vG, vt, vt2 = 20, 21, 22, 23
    A(f"s_movk_i32 s{S_G}, 0x78")
    A(f"v_and_b32 v{vi}, 15, v0")
    A(f"v_lshrrev_b32 v{vG}, 4, v0")
    A(f"v_xor_b32 v{vt}, v{vG}, v0")
    A(f"v_and_b32 v{vt}, 7, v{vt}")
    A(f"v_lshlrev_b32 v{vt}, 4, v{vt}")
    A(f"v_lshrrev_b32 v{vt2}, 3, v0")
    A(f"v_mul_u32_u24 v{vt2}, 1280, v{vt2}")
    A(f"v_add_u32 v{V_B}, v{vt}, v{vt2}")
    A(f"v_xor_b32 v{vt}, 64, v{vt}")
    A(f"v_add_u32 v{vt2}, {8*1280}, v{vt2}")
    A(f"v_add_u32 v{V_LX}, v{vt}, v{vt2}")
    A(f"v_lshlrev_b32 v{vt}, 4, v{vi}")
    A(f"v_lshl_add_u32 v{V_W}, v{vG}, 16, v{vt}")
    for r in range(1, 8):
        A(f"v_add_u32 v{V_W+r}, {r*8192}, v{V_W}")
    A("s_bitcmp1_b32 s2, 2")
    A("s_waitcnt lgkmcnt(0)")
    if o.diag:
        A(f"s_mov_b32 s{S_TS}, s54")
        A(f"s_mov_b32 s{S_TS+1}, s56")
        A("s_memtime s[88:89]")
    for dst, a, b in ((S_X, 32, 42), (S_K, 34, 44), (S_V, 36, 46), (S_WQ, 38, 48), (S_WO, 40, 50)):
        A(f"s_cselect_b32 s{dst}, s{b}, s{a}")
        A(f"s_cselect_b32 s{dst+1}, s{b+1}, s{a+1}")
    for dst, n in ((S_X, 1310720), (S_K, 8388608), (S_V, 8388608), (S_WQ, 5242880), (S_WO, 5242880), (S_WS, 268435456)):
        A(f"s_mov_b32 s{dst+2}, {n}")
        A(f"s_mov_b32 s{dst+3}, 0x20000")
    A(f"s_lshl_b32 s{S_C4U}, s{S_HQ}, 2")
    A(f"s_add_u32 s{S_C4U}, s{S_C4U}, s{S_W}")
    A(f"s_lshl_b32 s{S_T1}, s{S_C4U}, 8")
    for r in range(8):
        A(f"v_add_u32 v{V_W+r}, s{S_T1}, v{V_W+r}")
    A(f"s_mul_i32 s{S_KS}, s{S_BP}, 5")
    A(f"s_lshr_b32 s{S_KS}, s{S_KS}, 2")
    if not o.rot:
        A(f"s_mov_b32 s{S_KS}, 0")
    A(f"s_lshl_b32 s{S_KS}, s{S_KS}, 18")
    tab = []
    for ks in range(19):
        tab.append([f"s_add_u32 s{S_KS+ks+1}, s{S_KS+ks}, {1<<18}", f"s_cmp_eq_u32 s{S_KS+ks+1}, {20<<18}", f"s_cselect_b32 s{S_KS+ks+1}, 0, s{S_KS+ks+1}"])
    for t in tab[:2]:
        for x in t:
            A(x)
    tab = tab[2:]

    def wload(s, r):
        dst = vr(slot_rows(s)[r])
        if s < 20:
            pol = o.pw0 if s < o.nfirst else o.pwq
            return g.vm(f"buffer_load_dwordx4 {dst}, v{V_W+r}, s[{S_WQ}:{S_WQ+3}], s{S_KS+s} offen {pol}", f"w{s}")
        v = V_WO0 if r < 4 else V_WO1
        pol = o.pw0 if (s - 20 < o.nfirst or (s >= 36 and o.c4first)) else o.pwo
        ci = s - 20 if not o.dp else (s - 4 if s < 24 else s - 24)
        return g.vm(f"buffer_load_dwordx4 {dst}, v{v}, s[{S_WO}:{S_WO+3}], s{S_CW+ci} offen offset:{(r%4)*1280} {pol}", f"w{s}")

    def wsoff(s):
        return None

    def xhalf(second):
        A(f"s_and_b32 s{S_T1}, s{S_HQ}, 1")
        if second:
            A(f"s_xor_b32 s{S_T1}, s{S_T1}, 1")
        if not o.coop:
            A(f"s_mov_b32 s{S_T1}, {second}")
        A(f"s_lshl_b32 s{S_T0}, s{S_BP}, 2")
        A(f"s_add_u32 s{S_T0}, s{S_T0}, s{S_W}")
        A(f"s_mul_i32 s{S_T0}, s{S_T0}, {16*1280}")
        A(f"s_mul_i32 s{S_STMP}, s{S_T1}, 640")
        A(f"s_add_u32 s{S_T0}, s{S_T0}, s{S_STMP}")
        A(f"s_mul_i32 s{S_T1}, s{S_T1}, 20")
        A(f"s_add_u32 s{S_T1}, s{S_T1}, s{S_W}")
        A(f"s_lshl_b32 s{S_T1}, s{S_T1}, 11")
        A(f"s_add_u32 m0, s{S_T1}, {LDS_X}")
        A("s_nop 0")
        for n in range(10):
            kb, m = n // 2, n % 2
            A(g.vm(f"buffer_load_dwordx4 v{V_LX if m else V_B}, s[{S_X}:{S_X+3}], s{S_T0} offen offset:{kb*128} {o.pxb if second else o.px} lds", "x"))
            if n < 9:
                A(f"s_add_u32 m0, m0, {1024 if m == 0 else 8192-128-1024}")
                if tab:
                    for x in tab.pop(0):
                        A(x)
                else:
                    A("s_nop 0")
    def xinit():
        A(f"s_lshl_b32 s{S_T0}, s{S_BP}, 2")
        A(f"s_add_u32 s{S_T0}, s{S_T0}, s{S_W}")
        A(f"s_mul_i32 s{S_T0}, s{S_T0}, {16*1280}")
        A(f"s_lshl_b32 s{S_KLDS}, s{S_W}, 11")
        A(f"s_add_u32 s{S_KLDS}, s{S_KLDS}, {LDS_X}")
        A(f"s_and_b32 s{S_T1}, s{S_HQ}, 1")
        A(f"s_mul_i32 s{S_T1}, s{S_T1}, 5")
        if o.xrot:
            A(f"s_lshr_b32 s{S_STMP}, s{S_HQ}, 1")
            A(f"s_add_u32 s{S_T1}, s{S_T1}, s{S_STMP}")
        A(f"s_lshl_b32 s{S_T1}, s{S_T1}, 7")

    def xblk(n, track=True):
        pol = o.px if n < 5 else o.pxb
        A(f"s_lshl_b32 s{S_STMP}, s{S_T1}, 6")
        A(f"s_add_u32 m0, s{S_STMP}, s{S_KLDS}")
        A(f"s_add_u32 s{S_STMP}, s{S_T0}, s{S_T1}")
        x = f"buffer_load_dwordx4 v{V_B}, s[{S_X}:{S_X+3}], s{S_STMP} offen {pol} lds"
        A(g.vm(x, "x") if track else x)
        A(f"s_add_u32 m0, m0, 1024")
        A(f"s_add_u32 s{S_T1}, s{S_T1}, 128")
        x = f"buffer_load_dwordx4 v{V_LX}, s[{S_X}:{S_X+3}], s{S_STMP} offen {pol} lds"
        A(g.vm(x, "x") if track else x)
        A(f"s_cmp_eq_u32 s{S_T1}, 1280")
        A(f"s_cselect_b32 s{S_T1}, 0, s{S_T1}")
        if track:
            for _ in range(2):
                if tab:
                    for t in tab.pop(0):
                        A(t)

    def pre(track=True):
        A(f"s_lshr_b32 s{S_ST}, s{S_BP}, 2")
        A(f"s_mul_i32 s{S_ST}, s{S_ST}, 5")
        A(f"s_add_u32 s{S_ST}, s{S_ST}, 4")
        A(f"s_lshl_b32 s{S_ST}, s{S_ST}, 4")
        A(f"s_and_b32 s{S_SC}, s{S_BP}, 3")
        A(f"s_add_u32 s{S_ST}, s{S_ST}, s{S_SC}")
        A(f"s_lshl_b32 s{S_ST}, s{S_ST}, 14")
        for r in range(2):
            x = f"buffer_load_dwordx4 {ar(248+4*r)}, v{V_W+r}, s[{S_WQ}:{S_WQ+3}], s{S_ST} offen"
            A(g.vm(x, "pre") if track else x)

    def items(lst, track=True, stamps=False):
        for ni, item in enumerate(lst):
            if o.diag and stamps and ni in (1, 2, 3):
                A(f"s_memtime s[{88+2*ni}:{89+2*ni}]") if ni < 2 else A(f"s_memtime s[{68+2*ni}:{69+2*ni}]")
            if item[0] == "c":
                A(f"s_waitcnt vmcnt({item[1:]})")
            elif item == "xa":
                xhalf(0)
            elif item == "xb":
                xhalf(1)
            elif item == "p":
                pre(track)
            elif item[0] == "x":
                for n in range(int(item[1]), int(item[2]) + 1):
                    xblk(n, track)
            else:
                sw = int(item[1:])
                for r in range(8):
                    if track:
                        A(wload(sw, r))
                    else:
                        sv = [list(q) for q in g.vq]
                        A(wload(sw, r))
                        g.vq = sv
    lst = o.order.split(",")
    if any(x[0] == "x" and len(x) == 3 for x in lst):
        xinit()
    if o.alt:
        alt = o.alt.split(",")
        assert sorted(alt) == sorted(lst[:len(alt)])
        A(f"s_bitcmp1_b32 s{S_BP}, {o.altbit}")
        A("s_cbranch_scc1 L_alt")
        keep, tab[:] = list(tab), []
        items(lst[:len(alt)], stamps=True)
        A("s_branch L_join")
        g.lab("L_alt")
        items(alt, track=False, stamps=True)
        g.lab("L_join")
        tab[:] = keep
        items(lst[len(alt):])
    else:
        items(lst, stamps=True)
    for t in tab:
        for x in t:
            A(x)
    tab[:] = []
    assert not tab
    A(f"s_mov_b32 s{S_T0}, s{S_C4U}")
    if o.diag:
        A("s_waitcnt lgkmcnt(0)")
        A("v_mov_b32 v24, 0")
        for k, sr in ((11, 88), (12, 90), (14, 72), (15, 74)):
            A(f"v_writelane_b32 v24, s{sr}, {k}")
    A(f"s_lshl_b32 s{S_KV}, s{S_BP}, 6")
    A(f"s_add_u32 s{S_KV}, s{S_KV}, s{S_T0}")
    A(f"s_lshl_b32 s{S_KV}, s{S_KV}, 13")
    A(f"s_add_u32 s{S_KV+1}, s{S_KV}, 4096")
    A(f"s_add_u32 s{S_KV+2}, s{S_KV}, 262144")
    A(f"s_add_u32 s{S_KV+3}, s{S_KV}, {262144+4096}")
    A(f"s_lshl_b32 s{S_KLDS}, s{S_W}, 14")
    A(f"s_mov_b32 s{S_PLO}, 0x05040100")
    A(f"s_mov_b32 s{S_PHI}, 0x07060302")
    A(f"s_mov_b32 s{S_SC}, 0x3e0293ee")
    A(f"s_mul_i32 s{S_T0}, s{S_HQ}, {512*1280}")
    A(f"s_lshl_b32 s{S_T1}, s{S_W}, 8")
    A(f"s_add_u32 s{S_T1}, s{S_T1}, s{S_T0}")
    if o.dp:
        A(f"s_lshr_b32 s{S_T1}, s{S_W}, 1")
        A(f"s_lshl_b32 s{S_T1}, s{S_T1}, 8")
        A(f"s_add_u32 s{S_T1}, s{S_T1}, s{S_T0}")
        A(f"s_and_b32 s{S_STMP}, s{S_W}, 1")
        A(f"s_mul_i32 s{S_STMP}, s{S_STMP}, {256*1280}")
        A(f"s_add_u32 s{S_T1}, s{S_T1}, s{S_STMP}")
        for n in range(8):
            A(f"s_add_u32 s{S_STMP}, s{S_BP}, {n}")
            A(f"s_and_b32 s{S_C4U}, s{S_STMP}, 3")
            A(f"s_bfe_u32 s{S_STMP}, s{S_STMP}, 0x10002")
            A(f"s_lshl_b32 s{S_STMP}, s{S_STMP}, 4")
            A(f"s_add_u32 s{S_STMP}, s{S_STMP}, s{S_C4U}")
            A(f"s_mul_i32 s{S_STMP}, s{S_STMP}, {8*1280}")
            A(f"s_add_u32 s{S_CW+n}, s{S_STMP}, s{S_T1}")
            A(f"s_add_u32 s{S_CW+8+n}, s{S_CW+n}, 512")
    for n in range(16 if not o.dp else 0):
        if o.rot:
            A(f"s_add_u32 s{S_STMP}, s{S_BP}, {n}")
            A(f"s_and_b32 s{S_STMP}, s{S_STMP}, 15")
        else:
            A(f"s_mov_b32 s{S_STMP}, {n}")
        A(f"s_and_b32 s{S_C4U}, s{S_STMP}, 3")
        A(f"s_lshr_b32 s{S_STMP}, s{S_STMP}, 2")
        A(f"s_lshl_b32 s{S_STMP}, s{S_STMP}, 4")
        A(f"s_add_u32 s{S_STMP}, s{S_STMP}, s{S_C4U}")
        A(f"s_mul_i32 s{S_STMP}, s{S_STMP}, {8*1280}")
        A(f"s_add_u32 s{S_CW+n}, s{S_STMP}, s{S_T1}")
    A(f"s_mul_i32 s{S_T1}, s{S_W}, {128*1280}")
    A(f"s_add_u32 s{S_T1}, s{S_T1}, s{S_T0}")
    A(f"s_add_u32 s{S_T1}, s{S_T1}, 1024")
    for n in range(4):
        A(f"s_add_u32 s{S_CW+16+n}, s{S_T1}, {n*8*1280}")
    A(f"s_lshr_b32 s{S_T0}, s2, 2")
    A(f"s_and_b32 s{S_T0}, s{S_T0}, 1")
    A(f"s_lshl_b32 s{S_T0}, s{S_T0}, 4")
    A(f"s_add_u32 s{S_T0}, s{S_T0}, s{S_BP}")
    A(f"s_lshl_b32 s{S_T0}, s{S_T0}, 3")
    A(f"s_add_u32 s{S_T0}, s{S_T0}, s{S_HQ}")
    A(f"s_mul_i32 s{S_ST}, s{S_T0}, {81920+o.pad}")
    if o.fuse:
        if o.diag:
            A(f"s_mov_b32 vcc_hi, s2")
        A(f"s_mov_b32 s2, s{S_T0}")
        A(f"s_cmp_lg_u32 s{S_W}, 0")
        A("s_cbranch_scc1 L_noclr")
        A(f"s_lshl_b32 s{S_T0}, s2, 7")
        A(f"s_add_u32 s{S_T0}, s{S_T0}, {WS_FLAG}")
        A(f"v_mov_b32 v{V_TMP}, 0")
        A("s_mov_b64 exec, 1")
        A(f"buffer_store_dword v{V_TMP}, off, s[{S_WS}:{S_WS+3}], s{S_T0} sc1")
        A("s_mov_b64 exec, -1")
        g.lab("L_noclr")
    A(f"v_xor_b32 v{vt}, v{vi}, v{vG}")
    A(f"v_lshlrev_b32 v{vt}, 4, v{vt}")
    A(f"v_lshl_add_u32 v{V_KG}, v{vG}, 8, v{vt}")
    A(f"v_lshlrev_b32 v{vt}, 4, v{vi}")
    A(f"v_lshl_add_u32 v{V_VG}, v{vG}, 10, v{vt}")
    A(f"v_mul_u32_u24 v{V_WO0}, {32*1280}, v{vG}")
    A(f"v_add_u32 v{V_WO0}, v{V_WO0}, v{vt}")
    A(f"v_add_u32 v{V_WO1}, {4*1280}, v{V_WO0}")
    A(f"v_lshrrev_b32 v{vt}, 1, v{vi}")
    A(f"v_xor_b32 v{vt}, v{vt}, v{vG}")
    A(f"v_lshlrev_b32 v{vt}, 4, v{vt}")
    A(f"v_lshl_add_u32 v{V_LX}, v{vi}, 7, v{vt}")
    for n in range(20):
        A(f"s_lshr_b32 s{S_STMP}, s{S_KS+n}, 19")
        A(f"s_lshl_b32 s{S_STMP}, s{S_STMP}, 13")
        A(f"s_bfe_u32 s{S_C4U}, s{S_KS+n}, 0x10012")
        A(f"s_lshl_b32 s{S_C4U}, s{S_C4U}, 6")
        A(f"s_add_u32 s{S_STMP}, s{S_STMP}, {LDS_X}")
        A(f"s_or_b32 s{S_XC+n}, s{S_STMP}, s{S_C4U}")
    A(f"s_and_b32 s{S_GRP}, s{S_BP}, {o.ng-1}")
    if o.diag:
        A(f"v_mov_b32 v{V_TID}, v24")
        A(f"v_writelane_b32 v{V_TID}, s{S_TS}, 10")
        A(f"v_writelane_b32 v{V_TID}, s{S_TS+1}, 13")
        g.stamp(0)

    def kload(n):
        bt, m = n // 8, n % 8
        ins = []
        if m % 4 == 0:
            ins.append(f"s_add_u32 m0, s{S_KLDS}, {bt*8192 + (m//4)*4096}")
        ins.append(f"v_xor_b32 v{V_TMP}, {GFUN[m%4] << 6}, v{V_KG}")
        ins.append(("vm", f"buffer_load_dwordx4 v{V_TMP}, s[{S_K}:{S_K+3}], s{S_KV+bt*2+m//4} offen offset:{(m%4)*1024} {o.pk} lds", "k"))
        return ins

    def vload(n):
        bt, r = n // 8, n % 8
        return [("vm", f"buffer_load_dwordx4 {ar(A_V+n*4)}, v{V_VG}, s[{S_V}:{S_V+3}], s{S_KV+bt*2+r//4} offen offset:{(r%4)*256} {o.pv}", "v")]

    def baddr(s):
        if s < 20:
            return [f"v_xor_b32 v{V_B}, s{S_XC+s}, v{V_LX}"]
        if o.dp:
            if s < 24:
                return []
            return [f"v_add_u32 v{V_B}, s{S_CL}, v{V_KG}", f"v_xor_b32 v{V_VG}, 2048, v{V_B}", f"s_add_u32 s{S_CL}, s{S_CL}, 4096", f"s_and_b32 s{S_CL}, s{S_CL}, 0x7fff"]
        if s < 36:
            return [f"v_add_u32 v{V_B}, s{S_CL}, v{V_LX}", f"s_add_u32 s{S_CL}, s{S_CL}, 4096", f"s_and_b32 s{S_CL}, s{S_CL}, 0xffff"]
        return []

    def breads(s):
        buf = A_B + (s % 2) * 16
        if s < 20:
            return [f"ds_read_b128 {ar(buf+q*4)}, v{V_B} offset:{q*2048}" for q in range(4)]
        if o.dp:
            if s < 24:
                return [f"ds_read_b128 {ar(buf+q*4)}, v{V_W+q} offset:{(s-20)*4096}" for q in range(4)]
            return [f"ds_read_b128 {ar(buf+q*4)}, v{V_B if q < 2 else V_VG} offset:{(q%2)*1024}" for q in range(4)]
        if s < 36:
            return [f"ds_read_b128 {ar(buf+q*4)}, v{V_B} offset:{q*1024}" for q in range(4)]
        return [f"ds_read_b128 {ar(buf+q*4)}, v{V_W+q} offset:{(s-36)*4096}" for q in range(4)]

    def bread(s):
        return baddr(s) + breads(s)

    def emit(ins):
        if isinstance(ins, tuple):
            A(g.vm(ins[1], ins[2]))
        elif callable(ins):
            r = ins()
            if r:
                A(r)
        else:
            A(ins)

    DEF = (20, 21, 22) if o.defer == 3 else (21, 22)
    fq = []

    def cap(s, n):
        if n == 1:
            return 0, o.cape
        if n % 2 == 0:
            return o.capv, o.cape
        return (o.cap, o.cap) if n in (19, 21) else (1, 1)

    def dacc(s, q, j):
        if s < 24:
            return vr(128 + j * 4) if q == 0 else ar((96, 0, 32)[q - 1] + j * 4)
        if s < 32:
            return vr(192 + q * 32 + j * 4) if q < 2 else ar(128 + (q - 2) * 32 + j * 4)
        return ar(q * 32 + j * 4) if q < 2 else ar(192 + (q - 2) * 32 + j * 4)

    def step(s, first, last, extra, preperm=True, prefetchB=True):
        fill = [[] for _ in range(32)]
        rows = slot_rows(s)
        buf = A_B + (s % 2) * 16
        for t in range(3):
            for n, p in enumerate(perms(rows, t + 1, PERM + ((t + 1) % 2) * 8)):
                fill[t * 8 + (n // 2) * 2].append(p)
        late = o.spread
        if late and s >= 1 and s + 2 < 40 and s != 20 and not (o.defer and s + 2 in DEF):
            for n, r in enumerate(range(8 - late, 8)):
                fill[11 + 2 * n].append(lambda r=r: wload(s + 2, r))
        if not last:
            ba = baddr(s + 1)
            g0 = 1
            if ba:
                fill[g0].append(ba[0])
                fill[g0] += ba[1:2]
                fill[17] += ba[2:]
                g0 += 2
            for n, x in enumerate(breads(s + 1)):
                fill[g0 + n * 2].append(lambda x=x: g.ds(x, f"b{s+1}"))
            fill[21].append(lambda: g.waitvm(f"w{s+1}"))
            for n, p in enumerate(perms(slot_rows(s + 1), 0, PERM)):
                fill[24 + (n // 2) * 2].append(p)
            fill[19].append(lambda: g.waitds(f"b{s+1}"))
        if s + 3 < 40 and not (o.defer and s + 3 in DEF):
            gaps = [23, 25, 27, 29, 31] if late >= 3 else [23, 24, 25, 26, 27, 28, 29, 31]
            for r in range(8 - late):
                fill[gaps[r]].append(lambda r=r: wload(s + 3, r))
        if o.diag and o.steps:
            fill[28].append(f"s_memtime s[{S_TS}:{S_TS+1}]")
            fill[31].append(lambda: ("s_waitcnt lgkmcnt(0)", g.dq.clear())[0])
            fill[31].append(f"v_writelane_b32 v{V_TID}, s{S_TS}, {16+s}")
        for k, v in extra.items():
            fill[k] = fill[k] + v
        n = 0
        for t in range(4):
            for e in range(2):
                for q in range(4):
                    j = 2 * t + e
                    if o.dp and s >= 20:
                        d = dacc(s, q, j)
                    elif s < 36:
                        d = vr(ACC + q * 32 + j * 4)
                    else:
                        d = ar(A_C4 + q * 32 + j * 4)
                    A(mfma(d, vr(PERM + (t % 2) * 8 + e * 4), ar(buf + q * 4), "0" if first else d))
                    for x in fill[n]:
                        if o.exp and 24 <= s < 34:
                            if isinstance(x, str) and "noperm" in o.exp and x.startswith("v_perm"):
                                continue
                            if isinstance(x, str) and "nods" in o.exp and x.startswith("ds_read"):
                                continue
                            if callable(x) and "noload" in o.exp:
                                r = x()
                                if not (r and r.startswith("buffer_load")):
                                    A(r)
                                continue
                        emit(x)
                    cv_, co_ = cap(s, n)
                    while fq and fq[0][0] <= s * 32 + n:
                        if fq[0][2] == "v":
                            if cv_ <= 0:
                                break
                        elif co_ <= 0:
                            break
                        cv_ -= 1
                        co_ -= 1
                        emit(fq.pop(0)[1])
                    n += 1

    A(g.waitvm("x"))
    A("s_barrier")
    for x in bread(0):
        A(x)
    A(g.waitvm("w0"))
    for p in perms(slot_rows(0), 0, PERM):
        A(p)
    A("s_waitcnt lgkmcnt(0)")
    g.stamp(1)
    kvn = 0
    kst = [int(x) for x in o.kst.split(",")] if o.kst else []
    vst = [int(x) for x in o.vst.split(",")] if o.vst else []

    def burst(grp, fn, name):
        def f():
            out = []
            if o.ng > 1:
                out += [f"s_cmp_lg_u32 s{S_GRP}, {grp}", f"s_cbranch_scc1 L_{name}{grp}"]
            for n in range(16):
                for x in fn(n):
                    out.append(g.vm(x[1], x[2], grp) if isinstance(x, tuple) else x)
            t = "\n    ".join(out)
            if o.ng > 1:
                t += f"\nL_{name}{grp}:"
            return t
        return f
    for s in range(20):
        extra = {}
        if kst:
            for grp in range(o.ng):
                if kst[grp] == s:
                    extra.setdefault(31, []).append(burst(grp, kload, "kb"))
                if vst[grp] == s:
                    extra.setdefault(31, []).append(burst(grp, vload, "vb"))
        elif o.kv0 <= s and kvn < 16:
            for c in range(o.kvper):
                if kvn < 16:
                    extra.setdefault(10 + c * 6, []).extend(kload(kvn))
                    extra.setdefault(13 + c * 6, []).extend(vload(kvn))
                    kvn += 1
        if o.wopre and s == o.wopre:
            extra.setdefault(17, []).extend([f"s_lshl_b32 s{S_STMP}, s{S_HQ}, 4", f"s_add_u32 s{S_STMP}, s{S_STMP}, s{S_BP}"])
            extra.setdefault(19, []).extend([f"s_lshl_b32 s{S_STMP}, s{S_STMP}, 2", f"s_add_u32 s{S_STMP}, s{S_STMP}, s{S_W}"])
            extra.setdefault(21, []).extend([f"s_mul_i32 s{S_STMP}, s{S_STMP}, 10240", f"v_mbcnt_lo_u32_b32 v{V_TMP}, -1, 0"])
            extra.setdefault(23, []).extend([f"v_mbcnt_hi_u32_b32 v{V_TMP}, -1, v{V_TMP}"])
            extra.setdefault(25, []).extend([f"v_lshlrev_b32 v{V_TMP}, 7, v{V_TMP}"])
            extra.setdefault(31, []).extend([("vm", f"buffer_load_dword a240, v{V_TMP}, s[{S_WO}:{S_WO+3}], s{S_STMP} offen", "pre"),
                                             f"s_add_u32 s{S_STMP}, s{S_STMP}, 8192", "s_mov_b64 exec, 0xffff",
                                             ("vm", f"buffer_load_dword a241, v{V_TMP}, s[{S_WO}:{S_WO+3}], s{S_STMP} offen", "pre"),
                                             "s_mov_b64 exec, -1"])
        step(s, s == 0, s == 19, extra)
    assert kvn == 16 or kst
    if not o.defer:
        for r in range(8 - o.spread, 8):
            A(wload(22, r))
    g.stamp(2)

    vi, vG, vt, KA = 6, 7, 8, 2
    if o.fuse:
        A(f"s_load_dwordx2 s[{S_OUT}:{S_OUT+1}], s[0:1], 80")
        A(f"s_load_dwordx2 s[{S_DBG}:{S_DBG+1}], s[0:1], 88")
        A(f"s_mov_b32 s{S_OUT+2}, 2621440")
        A(f"s_mov_b32 s{S_DBG+2}, 256")
    A(f"s_movk_i32 s{S_G}, 0x78")
    A(f"v_lshrrev_b32 v{vG}, 10, v{V_VG}")
    A(f"v_bfe_u32 v{vi}, v{V_VG}, 4, 4")
    A(f"v_lshrrev_b32 v{vt}, 2, v{vi}")
    A(f"v_lshlrev_b32 v{vt}, 1, v{vt}")
    A(f"v_lshrrev_b32 v{vt}, v{vt}, s{S_G}")
    A(f"v_xor_b32 v{vt}, v{vt}, v{vG}")
    A(f"v_and_b32 v{vt}, 3, v{vt}")
    A(f"v_lshlrev_b32 v{vt}, 2, v{vt}")
    A(f"v_and_or_b32 v{vt}, v{vi}, 3, v{vt}")
    A(f"v_lshlrev_b32 v{vt}, 4, v{vt}")
    A(f"v_lshl_add_u32 v{vt}, v{vi}, 8, v{vt}")
    A(f"v_add_u32 v{KA}, s{S_KLDS}, v{vt}")
    for u in range(1, 4):
        A(f"v_xor_b32 v{KA+u}, {u*16}, v{KA}")
    A(f"v_lshlrev_b32 v{V_LX}, 8, v{vG}")
    A(f"v_lshl_add_u32 v{V_LX}, v{vi}, 4, v{V_LX}")
    def c4pre_b():
        A(f"s_mul_i32 s{S_T0}, s{S_BP}, {8*1280}")
        A(f"s_add_u32 s{S_T0}, s{S_T0}, s{S_CW+16}")
        A(f"v_mul_u32_u24 v{V_TMP}, {1280-256}, v{vG}")
        A(f"v_add_u32 v{V_TMP}, v{V_TMP}, v{V_LX}")
        A(g.vm(f"buffer_load_dwordx4 {ar(240)}, v{V_TMP}, s[{S_WO}:{S_WO+3}], s{S_T0} offen", "pre"))
        A(f"s_add_u32 s{S_T0}, s{S_T0}, {4*1280}")
        A(g.vm(f"buffer_load_dwordx4 {ar(244)}, v{V_TMP}, s[{S_WO}:{S_WO+3}], s{S_T0} offen", "pre"))
    A(g.waitvm("k"))
    if o.c4pre == 1:
        c4pre_b()
    if o.fuse:
        A("s_waitcnt lgkmcnt(0)")

    def kread(bt):
        for kb in range(2):
            for u in range(4):
                A(f"ds_read_b128 {ar(A_K+((bt*2+kb)*4+u)*4)}, v{KA+u} offset:{bt*8192+kb*4096}")
    QB = [PERM, 128, 144, 160]
    SA = 176
    cv = []
    for q in range(4):
        c = []
        for t in range(4):
            for u in range(4):
                c.append(f"v_cvt_pk_bf16_f32 v{QB[q]+u*4+t}, v{ACC+q*32+(2*t)*4+u}, v{ACC+q*32+(2*t+1)*4+u}")
        cv.append(c)
    kread(0)
    for x in cv[0]:
        A(x)
    A("s_waitcnt lgkmcnt(4)")
    kread(1)
    for x in cv[1]:
        A(x)
    A("s_waitcnt lgkmcnt(8)")

    def smfma(bt):
        r = []
        for u in range(4):
            for kb in range(2):
                for qq in range(2):
                    d = vr(SA + ((bt * 2 + kb) * 2 + qq) * 4)
                    r.append(mfma(d, ar(A_K + ((bt * 2 + kb) * 4 + u) * 4), vr(QB[bt * 2 + qq] + u * 4), "0" if u == 0 else d))
        return r
    s0 = smfma(0)
    rest = cv[2] + cv[3]
    A("s_nop 1")
    for n in range(16):
        A(s0[n])
        A(rest[2 * n])
        A(rest[2 * n + 1])
    A("s_waitcnt lgkmcnt(0)")
    A("s_nop 1")
    s1 = smfma(1)

    PB = 208
    TM = 224

    def softmax(q):
        bt, qq = q // 2, q % 2
        sv = [SA + ((bt * 2 + kb) * 2 + qq) * 4 + r for kb in range(2) for r in range(4)]
        m, t2 = TM + q * 4, TM + q * 4 + 1
        ph = []
        ph.append([f"v_max3_f32 v{m}, v{sv[0]}, v{sv[1]}, v{sv[2]}",
                   f"v_max3_f32 v{t2}, v{sv[3]}, v{sv[4]}, v{sv[5]}",
                   f"v_max3_f32 v{m}, v{m}, v{sv[6]}, v{sv[7]}",
                   f"v_max_f32 v{m}, v{m}, v{t2}",
                   f"v_mov_b32 v{t2}, v{m}"])
        ph.append([f"v_permlane32_swap_b32 v{m}, v{t2}"])
        ph.append([f"v_max_f32 v{m}, v{m}, v{t2}", f"v_mov_b32 v{t2}, v{m}"])
        ph.append([f"v_permlane16_swap_b32 v{m}, v{t2}"])
        ph.append([f"v_max_f32 v{m}, v{m}, v{t2}", f"v_mul_f32 v{m}, s{S_SC}, v{m}"] +
                  [f"v_fma_f32 v{x}, v{x}, s{S_SC}, -v{m}" for x in sv] +
                  [f"v_exp_f32 v{x}, v{x}" for x in sv])
        ph.append([f"v_add_f32 v{m}, v{sv[0]}, v{sv[1]}", f"v_add_f32 v{t2}, v{sv[2]}, v{sv[3]}",
                   f"v_add_f32 v{m}, v{m}, v{sv[4]}", f"v_add_f32 v{t2}, v{t2}, v{sv[5]}",
                   f"v_add_f32 v{m}, v{m}, v{sv[6]}", f"v_add_f32 v{t2}, v{t2}, v{sv[7]}",
                   f"v_add_f32 v{m}, v{m}, v{t2}", f"v_mov_b32 v{t2}, v{m}"])
        ph.append([f"v_permlane32_swap_b32 v{m}, v{t2}"])
        ph.append([f"v_add_f32 v{m}, v{m}, v{t2}", f"v_mov_b32 v{t2}, v{m}"])
        ph.append([f"v_permlane16_swap_b32 v{m}, v{t2}"])
        ph.append([f"v_add_f32 v{m}, v{m}, v{t2}"])
        ph.append([f"v_rcp_f32 v{m}, v{m}"])
        ph.append([f"v_mul_f32 v{x}, v{x}, v{m}" for x in sv])
        ph.append([f"v_cvt_pk_bf16_f32 v{PB+q*4+p}, v{sv[2*p]}, v{sv[2*p+1]}" for p in range(4)])
        return ph

    def softmax_pair(q0):
        a, b = softmax(q0), softmax(q0 + 1)
        out = []
        for pa, pb in zip(a, b):
            if pa[0].startswith("v_permlane"):
                out.append("s_nop 1")
            out += pa + pb
            if pa[0].startswith("v_rcp") or pa[0].startswith("v_permlane"):
                out.append("s_nop 0")
        return out
    sm0 = softmax_pair(0)
    for n in range(16):
        A(s1[n])
        if n >= 4:
            for _ in range(2):
                A(sm0.pop(0))
    for x in sm0:
        A(x)
    sm1 = softmax_pair(2)
    for n, x in enumerate(sm1):
        A(x)
        if o.defer == 2 and n % 12 == 11 and n // 12 < 8:
            A(wload(21, n // 12))
    g.stamp(3)
    A(g.waitvm("v"))
    dl = []
    if o.defer == 1:
        dl = [(21, r) for r in range(8)] + [(22, r) for r in range(8)]
    if o.defer == 2:
        dl = [(22, r) for r in range(8)]
    if o.defer == 3:
        for r in range(8):
            A(wload(20, r))
        dl = [(21, r) for r in range(8)] + [(22, r) for r in range(8)]
    OA = 128
    VT = 192
    VP1 = 224
    STG = 200

    def vperm(bt, t, dst):
        r = [f"v_accvgpr_read_b32 v{VT+x}, a{A_V+bt*32+x*4+t}" for x in range(8)]
        for e in range(2):
            for p in range(4):
                r.append(f"v_perm_b32 v{dst+e*4+p}, v{VT+2*p+1}, v{VT+2*p}, s{S_PLO if e == 0 else S_PHI}")
        return r
    for x in vperm(0, 0, PERM):
        A(x)
    for t in range(4):
        nxt = vperm(0, t + 1, PERM + ((t + 1) % 2) * 8) if t < 3 else vperm(1, 0, VP1)
        A("s_nop 1") if t == 0 else None
        k = 0
        for e in range(2):
            for qq in range(2):
                A(mfma(vr(OA + qq * 32 + (2 * t + e) * 4), vr(PERM + (t % 2) * 8 + e * 4), vr(PB + qq * 4), "0"))
                for x in nxt[k * 4:k * 4 + 4]:
                    A(x)
                if dl and (o.defer != 2 or k % 2):
                    A(wload(*dl.pop(0)))
                k += 1
        A("s_nop 0")
    assert not dl
    for t in range(1, 4):
        for x in vperm(1, t, VP1 + t * 8):
            A(x)
    A(f"v_add_u32 v{V_B}, s{S_KLDS}, v{V_LX}")

    def ocvt(bt, qq):
        r = []
        for u in range(4):
            st = STG + (u % 2) * 4
            for t in range(4):
                r.append(f"v_cvt_pk_bf16_f32 v{st+t}, v{OA+qq*32+(2*t)*4+u}, v{OA+qq*32+(2*t+1)*4+u}")
            r.append(f"ds_write_b128 v{V_B}, {vr(st)} offset:{u*4096+(bt*2+qq)*1024}")
        return r

    def pv1(qq):
        return [mfma(vr(OA + qq * 32 + j * 4), vr(VP1 + j * 4), vr(PB + (2 + qq) * 4), "0") for j in range(8)]
    for x in ocvt(0, 0):
        A(x)
    c = ocvt(0, 1)
    for mm in pv1(0):
        A(mm)
        for _ in range(3):
            if c:
                A(c.pop(0))
    assert not c
    m1 = pv1(1)
    c = ocvt(1, 0)
    for n, mm in enumerate(m1):
        A(mm)
    A("s_waitcnt lgkmcnt(4)")
    for x in c:
        A(x)
    for x in ocvt(1, 1):
        A(x)
    A(f"s_lshl_b32 s{S_T0}, s{S_W}, 10")
    A(f"v_add_u32 v{V_W}, s{S_T0}, v{V_B}")
    for x in range(1, 4):
        A(f"v_xor_b32 v{V_W+x}, {x*1024}, v{V_W}")
    A(f"s_lshl_b32 s{S_CL}, s{S_BP}, 12" if o.rot else f"s_mov_b32 s{S_CL}, 0")
    if o.dp:
        A(f"s_and_b32 s{S_CL}, s{S_CL}, 0x7fff")
        A(f"s_and_b32 s{S_T0}, s{S_W}, 1")
        A(f"s_mul_i32 s{S_T0}, s{S_T0}, {32768+2048}")
        A(f"v_add_u32 v{V_KG}, s{S_T0}, v{V_LX}")
        for x in range(1, 4):
            A(f"s_xor_b32 s{S_T0}, s{S_W}, {x}")
            A(f"s_mul_i32 s{S_T0}, s{S_T0}, {3*8192}")
            A(f"s_add_u32 s{S_T0}, s{S_T0}, {LDS_R + (x-1)*8192}")
            A(f"v_add_u32 v{5+x}, s{S_T0}, v{V_LX}")
        A(f"s_mul_i32 s{S_T0}, s{S_W}, {3*8192}")
        A(f"s_add_u32 s{S_T0}, s{S_T0}, {LDS_R}")
        A(f"v_add_u32 v9, s{S_T0}, v{V_LX}")
    A(g.waitvm("w20"))
    if o.fuse:
        A(f"s_cmp_lg_u32 s{S_W}, 0")
        A("s_cbranch_scc1 L_noann")
        A(f"s_lshr_b32 s{S_T0}, s2, 3")
        A(f"s_lshl_b32 s{S_T0}, s{S_T0}, 2")
        A(f"s_add_u32 s{S_T0}, s{S_T0}, 128")
        A(f"v_mov_b32 v{V_TMP}, 1")
        A("s_mov_b64 exec, 1")
        A(f"buffer_atomic_add v{V_TMP}, off, s[{S_DBG}:{S_DBG+3}], s{S_T0} sc1")
        A("s_mov_b64 exec, -1")
        g.lab("L_noann")
    for p in perms(slot_rows(20), 0, PERM):
        A(p)
    A("s_waitcnt lgkmcnt(0)")
    if not o.dp:
        A("s_barrier")
    for x in bread(20):
        A(x)
    A("s_waitcnt lgkmcnt(0)")
    g.stamp(4)
    if o.dp:
        stage_c_dp(g, step, fq, emit)
        finish(g)
        return

    for s in range(20, 36):
        extra = {}
        if o.c4pre and s == o.c4pre:
            extra[17] = [f"s_mul_i32 s{S_T0}, s{S_BP}, {8*1280}", f"s_add_u32 s{S_T0}, s{S_T0}, s{S_CW+16}"]
            extra[19] = [f"v_lshrrev_b32 v{V_TMP}, 8, v{V_LX}", f"v_mul_u32_u24 v{V_TMP}, {1280-256}, v{V_TMP}"]
            extra[21] = [f"v_add_u32 v{V_TMP}, v{V_TMP}, v{V_LX}"]
            extra[31] = [("vm", f"buffer_load_dwordx4 {ar(0)}, v{V_TMP}, s[{S_WO}:{S_WO+3}], s{S_T0} offen", "pre"),
                         f"s_add_u32 s{S_T0}, s{S_T0}, {4*1280}",
                         ("vm", f"buffer_load_dwordx4 {ar(4)}, v{V_TMP}, s[{S_WO}:{S_WO+3}], s{S_T0} offen", "pre")]
        step(s, s == 20, False, extra)
    g.stamp(5)
    ST2 = V_W + 4
    stg = [6, 12]
    outs = []
    A(f"s_lshl_b32 s{S_T0}, s{S_W}, 14")
    A(f"s_add_u32 s{S_T0}, s{S_T0}, s{S_ST}")
    for q in range(4):
        A(f"s_add_u32 s{S_KS+q}, s{S_T0}, {q*4096}")
    for q in range(4):
        for r in range(4):
            st = stg[r % 2]
            for t in range(4):
                outs.append(f"v_cvt_pk_bf16_f32 v{st+t}, v{ACC+q*32+(2*t)*4+r}, v{ACC+q*32+(2*t+1)*4+r}")
            outs.append(("vm", f"buffer_store_dwordx4 {vr(st)}, v{V_LX}, s[{S_WS}:{S_WS+3}], s{S_KS+q} offen offset:{r*1024} {o.pst}", "st"))
    ex36 = {}
    if o.fuse:
        ex36 = {13: [f"s_lshr_b32 s{S_KS+4}, s2, 3"], 15: [f"s_lshl_b32 s{S_KS+4}, s{S_KS+4}, 2"], 17: [f"s_add_u32 s{S_KS+4}, s{S_KS+4}, 128"],
                31: [("vm", f"buffer_load_dword v{V_B}, off, s[{S_DBG}:{S_DBG+3}], s{S_KS+4} sc1", "clr")]}
    step(36, True, False, ex36)
    for s in range(37, 40):
        extra = {}
        lo = 11 + 2 * o.spread if (s == 37 and o.spread) else 0
        for k in range(lo, 32):
            if outs:
                extra[k] = [outs.pop(0)]
                if s == 39 and k >= 24 and outs:
                    extra[k].append(outs.pop(0))
        step(s, False, s == 39, extra)
    for x in outs:
        emit(x)
    g.stamp(6)
    for x in range(1, 4):
        A(f"s_xor_b32 s{S_T0}, s{S_W}, {x}")
        A(f"s_mul_i32 s{S_T0}, s{S_T0}, {3*8192}")
        A(f"s_add_u32 s{S_T0}, s{S_T0}, {LDS_R + (x-1)*8192}")
        A(f"v_add_u32 v{V_W+x}, s{S_T0}, v{V_LX}")
    A(f"s_mul_i32 s{S_T0}, s{S_W}, {3*8192}")
    A(f"s_add_u32 s{S_T0}, s{S_T0}, {LDS_R}")
    A(f"v_add_u32 v{V_W}, s{S_T0}, v{V_LX}")
    A("s_nop 7")
    for x in range(1, 4):
        for j in range(8):
            A(f"ds_write_b128 v{V_W+x}, {ar(A_C4+x*32+j*4)} offset:{j*1024}")
        A("s_waitcnt lgkmcnt(6)")
    for n in range(32):
        A(f"v_accvgpr_read_b32 v{ACC+n}, a{A_C4+n}")
    A(f"s_lshl_b32 s{S_T0}, s{S_W}, 12")
    A(f"s_add_u32 s{S_T0}, s{S_T0}, s{S_ST}")
    A(f"s_add_u32 s{S_T0}, s{S_T0}, 65536")
    A("s_waitcnt lgkmcnt(0)")
    A("s_barrier")
    for x in range(3):
        for j in range(8):
            A(f"ds_read_b128 {vr(RING+x*32+j*4)}, v{V_W} offset:{x*8192+j*1024}")
            if x >= 1 and j == 3:
                A("s_waitcnt lgkmcnt(4)")
                for n in range(32):
                    A(f"v_add_f32 v{ACC+n}, v{ACC+n}, v{RING+(x-1)*32+n}")
    A("s_waitcnt lgkmcnt(0)")
    for n in range(32):
        A(f"v_add_f32 v{ACC+n}, v{ACC+n}, v{RING+64+n}")
    for r in range(4):
        st = PERM + r * 4
        for t in range(4):
            A(f"v_cvt_pk_bf16_f32 v{st+t}, v{ACC+(2*t)*4+r}, v{ACC+(2*t+1)*4+r}")
        A(g.vm(f"buffer_store_dwordx4 {vr(st)}, v{V_LX}, s[{S_WS}:{S_WS+3}], s{S_T0} offen offset:{r*1024} {o.pst}", "st"))
    if o.fuse:
        fused_tail(g)
    finish(g)


def finish(g):
    o = g.o
    A = g.A
    if o.diag:
        g.stamp(7) if not o.fuse else None
        A("s_waitcnt vmcnt(0)")
        g.stamp(8)
        if o.fuse:
            A("s_mov_b32 s2, vcc_hi")
        A(f"s_memrealtime s[{S_TS}:{S_TS+1}]")
        A("s_waitcnt lgkmcnt(0)")
        A(f"v_writelane_b32 v{V_TID}, s{S_TS}, 9")
        A(f"s_lshl_b32 s{S_T0}, s2, 2")
        A(f"s_add_u32 s{S_T0}, s{S_T0}, s{S_W}")
        A(f"s_lshl_b32 s{S_T0}, s{S_T0}, 8")
        A(f"s_add_u32 s{S_T0}, s{S_T0}, 0x8000000")
        A(f"v_lshrrev_b32 v{V_TMP}, 2, v{V_LX}")
        A(f"buffer_store_dword v{V_TID}, v{V_TMP}, s[{S_WS}:{S_WS+3}], s{S_T0} offen")
        if o.diag == 3 and o.fuse:
            A(f"s_lshl_b32 s{S_T0}, s2, 2")
            A(f"s_add_u32 s{S_T0}, s{S_T0}, s{S_W}")
            A(f"s_cmp_lg_u32 s{S_T0}, {o.sel}")
            A("s_cbranch_scc1 L_main_end")
            A(f"v_readlane_b32 s{S_T0}, v{V_TID}, 56")
            A(f"v_readlane_b32 s{S_T1}, v{V_TID}, 57")
            A(f"v_readlane_b32 s{S_STMP}, v{V_TID}, 58")
            A("s_nop 3")
            A(f"v_writelane_b32 v{V_TID}, s{S_T0}, 12")
            A(f"v_writelane_b32 v{V_TID}, s{S_T1}, 14")
            A(f"v_writelane_b32 v{V_TID}, s{S_STMP}, 15")
            A("s_mov_b64 exec, 0xffff")
            A(f"buffer_store_dword v{V_TID}, v{V_TMP}, s[{S_DBG}:{S_DBG+3}], 0 offen")
        if o.diag == 2:
            A("s_load_dwordx2 s[32:33], s[0:1], 88")
            A("v_readlane_b32 s36, v0, 10")
            A("v_readlane_b32 s37, v0, 8")
            A("s_mov_b32 s34, 64")
            A("s_mov_b32 s35, 0x20000")
            A("s_not_b32 s36, s36")
            A("s_not_b32 s37, s37")
            A("v_writelane_b32 v0, s36, 11")
            A("v_writelane_b32 v0, s37, 12")
            A("s_waitcnt lgkmcnt(0)")
            A(f"buffer_atomic_umax v0, v{V_TMP}, s[32:35], 0 offen sc1")
    g.lab("L_main_end")
    A("s_endpgm")


def fused_tail(g):
    o = g.o
    A = g.A
    T = S_KS
    g.stamp(7)
    A(f"s_lshr_b32 s{T+5}, s2, 3")
    A(f"s_and_b32 s{T+6}, s2, 7")
    A(f"s_mul_i32 s{T+7}, s{T+5}, {8*(81920+o.pad)}")
    A(f"s_lshl_b32 s{T+8}, s{T+6}, 3")
    A(f"s_lshl_b32 s{T+9}, s{S_W}, 1")
    A(f"s_add_u32 s{T+8}, s{T+8}, s{T+9}")
    A(f"s_lshl_b32 s{T+9}, s{T+6}, 1")
    A(f"s_lshr_b32 s{T+10}, s{S_W}, 1")
    A(f"s_add_u32 s{T+9}, s{T+9}, s{T+10}")
    A(f"s_add_u32 s{T+9}, s{T+9}, 64")
    A(f"s_lshl_b32 s{T+10}, s{T+8}, 10")
    A(f"s_add_u32 s{T+10}, s{T+10}, s{T+7}")
    A(f"s_lshl_b32 s{T+11}, s{T+9}, 10")
    A(f"s_add_u32 s{T+11}, s{T+11}, s{T+7}")
    A(f"s_and_b32 s{T+12}, s{T+5}, 15")
    A(f"s_mul_i32 s{T+12}, s{T+12}, {4*40960}")
    A(f"s_lshr_b32 s{T+13}, s{T+5}, 4")
    A(f"s_mul_i32 s{T+13}, s{T+13}, 1280")
    A(f"s_add_u32 s{T+12}, s{T+12}, s{T+13}")
    for blk, dst in ((T+8, T+14), (T+9, T+15)):
        A(f"s_bfe_u32 s{T+13}, s{blk}, 0x20002")
        A(f"s_mul_i32 s{T+13}, s{T+13}, 40960")
        A(f"s_add_u32 s{dst}, s{T+12}, s{T+13}")
        A(f"s_lshr_b32 s{T+13}, s{blk}, 4")
        A(f"s_lshl_b32 s{T+13}, s{T+13}, 8")
        A(f"s_add_u32 s{dst}, s{dst}, s{T+13}")
        A(f"s_and_b32 s{T+13}, s{blk}, 3")
        A(f"s_lshl_b32 s{T+13}, s{T+13}, 4")
        A(f"s_add_u32 s{dst}, s{dst}, s{T+13}")
    A(f"s_bitcmp1_b32 s{S_W}, 0")
    A(f"s_cselect_b32 s{T+16}, 0, -1")
    A(f"s_cselect_b32 s{T+17}, -1, 0")
    A(f"s_mov_b32 s{T+18}, 0x3f80")
    A(f"s_mov_b32 s{T+19}, 0x3f800000")
    A(f"s_mov_b32 s{T+20}, 0xffff0000")
    VO, VF, VP = 2, 3, 4
    A(f"v_bfe_u32 v{VO}, v{V_LX}, 4, 4")
    A(f"v_lshrrev_b32 v{VF}, 8, v{V_LX}")
    A(f"v_mul_u32_u24 v{VO}, 2560, v{VO}")
    A(f"v_lshl_add_u32 v{VO}, v{VF}, 6, v{VO}")
    A(f"v_lshlrev_b32 v{VF}, 3, v{V_LX}")
    A(f"s_lshl_b32 s{T+21}, s2, 7")
    A(f"s_add_u32 s{T+21}, s{T+21}, {WS_FLAG}")
    A(f"s_lshl_b32 s{T+22}, s{T+5}, 10")
    A(f"s_add_u32 s{T+22}, s{T+22}, {WS_FLAG}")
    A(f"s_mov_b32 s{T+23}, {1<<20}")
    A(f"v_mov_b32 v{VP}, 1")
    A("s_waitcnt vmcnt(0)")
    A("s_barrier")
    g.stamp(56)
    A(f"s_cmp_lg_u32 s{S_W}, 0")
    A("s_cbranch_scc1 L_polled")
    A("s_mov_b64 exec, 1")
    A(f"buffer_store_dword v{VP}, off, s[{S_WS}:{S_WS+3}], s{T+21} sc1")
    g.lab("L_clr")
    A(f"v_readfirstlane_b32 s{T+24}, v{V_B}")
    A(f"s_sub_u32 s{T+23}, s{T+23}, 1")
    A("s_cbranch_scc1 L_polled")
    A(f"s_cmp_ge_u32 s{T+24}, 8")
    A("s_cbranch_scc1 L_poll0")
    A(f"buffer_load_dword v{V_B}, off, s[{S_DBG}:{S_DBG+3}], s{S_KS+4} sc1")
    A("s_waitcnt vmcnt(0)")
    A("s_branch L_clr")
    g.lab("L_poll0")
    A("s_mov_b64 exec, 0xff")
    g.lab("L_poll")
    A(f"buffer_load_dword v{VP}, v{VF}, s[{S_WS}:{S_WS+3}], s{T+22} offen sc1")
    A(f"s_sub_u32 s{T+23}, s{T+23}, 1")
    A("s_cbranch_scc1 L_polled")
    A("s_waitcnt vmcnt(0)")
    A(f"v_cmp_ne_u32 s[{T+24}:{T+25}], 1, v{VP}")
    A("s_nop 3")
    A(f"s_cmp_lg_u32 s{T+24}, 0")
    A("s_cbranch_scc1 L_poll")
    g.lab("L_polled")
    A("s_mov_b64 exec, -1")
    A("s_waitcnt vmcnt(0)")
    A("s_barrier")
    g.stamp(57)
    R = RING
    for h in range(8):
        A(f"buffer_load_dwordx4 {vr(R+h*12)}, v{V_LX}, s[{S_WS}:{S_WS+3}], s{T+10} offen sc1")
        A(f"buffer_load_dwordx4 {vr(R+h*12+4)}, v{V_LX}, s[{S_WS}:{S_WS+3}], s{T+10} offen offset:1024 sc1")
        A(f"s_mov_b64 exec, s[{T+16}:{T+17}]")
        A(f"buffer_load_dwordx4 {vr(R+h*12+8)}, v{V_LX}, s[{S_WS}:{S_WS+3}], s{T+11} offen sc1")
        A("s_mov_b64 exec, -1")
        if h < 7:
            A(f"s_add_u32 s{T+10}, s{T+10}, {81920+o.pad}")
            A(f"s_add_u32 s{T+11}, s{T+11}, {81920+o.pad}")
    for h in range(8):
        for b in range(3):
            A(f"s_waitcnt vmcnt({23-h*3-b})")
            for t in range(4):
                src = R + h * 12 + b * 4 + t
                d = ACC + b * 8 + 2 * t
                if h == 0:
                    A(f"v_lshlrev_b32 v{d}, 16, v{src}")
                    A(f"v_and_b32 v{d+1}, s{T+20}, v{src}")
                else:
                    A(f"v_dot2c_f32_bf16 v{d}, s{T+18}, v{src}")
                    A(f"v_dot2c_f32_bf16 v{d+1}, s{T+19}, v{src}")
    g.stamp(58)
    A("s_nop 1")
    for b in range(3):
        for t in range(4):
            A(f"v_cvt_pk_bf16_f32 v{PERM+b*4+t}, v{ACC+b*8+2*t}, v{ACC+b*8+2*t+1}")
        if b == 2:
            A(f"s_mov_b64 exec, s[{T+16}:{T+17}]")
        A(f"buffer_store_dwordx4 {vr(PERM+b*4)}, v{VO}, s[{S_OUT}:{S_OUT+3}], s{T+14+b//2} offen offset:{16*(b%2)} {o.pout}")
    if o.diag:
        A("s_mov_b64 exec, -1")


def stage_c_dp(g, step, fq, emit):
    o = g.o
    A = g.A
    T = S_KS
    WS = f"s[{S_WS}:{S_WS+3}]"

    def q(gap, ins, kind):
        fq.append((gap, ins, kind))

    def dsop(x, tag):
        return lambda: g.ds(x, tag)

    def waitall():
        for k in range(len(g.vq)):
            g.vq[k] = []
        return "s_waitcnt vmcnt(0)"

    def store(reg, soff, r):
        return ("vm", f"buffer_store_dwordx4 {vr(reg)}, v{V_LX}, {WS}, s{soff} offen offset:{r*1024} {o.pst}", "st")

    def pkadd(d, a):
        return f"v_pk_add_f32 v[{d}:{d+1}], v[{d}:{d+1}], v[{a}:{a+1}]"

    def cvts(dst, acc, r):
        return [f"v_cvt_pk_bf16_f32 v{dst+t}, v{acc+(2*t)*4+r}, v{acc+(2*t+1)*4+r}" for t in range(4)]
    A(f"s_lshl_b32 s{T}, s{S_W}, 13")
    A(f"s_add_u32 s{T}, s{T}, s{S_ST}")
    A(f"s_add_u32 s{T+1}, s{T}, 4096")
    A(f"s_add_u32 s{T+2}, s{T}, 32768")
    A(f"s_add_u32 s{T+3}, s{T}, {32768+4096}")
    A(f"s_lshl_b32 s{T+5}, s{S_W}, 12")
    A(f"s_add_u32 s{T+5}, s{T+5}, s{S_ST}")
    A(f"s_add_u32 s{T+5}, s{T+5}, 65536")
    A(f"s_lshr_b32 s{T+4}, s2, 3")
    A(f"s_lshl_b32 s{T+4}, s{T+4}, 2")
    A(f"s_add_u32 s{T+4}, s{T+4}, 128")
    A(f"s_xor_b32 s{T+6}, s{S_W}, 1")
    A(f"s_lshl_b32 s{T+6}, s{T+6}, 14")
    A(f"s_add_u32 s{T+6}, s{T+6}, {LDS_R}")
    A(f"s_lshl_b32 s{T+7}, s{S_W}, 14")
    A(f"s_add_u32 s{T+7}, s{T+7}, {LDS_R}")
    U = S_XC
    pre = []
    P = pre.append
    P(f"s_lshr_b32 s{U}, s2, 3")
    P(f"s_and_b32 s{U+1}, s2, 7")
    P(f"s_mul_i32 s{U+2}, s{U}, {8*(81920+o.pad)}")
    P(f"s_lshl_b32 s{U+3}, s{U+1}, 2")
    P(f"s_add_u32 s{U+3}, s{U+3}, s{S_W}")
    P(f"s_lshl_b32 s{U+4}, s{U+1}, 1")
    P(f"s_lshr_b32 s{U+5}, s{S_W}, 1")
    P(f"s_add_u32 s{U+4}, s{U+4}, s{U+5}")
    P(f"s_add_u32 s{U+4}, s{U+4}, 64")
    P(f"s_lshl_b32 s{U+5}, s{U+3}, 10")
    P(f"s_add_u32 s{U+5}, s{U+5}, s{U+2}")
    P(f"s_lshl_b32 s{U+6}, s{U+4}, 10")
    P(f"s_add_u32 s{U+6}, s{U+6}, s{U+2}")
    P(f"s_add_u32 s{U+7}, s{U+5}, 32768")
    P(f"s_and_b32 s{U+8}, s{U}, 15")
    P(f"s_mul_i32 s{U+8}, s{U+8}, {4*40960}")
    P(f"s_lshr_b32 s{U+9}, s{U}, 4")
    P(f"s_mul_i32 s{U+9}, s{U+9}, 1280")
    P(f"s_add_u32 s{U+8}, s{U+8}, s{U+9}")
    for blk, dst in ((U+3, U+10), (U+4, U+11)):
        P(f"s_bfe_u32 s{U+9}, s{blk}, 0x20002")
        P(f"s_mul_i32 s{U+9}, s{U+9}, 40960")
        P(f"s_add_u32 s{dst}, s{U+8}, s{U+9}")
        P(f"s_lshr_b32 s{U+9}, s{blk}, 4")
        P(f"s_lshl_b32 s{U+9}, s{U+9}, 8")
        P(f"s_add_u32 s{dst}, s{dst}, s{U+9}")
        P(f"s_and_b32 s{U+9}, s{blk}, 3")
        P(f"s_lshl_b32 s{U+9}, s{U+9}, 4")
        P(f"s_add_u32 s{dst}, s{dst}, s{U+9}")
    P(f"s_bitcmp1_b32 s{S_W}, 0\n    s_cselect_b32 s{U+12}, 0, -1\n    s_cselect_b32 s{U+13}, -1, 0")
    P(f"s_mov_b32 s{U+14}, 0x3f80")
    P(f"s_mov_b32 s{U+15}, 0x3f800000")
    P(f"s_mov_b32 s{U+16}, 0xffff0000")
    P(f"s_lshl_b32 s{U+17}, s{U}, 10")
    P(f"s_add_u32 s{U+17}, s{U+17}, {WS_FLAG}")
    P(f"s_mov_b32 s{U+18}, {1<<20}")
    for x in pre:
        A(x)
    pre = []
    for s in range(20, 23):
        step(s, s == 20, False, {})
    step(23, False, False, {0: ["s_barrier"]})
    g.stamp(5)
    G0 = 24 * 32 + 2
    C4 = (96, 0, 32)
    for j in range(8):
        for x in range(3):
            q(G0 + (j * 3 + x) * o.wpace, dsop(f"ds_write_b128 v{6+x}, {ar(C4[x]+j*4)} offset:{j*1024}", "cw"), "o")
    q(G0, lambda: g.waitds("cw"), "o")
    q(G0, "s_barrier", "o")
    rd = [(x, j) for x in range(3) for j in range(8)]

    def c4read(k):
        x, j = rd[k]
        q(G0, dsop(f"ds_read_b128 {vr(160+j*4)}, v9 offset:{x*8192+j*1024}", f"cr{k//4}"), "o")
    for k in range(8):
        c4read(k)
    for grp in range(6):
        q(G0, lambda grp=grp: g.waitds(f"cr{grp}"), "o")
        for k in range(grp * 4, grp * 4 + 4):
            j = rd[k][1]
            q(G0, pkadd(128 + j * 4, 160 + j * 4), "v")
            q(G0, pkadd(128 + j * 4 + 2, 160 + j * 4 + 2), "v")
        for k in range(grp * 4 + 8, min(grp * 4 + 12, 24)):
            c4read(k)
    q(G0, "s_barrier", "o")
    q(G0, f"v_add_u32 v6, s{T+6}, v{V_LX}", "v")
    q(G0, f"v_add_u32 v7, s{T+7}, v{V_LX}", "v")
    for r in range(4):
        for x in cvts(160 + r * 4, 128, r):
            q(G0, x, "v")
        q(G0, store(160 + r * 4, T + 5, r), "o")
    G1 = 32 * 32 + 2
    for j in range(8):
        for x in range(2):
            q(G1 + (j * 2 + x) * o.wpace, dsop(f"ds_write_b128 v6, {ar(128+x*32+j*4)} offset:{x*8192+j*1024}", "pw"), "o")
    q(G1, lambda: g.waitds("pw"), "o")
    q(G1, "s_barrier", "o")
    for x in range(2):
        for j in range(8):
            q(G1, dsop(f"ds_read_b128 {vr(128+x*32+j*4)}, v7 offset:{x*8192+j*1024}", f"pr{x}"), "o")
    for x in range(2):
        q(G1, lambda x=x: g.waitds(f"pr{x}"), "o")
        for n in range(16):
            q(G1, pkadd(192 + x * 32 + n * 2, 128 + x * 32 + n * 2), "v")
        for r in range(4):
            for c in cvts(128 + x * 32 + r * 4, 192 + x * 32, r):
                q(G1, c, "v")
            q(G1, store(128 + x * 32 + r * 4, T + x, r), "o")
    for s in range(24, 39):
        ex = {}
        if s == 36:
            ex[31] = [("vm", f"buffer_load_dword v5, off, s[{S_DBG}:{S_DBG+3}], s{T+4} sc1", "clr")]
        step(s, s in (24, 32), False, ex)
        if s == 31:
            g.stamp(6)
        g.left = getattr(g, "left", []) + [len(fq)]
    assert not fq, g.left
    VO, VF, VP, VC = 2, 3, 4, 5
    prev = [f"v_bfe_u32 v{VO}, v{V_LX}, 4, 4", f"v_lshrrev_b32 v{VF}, 8, v{V_LX}", f"v_mul_u32_u24 v{VO}, 2560, v{VO}",
            f"v_lshl_add_u32 v{VO}, v{VF}, 6, v{VO}", f"v_lshlrev_b32 v{VF}, 3, v{V_LX}"]
    FL = T + 8

    def flag(val, lab):
        return "\n    ".join([f"s_cmp_lg_u32 s{S_W}, 0", f"s_cbranch_scc1 {lab}", f"v_mov_b32 v{V_TMP}, {val}", "s_mov_b64 exec, 1",
                               f"buffer_store_dword v{V_TMP}, off, {WS}, s{FL} sc1", "s_mov_b64 exec, -1"]) + f"\n{lab}:"
    ex = {0: [f"s_lshl_b32 s{FL}, s2, 7"], 1: [f"s_add_u32 s{FL}, s{FL}, {WS_FLAG}", waitall], 3: ["s_barrier"], 5: [flag(1, "L_f1")]}
    acr = [f"v_accvgpr_read_b32 v{192+x*32+j*4+r}, a{x*32+j*4+r}" for j in range(8) for x in range(2) for r in range(4)]
    wr = [dsop(f"ds_write_b128 v6, {ar(192+x*32+j*4)} offset:{x*8192+j*1024}", "qw") for j in range(8) for x in range(2)]
    nw = na = 0
    for n in range(6, 32):
        ex.setdefault(n, [])
        if nw < 16 and n >= (nw // 2) * 4 + 7 and n % 4 in (3, 0):
            ex[n].append(wr[nw])
            nw += 1
        elif pre:
            ex[n].append(pre.pop(0))
        for _ in range(2 if (n % 2 or n >= 24) else 0):
            if prev:
                ex[n].append(prev.pop(0))
            elif na < 64 and n >= (na // 8) * 4 + 7:
                ex[n].append(acr[na])
                na += 1
    step(39, False, True, ex)
    g.stamp(7)
    for x in pre:
        A(x)
    if o.early:
        A("s_mov_b64 exec, 0xff")
        A(g.vm(f"buffer_load_dword v{VP}, v{VF}, {WS}, s{U+17} offen sc1", "poll"))
        A("s_mov_b64 exec, -1")
    cut = 48
    for x in acr[na:cut]:
        A(x)
    if o.verbose:
        print("left", g.left, "na", na, "nw", nw, "pre", len(pre), file=sys.stderr)
    A("s_nop 7")
    A("s_nop 3")
    for x in wr[nw:]:
        emit(x)
    for x in acr[max(na, cut):]:
        A(x)
    A(g.waitds("qw"))
    A("s_barrier")
    for x in range(2):
        for j in range(8):
            A(g.ds(f"ds_read_b128 {vr(128+x*32+j*4)}, v7 offset:{x*8192+j*1024}", f"qr{x*2+j//4}"))
    for x in range(2):
        for hj in range(2):
            A(g.waitds(f"qr{x*2+hj}"))
            for n in range(8):
                A(pkadd(192 + x * 32 + hj * 16 + n * 2, 128 + x * 32 + hj * 16 + n * 2))
        for r in range(4):
            for c in cvts(128 + x * 32 + r * 4, 192 + x * 32, r):
                A(c)
            emit(store(128 + x * 32 + r * 4, T + 2 + x, r))
    g.stamp(59)
    R, SUM = RING, 192

    def loads(early):
        for h in range(8):
            if early:
                A(f"buffer_load_dwordx4 {vr(R+h*8)}, v{V_LX}, {WS}, s{U+5} offen sc1")
                A(f"s_mov_b64 exec, s[{U+12}:{U+13}]")
                A(f"buffer_load_dwordx4 {vr(R+h*8+4)}, v{V_LX}, {WS}, s{U+6} offen sc1")
                A("s_mov_b64 exec, -1")
                if h < 7:
                    A(f"s_add_u32 s{U+5}, s{U+5}, {81920+o.pad}")
                    A(f"s_add_u32 s{U+6}, s{U+6}, {81920+o.pad}")
            else:
                A(f"buffer_load_dwordx4 {vr(R+64+h*4)}, v{V_LX}, {WS}, s{U+7} offen sc1")
                if h < 7:
                    A(f"s_add_u32 s{U+7}, s{U+7}, {81920+o.pad}")

    def sums(early, younger):
        nb = 2 if early else 1
        for h in range(8):
            for b in range(nb):
                A(f"s_waitcnt vmcnt({(8-h)*nb-b-1+younger})")
                for t in range(4):
                    src = (R + h * 8 + b * 4 + t) if early else (R + 64 + h * 4 + t)
                    d = SUM + (b if early else 2) * 8 + 2 * t
                    if h == 0:
                        A(f"v_lshlrev_b32 v{d}, 16, v{src}")
                        A(f"v_and_b32 v{d+1}, s{U+16}, v{src}")
                    else:
                        A(f"v_dot2c_f32_bf16 v{d}, s{U+14}, v{src}")
                        A(f"v_dot2c_f32_bf16 v{d+1}, s{U+15}, v{src}")
        A("s_nop 1")
        for b in ((0, 1) if early else (2,)):
            for t in range(4):
                A(f"v_cvt_pk_bf16_f32 v{SUM+24+b*4+t}, v{SUM+b*8+2*t}, v{SUM+b*8+2*t+1}")
            if b == 1:
                A(f"s_mov_b64 exec, s[{U+12}:{U+13}]")
            A(f"buffer_store_dwordx4 {vr(SUM+24+b*4)}, v{VO}, s[{S_OUT}:{S_OUT+3}], s{U+10+b%2} offen offset:{512*(b//2)} {o.pout}")
            if b == 1:
                A("s_mov_b64 exec, -1")
    E = U + 19

    def poll(lab, cmp_, val):
        A("s_mov_b64 exec, 1")
        g.lab(f"{lab}_clr")
        A(f"v_readfirstlane_b32 s{T+10}, v{VC}")
        A(f"s_sub_u32 s{U+18}, s{U+18}, 1")
        A(f"s_cbranch_scc1 {lab}_out")
        A(f"s_cmp_ge_u32 s{T+10}, 8")
        A(f"s_cbranch_scc1 {lab}_go")
        A(f"buffer_load_dword v{VC}, off, s[{S_DBG}:{S_DBG+3}], s{T+4} sc1")
        A("s_waitcnt vmcnt(0)")
        A(f"s_branch {lab}_clr")
        g.lab(f"{lab}_go")
        A("s_mov_b64 exec, 0xff")
        g.lab(f"{lab}_loop")
        A(f"buffer_load_dword v{VP}, v{VF}, {WS}, s{U+17} offen sc1")
        A("s_waitcnt vmcnt(0)")
        A(f"s_sub_u32 s{U+18}, s{U+18}, 1")
        A(f"s_cbranch_scc1 {lab}_out")
        A(f"v_cmp_{cmp_}_u32 s[{T+12}:{T+13}], {val}, v{VP}")
        A("s_nop 3")
        A(f"s_cmp_lg_u32 s{T+12}, 0")
        A(f"s_cbranch_scc1 {lab}_loop")
        g.lab(f"{lab}_out")
        A("s_mov_b64 exec, -1")
    if o.diag:
        A(f"s_mov_b32 s{E}, 0")
    if o.early:
        A(g.waitvm("poll"))
        A(f"v_readfirstlane_b32 s{T+10}, v{VC}")
        A("s_mov_b64 exec, 0xff")
        A(f"v_cmp_eq_u32 s[{T+12}:{T+13}], 0, v{VP}")
        A("s_mov_b64 exec, -1")
        A(f"s_cmp_lt_u32 s{T+10}, 8")
        A("s_cbranch_scc1 L_late")
        A(f"s_cmp_lg_u32 s{T+12}, 0")
        A("s_cbranch_scc1 L_late")
        if o.diag:
            A(f"s_mov_b32 s{E}, 1")
        loads(True)
        A("s_waitcnt vmcnt(16)")
        A("s_barrier")
        A(flag(2, "L_f2a"))
        g.stamp(56)
        A(f"s_cmp_lg_u32 s{S_W}, 0")
        A("s_cbranch_scc1 L_s0")
        sums(True, 1)
        A("s_branch L_wait")
    g.lab("L_late")
    A(waitall())
    A("s_barrier")
    A(flag(2, "L_f2b"))
    g.stamp(56)
    poll("L_p1", "eq", 0)
    loads(True)
    g.lab("L_s0")
    sums(True, 0)
    A(f"s_cmp_lg_u32 s{S_W}, 0")
    A("s_cbranch_scc1 L_polled")
    g.lab("L_wait")
    poll("L_p2", "ne", 2)
    g.lab("L_polled")
    A("s_barrier")
    g.stamp(57)
    loads(False)
    sums(False, 0)
    g.stamp(58)
    if o.diag:
        A(f"v_writelane_b32 v{V_TID}, s{E}, 60")


def gen_reduce(g):
    o = g.o
    A = g.A
    K = "reduce_kernel"
    g.L.append(f".globl {K}\n.p2align 8\n.type {K},@function")
    g.lab(K)
    A("s_cmp_ge_u32 s2, 640")
    A("s_cbranch_scc1 L_red_end")
    if o.diag >= 2:
        A("s_memrealtime s[20:21]")
    A("s_load_dwordx2 s[4:5], s[0:1], 80")
    A("s_load_dwordx2 s[8:9], s[0:1], 96")
    A("v_lshrrev_b32 v1, 6, v0")
    A("v_and_b32 v0, 63, v0")
    A("v_readfirstlane_b32 s3, v1")
    A("s_lshl_b32 s12, s2, 2")
    A("s_mov_b32 s6, 2621440")
    A("s_mov_b32 s7, 0x20000")
    A("s_mov_b32 s10, 268435456")
    A("s_mov_b32 s11, 0x20000")
    A("s_add_u32 s12, s12, s3")
    A("s_mul_i32 s13, s12, 52429")
    A("s_lshr_b32 s13, s13, 22")
    A("s_mul_i32 s14, s13, 80")
    A("s_sub_u32 s14, s12, s14")
    A("s_mul_i32 s15, s13, 655360")
    A("s_lshl_b32 s16, s14, 10")
    A("s_add_u32 s15, s15, s16")
    A("v_lshlrev_b32 v1, 4, v0")
    A("s_waitcnt lgkmcnt(0)")
    for h in range(8):
        A(f"buffer_load_dwordx4 {vr(4+h*4)}, v1, s[8:11], s15 offen {o.pld}")
        if h < 7:
            A("s_add_u32 s15, s15, 81920")
    A("s_and_b32 s16, s13, 15")
    A("s_lshl_b32 s16, s16, 2")
    A("s_bfe_u32 s17, s14, 0x20002")
    A("s_add_u32 s16, s16, s17")
    A("s_mul_i32 s16, s16, 40960")
    A("s_lshr_b32 s17, s13, 4")
    A("s_mul_i32 s17, s17, 1280")
    A("s_add_u32 s16, s16, s17")
    A("s_lshr_b32 s17, s14, 4")
    A("s_lshl_b32 s17, s17, 8")
    A("s_add_u32 s16, s16, s17")
    A("s_and_b32 s17, s14, 3")
    A("s_lshl_b32 s17, s17, 4")
    A("s_add_u32 s16, s16, s17")
    A("v_and_b32 v2, 15, v0")
    A("v_lshrrev_b32 v3, 4, v0")
    A("v_mul_u32_u24 v2, 2560, v2")
    A("v_lshl_add_u32 v2, v3, 6, v2")
    A("s_mov_b32 s18, 0xffff0000")
    for h in range(8):
        A(f"s_waitcnt vmcnt({7-h})")
        for t in range(4):
            src = 4 + h * 4 + t
            if h == 0:
                A(f"v_lshlrev_b32 v{40+2*t}, 16, v{src}")
                A(f"v_and_b32 v{41+2*t}, s18, v{src}")
            else:
                A(f"v_lshlrev_b32 v{48+2*t}, 16, v{src}")
                A(f"v_and_b32 v{49+2*t}, s18, v{src}")
        if h:
            for n in range(8):
                A(f"v_add_f32 v{40+n}, v{40+n}, v{48+n}")
    for t in range(4):
        A(f"v_cvt_pk_bf16_f32 v{4+t}, v{40+2*t}, v{41+2*t}")
    A(f"buffer_store_dwordx4 {vr(4)}, v2, s[4:7], s16 offen")
    if o.diag == 2:
        A("s_waitcnt vmcnt(0)")
        A("s_memrealtime s[22:23]")
        A("s_load_dwordx2 s[24:25], s[0:1], 88")
        A("s_mov_b32 s26, 64")
        A("s_mov_b32 s27, 0x20000")
        A("s_waitcnt lgkmcnt(0)")
        A("v_mov_b32 v8, 0")
        A("s_not_b32 s21, s20")
        A("v_writelane_b32 v8, s20, 13")
        A("v_writelane_b32 v8, s21, 14")
        A("v_writelane_b32 v8, s22, 15")
        A("v_lshlrev_b32 v9, 2, v0")
        A("buffer_atomic_umax v8, v9, s[24:27], 0 offen sc1")
    if o.diag == 3:
        A("s_cmp_lg_u32 s12, 2000")
        A("s_cbranch_scc1 L_red_end")
        A("s_waitcnt vmcnt(0)")
        A("s_memrealtime s[22:23]")
        A("s_load_dwordx2 s[24:25], s[0:1], 88")
        A("s_mov_b32 s26, 64")
        A("s_mov_b32 s27, 0x20000")
        A("v_lshlrev_b32 v9, 2, v0")
        A(f"s_mov_b32 s15, {0x8000000 + o.sel*256}")
        A("buffer_load_dword v8, v9, s[8:11], s15 offen sc1")
        A("s_waitcnt vmcnt(0) lgkmcnt(0)")
        A("v_writelane_b32 v8, s20, 14")
        A("v_writelane_b32 v8, s22, 15")
        A("buffer_store_dword v8, v9, s[24:27], 0 offen")
    g.lab("L_red_end")
    A("s_endpgm")


def desc(name, vg, acc, sg):
    return f""".amdhsa_kernel {name}
  .amdhsa_next_free_vgpr {vg}
  .amdhsa_next_free_sgpr {sg}
  .amdhsa_accum_offset {acc}
  .amdhsa_group_segment_fixed_size 0
  .amdhsa_kernarg_size 104
  .amdhsa_user_sgpr_count 2
  .amdhsa_user_sgpr_kernarg_segment_ptr 1
  .amdhsa_system_sgpr_workgroup_id_x 1
.end_amdhsa_kernel"""


def build(o):
    g = Gen(o)
    head = [l.rstrip("\n") for l in open(f"cdna_kernels/{NAME}.s.ref") if l.startswith(";   offset") or l.startswith("; Kernarg")]
    if o.fuse:
        head.append(f"; @launch grid=(256,1,1) block=(256,1,1) lds={LDS_BYTES}")
    else:
        head.append(f"; @launch kernel={NAME}_kernel grid=(256,1,1) block=(256,1,1) lds={LDS_BYTES}")
        head.append(f"; @launch kernel=reduce_kernel grid=(640,1,1) block=(256,1,1) lds=0")
    for _ in range(o.noop):
        head.append(f"; @launch kernel=noop_kernel grid=(1,1,1) block=(64,1,1) lds=0")
    head.append('.amdgcn_target "amdgcn-amd-amdhsa--gfx950"')
    head.append(".text")
    gen_main(g)
    if not o.fuse:
        gen_reduce(g)
    g.lab("L_code_end")
    if o.noop:
        g.L.append(".globl noop_kernel\n.p2align 8\n.type noop_kernel,@function\nnoop_kernel:\n    s_endpgm")
    tail = ['.section .rodata,"a"', ".p2align 6", desc(f"{NAME}_kernel", 512, 256, 102)]
    if not o.fuse:
        tail += [".p2align 6", desc("reduce_kernel", 64, 64, 32)]
    if o.noop:
        tail += [".p2align 6", desc("noop_kernel", 64, 64, 32)]
    return "\n".join(head + g.L + tail) + "\n"


def opts(argv=None):
    p = argparse.ArgumentParser()
    p.add_argument("-o", default=f"cdna_kernels/{NAME}.s")
    p.add_argument("--diag", type=int, default=0)
    p.add_argument("--warm", type=int, default=1)
    p.add_argument("--noop", type=int, default=0)
    p.add_argument("--fuse", type=int, default=0)
    p.add_argument("--dp", type=int, default=0)
    p.add_argument("--verbose", type=int, default=0)
    p.add_argument("--cap", type=int, default=2)
    p.add_argument("--wpace", type=int, default=4)
    p.add_argument("--cape", type=int, default=1)
    p.add_argument("--capv", type=int, default=0)
    p.add_argument("--early", type=int, default=1)
    p.add_argument("--wopre", type=int, default=0)
    p.add_argument("--defer", type=int, default=0)
    p.add_argument("--xrot", type=int, default=1)
    p.add_argument("--alt", default="")
    p.add_argument("--altbit", type=int, default=0)
    p.add_argument("--pad", type=int, default=0)
    p.add_argument("--c4pre", type=int, default=0)
    p.add_argument("--exp", default="")
    p.add_argument("--steps", type=int, default=0)
    p.add_argument("--ng", type=int, default=1)
    p.add_argument("--kst", default="")
    p.add_argument("--vst", default="")
    p.add_argument("--order", default="xa,xb,w0,w1,w2")
    p.add_argument("--coop", type=int, default=0)
    p.add_argument("--nfirst", type=int, default=0)
    p.add_argument("--c4first", type=int, default=0)
    p.add_argument("--sel", type=int, default=401)
    p.add_argument("--rot", type=int, default=1)
    p.add_argument("--spread", type=int, default=3)
    p.add_argument("--kv0", type=int, default=0)
    p.add_argument("--kvper", type=int, default=1)
    for k, d in (("px", ""), ("pxb", ""), ("pw0", "nt"), ("pwq", ""), ("pwo", ""), ("pk", "nt"), ("pv", "nt"), ("pst", "sc1"), ("pld", ""), ("pout", "")):
        p.add_argument("--" + k, default=d)
    return p.parse_args(argv)


if __name__ == "__main__":
    o = opts()
    open(o.o, "w").write(build(o))
```

```python
import sys, argparse

NAME = "concat_heads__gqa_block_cached__mha_block_cached__near_ridge"

V_TID = 0
V_TMP = 1
V_W = 2
V_B = 10
V_LX = 11
V_KG = 12
V_VG = 13
V_WO0 = 14
V_WO1 = 15
PERM = 16
RING = 32
ACC = 128
A_V = 0
A_B = 64
A_K = 128
A_C4 = 128

S_X, S_K, S_V, S_WQ, S_WO, S_WS = 8, 12, 16, 20, 24, 28
S_W = 3
S_BP = 4
S_HQ = 5
S_T0, S_T1 = 6, 7
S_KS = 32
S_CW = 52
S_XC = 72
S_KV = 8
S_CL = 95
S_ST = 92
S_PLO, S_PHI = 93, 94
S_KLDS = 96
S_SC = 97
S_C4U = 98
S_GRP = 7
S_STMP = 99
S_TS = 100
S_G = 95

S_OUT, S_DBG = 12, 16
WS_FLAG = 0x2000000
LDS_O = 0
LDS_X = 65536
LDS_R = 65536
LDS_BYTES = 163840
GFUN = [0, 2, 3, 1]


class Gen:
    def __init__(self, o):
        self.o = o
        self.L = []
        self.ng = o.ng
        self.vq = [[] for _ in range(self.ng)]
        self.nlab = 0
        self.dq = []

    def A(self, s):
        if s:
            self.L.append("    " + s)

    def lab(self, s):
        self.L.append(s + ":")

    def vm(self, s, tag, grp=None):
        for k, q in enumerate(self.vq):
            if grp is None or grp == k:
                q.append(tag)
                assert len(q) <= 63, "vmcnt overflow"
        return s

    def waitvm(self, tag):
        ns = []
        for k, q in enumerate(self.vq):
            idx = max((i for i, t in enumerate(q) if t == tag), default=-1)
            ns.append(None if idx < 0 else len(q) - 1 - idx)
            self.vq[k] = q[idx + 1:]
        vals = sorted(set(n for n in ns if n is not None))
        if not vals:
            return None
        lo = vals[0]
        big = [k for k, n in enumerate(ns) if n is not None and n > lo]
        if len(big) != 1:
            return f"s_waitcnt vmcnt({lo})"
        self.nlab += 1
        return (f"s_cmp_eq_u32 s{S_GRP}, {big[0]}\n    s_cbranch_scc1 L_w{self.nlab}\n    s_waitcnt vmcnt({lo})\n"
                f"L_w{self.nlab}:\n    s_waitcnt vmcnt({ns[big[0]]})")

    def ds(self, s, tag):
        self.dq.append(tag)
        return s

    def waitds(self, tag):
        idx = max((i for i, t in enumerate(self.dq) if t == tag), default=-1)
        if idx < 0:
            return None
        n = len(self.dq) - 1 - idx
        self.dq = self.dq[idx + 1:]
        return f"s_waitcnt lgkmcnt({min(n, 15)})"

    def stamp(self, k):
        if not self.o.diag:
            return
        A = self.A
        A(f"{'s_memtime' if self.o.diag != 2 else 's_memrealtime'} s[{S_TS}:{S_TS+1}]")
        A("s_waitcnt lgkmcnt(0)")
        A(f"v_writelane_b32 v{V_TID}, s{S_TS}, {k}")


def mfma(d, a, b, c):
    return f"v_mfma_f32_16x16x32_bf16 {d}, {a}, {b}, {c}"


def vr(n, k=4):
    return f"v[{n}:{n+k-1}]"


def ar(n, k=4):
    return f"a[{n}:{n+k-1}]"


def perms(src_rows, t, dst):
    out = []
    for e in range(2):
        for p in range(4):
            sel = S_PLO if e == 0 else S_PHI
            out.append(f"v_perm_b32 v{dst+e*4+p}, v{src_rows[2*p+1]+t}, v{src_rows[2*p]+t}, s{sel}")
    return out


def slot_rows(s):
    return [RING + (s % 3) * 32 + r * 4 for r in range(8)]


def gen_main(g):
    o = g.o
    A = g.A
    K = f"{NAME}_kernel"
    g.L.append(f".globl {K}\n.p2align 8\n.type {K},@function")
    g.lab(K)
    A("s_cmp_ge_u32 s2, 256")
    A("s_cbranch_scc1 L_main_end")
    if o.diag:
        A(f"{'s_memtime' if o.diag != 2 else 's_memrealtime'} s[54:55]")
        A(f"s_memrealtime s[56:57]")
    A("s_load_dwordx16 s[32:47], s[0:1], 0")
    A("s_load_dwordx4 s[48:51], s[0:1], 64")
    A("s_load_dwordx2 s[28:29], s[0:1], 96")
    A(f"v_lshrrev_b32 v{V_TMP}, 6, v0")
    A(f"v_and_b32 v0, 63, v0")
    A(f"v_readfirstlane_b32 s{S_W}, v{V_TMP}")
    A(f"s_lshr_b32 s{S_T0}, s2, 3")
    if o.warm:
        A("s_getpc_b64 s[52:53]")
        g.lab("L_pc")
        A(f"s_sub_u32 s52, s52, L_pc-{K}")
        A("s_subb_u32 s53, s53, 0")
        A(f"s_lshl_b32 s{S_T1}, s{S_T0}, 2")
        A(f"s_add_u32 s{S_T1}, s{S_T1}, s{S_W}")
        A(f"s_min_u32 s{S_T1}, s{S_T1}, (L_code_end-{K})/1024-1")
        A(f"s_lshl_b32 s{S_T1}, s{S_T1}, 10")
        A(f"v_lshl_add_u32 v{V_TMP}, v0, 4, s{S_T1}")
        A(g.vm(f"global_load_dwordx4 {vr(PERM)}, v{V_TMP}, s[52:53]", "warm"))
    A(f"s_lshr_b32 s{S_BP}, s{S_T0}, 1")
    A(f"s_and_b32 s{S_T0}, s{S_T0}, 1")
    A(f"s_and_b32 s{S_HQ}, s2, 3")
    A(f"s_lshl_b32 s{S_HQ}, s{S_HQ}, 1")
    A(f"s_add_u32 s{S_HQ}, s{S_HQ}, s{S_T0}")
    vi, vG, vt, vt2 = 20, 21, 22, 23
    A(f"s_movk_i32 s{S_G}, 0x78")
    A(f"v_and_b32 v{vi}, 15, v0")
    A(f"v_lshrrev_b32 v{vG}, 4, v0")
    A(f"v_xor_b32 v{vt}, v{vG}, v0")
    A(f"v_and_b32 v{vt}, 7, v{vt}")
    A(f"v_lshlrev_b32 v{vt}, 4, v{vt}")
    A(f"v_lshrrev_b32 v{vt2}, 3, v0")
    A(f"v_mul_u32_u24 v{vt2}, 1280, v{vt2}")
    A(f"v_add_u32 v{V_B}, v{vt}, v{vt2}")
    A(f"v_xor_b32 v{vt}, 64, v{vt}")
    A(f"v_add_u32 v{vt2}, {8*1280}, v{vt2}")
    A(f"v_add_u32 v{V_LX}, v{vt}, v{vt2}")
    A(f"v_lshlrev_b32 v{vt}, 4, v{vi}")
    A(f"v_lshl_add_u32 v{V_W}, v{vG}, 16, v{vt}")
    for r in range(1, 8):
        A(f"v_add_u32 v{V_W+r}, {r*8192}, v{V_W}")
    A("s_bitcmp1_b32 s2, 2")
    A("s_waitcnt lgkmcnt(0)")
    if o.diag:
        A(f"s_mov_b32 s{S_TS}, s54")
        A(f"s_mov_b32 s{S_TS+1}, s56")
        A("s_memtime s[88:89]")
    for dst, a, b in ((S_X, 32, 42), (S_K, 34, 44), (S_V, 36, 46), (S_WQ, 38, 48), (S_WO, 40, 50)):
        A(f"s_cselect_b32 s{dst}, s{b}, s{a}")
        A(f"s_cselect_b32 s{dst+1}, s{b+1}, s{a+1}")
    for dst, n in ((S_X, 1310720), (S_K, 8388608), (S_V, 8388608), (S_WQ, 5242880), (S_WO, 5242880), (S_WS, 268435456)):
        A(f"s_mov_b32 s{dst+2}, {n}")
        A(f"s_mov_b32 s{dst+3}, 0x20000")
    A(f"s_lshl_b32 s{S_C4U}, s{S_HQ}, 2")
    A(f"s_add_u32 s{S_C4U}, s{S_C4U}, s{S_W}")
    A(f"s_lshl_b32 s{S_T1}, s{S_C4U}, 8")
    for r in range(8):
        A(f"v_add_u32 v{V_W+r}, s{S_T1}, v{V_W+r}")
    A(f"s_mul_i32 s{S_KS}, s{S_BP}, 5")
    A(f"s_lshr_b32 s{S_KS}, s{S_KS}, 2")
    if not o.rot:
        A(f"s_mov_b32 s{S_KS}, 0")
    A(f"s_lshl_b32 s{S_KS}, s{S_KS}, 18")
    tab = []
    for ks in range(19):
        tab.append([f"s_add_u32 s{S_KS+ks+1}, s{S_KS+ks}, {1<<18}", f"s_cmp_eq_u32 s{S_KS+ks+1}, {20<<18}", f"s_cselect_b32 s{S_KS+ks+1}, 0, s{S_KS+ks+1}"])
    for t in tab[:2]:
        for x in t:
            A(x)
    tab = tab[2:]

    def wload(s, r):
        dst = vr(slot_rows(s)[r])
        if s == 39 and o.e39:
            dst = ar(r * 4)
        if s < 20:
            pol = o.pw0 if s < o.nfirst else o.pwq
            return g.vm(f"buffer_load_dwordx4 {dst}, v{V_W+r}, s[{S_WQ}:{S_WQ+3}], s{S_KS+s} offen {pol}", f"w{s}")
        v = V_WO0 if r < 4 else V_WO1
        pol = o.pw0 if (s - 20 < o.nfirst or (s >= 36 and o.c4first)) else o.pwo
        ci = s - 20 if not o.dp else (s - 4 if s < 24 else s - 24)
        return g.vm(f"buffer_load_dwordx4 {dst}, v{v}, s[{S_WO}:{S_WO+3}], s{S_CW+ci} offen offset:{(r%4)*1280} {pol}", f"w{s}")

    def wsoff(s):
        return None

    def xhalf(second):
        A(f"s_and_b32 s{S_T1}, s{S_HQ}, 1")
        if second:
            A(f"s_xor_b32 s{S_T1}, s{S_T1}, 1")
        if not o.coop:
            A(f"s_mov_b32 s{S_T1}, {second}")
        A(f"s_lshl_b32 s{S_T0}, s{S_BP}, 2")
        A(f"s_add_u32 s{S_T0}, s{S_T0}, s{S_W}")
        A(f"s_mul_i32 s{S_T0}, s{S_T0}, {16*1280}")
        A(f"s_mul_i32 s{S_STMP}, s{S_T1}, 640")
        A(f"s_add_u32 s{S_T0}, s{S_T0}, s{S_STMP}")
        A(f"s_mul_i32 s{S_T1}, s{S_T1}, 20")
        A(f"s_add_u32 s{S_T1}, s{S_T1}, s{S_W}")
        A(f"s_lshl_b32 s{S_T1}, s{S_T1}, 11")
        A(f"s_add_u32 m0, s{S_T1}, {LDS_X}")
        A("s_nop 0")
        for n in range(10):
            kb, m = n // 2, n % 2
            A(g.vm(f"buffer_load_dwordx4 v{V_LX if m else V_B}, s[{S_X}:{S_X+3}], s{S_T0} offen offset:{kb*128} {o.pxb if second else o.px} lds", "x"))
            if n < 9:
                A(f"s_add_u32 m0, m0, {1024 if m == 0 else 8192-128-1024}")
                if tab:
                    for x in tab.pop(0):
                        A(x)
                else:
                    A("s_nop 0")
    def xinit():
        A(f"s_lshl_b32 s{S_T0}, s{S_BP}, 2")
        A(f"s_add_u32 s{S_T0}, s{S_T0}, s{S_W}")
        A(f"s_mul_i32 s{S_T0}, s{S_T0}, {16*1280}")
        A(f"s_lshl_b32 s{S_KLDS}, s{S_W}, 11")
        A(f"s_add_u32 s{S_KLDS}, s{S_KLDS}, {LDS_X}")
        A(f"s_and_b32 s{S_T1}, s{S_HQ}, 1")
        A(f"s_mul_i32 s{S_T1}, s{S_T1}, 5")
        if o.xrot:
            A(f"s_lshr_b32 s{S_STMP}, s{S_HQ}, 1")
            A(f"s_add_u32 s{S_T1}, s{S_T1}, s{S_STMP}")
        A(f"s_lshl_b32 s{S_T1}, s{S_T1}, 7")

    def xblk(n, track=True):
        pol = o.px if n < 5 else o.pxb
        A(f"s_lshl_b32 s{S_STMP}, s{S_T1}, 6")
        A(f"s_add_u32 m0, s{S_STMP}, s{S_KLDS}")
        A(f"s_add_u32 s{S_STMP}, s{S_T0}, s{S_T1}")
        x = f"buffer_load_dwordx4 v{V_B}, s[{S_X}:{S_X+3}], s{S_STMP} offen {pol} lds"
        A(g.vm(x, "x") if track else x)
        A(f"s_add_u32 m0, m0, 1024")
        A(f"s_add_u32 s{S_T1}, s{S_T1}, 128")
        x = f"buffer_load_dwordx4 v{V_LX}, s[{S_X}:{S_X+3}], s{S_STMP} offen {pol} lds"
        A(g.vm(x, "x") if track else x)
        A(f"s_cmp_eq_u32 s{S_T1}, 1280")
        A(f"s_cselect_b32 s{S_T1}, 0, s{S_T1}")
        if track:
            for _ in range(2):
                if tab:
                    for t in tab.pop(0):
                        A(t)

    def pre(track=True):
        A(f"s_lshr_b32 s{S_ST}, s{S_BP}, 2")
        A(f"s_mul_i32 s{S_ST}, s{S_ST}, 5")
        A(f"s_add_u32 s{S_ST}, s{S_ST}, 4")
        A(f"s_lshl_b32 s{S_ST}, s{S_ST}, 4")
        A(f"s_and_b32 s{S_SC}, s{S_BP}, 3")
        A(f"s_add_u32 s{S_ST}, s{S_ST}, s{S_SC}")
        A(f"s_lshl_b32 s{S_ST}, s{S_ST}, 14")
        for r in range(2):
            x = f"buffer_load_dwordx4 {ar(248+4*r)}, v{V_W+r}, s[{S_WQ}:{S_WQ+3}], s{S_ST} offen"
            A(g.vm(x, "pre") if track else x)

    def items(lst, track=True, stamps=False):
        for ni, item in enumerate(lst):
            if o.diag and stamps and ni in (1, 2, 3):
                A(f"s_memtime s[{88+2*ni}:{89+2*ni}]") if ni < 2 else A(f"s_memtime s[{68+2*ni}:{69+2*ni}]")
            if item[0] == "c":
                A(f"s_waitcnt vmcnt({item[1:]})")
            elif item == "xa":
                xhalf(0)
            elif item == "xb":
                xhalf(1)
            elif item == "p":
                pre(track)
            elif item[0] == "x":
                for n in range(int(item[1]), int(item[2]) + 1):
                    xblk(n, track)
            else:
                sw = int(item[1:])
                for r in range(8):
                    if track:
                        A(wload(sw, r))
                    else:
                        sv = [list(q) for q in g.vq]
                        A(wload(sw, r))
                        g.vq = sv
    lst = o.order.split(",")
    if any(x[0] == "x" and len(x) == 3 for x in lst):
        xinit()
    if o.alt:
        alt = o.alt.split(",")
        assert sorted(alt) == sorted(lst[:len(alt)])
        A(f"s_bitcmp1_b32 s{S_BP}, {o.altbit}")
        A("s_cbranch_scc1 L_alt")
        keep, tab[:] = list(tab), []
        items(lst[:len(alt)], stamps=True)
        A("s_branch L_join")
        g.lab("L_alt")
        items(alt, track=False, stamps=True)
        g.lab("L_join")
        tab[:] = keep
        items(lst[len(alt):])
    else:
        items(lst, stamps=True)
    for t in tab:
        for x in t:
            A(x)
    tab[:] = []
    assert not tab
    A(f"s_mov_b32 s{S_T0}, s{S_C4U}")
    if o.diag:
        A("s_waitcnt lgkmcnt(0)")
        A("v_mov_b32 v24, 0")
        for k, sr in ((11, 88), (12, 90), (14, 72), (15, 74)):
            A(f"v_writelane_b32 v24, s{sr}, {k}")
    A(f"s_lshl_b32 s{S_KV}, s{S_BP}, 6")
    A(f"s_add_u32 s{S_KV}, s{S_KV}, s{S_T0}")
    A(f"s_lshl_b32 s{S_KV}, s{S_KV}, 13")
    A(f"s_add_u32 s{S_KV+1}, s{S_KV}, 4096")
    A(f"s_add_u32 s{S_KV+2}, s{S_KV}, 262144")
    A(f"s_add_u32 s{S_KV+3}, s{S_KV}, {262144+4096}")
    A(f"s_lshl_b32 s{S_KLDS}, s{S_W}, 14")
    A(f"s_mov_b32 s{S_PLO}, 0x05040100")
    A(f"s_mov_b32 s{S_PHI}, 0x07060302")
    A(f"s_mov_b32 s{S_SC}, 0x3e0293ee")
    A(f"s_mul_i32 s{S_T0}, s{S_HQ}, {512*1280}")
    A(f"s_lshl_b32 s{S_T1}, s{S_W}, 8")
    A(f"s_add_u32 s{S_T1}, s{S_T1}, s{S_T0}")
    if o.dp:
        A(f"s_lshr_b32 s{S_T1}, s{S_W}, 1")
        A(f"s_lshl_b32 s{S_T1}, s{S_T1}, 8")
        A(f"s_add_u32 s{S_T1}, s{S_T1}, s{S_T0}")
        A(f"s_and_b32 s{S_STMP}, s{S_W}, 1")
        A(f"s_mul_i32 s{S_STMP}, s{S_STMP}, {256*1280}")
        A(f"s_add_u32 s{S_T1}, s{S_T1}, s{S_STMP}")
        for n in range(8):
            A(f"s_add_u32 s{S_STMP}, s{S_BP}, {n}")
            A(f"s_and_b32 s{S_C4U}, s{S_STMP}, 3")
            A(f"s_bfe_u32 s{S_STMP}, s{S_STMP}, 0x10002")
            A(f"s_lshl_b32 s{S_STMP}, s{S_STMP}, 4")
            A(f"s_add_u32 s{S_STMP}, s{S_STMP}, s{S_C4U}")
            A(f"s_mul_i32 s{S_STMP}, s{S_STMP}, {8*1280}")
            A(f"s_add_u32 s{S_CW+n}, s{S_STMP}, s{S_T1}")
            A(f"s_add_u32 s{S_CW+8+n}, s{S_CW+n}, 512")
    for n in range(16 if not o.dp else 0):
        if o.rot:
            A(f"s_add_u32 s{S_STMP}, s{S_BP}, {n}")
            A(f"s_and_b32 s{S_STMP}, s{S_STMP}, 15")
        else:
            A(f"s_mov_b32 s{S_STMP}, {n}")
        A(f"s_and_b32 s{S_C4U}, s{S_STMP}, 3")
        A(f"s_lshr_b32 s{S_STMP}, s{S_STMP}, 2")
        A(f"s_lshl_b32 s{S_STMP}, s{S_STMP}, 4")
        A(f"s_add_u32 s{S_STMP}, s{S_STMP}, s{S_C4U}")
        A(f"s_mul_i32 s{S_STMP}, s{S_STMP}, {8*1280}")
        A(f"s_add_u32 s{S_CW+n}, s{S_STMP}, s{S_T1}")
    A(f"s_mul_i32 s{S_T1}, s{S_W}, {128*1280}")
    A(f"s_add_u32 s{S_T1}, s{S_T1}, s{S_T0}")
    A(f"s_add_u32 s{S_T1}, s{S_T1}, 1024")
    for n in range(4):
        A(f"s_add_u32 s{S_CW+16+n}, s{S_T1}, {n*8*1280}")
    A(f"s_lshr_b32 s{S_T0}, s2, 2")
    A(f"s_and_b32 s{S_T0}, s{S_T0}, 1")
    A(f"s_lshl_b32 s{S_T0}, s{S_T0}, 4")
    A(f"s_add_u32 s{S_T0}, s{S_T0}, s{S_BP}")
    A(f"s_lshl_b32 s{S_T0}, s{S_T0}, 3")
    A(f"s_add_u32 s{S_T0}, s{S_T0}, s{S_HQ}")
    A(f"s_mul_i32 s{S_ST}, s{S_T0}, {81920+o.pad}")
    if o.fuse:
        if o.diag:
            A(f"s_mov_b32 vcc_hi, s2")
        A(f"s_mov_b32 s2, s{S_T0}")
        A(f"s_cmp_lg_u32 s{S_W}, 0")
        A("s_cbranch_scc1 L_noclr")
        if o.fuse == 2:
            flag_base(g, S_T0, S_STMP)
            A(f"v_mov_b32 v{V_TMP}, 0")
            A(f"v_lshlrev_b32 v{vt}, 7, v{vi}")
            A("s_mov_b64 exec, 15")
            A(f"buffer_store_dword v{V_TMP}, v{vt}, s[{S_WS}:{S_WS+3}], s{S_T0} offen sc1")
        else:
            A(f"s_lshl_b32 s{S_T0}, s2, 7")
            A(f"s_add_u32 s{S_T0}, s{S_T0}, {WS_FLAG}")
            A(f"v_mov_b32 v{V_TMP}, 0")
            A("s_mov_b64 exec, 1")
            A(f"buffer_store_dword v{V_TMP}, off, s[{S_WS}:{S_WS+3}], s{S_T0} sc1")
        A("s_mov_b64 exec, -1")
        g.lab("L_noclr")
    A(f"v_xor_b32 v{vt}, v{vi}, v{vG}")
    A(f"v_lshlrev_b32 v{vt}, 4, v{vt}")
    A(f"v_lshl_add_u32 v{V_KG}, v{vG}, 8, v{vt}")
    A(f"v_lshlrev_b32 v{vt}, 4, v{vi}")
    A(f"v_lshl_add_u32 v{V_VG}, v{vG}, 10, v{vt}")
    A(f"v_mul_u32_u24 v{V_WO0}, {32*1280}, v{vG}")
    A(f"v_add_u32 v{V_WO0}, v{V_WO0}, v{vt}")
    A(f"v_add_u32 v{V_WO1}, {4*1280}, v{V_WO0}")
    A(f"v_lshrrev_b32 v{vt}, 1, v{vi}")
    A(f"v_xor_b32 v{vt}, v{vt}, v{vG}")
    A(f"v_lshlrev_b32 v{vt}, 4, v{vt}")
    A(f"v_lshl_add_u32 v{V_LX}, v{vi}, 7, v{vt}")
    for n in range(20):
        A(f"s_lshr_b32 s{S_STMP}, s{S_KS+n}, 19")
        A(f"s_lshl_b32 s{S_STMP}, s{S_STMP}, 13")
        A(f"s_bfe_u32 s{S_C4U}, s{S_KS+n}, 0x10012")
        A(f"s_lshl_b32 s{S_C4U}, s{S_C4U}, 6")
        A(f"s_add_u32 s{S_STMP}, s{S_STMP}, {LDS_X}")
        A(f"s_or_b32 s{S_XC+n}, s{S_STMP}, s{S_C4U}")
    A(f"s_and_b32 s{S_GRP}, s{S_BP}, {o.ng-1}")
    if o.diag:
        A(f"v_mov_b32 v{V_TID}, v24")
        A(f"v_writelane_b32 v{V_TID}, s{S_TS}, 10")
        A(f"v_writelane_b32 v{V_TID}, s{S_TS+1}, 13")
        g.stamp(0)

    def kload(n):
        bt, m = n // 8, n % 8
        ins = []
        if m % 4 == 0:
            ins.append(f"s_add_u32 m0, s{S_KLDS}, {bt*8192 + (m//4)*4096}")
        ins.append(f"v_xor_b32 v{V_TMP}, {GFUN[m%4] << 6}, v{V_KG}")
        ins.append(("vm", f"buffer_load_dwordx4 v{V_TMP}, s[{S_K}:{S_K+3}], s{S_KV+bt*2+m//4} offen offset:{(m%4)*1024} {o.pk} lds", "k"))
        return ins

    def vload(n):
        bt, r = n // 8, n % 8
        return [("vm", f"buffer_load_dwordx4 {ar(A_V+n*4)}, v{V_VG}, s[{S_V}:{S_V+3}], s{S_KV+bt*2+r//4} offen offset:{(r%4)*256} {o.pv}", "v")]

    def baddr(s):
        if s < 20:
            return [f"v_xor_b32 v{V_B}, s{S_XC+s}, v{V_LX}"]
        if o.dp:
            if s < 24:
                return []
            return [f"v_add_u32 v{V_B}, s{S_CL}, v{V_KG}", f"v_xor_b32 v{V_VG}, 2048, v{V_B}", f"s_add_u32 s{S_CL}, s{S_CL}, 4096", f"s_and_b32 s{S_CL}, s{S_CL}, 0x7fff"]
        if s < 36:
            return [f"v_add_u32 v{V_B}, s{S_CL}, v{V_LX}", f"s_add_u32 s{S_CL}, s{S_CL}, 4096", f"s_and_b32 s{S_CL}, s{S_CL}, 0xffff"]
        return []

    def breads(s):
        buf = A_B + (s % 2) * 16
        if s < 20:
            return [f"ds_read_b128 {ar(buf+q*4)}, v{V_B} offset:{q*2048}" for q in range(4)]
        if o.dp:
            if s < 24:
                return [f"ds_read_b128 {ar(buf+q*4)}, v{V_W+q} offset:{(s-20)*4096}" for q in range(4)]
            return [f"ds_read_b128 {ar(buf+q*4)}, v{V_B if q < 2 else V_VG} offset:{(q%2)*1024}" for q in range(4)]
        if s < 36:
            return [f"ds_read_b128 {ar(buf+q*4)}, v{V_B} offset:{q*1024}" for q in range(4)]
        return [f"ds_read_b128 {ar(buf+q*4)}, v{V_W+q} offset:{(s-36)*4096}" for q in range(4)]

    def bread(s):
        return baddr(s) + breads(s)

    def emit(ins):
        if isinstance(ins, tuple):
            A(g.vm(ins[1], ins[2]))
        elif callable(ins):
            r = ins()
            if r:
                A(r)
        else:
            A(ins)

    DEF = (20, 21, 22) if o.defer == 3 else (21, 22)
    fq = []

    def cap(s, n):
        if n == 1:
            return 0, o.cape
        if n % 2 == 0:
            return o.capv, o.cape
        return (o.cap, o.cap) if n in (19, 21) else (1, 1)

    def dacc(s, q, j):
        if s < 24:
            return vr(128 + j * 4) if q == 0 else ar((96, 0, 32)[q - 1] + j * 4)
        if s < 32:
            return vr(192 + q * 32 + j * 4) if q < 2 else ar(128 + (q - 2) * 32 + j * 4)
        return ar(q * 32 + j * 4) if q < 2 else ar(192 + (q - 2) * 32 + j * 4)

    def step(s, first, last, extra, preperm=True, prefetchB=True):
        fill = [[] for _ in range(32)]
        rows = slot_rows(s)
        buf = A_B + (s % 2) * 16
        for t in range(3):
            for n, p in enumerate(perms(rows, t + 1, PERM + ((t + 1) % 2) * 8)):
                fill[t * 8 + (n // 2) * 2].append(p)
        late = o.spread
        if late and s >= 1 and s + 2 < 40 and s != 20 and not (o.defer and s + 2 in DEF) and not (o.e39 and s + 2 >= 38):
            for n, r in enumerate(range(8 - late, 8)):
                fill[11 + 2 * n].append(lambda r=r: wload(s + 2, r))
        if not last:
            ba = baddr(s + 1)
            g0 = 1
            if ba:
                fill[g0].append(ba[0])
                fill[g0] += ba[1:2]
                fill[17] += ba[2:]
                g0 += 2
            for n, x in enumerate(breads(s + 1)):
                fill[g0 + n * 2].append(lambda x=x: g.ds(x, f"b{s+1}"))
            fill[21].append(lambda: g.waitvm(f"w{s+1}"))
            for n, p in enumerate(perms(slot_rows(s + 1), 0, PERM)):
                fill[24 + (n // 2) * 2].append(p)
            fill[19].append(lambda: g.waitds(f"b{s+1}"))
        if o.e39 and 32 <= s < 36:
            for n, gp in enumerate((9, 17)):
                fill[gp].append(lambda r=(s - 32) * 2 + n: wload(39, r))
        if o.e39 and s == 35:
            late = 0
        if s + 3 < 40 and not (o.defer and s + 3 in DEF) and not (o.e39 and s == 36):
            gaps = [23, 25, 27, 29, 31] if late >= 3 else [23, 24, 25, 26, 27, 28, 29, 31]
            for r in range(8 - late):
                fill[gaps[r]].append(lambda r=r: wload(s + 3, r))
        if o.diag and o.steps:
            fill[28].append(f"s_memtime s[{S_TS}:{S_TS+1}]")
            fill[31].append(lambda: ("s_waitcnt lgkmcnt(0)", g.dq.clear())[0])
            fill[31].append(f"v_writelane_b32 v{V_TID}, s{S_TS}, {16+s}")
        for k, v in extra.items():
            fill[k] = fill[k] + v
        n = 0
        for t in range(4):
            for e in range(2):
                for q in range(4):
                    j = 2 * t + e
                    if o.dp and s >= 20:
                        d = dacc(s, q, j)
                    elif s < 36:
                        d = vr(ACC + q * 32 + j * 4)
                    else:
                        d = ar(A_C4 + q * 32 + j * 4)
                    A(mfma(d, vr(PERM + (t % 2) * 8 + e * 4), ar(buf + q * 4), "0" if first else d))
                    for x in fill[n]:
                        if o.exp and 24 <= s < 34:
                            if isinstance(x, str) and "noperm" in o.exp and x.startswith("v_perm"):
                                continue
                            if isinstance(x, str) and "nods" in o.exp and x.startswith("ds_read"):
                                continue
                            if callable(x) and "noload" in o.exp:
                                r = x()
                                if not (r and r.startswith("buffer_load")):
                                    A(r)
                                continue
                        emit(x)
                    cv_, co_ = cap(s, n)
                    while fq and fq[0][0] <= s * 32 + n:
                        if fq[0][2] == "v":
                            if cv_ <= 0:
                                break
                        elif co_ <= 0:
                            break
                        cv_ -= 1
                        co_ -= 1
                        emit(fq.pop(0)[1])
                    n += 1

    A(g.waitvm("x"))
    A("s_barrier")
    for x in bread(0):
        A(x)
    A(g.waitvm("w0"))
    for p in perms(slot_rows(0), 0, PERM):
        A(p)
    A("s_waitcnt lgkmcnt(0)")
    g.stamp(1)
    kvn = 0
    kst = [int(x) for x in o.kst.split(",")] if o.kst else []
    vst = [int(x) for x in o.vst.split(",")] if o.vst else []

    def burst(grp, fn, name):
        def f():
            out = []
            if o.ng > 1:
                out += [f"s_cmp_lg_u32 s{S_GRP}, {grp}", f"s_cbranch_scc1 L_{name}{grp}"]
            for n in range(16):
                for x in fn(n):
                    out.append(g.vm(x[1], x[2], grp) if isinstance(x, tuple) else x)
            t = "\n    ".join(out)
            if o.ng > 1:
                t += f"\nL_{name}{grp}:"
            return t
        return f
    for s in range(20):
        extra = {}
        if kst:
            for grp in range(o.ng):
                if kst[grp] == s:
                    extra.setdefault(31, []).append(burst(grp, kload, "kb"))
                if vst[grp] == s:
                    extra.setdefault(31, []).append(burst(grp, vload, "vb"))
        elif o.kv0 <= s and kvn < 16:
            for c in range(o.kvper):
                if kvn < 16:
                    extra.setdefault(10 + c * 6, []).extend(kload(kvn))
                    extra.setdefault(13 + c * 6, []).extend(vload(kvn))
                    kvn += 1
        if o.wopre and s == o.wopre:
            extra.setdefault(17, []).extend([f"s_lshl_b32 s{S_STMP}, s{S_HQ}, 4", f"s_add_u32 s{S_STMP}, s{S_STMP}, s{S_BP}"])
            extra.setdefault(19, []).extend([f"s_lshl_b32 s{S_STMP}, s{S_STMP}, 2", f"s_add_u32 s{S_STMP}, s{S_STMP}, s{S_W}"])
            extra.setdefault(21, []).extend([f"s_mul_i32 s{S_STMP}, s{S_STMP}, 10240", f"v_mbcnt_lo_u32_b32 v{V_TMP}, -1, 0"])
            extra.setdefault(23, []).extend([f"v_mbcnt_hi_u32_b32 v{V_TMP}, -1, v{V_TMP}"])
            extra.setdefault(25, []).extend([f"v_lshlrev_b32 v{V_TMP}, 7, v{V_TMP}"])
            extra.setdefault(31, []).extend([("vm", f"buffer_load_dword a240, v{V_TMP}, s[{S_WO}:{S_WO+3}], s{S_STMP} offen", "pre"),
                                             f"s_add_u32 s{S_STMP}, s{S_STMP}, 8192", "s_mov_b64 exec, 0xffff",
                                             ("vm", f"buffer_load_dword a241, v{V_TMP}, s[{S_WO}:{S_WO+3}], s{S_STMP} offen", "pre"),
                                             "s_mov_b64 exec, -1"])
        step(s, s == 0, s == 19, extra)
    assert kvn == 16 or kst
    if not o.defer:
        for r in range(8 - o.spread, 8):
            A(wload(22, r))
    g.stamp(2)

    vi, vG, vt, KA = 6, 7, 8, 2
    if o.fuse:
        A(f"s_load_dwordx2 s[{S_OUT}:{S_OUT+1}], s[0:1], 80")
        A(f"s_load_dwordx2 s[{S_DBG}:{S_DBG+1}], s[0:1], 88")
        A(f"s_mov_b32 s{S_OUT+2}, 2621440")
        A(f"s_mov_b32 s{S_DBG+2}, 256")
    A(f"s_movk_i32 s{S_G}, 0x78")
    A(f"v_lshrrev_b32 v{vG}, 10, v{V_VG}")
    A(f"v_bfe_u32 v{vi}, v{V_VG}, 4, 4")
    A(f"v_lshrrev_b32 v{vt}, 2, v{vi}")
    A(f"v_lshlrev_b32 v{vt}, 1, v{vt}")
    A(f"v_lshrrev_b32 v{vt}, v{vt}, s{S_G}")
    A(f"v_xor_b32 v{vt}, v{vt}, v{vG}")
    A(f"v_and_b32 v{vt}, 3, v{vt}")
    A(f"v_lshlrev_b32 v{vt}, 2, v{vt}")
    A(f"v_and_or_b32 v{vt}, v{vi}, 3, v{vt}")
    A(f"v_lshlrev_b32 v{vt}, 4, v{vt}")
    A(f"v_lshl_add_u32 v{vt}, v{vi}, 8, v{vt}")
    A(f"v_add_u32 v{KA}, s{S_KLDS}, v{vt}")
    for u in range(1, 4):
        A(f"v_xor_b32 v{KA+u}, {u*16}, v{KA}")
    A(f"v_lshlrev_b32 v{V_LX}, 8, v{vG}")
    A(f"v_lshl_add_u32 v{V_LX}, v{vi}, 4, v{V_LX}")
    def c4pre_b():
        A(f"s_mul_i32 s{S_T0}, s{S_BP}, {8*1280}")
        A(f"s_add_u32 s{S_T0}, s{S_T0}, s{S_CW+16}")
        A(f"v_mul_u32_u24 v{V_TMP}, {1280-256}, v{vG}")
        A(f"v_add_u32 v{V_TMP}, v{V_TMP}, v{V_LX}")
        A(g.vm(f"buffer_load_dwordx4 {ar(240)}, v{V_TMP}, s[{S_WO}:{S_WO+3}], s{S_T0} offen", "pre"))
        A(f"s_add_u32 s{S_T0}, s{S_T0}, {4*1280}")
        A(g.vm(f"buffer_load_dwordx4 {ar(244)}, v{V_TMP}, s[{S_WO}:{S_WO+3}], s{S_T0} offen", "pre"))
    A(g.waitvm("k"))
    if o.c4pre == 1:
        c4pre_b()
    if o.fuse:
        A("s_waitcnt lgkmcnt(0)")

    def kread(bt):
        for kb in range(2):
            for u in range(4):
                A(f"ds_read_b128 {ar(A_K+((bt*2+kb)*4+u)*4)}, v{KA+u} offset:{bt*8192+kb*4096}")
    QB = [PERM, 128, 144, 160]
    SA = 176
    cv = []
    for q in range(4):
        c = []
        for t in range(4):
            for u in range(4):
                c.append(f"v_cvt_pk_bf16_f32 v{QB[q]+u*4+t}, v{ACC+q*32+(2*t)*4+u}, v{ACC+q*32+(2*t+1)*4+u}")
        cv.append(c)
    kread(0)
    for x in cv[0]:
        A(x)
    A("s_waitcnt lgkmcnt(4)")
    kread(1)
    for x in cv[1]:
        A(x)
    A("s_waitcnt lgkmcnt(8)")

    def smfma(bt):
        r = []
        for u in range(4):
            for kb in range(2):
                for qq in range(2):
                    d = vr(SA + ((bt * 2 + kb) * 2 + qq) * 4)
                    r.append(mfma(d, ar(A_K + ((bt * 2 + kb) * 4 + u) * 4), vr(QB[bt * 2 + qq] + u * 4), "0" if u == 0 else d))
        return r
    s0 = smfma(0)
    rest = cv[2] + cv[3]
    A("s_nop 1")
    for n in range(16):
        A(s0[n])
        A(rest[2 * n])
        A(rest[2 * n + 1])
    A("s_waitcnt lgkmcnt(0)")
    A("s_nop 1")
    s1 = smfma(1)

    PB = 208
    TM = 224

    def softmax(q):
        bt, qq = q // 2, q % 2
        sv = [SA + ((bt * 2 + kb) * 2 + qq) * 4 + r for kb in range(2) for r in range(4)]
        m, t2 = TM + q * 4, TM + q * 4 + 1
        ph = []
        ph.append([f"v_max3_f32 v{m}, v{sv[0]}, v{sv[1]}, v{sv[2]}",
                   f"v_max3_f32 v{t2}, v{sv[3]}, v{sv[4]}, v{sv[5]}",
                   f"v_max3_f32 v{m}, v{m}, v{sv[6]}, v{sv[7]}",
                   f"v_max_f32 v{m}, v{m}, v{t2}",
                   f"v_mov_b32 v{t2}, v{m}"])
        ph.append([f"v_permlane32_swap_b32 v{m}, v{t2}"])
        ph.append([f"v_max_f32 v{m}, v{m}, v{t2}", f"v_mov_b32 v{t2}, v{m}"])
        ph.append([f"v_permlane16_swap_b32 v{m}, v{t2}"])
        ph.append([f"v_max_f32 v{m}, v{m}, v{t2}", f"v_mul_f32 v{m}, s{S_SC}, v{m}"] +
                  [f"v_fma_f32 v{x}, v{x}, s{S_SC}, -v{m}" for x in sv] +
                  [f"v_exp_f32 v{x}, v{x}" for x in sv])
        ph.append([f"v_add_f32 v{m}, v{sv[0]}, v{sv[1]}", f"v_add_f32 v{t2}, v{sv[2]}, v{sv[3]}",
                   f"v_add_f32 v{m}, v{m}, v{sv[4]}", f"v_add_f32 v{t2}, v{t2}, v{sv[5]}",
                   f"v_add_f32 v{m}, v{m}, v{sv[6]}", f"v_add_f32 v{t2}, v{t2}, v{sv[7]}",
                   f"v_add_f32 v{m}, v{m}, v{t2}", f"v_mov_b32 v{t2}, v{m}"])
        ph.append([f"v_permlane32_swap_b32 v{m}, v{t2}"])
        ph.append([f"v_add_f32 v{m}, v{m}, v{t2}", f"v_mov_b32 v{t2}, v{m}"])
        ph.append([f"v_permlane16_swap_b32 v{m}, v{t2}"])
        ph.append([f"v_add_f32 v{m}, v{m}, v{t2}"])
        ph.append([f"v_rcp_f32 v{m}, v{m}"])
        ph.append([f"v_mul_f32 v{x}, v{x}, v{m}" for x in sv])
        ph.append([f"v_cvt_pk_bf16_f32 v{PB+q*4+p}, v{sv[2*p]}, v{sv[2*p+1]}" for p in range(4)])
        return ph

    def softmax_pair(q0):
        a, b = softmax(q0), softmax(q0 + 1)
        out = []
        for pa, pb in zip(a, b):
            if pa[0].startswith("v_permlane"):
                out.append("s_nop 1")
            out += pa + pb
            if pa[0].startswith("v_rcp") or pa[0].startswith("v_permlane"):
                out.append("s_nop 0")
        return out
    sm0 = softmax_pair(0)
    for n in range(16):
        A(s1[n])
        if n >= 4:
            for _ in range(2):
                A(sm0.pop(0))
    for x in sm0:
        A(x)
    sm1 = softmax_pair(2)
    for n, x in enumerate(sm1):
        A(x)
        if o.defer == 2 and n % 12 == 11 and n // 12 < 8:
            A(wload(21, n // 12))
    g.stamp(3)
    A(g.waitvm("v"))
    dl = []
    if o.defer == 1:
        dl = [(21, r) for r in range(8)] + [(22, r) for r in range(8)]
    if o.defer == 2:
        dl = [(22, r) for r in range(8)]
    if o.defer == 3:
        for r in range(8):
            A(wload(20, r))
        dl = [(21, r) for r in range(8)] + [(22, r) for r in range(8)]
    OA = 128
    VT = 192
    VP1 = 224
    STG = 200

    def vperm(bt, t, dst):
        r = [f"v_accvgpr_read_b32 v{VT+x}, a{A_V+bt*32+x*4+t}" for x in range(8)]
        for e in range(2):
            for p in range(4):
                r.append(f"v_perm_b32 v{dst+e*4+p}, v{VT+2*p+1}, v{VT+2*p}, s{S_PLO if e == 0 else S_PHI}")
        return r
    for x in vperm(0, 0, PERM):
        A(x)
    for t in range(4):
        nxt = vperm(0, t + 1, PERM + ((t + 1) % 2) * 8) if t < 3 else vperm(1, 0, VP1)
        A("s_nop 1") if t == 0 else None
        k = 0
        for e in range(2):
            for qq in range(2):
                A(mfma(vr(OA + qq * 32 + (2 * t + e) * 4), vr(PERM + (t % 2) * 8 + e * 4), vr(PB + qq * 4), "0"))
                for x in nxt[k * 4:k * 4 + 4]:
                    A(x)
                if dl and (o.defer != 2 or k % 2):
                    A(wload(*dl.pop(0)))
                k += 1
        A("s_nop 0")
    assert not dl
    for t in range(1, 4):
        for x in vperm(1, t, VP1 + t * 8):
            A(x)
    A(f"v_add_u32 v{V_B}, s{S_KLDS}, v{V_LX}")

    def ocvt(bt, qq):
        r = []
        for u in range(4):
            st = STG + (u % 2) * 4
            for t in range(4):
                r.append(f"v_cvt_pk_bf16_f32 v{st+t}, v{OA+qq*32+(2*t)*4+u}, v{OA+qq*32+(2*t+1)*4+u}")
            r.append(f"ds_write_b128 v{V_B}, {vr(st)} offset:{u*4096+(bt*2+qq)*1024}")
        return r

    def pv1(qq):
        return [mfma(vr(OA + qq * 32 + j * 4), vr(VP1 + j * 4), vr(PB + (2 + qq) * 4), "0") for j in range(8)]
    for x in ocvt(0, 0):
        A(x)
    c = ocvt(0, 1)
    for mm in pv1(0):
        A(mm)
        for _ in range(3):
            if c:
                A(c.pop(0))
    assert not c
    m1 = pv1(1)
    c = ocvt(1, 0)
    for n, mm in enumerate(m1):
        A(mm)
    A("s_waitcnt lgkmcnt(4)")
    for x in c:
        A(x)
    for x in ocvt(1, 1):
        A(x)
    A(f"s_lshl_b32 s{S_T0}, s{S_W}, 10")
    A(f"v_add_u32 v{V_W}, s{S_T0}, v{V_B}")
    for x in range(1, 4):
        A(f"v_xor_b32 v{V_W+x}, {x*1024}, v{V_W}")
    A(f"s_lshl_b32 s{S_CL}, s{S_BP}, 12" if o.rot else f"s_mov_b32 s{S_CL}, 0")
    if o.dp:
        A(f"s_and_b32 s{S_CL}, s{S_CL}, 0x7fff")
        A(f"s_and_b32 s{S_T0}, s{S_W}, 1")
        A(f"s_mul_i32 s{S_T0}, s{S_T0}, {32768+2048}")
        A(f"v_add_u32 v{V_KG}, s{S_T0}, v{V_LX}")
        for x in range(1, 4):
            A(f"s_xor_b32 s{S_T0}, s{S_W}, {x}")
            A(f"s_mul_i32 s{S_T0}, s{S_T0}, {3*8192}")
            A(f"s_add_u32 s{S_T0}, s{S_T0}, {LDS_R + (x-1)*8192}")
            A(f"v_add_u32 v{5+x}, s{S_T0}, v{V_LX}")
        A(f"s_mul_i32 s{S_T0}, s{S_W}, {3*8192}")
        A(f"s_add_u32 s{S_T0}, s{S_T0}, {LDS_R}")
        A(f"v_add_u32 v9, s{S_T0}, v{V_LX}")
    A(g.waitvm("w20"))
    if o.fuse:
        A(f"s_cmp_lg_u32 s{S_W}, 0")
        A("s_cbranch_scc1 L_noann")
        A(f"s_lshr_b32 s{S_T0}, s2, 3")
        A(f"s_lshl_b32 s{S_T0}, s{S_T0}, 2")
        A(f"s_add_u32 s{S_T0}, s{S_T0}, 128")
        A(f"v_mov_b32 v{V_TMP}, 1")
        A("s_mov_b64 exec, 1")
        A(f"buffer_atomic_add v{V_TMP}, off, s[{S_DBG}:{S_DBG+3}], s{S_T0} sc1")
        A("s_mov_b64 exec, -1")
        g.lab("L_noann")
    for p in perms(slot_rows(20), 0, PERM):
        A(p)
    A("s_waitcnt lgkmcnt(0)")
    if not o.dp:
        A("s_barrier")
    for x in bread(20):
        A(x)
    A("s_waitcnt lgkmcnt(0)")
    g.stamp(4)
    if o.dp:
        stage_c_dp(g, step, fq, emit)
        finish(g)
        return

    for s in range(20, 36):
        extra = {}
        if o.c4pre and s == o.c4pre:
            extra[17] = [f"s_mul_i32 s{S_T0}, s{S_BP}, {8*1280}", f"s_add_u32 s{S_T0}, s{S_T0}, s{S_CW+16}"]
            extra[19] = [f"v_lshrrev_b32 v{V_TMP}, 8, v{V_LX}", f"v_mul_u32_u24 v{V_TMP}, {1280-256}, v{V_TMP}"]
            extra[21] = [f"v_add_u32 v{V_TMP}, v{V_TMP}, v{V_LX}"]
            extra[31] = [("vm", f"buffer_load_dwordx4 {ar(0)}, v{V_TMP}, s[{S_WO}:{S_WO+3}], s{S_T0} offen", "pre"),
                         f"s_add_u32 s{S_T0}, s{S_T0}, {4*1280}",
                         ("vm", f"buffer_load_dwordx4 {ar(4)}, v{V_TMP}, s[{S_WO}:{S_WO+3}], s{S_T0} offen", "pre")]
        if o.e39 and s == 35:
            extra = {11: [f"s_lshr_b32 s{S_KS+4}, s2, 3"], 13: [f"s_lshl_b32 s{S_KS+4}, s{S_KS+4}, 2"], 15: [f"s_add_u32 s{S_KS+4}, s{S_KS+4}, 128"],
                     19: [("vm", f"buffer_load_dword v{V_B}, off, s[{S_DBG}:{S_DBG+3}], s{S_KS+4} sc1", "clr")]}
        step(s, s == 20, False, extra)
    g.stamp(5)
    ST2 = V_W + 4
    stg = [6, 12]
    outs = []
    A(f"s_lshl_b32 s{S_T0}, s{S_W}, 14")
    A(f"s_add_u32 s{S_T0}, s{S_T0}, s{S_ST}")
    for q in range(4):
        A(f"s_add_u32 s{S_KS+q}, s{S_T0}, {q*4096}")
    for q in range(4):
        for r in range(4):
            st = stg[r % 2]
            for t in range(4):
                outs.append(f"v_cvt_pk_bf16_f32 v{st+t}, v{ACC+q*32+(2*t)*4+r}, v{ACC+q*32+(2*t+1)*4+r}")
            outs.append(("vm", f"buffer_store_dwordx4 {vr(st)}, v{V_LX}, s[{S_WS}:{S_WS+3}], s{S_KS+q} offen offset:{r*1024} {o.pst}", "st"))
    ex36 = {}
    if o.fuse:
        ex36 = {13: [f"s_lshr_b32 s{S_KS+4}, s2, 3"], 15: [f"s_lshl_b32 s{S_KS+4}, s{S_KS+4}, 2"], 17: [f"s_add_u32 s{S_KS+4}, s{S_KS+4}, 128"],
                31: [("vm", f"buffer_load_dword v{V_B}, off, s[{S_DBG}:{S_DBG+3}], s{S_KS+4} sc1", "clr")]}
    if o.e39:
        cps = [f"v_accvgpr_read_b32 v{RING+n}, a{n}" for n in range(32)]
        for s in range(36, 40):
            extra = {}
            for k in range(1 if s == 36 else 0, 32):
                extra[k] = []
                for rep in range(2 if (o.dens and k % 2 == 1) else 1):
                    if outs:
                        extra[k].append(outs.pop(0))
                if s == 36 and k == 23:
                    extra[k].append(lambda: g.waitvm("w39"))
                if cps and (s, k) >= ((37, 0) if not o.dens else (37, 12)):
                    extra[k].append(cps.pop(0))
            if s == 38:
                assert not cps
            step(s, s == 36, s == 39, extra)
    else:
        step(36, True, False, ex36)
    for s in range(37, 40 if not o.e39 else 0):
        extra = {}
        lo = 11 + 2 * o.spread if (s == 37 and o.spread) else 0
        for k in range(lo, 32):
            if outs:
                extra[k] = [outs.pop(0)]
                if s == 39 and k >= 24 and outs:
                    extra[k].append(outs.pop(0))
        step(s, False, s == 39, extra)
    for x in outs:
        emit(x)
    g.stamp(6)
    for x in range(1, 4):
        A(f"s_xor_b32 s{S_T0}, s{S_W}, {x}")
        A(f"s_mul_i32 s{S_T0}, s{S_T0}, {3*8192}")
        A(f"s_add_u32 s{S_T0}, s{S_T0}, {LDS_R + (x-1)*8192}")
        A(f"v_add_u32 v{V_W+x}, s{S_T0}, v{V_LX}")
    A(f"s_mul_i32 s{S_T0}, s{S_W}, {3*8192}")
    A(f"s_add_u32 s{S_T0}, s{S_T0}, {LDS_R}")
    A(f"v_add_u32 v{V_W}, s{S_T0}, v{V_LX}")
    A("s_nop 7")
    for x in range(1, 4):
        for j in range(8):
            A(f"ds_write_b128 v{V_W+x}, {ar(A_C4+x*32+j*4)} offset:{j*1024}")
        A("s_waitcnt lgkmcnt(6)")
    for n in range(32):
        A(f"v_accvgpr_read_b32 v{ACC+n}, a{A_C4+n}")
    A(f"s_lshl_b32 s{S_T0}, s{S_W}, 12")
    A(f"s_add_u32 s{S_T0}, s{S_T0}, s{S_ST}")
    A(f"s_add_u32 s{S_T0}, s{S_T0}, 65536")
    if o.fuse == 2:
        tail2_addr(g)
    A("s_waitcnt lgkmcnt(0)")
    A("s_barrier")
    for x in range(3):
        for j in range(8):
            A(f"ds_read_b128 {vr(RING+x*32+j*4)}, v{V_W} offset:{x*8192+j*1024}")
            if x >= 1 and j == 3:
                A("s_waitcnt lgkmcnt(4)")
                if o.fuse == 2 and o.fa == 3 - x:
                    tail2_flag(g, 1)
                for n in range(32):
                    A(f"v_add_f32 v{ACC+n}, v{ACC+n}, v{RING+(x-1)*32+n}")
    A("s_waitcnt lgkmcnt(0)")
    for n in range(32):
        A(f"v_add_f32 v{ACC+n}, v{ACC+n}, v{RING+64+n}")
    for r in range(4):
        st = PERM + r * 4
        for t in range(4):
            A(f"v_cvt_pk_bf16_f32 v{st+t}, v{ACC+(2*t)*4+r}, v{ACC+(2*t+1)*4+r}")
        if o.fuse == 2 and o.fa == 0 and r == 0:
            tail2_flag(g, 1)
        A(g.vm(f"buffer_store_dwordx4 {vr(st)}, v{V_LX}, s[{S_WS}:{S_WS+3}], s{S_T0} offen offset:{r*1024} {o.pst}", "st"))
    if o.fuse == 2:
        tail2(g)
    elif o.fuse:
        fused_tail(g)
    finish(g)


def finish(g):
    o = g.o
    A = g.A
    if o.diag:
        g.stamp(7) if not o.fuse else None
        A("s_waitcnt vmcnt(0)")
        g.stamp(8)
        if o.fuse:
            A("s_mov_b32 s2, vcc_hi")
        A(f"s_memrealtime s[{S_TS}:{S_TS+1}]")
        A("s_waitcnt lgkmcnt(0)")
        A(f"v_writelane_b32 v{V_TID}, s{S_TS}, 9")
        A(f"s_lshl_b32 s{S_T0}, s2, 2")
        A(f"s_add_u32 s{S_T0}, s{S_T0}, s{S_W}")
        A(f"s_lshl_b32 s{S_T0}, s{S_T0}, 8")
        A(f"s_add_u32 s{S_T0}, s{S_T0}, 0x8000000")
        A(f"v_lshrrev_b32 v{V_TMP}, 2, v{V_LX}")
        A(f"buffer_store_dword v{V_TID}, v{V_TMP}, s[{S_WS}:{S_WS+3}], s{S_T0} offen")
        if o.diag == 3 and o.fuse:
            A(f"s_lshl_b32 s{S_T0}, s2, 2")
            A(f"s_add_u32 s{S_T0}, s{S_T0}, s{S_W}")
            A(f"s_cmp_lg_u32 s{S_T0}, {o.sel}")
            A("s_cbranch_scc1 L_main_end")
            A(f"v_readlane_b32 s{S_T0}, v{V_TID}, 56")
            A(f"v_readlane_b32 s{S_T1}, v{V_TID}, 57")
            A(f"v_readlane_b32 s{S_STMP}, v{V_TID}, 58")
            A("s_nop 3")
            A(f"v_writelane_b32 v{V_TID}, s{S_T0}, 12")
            A(f"v_writelane_b32 v{V_TID}, s{S_T1}, 14")
            A(f"v_writelane_b32 v{V_TID}, s{S_STMP}, 15")
            A("s_mov_b64 exec, 0xffff")
            A(f"buffer_store_dword v{V_TID}, v{V_TMP}, s[{S_DBG}:{S_DBG+3}], 0 offen")
        if o.diag == 2:
            A("s_load_dwordx2 s[32:33], s[0:1], 88")
            A("v_readlane_b32 s36, v0, 10")
            A("v_readlane_b32 s37, v0, 8")
            A("s_mov_b32 s34, 64")
            A("s_mov_b32 s35, 0x20000")
            A("s_not_b32 s36, s36")
            A("s_not_b32 s37, s37")
            A("v_writelane_b32 v0, s36, 11")
            A("v_writelane_b32 v0, s37, 12")
            A("s_waitcnt lgkmcnt(0)")
            A(f"buffer_atomic_umax v0, v{V_TMP}, s[32:35], 0 offen sc1")
    g.lab("L_main_end")
    A("s_endpgm")


def fused_tail(g):
    o = g.o
    A = g.A
    T = S_KS
    g.stamp(7)
    A(f"s_lshr_b32 s{T+5}, s2, 3")
    A(f"s_and_b32 s{T+6}, s2, 7")
    A(f"s_mul_i32 s{T+7}, s{T+5}, {8*(81920+o.pad)}")
    A(f"s_lshl_b32 s{T+8}, s{T+6}, 3")
    A(f"s_lshl_b32 s{T+9}, s{S_W}, 1")
    A(f"s_add_u32 s{T+8}, s{T+8}, s{T+9}")
    A(f"s_lshl_b32 s{T+9}, s{T+6}, 1")
    A(f"s_lshr_b32 s{T+10}, s{S_W}, 1")
    A(f"s_add_u32 s{T+9}, s{T+9}, s{T+10}")
    A(f"s_add_u32 s{T+9}, s{T+9}, 64")
    A(f"s_lshl_b32 s{T+10}, s{T+8}, 10")
    A(f"s_add_u32 s{T+10}, s{T+10}, s{T+7}")
    A(f"s_lshl_b32 s{T+11}, s{T+9}, 10")
    A(f"s_add_u32 s{T+11}, s{T+11}, s{T+7}")
    A(f"s_and_b32 s{T+12}, s{T+5}, 15")
    A(f"s_mul_i32 s{T+12}, s{T+12}, {4*40960}")
    A(f"s_lshr_b32 s{T+13}, s{T+5}, 4")
    A(f"s_mul_i32 s{T+13}, s{T+13}, 1280")
    A(f"s_add_u32 s{T+12}, s{T+12}, s{T+13}")
    for blk, dst in ((T+8, T+14), (T+9, T+15)):
        A(f"s_bfe_u32 s{T+13}, s{blk}, 0x20002")
        A(f"s_mul_i32 s{T+13}, s{T+13}, 40960")
        A(f"s_add_u32 s{dst}, s{T+12}, s{T+13}")
        A(f"s_lshr_b32 s{T+13}, s{blk}, 4")
        A(f"s_lshl_b32 s{T+13}, s{T+13}, 8")
        A(f"s_add_u32 s{dst}, s{dst}, s{T+13}")
        A(f"s_and_b32 s{T+13}, s{blk}, 3")
        A(f"s_lshl_b32 s{T+13}, s{T+13}, 4")
        A(f"s_add_u32 s{dst}, s{dst}, s{T+13}")
    A(f"s_bitcmp1_b32 s{S_W}, 0")
    A(f"s_cselect_b32 s{T+16}, 0, -1")
    A(f"s_cselect_b32 s{T+17}, -1, 0")
    A(f"s_mov_b32 s{T+18}, 0x3f80")
    A(f"s_mov_b32 s{T+19}, 0x3f800000")
    A(f"s_mov_b32 s{T+20}, 0xffff0000")
    VO, VF, VP = 2, 3, 4
    A(f"v_bfe_u32 v{VO}, v{V_LX}, 4, 4")
    A(f"v_lshrrev_b32 v{VF}, 8, v{V_LX}")
    A(f"v_mul_u32_u24 v{VO}, 2560, v{VO}")
    A(f"v_lshl_add_u32 v{VO}, v{VF}, 6, v{VO}")
    A(f"v_lshlrev_b32 v{VF}, 3, v{V_LX}")
    A(f"s_lshl_b32 s{T+21}, s2, 7")
    A(f"s_add_u32 s{T+21}, s{T+21}, {WS_FLAG}")
    A(f"s_lshl_b32 s{T+22}, s{T+5}, 10")
    A(f"s_add_u32 s{T+22}, s{T+22}, {WS_FLAG}")
    A(f"s_mov_b32 s{T+23}, {1<<20}")
    A(f"v_mov_b32 v{VP}, 1")
    A("s_waitcnt vmcnt(0)")
    A("s_barrier")
    g.stamp(56)
    A(f"s_cmp_lg_u32 s{S_W}, 0")
    A("s_cbranch_scc1 L_polled")
    A("s_mov_b64 exec, 1")
    A(f"buffer_store_dword v{VP}, off, s[{S_WS}:{S_WS+3}], s{T+21} sc1")
    g.lab("L_clr")
    A(f"v_readfirstlane_b32 s{T+24}, v{V_B}")
    A(f"s_sub_u32 s{T+23}, s{T+23}, 1")
    A("s_cbranch_scc1 L_polled")
    A(f"s_cmp_ge_u32 s{T+24}, 8")
    A("s_cbranch_scc1 L_poll0")
    A(f"buffer_load_dword v{V_B}, off, s[{S_DBG}:{S_DBG+3}], s{S_KS+4} sc1")
    A("s_waitcnt vmcnt(0)")
    A("s_branch L_clr")
    g.lab("L_poll0")
    A("s_mov_b64 exec, 0xff")
    g.lab("L_poll")
    A(f"buffer_load_dword v{VP}, v{VF}, s[{S_WS}:{S_WS+3}], s{T+22} offen sc1")
    A(f"s_sub_u32 s{T+23}, s{T+23}, 1")
    A("s_cbranch_scc1 L_polled")
    A("s_waitcnt vmcnt(0)")
    A(f"v_cmp_ne_u32 s[{T+24}:{T+25}], 1, v{VP}")
    A("s_nop 3")
    A(f"s_cmp_lg_u32 s{T+24}, 0")
    A("s_cbranch_scc1 L_poll")
    g.lab("L_polled")
    A("s_mov_b64 exec, -1")
    A("s_waitcnt vmcnt(0)")
    A("s_barrier")
    g.stamp(57)
    R = RING
    for h in range(8):
        A(f"buffer_load_dwordx4 {vr(R+h*12)}, v{V_LX}, s[{S_WS}:{S_WS+3}], s{T+10} offen sc1")
        A(f"buffer_load_dwordx4 {vr(R+h*12+4)}, v{V_LX}, s[{S_WS}:{S_WS+3}], s{T+10} offen offset:1024 sc1")
        A(f"s_mov_b64 exec, s[{T+16}:{T+17}]")
        A(f"buffer_load_dwordx4 {vr(R+h*12+8)}, v{V_LX}, s[{S_WS}:{S_WS+3}], s{T+11} offen sc1")
        A("s_mov_b64 exec, -1")
        if h < 7:
            A(f"s_add_u32 s{T+10}, s{T+10}, {81920+o.pad}")
            A(f"s_add_u32 s{T+11}, s{T+11}, {81920+o.pad}")
    for h in range(8):
        for b in range(3):
            A(f"s_waitcnt vmcnt({23-h*3-b})")
            for t in range(4):
                src = R + h * 12 + b * 4 + t
                d = ACC + b * 8 + 2 * t
                if h == 0:
                    A(f"v_lshlrev_b32 v{d}, 16, v{src}")
                    A(f"v_and_b32 v{d+1}, s{T+20}, v{src}")
                else:
                    A(f"v_dot2c_f32_bf16 v{d}, s{T+18}, v{src}")
                    A(f"v_dot2c_f32_bf16 v{d+1}, s{T+19}, v{src}")
    g.stamp(58)
    A("s_nop 1")
    for b in range(3):
        for t in range(4):
            A(f"v_cvt_pk_bf16_f32 v{PERM+b*4+t}, v{ACC+b*8+2*t}, v{ACC+b*8+2*t+1}")
        if b == 2:
            A(f"s_mov_b64 exec, s[{T+16}:{T+17}]")
        A(f"buffer_store_dwordx4 {vr(PERM+b*4)}, v{VO}, s[{S_OUT}:{S_OUT+3}], s{T+14+b//2} offen offset:{16*(b%2)} {o.pout}")
    if o.diag:
        A("s_mov_b64 exec, -1")


VO2, VF2, VP2, VQ2 = 6, 7, 8, 9


def flag_base(g, d, t):
    A = g.A
    if g.o.fl:
        A(f"s_lshr_b32 s{d}, s2, 3")
        A(f"s_lshl_b32 s{d}, s{d}, 9")
        A(f"s_and_b32 s{t}, s2, 7")
        A(f"s_lshl_b32 s{t}, s{t}, 2")
        A(f"s_add_u32 s{d}, s{d}, s{t}")
    else:
        A(f"s_lshl_b32 s{d}, s2, 9")
    A(f"s_add_u32 s{d}, s{d}, {WS_FLAG}")


def tail2_addr(g):
    o = g.o
    A = g.A
    T = S_KS
    A(f"s_lshr_b32 s{T+5}, s2, 3")
    A(f"s_and_b32 s{T+6}, s2, 7")
    A(f"s_mul_i32 s{T+7}, s{T+5}, {8*(81920+o.pad)}")
    A(f"s_lshl_b32 s{T+8}, s{T+6}, 3")
    A(f"s_mul_i32 s{T+9}, s{S_W}, 3")
    A(f"s_add_u32 s{T+8}, s{T+8}, s{T+9}")
    A(f"s_lshl_b32 s{T+9}, s{T+6}, 1")
    A(f"s_add_u32 s{T+9}, s{T+9}, 64")
    A(f"s_cmp_eq_u32 s{S_W}, 3")
    A(f"s_cselect_b32 s{T+8}, s{T+9}, s{T+8}")
    A(f"s_cselect_b32 s{T+17}, 2, 1")
    A(f"s_lshl_b32 s{T+10}, s{T+8}, 10")
    A(f"s_add_u32 s{T+10}, s{T+10}, s{T+7}")
    A(f"s_and_b32 s{T+12}, s{T+5}, 15")
    A(f"s_mul_i32 s{T+12}, s{T+12}, {4*40960}")
    A(f"s_lshr_b32 s{T+13}, s{T+5}, 4")
    A(f"s_mul_i32 s{T+13}, s{T+13}, 1280")
    A(f"s_add_u32 s{T+12}, s{T+12}, s{T+13}")
    for b in range(3):
        dst = T + 14 + b
        A(f"s_bfe_u32 s{T+13}, s{T+8}, 0x20002")
        A(f"s_mul_i32 s{T+13}, s{T+13}, 40960")
        A(f"s_add_u32 s{dst}, s{T+12}, s{T+13}")
        A(f"s_lshr_b32 s{T+13}, s{T+8}, 4")
        A(f"s_lshl_b32 s{T+13}, s{T+13}, 8")
        A(f"s_add_u32 s{dst}, s{dst}, s{T+13}")
        A(f"s_and_b32 s{T+13}, s{T+8}, 3")
        A(f"s_lshl_b32 s{T+13}, s{T+13}, 4")
        A(f"s_add_u32 s{dst}, s{dst}, s{T+13}")
        if b < 2:
            A(f"s_add_u32 s{T+8}, s{T+8}, 1")
    A(f"s_mov_b32 s{T+18}, 0x3f80")
    A(f"s_mov_b32 s{T+19}, 0x3f800000")
    A(f"s_mov_b32 s{T+20}, 0xffff0000")
    A(f"v_bfe_u32 v{VO2}, v{V_LX}, 4, 4")
    A(f"v_lshrrev_b32 v{VF2}, 8, v{V_LX}")
    A(f"v_mul_u32_u24 v{VO2}, 2560, v{VO2}")
    A(f"v_lshl_add_u32 v{VO2}, v{VF2}, 6, v{VO2}")
    if o.fl:
        A(f"v_lshrrev_b32 v{VF2}, 2, v{V_LX}")
    else:
        A(f"v_lshlrev_b32 v{VF2}, 5, v{V_LX}")
    flag_base(g, T + 21, T + 13)
    A(f"s_lshl_b32 s{T+13}, s{S_W}, 7")
    A(f"s_add_u32 s{T+21}, s{T+21}, s{T+13}")
    A(f"s_lshl_b32 s{T+22}, s{T+5}, {9 if o.fl else 12}")
    A(f"s_lshr_b32 s{T+13}, s{T+6}, 1")
    A(f"s_lshl_b32 s{T+13}, s{T+13}, 7")
    A(f"s_add_u32 s{T+22}, s{T+22}, s{T+13}")
    A(f"s_add_u32 s{T+22}, s{T+22}, {WS_FLAG}")
    A(f"s_mov_b32 s{T+23}, {1<<20}")
    A(f"v_mov_b32 v{VP2}, 1")
    A(f"v_mov_b32 v{VQ2}, 2")


def tail2_flag(g, val):
    A = g.A
    T = S_KS
    for k in range(len(g.vq)):
        g.vq[k] = []
    A("s_waitcnt vmcnt(0)")
    g.stamp(59)
    A("s_mov_b64 exec, 1")
    A(f"buffer_store_dword v{VP2}, off, s[{S_WS}:{S_WS+3}], s{T+21} sc1")
    A("s_mov_b64 exec, -1")


def tail2(g):
    o = g.o
    A = g.A
    T = S_KS
    g.stamp(7)
    A("s_mov_b64 exec, 1")
    g.lab("L_clr")
    A(f"v_readfirstlane_b32 s{T+24}, v{V_B}")
    A(f"s_sub_u32 s{T+23}, s{T+23}, 1")
    A("s_cbranch_scc1 L_polled")
    A(f"s_cmp_ge_u32 s{T+24}, 8")
    A("s_cbranch_scc1 L_poll0")
    A(f"buffer_load_dword v{V_B}, off, s[{S_DBG}:{S_DBG+3}], s{S_KS+4} sc1")
    A("s_waitcnt vmcnt(0)")
    A("s_branch L_clr")
    g.lab("L_poll0")
    A("s_mov_b64 exec, 0xff")
    A(f"buffer_load_dword v{VP2}, v{VF2}, s[{S_WS}:{S_WS+3}], s{T+22} offen sc1")
    A("s_waitcnt vmcnt(0)")
    g.stamp(56)
    A("s_mov_b64 exec, 1")
    A(f"buffer_store_dword v{VQ2}, off, s[{S_WS}:{S_WS+3}], s{T+21} sc1")
    A("s_mov_b64 exec, 0xff")
    g.lab("L_poll")
    A(f"v_cmp_gt_u32 s[{T+24}:{T+25}], s{T+17}, v{VP2}")
    A(f"s_sub_u32 s{T+23}, s{T+23}, 1")
    A("s_cbranch_scc1 L_polled")
    A("s_nop 2")
    A(f"s_cmp_eq_u32 s{T+24}, 0")
    A("s_cbranch_scc1 L_polled")
    A(f"buffer_load_dword v{VP2}, v{VF2}, s[{S_WS}:{S_WS+3}], s{T+22} offen sc1")
    A("s_waitcnt vmcnt(0)")
    A("s_branch L_poll")
    g.lab("L_polled")
    A("s_mov_b64 exec, -1")
    g.stamp(57)
    R = RING
    A(f"s_cmp_ge_u32 s{S_W}, 2")
    A("s_cbranch_scc1 L_two")
    for nb in (3, 2):
        if nb == 2:
            g.lab("L_two")
        for h in range(8):
            for b in range(nb):
                A(f"buffer_load_dwordx4 {vr(R+h*12+b*4)}, v{V_LX}, s[{S_WS}:{S_WS+3}], s{T+10} offen offset:{b*1024} sc1")
            if h < 7:
                A(f"s_add_u32 s{T+10}, s{T+10}, {81920+o.pad}")
        for h in range(8):
            for b in range(nb):
                A(f"s_waitcnt vmcnt({8*nb-1-h*nb-b})")
                for t in range(4):
                    src = R + h * 12 + b * 4 + t
                    d = ACC + b * 8 + 2 * t
                    if h == 0:
                        A(f"v_lshlrev_b32 v{d}, 16, v{src}")
                        A(f"v_and_b32 v{d+1}, s{T+20}, v{src}")
                    else:
                        A(f"v_dot2c_f32_bf16 v{d}, s{T+18}, v{src}")
                        A(f"v_dot2c_f32_bf16 v{d+1}, s{T+19}, v{src}")
        g.stamp(58)
        A("s_nop 1")
        for b in range(nb):
            for t in range(4):
                A(f"v_cvt_pk_bf16_f32 v{PERM+b*4+t}, v{ACC+b*8+2*t}, v{ACC+b*8+2*t+1}")
            A(f"buffer_store_dwordx4 {vr(PERM+b*4)}, v{VO2}, s[{S_OUT}:{S_OUT+3}], s{T+14+b} offen {o.pout}")
        if nb == 3:
            A("s_branch L_summed" if o.diag else "s_endpgm")
    g.lab("L_summed")


def stage_c_dp(g, step, fq, emit):
    o = g.o
    A = g.A
    T = S_KS
    WS = f"s[{S_WS}:{S_WS+3}]"

    def q(gap, ins, kind):
        fq.append((gap, ins, kind))

    def dsop(x, tag):
        return lambda: g.ds(x, tag)

    def waitall():
        for k in range(len(g.vq)):
            g.vq[k] = []
        return "s_waitcnt vmcnt(0)"

    def store(reg, soff, r):
        return ("vm", f"buffer_store_dwordx4 {vr(reg)}, v{V_LX}, {WS}, s{soff} offen offset:{r*1024} {o.pst}", "st")

    def pkadd(d, a):
        return f"v_pk_add_f32 v[{d}:{d+1}], v[{d}:{d+1}], v[{a}:{a+1}]"

    def cvts(dst, acc, r):
        return [f"v_cvt_pk_bf16_f32 v{dst+t}, v{acc+(2*t)*4+r}, v{acc+(2*t+1)*4+r}" for t in range(4)]
    A(f"s_lshl_b32 s{T}, s{S_W}, 13")
    A(f"s_add_u32 s{T}, s{T}, s{S_ST}")
    A(f"s_add_u32 s{T+1}, s{T}, 4096")
    A(f"s_add_u32 s{T+2}, s{T}, 32768")
    A(f"s_add_u32 s{T+3}, s{T}, {32768+4096}")
    A(f"s_lshl_b32 s{T+5}, s{S_W}, 12")
    A(f"s_add_u32 s{T+5}, s{T+5}, s{S_ST}")
    A(f"s_add_u32 s{T+5}, s{T+5}, 65536")
    A(f"s_lshr_b32 s{T+4}, s2, 3")
    A(f"s_lshl_b32 s{T+4}, s{T+4}, 2")
    A(f"s_add_u32 s{T+4}, s{T+4}, 128")
    A(f"s_xor_b32 s{T+6}, s{S_W}, 1")
    A(f"s_lshl_b32 s{T+6}, s{T+6}, 14")
    A(f"s_add_u32 s{T+6}, s{T+6}, {LDS_R}")
    A(f"s_lshl_b32 s{T+7}, s{S_W}, 14")
    A(f"s_add_u32 s{T+7}, s{T+7}, {LDS_R}")
    U = S_XC
    pre = []
    P = pre.append
    P(f"s_lshr_b32 s{U}, s2, 3")
    P(f"s_and_b32 s{U+1}, s2, 7")
    P(f"s_mul_i32 s{U+2}, s{U}, {8*(81920+o.pad)}")
    P(f"s_lshl_b32 s{U+3}, s{U+1}, 2")
    P(f"s_add_u32 s{U+3}, s{U+3}, s{S_W}")
    P(f"s_lshl_b32 s{U+4}, s{U+1}, 1")
    P(f"s_lshr_b32 s{U+5}, s{S_W}, 1")
    P(f"s_add_u32 s{U+4}, s{U+4}, s{U+5}")
    P(f"s_add_u32 s{U+4}, s{U+4}, 64")
    P(f"s_lshl_b32 s{U+5}, s{U+3}, 10")
    P(f"s_add_u32 s{U+5}, s{U+5}, s{U+2}")
    P(f"s_lshl_b32 s{U+6}, s{U+4}, 10")
    P(f"s_add_u32 s{U+6}, s{U+6}, s{U+2}")
    P(f"s_add_u32 s{U+7}, s{U+5}, 32768")
    P(f"s_and_b32 s{U+8}, s{U}, 15")
    P(f"s_mul_i32 s{U+8}, s{U+8}, {4*40960}")
    P(f"s_lshr_b32 s{U+9}, s{U}, 4")
    P(f"s_mul_i32 s{U+9}, s{U+9}, 1280")
    P(f"s_add_u32 s{U+8}, s{U+8}, s{U+9}")
    for blk, dst in ((U+3, U+10), (U+4, U+11)):
        P(f"s_bfe_u32 s{U+9}, s{blk}, 0x20002")
        P(f"s_mul_i32 s{U+9}, s{U+9}, 40960")
        P(f"s_add_u32 s{dst}, s{U+8}, s{U+9}")
        P(f"s_lshr_b32 s{U+9}, s{blk}, 4")
        P(f"s_lshl_b32 s{U+9}, s{U+9}, 8")
        P(f"s_add_u32 s{dst}, s{dst}, s{U+9}")
        P(f"s_and_b32 s{U+9}, s{blk}, 3")
        P(f"s_lshl_b32 s{U+9}, s{U+9}, 4")
        P(f"s_add_u32 s{dst}, s{dst}, s{U+9}")
    P(f"s_bitcmp1_b32 s{S_W}, 0\n    s_cselect_b32 s{U+12}, 0, -1\n    s_cselect_b32 s{U+13}, -1, 0")
    P(f"s_mov_b32 s{U+14}, 0x3f80")
    P(f"s_mov_b32 s{U+15}, 0x3f800000")
    P(f"s_mov_b32 s{U+16}, 0xffff0000")
    P(f"s_lshl_b32 s{U+17}, s{U}, 10")
    P(f"s_add_u32 s{U+17}, s{U+17}, {WS_FLAG}")
    P(f"s_mov_b32 s{U+18}, {1<<20}")
    for x in pre:
        A(x)
    pre = []
    for s in range(20, 23):
        step(s, s == 20, False, {})
    step(23, False, False, {0: ["s_barrier"]})
    g.stamp(5)
    G0 = 24 * 32 + 2
    C4 = (96, 0, 32)
    for j in range(8):
        for x in range(3):
            q(G0 + (j * 3 + x) * o.wpace, dsop(f"ds_write_b128 v{6+x}, {ar(C4[x]+j*4)} offset:{j*1024}", "cw"), "o")
    q(G0, lambda: g.waitds("cw"), "o")
    q(G0, "s_barrier", "o")
    rd = [(x, j) for x in range(3) for j in range(8)]

    def c4read(k):
        x, j = rd[k]
        q(G0, dsop(f"ds_read_b128 {vr(160+j*4)}, v9 offset:{x*8192+j*1024}", f"cr{k//4}"), "o")
    for k in range(8):
        c4read(k)
    for grp in range(6):
        q(G0, lambda grp=grp: g.waitds(f"cr{grp}"), "o")
        for k in range(grp * 4, grp * 4 + 4):
            j = rd[k][1]
            q(G0, pkadd(128 + j * 4, 160 + j * 4), "v")
            q(G0, pkadd(128 + j * 4 + 2, 160 + j * 4 + 2), "v")
        for k in range(grp * 4 + 8, min(grp * 4 + 12, 24)):
            c4read(k)
    q(G0, "s_barrier", "o")
    q(G0, f"v_add_u32 v6, s{T+6}, v{V_LX}", "v")
    q(G0, f"v_add_u32 v7, s{T+7}, v{V_LX}", "v")
    for r in range(4):
        for x in cvts(160 + r * 4, 128, r):
            q(G0, x, "v")
        q(G0, store(160 + r * 4, T + 5, r), "o")
    G1 = 32 * 32 + 2
    for j in range(8):
        for x in range(2):
            q(G1 + (j * 2 + x) * o.wpace, dsop(f"ds_write_b128 v6, {ar(128+x*32+j*4)} offset:{x*8192+j*1024}", "pw"), "o")
    q(G1, lambda: g.waitds("pw"), "o")
    q(G1, "s_barrier", "o")
    for x in range(2):
        for j in range(8):
            q(G1, dsop(f"ds_read_b128 {vr(128+x*32+j*4)}, v7 offset:{x*8192+j*1024}", f"pr{x}"), "o")
    for x in range(2):
        q(G1, lambda x=x: g.waitds(f"pr{x}"), "o")
        for n in range(16):
            q(G1, pkadd(192 + x * 32 + n * 2, 128 + x * 32 + n * 2), "v")
        for r in range(4):
            for c in cvts(128 + x * 32 + r * 4, 192 + x * 32, r):
                q(G1, c, "v")
            q(G1, store(128 + x * 32 + r * 4, T + x, r), "o")
    for s in range(24, 39):
        ex = {}
        if s == 36:
            ex[31] = [("vm", f"buffer_load_dword v5, off, s[{S_DBG}:{S_DBG+3}], s{T+4} sc1", "clr")]
        step(s, s in (24, 32), False, ex)
        if s == 31:
            g.stamp(6)
        g.left = getattr(g, "left", []) + [len(fq)]
    assert not fq, g.left
    VO, VF, VP, VC = 2, 3, 4, 5
    prev = [f"v_bfe_u32 v{VO}, v{V_LX}, 4, 4", f"v_lshrrev_b32 v{VF}, 8, v{V_LX}", f"v_mul_u32_u24 v{VO}, 2560, v{VO}",
            f"v_lshl_add_u32 v{VO}, v{VF}, 6, v{VO}", f"v_lshlrev_b32 v{VF}, 3, v{V_LX}"]
    FL = T + 8

    def flag(val, lab):
        return "\n    ".join([f"s_cmp_lg_u32 s{S_W}, 0", f"s_cbranch_scc1 {lab}", f"v_mov_b32 v{V_TMP}, {val}", "s_mov_b64 exec, 1",
                               f"buffer_store_dword v{V_TMP}, off, {WS}, s{FL} sc1", "s_mov_b64 exec, -1"]) + f"\n{lab}:"
    ex = {0: [f"s_lshl_b32 s{FL}, s2, 7"], 1: [f"s_add_u32 s{FL}, s{FL}, {WS_FLAG}", waitall], 3: ["s_barrier"], 5: [flag(1, "L_f1")]}
    acr = [f"v_accvgpr_read_b32 v{192+x*32+j*4+r}, a{x*32+j*4+r}" for j in range(8) for x in range(2) for r in range(4)]
    wr = [dsop(f"ds_write_b128 v6, {ar(192+x*32+j*4)} offset:{x*8192+j*1024}", "qw") for j in range(8) for x in range(2)]
    nw = na = 0
    for n in range(6, 32):
        ex.setdefault(n, [])
        if nw < 16 and n >= (nw // 2) * 4 + 7 and n % 4 in (3, 0):
            ex[n].append(wr[nw])
            nw += 1
        elif pre:
            ex[n].append(pre.pop(0))
        for _ in range(2 if (n % 2 or n >= 24) else 0):
            if prev:
                ex[n].append(prev.pop(0))
            elif na < 64 and n >= (na // 8) * 4 + 7:
                ex[n].append(acr[na])
                na += 1
    step(39, False, True, ex)
    g.stamp(7)
    for x in pre:
        A(x)
    if o.early:
        A("s_mov_b64 exec, 0xff")
        A(g.vm(f"buffer_load_dword v{VP}, v{VF}, {WS}, s{U+17} offen sc1", "poll"))
        A("s_mov_b64 exec, -1")
    cut = 48
    for x in acr[na:cut]:
        A(x)
    if o.verbose:
        print("left", g.left, "na", na, "nw", nw, "pre", len(pre), file=sys.stderr)
    A("s_nop 7")
    A("s_nop 3")
    for x in wr[nw:]:
        emit(x)
    for x in acr[max(na, cut):]:
        A(x)
    A(g.waitds("qw"))
    A("s_barrier")
    for x in range(2):
        for j in range(8):
            A(g.ds(f"ds_read_b128 {vr(128+x*32+j*4)}, v7 offset:{x*8192+j*1024}", f"qr{x*2+j//4}"))
    for x in range(2):
        for hj in range(2):
            A(g.waitds(f"qr{x*2+hj}"))
            for n in range(8):
                A(pkadd(192 + x * 32 + hj * 16 + n * 2, 128 + x * 32 + hj * 16 + n * 2))
        for r in range(4):
            for c in cvts(128 + x * 32 + r * 4, 192 + x * 32, r):
                A(c)
            emit(store(128 + x * 32 + r * 4, T + 2 + x, r))
    g.stamp(59)
    R, SUM = RING, 192

    def loads(early):
        for h in range(8):
            if early:
                A(f"buffer_load_dwordx4 {vr(R+h*8)}, v{V_LX}, {WS}, s{U+5} offen sc1")
                A(f"s_mov_b64 exec, s[{U+12}:{U+13}]")
                A(f"buffer_load_dwordx4 {vr(R+h*8+4)}, v{V_LX}, {WS}, s{U+6} offen sc1")
                A("s_mov_b64 exec, -1")
                if h < 7:
                    A(f"s_add_u32 s{U+5}, s{U+5}, {81920+o.pad}")
                    A(f"s_add_u32 s{U+6}, s{U+6}, {81920+o.pad}")
            else:
                A(f"buffer_load_dwordx4 {vr(R+64+h*4)}, v{V_LX}, {WS}, s{U+7} offen sc1")
                if h < 7:
                    A(f"s_add_u32 s{U+7}, s{U+7}, {81920+o.pad}")

    def sums(early, younger):
        nb = 2 if early else 1
        for h in range(8):
            for b in range(nb):
                A(f"s_waitcnt vmcnt({(8-h)*nb-b-1+younger})")
                for t in range(4):
                    src = (R + h * 8 + b * 4 + t) if early else (R + 64 + h * 4 + t)
                    d = SUM + (b if early else 2) * 8 + 2 * t
                    if h == 0:
                        A(f"v_lshlrev_b32 v{d}, 16, v{src}")
                        A(f"v_and_b32 v{d+1}, s{U+16}, v{src}")
                    else:
                        A(f"v_dot2c_f32_bf16 v{d}, s{U+14}, v{src}")
                        A(f"v_dot2c_f32_bf16 v{d+1}, s{U+15}, v{src}")
        A("s_nop 1")
        for b in ((0, 1) if early else (2,)):
            for t in range(4):
                A(f"v_cvt_pk_bf16_f32 v{SUM+24+b*4+t}, v{SUM+b*8+2*t}, v{SUM+b*8+2*t+1}")
            if b == 1:
                A(f"s_mov_b64 exec, s[{U+12}:{U+13}]")
            A(f"buffer_store_dwordx4 {vr(SUM+24+b*4)}, v{VO}, s[{S_OUT}:{S_OUT+3}], s{U+10+b%2} offen offset:{512*(b//2)} {o.pout}")
            if b == 1:
                A("s_mov_b64 exec, -1")
    E = U + 19

    def poll(lab, cmp_, val):
        A("s_mov_b64 exec, 1")
        g.lab(f"{lab}_clr")
        A(f"v_readfirstlane_b32 s{T+10}, v{VC}")
        A(f"s_sub_u32 s{U+18}, s{U+18}, 1")
        A(f"s_cbranch_scc1 {lab}_out")
        A(f"s_cmp_ge_u32 s{T+10}, 8")
        A(f"s_cbranch_scc1 {lab}_go")
        A(f"buffer_load_dword v{VC}, off, s[{S_DBG}:{S_DBG+3}], s{T+4} sc1")
        A("s_waitcnt vmcnt(0)")
        A(f"s_branch {lab}_clr")
        g.lab(f"{lab}_go")
        A("s_mov_b64 exec, 0xff")
        g.lab(f"{lab}_loop")
        A(f"buffer_load_dword v{VP}, v{VF}, {WS}, s{U+17} offen sc1")
        A("s_waitcnt vmcnt(0)")
        A(f"s_sub_u32 s{U+18}, s{U+18}, 1")
        A(f"s_cbranch_scc1 {lab}_out")
        A(f"v_cmp_{cmp_}_u32 s[{T+12}:{T+13}], {val}, v{VP}")
        A("s_nop 3")
        A(f"s_cmp_lg_u32 s{T+12}, 0")
        A(f"s_cbranch_scc1 {lab}_loop")
        g.lab(f"{lab}_out")
        A("s_mov_b64 exec, -1")
    if o.diag:
        A(f"s_mov_b32 s{E}, 0")
    if o.early:
        A(g.waitvm("poll"))
        A(f"v_readfirstlane_b32 s{T+10}, v{VC}")
        A("s_mov_b64 exec, 0xff")
        A(f"v_cmp_eq_u32 s[{T+12}:{T+13}], 0, v{VP}")
        A("s_mov_b64 exec, -1")
        A(f"s_cmp_lt_u32 s{T+10}, 8")
        A("s_cbranch_scc1 L_late")
        A(f"s_cmp_lg_u32 s{T+12}, 0")
        A("s_cbranch_scc1 L_late")
        if o.diag:
            A(f"s_mov_b32 s{E}, 1")
        loads(True)
        A("s_waitcnt vmcnt(16)")
        A("s_barrier")
        A(flag(2, "L_f2a"))
        g.stamp(56)
        A(f"s_cmp_lg_u32 s{S_W}, 0")
        A("s_cbranch_scc1 L_s0")
        sums(True, 1)
        A("s_branch L_wait")
    g.lab("L_late")
    A(waitall())
    A("s_barrier")
    A(flag(2, "L_f2b"))
    g.stamp(56)
    poll("L_p1", "eq", 0)
    loads(True)
    g.lab("L_s0")
    sums(True, 0)
    A(f"s_cmp_lg_u32 s{S_W}, 0")
    A("s_cbranch_scc1 L_polled")
    g.lab("L_wait")
    poll("L_p2", "ne", 2)
    g.lab("L_polled")
    A("s_barrier")
    g.stamp(57)
    loads(False)
    sums(False, 0)
    g.stamp(58)
    if o.diag:
        A(f"v_writelane_b32 v{V_TID}, s{E}, 60")


def gen_reduce(g):
    o = g.o
    A = g.A
    K = "reduce_kernel"
    g.L.append(f".globl {K}\n.p2align 8\n.type {K},@function")
    g.lab(K)
    A("s_cmp_ge_u32 s2, 640")
    A("s_cbranch_scc1 L_red_end")
    if o.diag >= 2:
        A("s_memrealtime s[20:21]")
    A("s_load_dwordx2 s[4:5], s[0:1], 80")
    A("s_load_dwordx2 s[8:9], s[0:1], 96")
    A("v_lshrrev_b32 v1, 6, v0")
    A("v_and_b32 v0, 63, v0")
    A("v_readfirstlane_b32 s3, v1")
    A("s_lshl_b32 s12, s2, 2")
    A("s_mov_b32 s6, 2621440")
    A("s_mov_b32 s7, 0x20000")
    A("s_mov_b32 s10, 268435456")
    A("s_mov_b32 s11, 0x20000")
    A("s_add_u32 s12, s12, s3")
    A("s_mul_i32 s13, s12, 52429")
    A("s_lshr_b32 s13, s13, 22")
    A("s_mul_i32 s14, s13, 80")
    A("s_sub_u32 s14, s12, s14")
    A("s_mul_i32 s15, s13, 655360")
    A("s_lshl_b32 s16, s14, 10")
    A("s_add_u32 s15, s15, s16")
    A("v_lshlrev_b32 v1, 4, v0")
    A("s_waitcnt lgkmcnt(0)")
    for h in range(8):
        A(f"buffer_load_dwordx4 {vr(4+h*4)}, v1, s[8:11], s15 offen {o.pld}")
        if h < 7:
            A("s_add_u32 s15, s15, 81920")
    A("s_and_b32 s16, s13, 15")
    A("s_lshl_b32 s16, s16, 2")
    A("s_bfe_u32 s17, s14, 0x20002")
    A("s_add_u32 s16, s16, s17")
    A("s_mul_i32 s16, s16, 40960")
    A("s_lshr_b32 s17, s13, 4")
    A("s_mul_i32 s17, s17, 1280")
    A("s_add_u32 s16, s16, s17")
    A("s_lshr_b32 s17, s14, 4")
    A("s_lshl_b32 s17, s17, 8")
    A("s_add_u32 s16, s16, s17")
    A("s_and_b32 s17, s14, 3")
    A("s_lshl_b32 s17, s17, 4")
    A("s_add_u32 s16, s16, s17")
    A("v_and_b32 v2, 15, v0")
    A("v_lshrrev_b32 v3, 4, v0")
    A("v_mul_u32_u24 v2, 2560, v2")
    A("v_lshl_add_u32 v2, v3, 6, v2")
    A("s_mov_b32 s18, 0xffff0000")
    for h in range(8):
        A(f"s_waitcnt vmcnt({7-h})")
        for t in range(4):
            src = 4 + h * 4 + t
            if h == 0:
                A(f"v_lshlrev_b32 v{40+2*t}, 16, v{src}")
                A(f"v_and_b32 v{41+2*t}, s18, v{src}")
            else:
                A(f"v_lshlrev_b32 v{48+2*t}, 16, v{src}")
                A(f"v_and_b32 v{49+2*t}, s18, v{src}")
        if h:
            for n in range(8):
                A(f"v_add_f32 v{40+n}, v{40+n}, v{48+n}")
    for t in range(4):
        A(f"v_cvt_pk_bf16_f32 v{4+t}, v{40+2*t}, v{41+2*t}")
    A(f"buffer_store_dwordx4 {vr(4)}, v2, s[4:7], s16 offen")
    if o.diag == 2:
        A("s_waitcnt vmcnt(0)")
        A("s_memrealtime s[22:23]")
        A("s_load_dwordx2 s[24:25], s[0:1], 88")
        A("s_mov_b32 s26, 64")
        A("s_mov_b32 s27, 0x20000")
        A("s_waitcnt lgkmcnt(0)")
        A("v_mov_b32 v8, 0")
        A("s_not_b32 s21, s20")
        A("v_writelane_b32 v8, s20, 13")
        A("v_writelane_b32 v8, s21, 14")
        A("v_writelane_b32 v8, s22, 15")
        A("v_lshlrev_b32 v9, 2, v0")
        A("buffer_atomic_umax v8, v9, s[24:27], 0 offen sc1")
    if o.diag == 3:
        A("s_cmp_lg_u32 s12, 2000")
        A("s_cbranch_scc1 L_red_end")
        A("s_waitcnt vmcnt(0)")
        A("s_memrealtime s[22:23]")
        A("s_load_dwordx2 s[24:25], s[0:1], 88")
        A("s_mov_b32 s26, 64")
        A("s_mov_b32 s27, 0x20000")
        A("v_lshlrev_b32 v9, 2, v0")
        A(f"s_mov_b32 s15, {0x8000000 + o.sel*256}")
        A("buffer_load_dword v8, v9, s[8:11], s15 offen sc1")
        A("s_waitcnt vmcnt(0) lgkmcnt(0)")
        A("v_writelane_b32 v8, s20, 14")
        A("v_writelane_b32 v8, s22, 15")
        A("buffer_store_dword v8, v9, s[24:27], 0 offen")
    g.lab("L_red_end")
    A("s_endpgm")


def desc(name, vg, acc, sg):
    return f""".amdhsa_kernel {name}
  .amdhsa_next_free_vgpr {vg}
  .amdhsa_next_free_sgpr {sg}
  .amdhsa_accum_offset {acc}
  .amdhsa_group_segment_fixed_size 0
  .amdhsa_kernarg_size 104
  .amdhsa_user_sgpr_count 2
  .amdhsa_user_sgpr_kernarg_segment_ptr 1
  .amdhsa_system_sgpr_workgroup_id_x 1
.end_amdhsa_kernel"""


def build(o):
    g = Gen(o)
    head = [l.rstrip("\n") for l in open(f"cdna_kernels/{NAME}.s.ref") if l.startswith(";   offset") or l.startswith("; Kernarg")]
    if o.fuse:
        head.append(f"; @launch grid=(256,1,1) block=(256,1,1) lds={LDS_BYTES}")
    else:
        head.append(f"; @launch kernel={NAME}_kernel grid=(256,1,1) block=(256,1,1) lds={LDS_BYTES}")
        head.append(f"; @launch kernel=reduce_kernel grid=(640,1,1) block=(256,1,1) lds=0")
    for _ in range(o.noop):
        head.append(f"; @launch kernel=noop_kernel grid=(1,1,1) block=(64,1,1) lds=0")
    head.append('.amdgcn_target "amdgcn-amd-amdhsa--gfx950"')
    head.append(".text")
    gen_main(g)
    if not o.fuse:
        gen_reduce(g)
    g.lab("L_code_end")
    if o.noop:
        g.L.append(".globl noop_kernel\n.p2align 8\n.type noop_kernel,@function\nnoop_kernel:\n    s_endpgm")
    tail = ['.section .rodata,"a"', ".p2align 6", desc(f"{NAME}_kernel", 512, 256, 102)]
    if not o.fuse:
        tail += [".p2align 6", desc("reduce_kernel", 64, 64, 32)]
    if o.noop:
        tail += [".p2align 6", desc("noop_kernel", 64, 64, 32)]
    return "\n".join(head + g.L + tail) + "\n"


def opts(argv=None):
    p = argparse.ArgumentParser()
    p.add_argument("-o", default=f"cdna_kernels/{NAME}.s")
    p.add_argument("--diag", type=int, default=0)
    p.add_argument("--warm", type=int, default=1)
    p.add_argument("--noop", type=int, default=0)
    p.add_argument("--fuse", type=int, default=0)
    p.add_argument("--dp", type=int, default=0)
    p.add_argument("--verbose", type=int, default=0)
    p.add_argument("--cap", type=int, default=2)
    p.add_argument("--wpace", type=int, default=4)
    p.add_argument("--cape", type=int, default=1)
    p.add_argument("--capv", type=int, default=0)
    p.add_argument("--early", type=int, default=1)
    p.add_argument("--wopre", type=int, default=0)
    p.add_argument("--e39", type=int, default=0)
    p.add_argument("--fa", type=int, default=0)
    p.add_argument("--fl", type=int, default=0)
    p.add_argument("--dens", type=int, default=0)
    p.add_argument("--defer", type=int, default=0)
    p.add_argument("--xrot", type=int, default=1)
    p.add_argument("--alt", default="")
    p.add_argument("--altbit", type=int, default=0)
    p.add_argument("--pad", type=int, default=0)
    p.add_argument("--c4pre", type=int, default=0)
    p.add_argument("--exp", default="")
    p.add_argument("--steps", type=int, default=0)
    p.add_argument("--ng", type=int, default=1)
    p.add_argument("--kst", default="")
    p.add_argument("--vst", default="")
    p.add_argument("--order", default="xa,xb,w0,w1,w2")
    p.add_argument("--coop", type=int, default=0)
    p.add_argument("--nfirst", type=int, default=0)
    p.add_argument("--c4first", type=int, default=0)
    p.add_argument("--sel", type=int, default=401)
    p.add_argument("--rot", type=int, default=1)
    p.add_argument("--spread", type=int, default=3)
    p.add_argument("--kv0", type=int, default=0)
    p.add_argument("--kvper", type=int, default=1)
    for k, d in (("px", ""), ("pxb", ""), ("pw0", "nt"), ("pwq", ""), ("pwo", ""), ("pk", "nt"), ("pv", "nt"), ("pst", "sc1"), ("pld", ""), ("pout", "")):
        p.add_argument("--" + k, default=d)
    return p.parse_args(argv)


if __name__ == "__main__":
    o = opts()
    open(o.o, "w").write(build(o))
```

```python
import sys, argparse

NAME = "concat_heads__gqa_block_cached__mha_block_cached__near_ridge"

V_TID = 0
V_TMP = 1
V_W = 2
V_B = 10
V_LX = 11
V_KG = 12
V_VG = 13
V_WO0 = 14
V_WO1 = 15
PERM = 16
RING = 32
ACC = 128
A_V = 0
A_B = 64
A_K = 128
A_C4 = 128

S_X, S_K, S_V, S_WQ, S_WO, S_WS = 8, 12, 16, 20, 24, 28
S_W = 3
S_BP = 4
S_HQ = 5
S_T0, S_T1 = 6, 7
S_KS = 32
S_CW = 52
S_XC = 72
S_KV = 8
S_CL = 95
S_ST = 92
S_PLO, S_PHI = 93, 94
S_KLDS = 96
S_SC = 97
S_C4U = 98
S_GRP = 7
S_STMP = 99
S_TS = 100
S_G = 95

S_OUT, S_DBG = 12, 16
WS_FLAG = 0x2000000
LDS_O = 0
LDS_X = 65536
LDS_R = 65536
LDS_BYTES = 163840
GFUN = [0, 2, 3, 1]


class Gen:
    def __init__(self, o):
        self.o = o
        self.L = []
        self.ng = o.ng
        self.vq = [[] for _ in range(self.ng)]
        self.nlab = 0
        self.dq = []

    def A(self, s):
        if s:
            self.L.append("    " + s)

    def lab(self, s):
        self.L.append(s + ":")

    def vm(self, s, tag, grp=None):
        for k, q in enumerate(self.vq):
            if grp is None or grp == k:
                q.append(tag)
                assert len(q) <= 63, "vmcnt overflow"
        return s

    def waitvm(self, tag):
        ns = []
        for k, q in enumerate(self.vq):
            idx = max((i for i, t in enumerate(q) if t == tag), default=-1)
            ns.append(None if idx < 0 else len(q) - 1 - idx)
            self.vq[k] = q[idx + 1:]
        vals = sorted(set(n for n in ns if n is not None))
        if not vals:
            return None
        lo = vals[0]
        big = [k for k, n in enumerate(ns) if n is not None and n > lo]
        if len(big) != 1:
            return f"s_waitcnt vmcnt({lo})"
        self.nlab += 1
        return (f"s_cmp_eq_u32 s{S_GRP}, {big[0]}\n    s_cbranch_scc1 L_w{self.nlab}\n    s_waitcnt vmcnt({lo})\n"
                f"L_w{self.nlab}:\n    s_waitcnt vmcnt({ns[big[0]]})")

    def ds(self, s, tag):
        self.dq.append(tag)
        return s

    def waitds(self, tag):
        idx = max((i for i, t in enumerate(self.dq) if t == tag), default=-1)
        if idx < 0:
            return None
        n = len(self.dq) - 1 - idx
        self.dq = self.dq[idx + 1:]
        return f"s_waitcnt lgkmcnt({min(n, 15)})"

    def stamp(self, k):
        if not self.o.diag:
            return
        A = self.A
        A(f"{'s_memtime' if self.o.diag != 2 else 's_memrealtime'} s[{S_TS}:{S_TS+1}]")
        A("s_waitcnt lgkmcnt(0)")
        A(f"v_writelane_b32 v{V_TID}, s{S_TS}, {k}")


def mfma(d, a, b, c):
    return f"v_mfma_f32_16x16x32_bf16 {d}, {a}, {b}, {c}"


def vr(n, k=4):
    return f"v[{n}:{n+k-1}]"


def ar(n, k=4):
    return f"a[{n}:{n+k-1}]"


def perms(src_rows, t, dst):
    out = []
    for e in range(2):
        for p in range(4):
            sel = S_PLO if e == 0 else S_PHI
            out.append(f"v_perm_b32 v{dst+e*4+p}, v{src_rows[2*p+1]+t}, v{src_rows[2*p]+t}, s{sel}")
    return out


def slot_rows(s):
    return [RING + (s % 3) * 32 + r * 4 for r in range(8)]


def gen_main(g):
    o = g.o
    A = g.A
    K = f"{NAME}_kernel"
    g.L.append(f".globl {K}\n.p2align 8\n.type {K},@function")
    g.lab(K)
    A("s_cmp_ge_u32 s2, 256")
    A("s_cbranch_scc1 L_main_end")
    if o.diag:
        A(f"{'s_memtime' if o.diag != 2 else 's_memrealtime'} s[54:55]")
        A(f"s_memrealtime s[56:57]")
    A("s_load_dwordx16 s[32:47], s[0:1], 0")
    A("s_load_dwordx4 s[48:51], s[0:1], 64")
    A("s_load_dwordx2 s[28:29], s[0:1], 96")
    A(f"v_lshrrev_b32 v{V_TMP}, 6, v0")
    A(f"v_and_b32 v0, 63, v0")
    A(f"v_readfirstlane_b32 s{S_W}, v{V_TMP}")
    A(f"s_lshr_b32 s{S_T0}, s2, 3")
    if o.warm:
        A("s_getpc_b64 s[52:53]")
        g.lab("L_pc")
        A(f"s_sub_u32 s52, s52, L_pc-{K}")
        A("s_subb_u32 s53, s53, 0")
        A(f"s_lshl_b32 s{S_T1}, s{S_T0}, 2")
        A(f"s_add_u32 s{S_T1}, s{S_T1}, s{S_W}")
        A(f"s_min_u32 s{S_T1}, s{S_T1}, (L_code_end-{K})/1024-1")
        A(f"s_lshl_b32 s{S_T1}, s{S_T1}, 10")
        A(f"v_lshl_add_u32 v{V_TMP}, v0, 4, s{S_T1}")
        A(g.vm(f"global_load_dwordx4 {vr(PERM)}, v{V_TMP}, s[52:53]", "warm"))
    A(f"s_lshr_b32 s{S_BP}, s{S_T0}, 1")
    A(f"s_and_b32 s{S_T0}, s{S_T0}, 1")
    A(f"s_and_b32 s{S_HQ}, s2, 3")
    A(f"s_lshl_b32 s{S_HQ}, s{S_HQ}, 1")
    A(f"s_add_u32 s{S_HQ}, s{S_HQ}, s{S_T0}")
    vi, vG, vt, vt2 = 20, 21, 22, 23
    A(f"s_movk_i32 s{S_G}, 0x78")
    A(f"v_and_b32 v{vi}, 15, v0")
    A(f"v_lshrrev_b32 v{vG}, 4, v0")
    A(f"v_xor_b32 v{vt}, v{vG}, v0")
    A(f"v_and_b32 v{vt}, 7, v{vt}")
    A(f"v_lshlrev_b32 v{vt}, 4, v{vt}")
    A(f"v_lshrrev_b32 v{vt2}, 3, v0")
    A(f"v_mul_u32_u24 v{vt2}, 1280, v{vt2}")
    A(f"v_add_u32 v{V_B}, v{vt}, v{vt2}")
    A(f"v_xor_b32 v{vt}, 64, v{vt}")
    A(f"v_add_u32 v{vt2}, {8*1280}, v{vt2}")
    A(f"v_add_u32 v{V_LX}, v{vt}, v{vt2}")
    A(f"v_lshlrev_b32 v{vt}, 4, v{vi}")
    A(f"v_lshl_add_u32 v{V_W}, v{vG}, 16, v{vt}")
    for r in range(1, 8):
        A(f"v_add_u32 v{V_W+r}, {r*8192}, v{V_W}")
    A("s_bitcmp1_b32 s2, 2")
    A("s_waitcnt lgkmcnt(0)")
    if o.diag:
        A(f"s_mov_b32 s{S_TS}, s54")
        A(f"s_mov_b32 s{S_TS+1}, s56")
        A("s_memtime s[88:89]")
    for dst, a, b in ((S_X, 32, 42), (S_K, 34, 44), (S_V, 36, 46), (S_WQ, 38, 48), (S_WO, 40, 50)):
        A(f"s_cselect_b32 s{dst}, s{b}, s{a}")
        A(f"s_cselect_b32 s{dst+1}, s{b+1}, s{a+1}")
    for dst, n in ((S_X, 1310720), (S_K, 8388608), (S_V, 8388608), (S_WQ, 5242880), (S_WO, 5242880), (S_WS, 268435456)):
        A(f"s_mov_b32 s{dst+2}, {n}")
        A(f"s_mov_b32 s{dst+3}, 0x20000")
    A(f"s_lshl_b32 s{S_C4U}, s{S_HQ}, 2")
    A(f"s_add_u32 s{S_C4U}, s{S_C4U}, s{S_W}")
    A(f"s_lshl_b32 s{S_T1}, s{S_C4U}, 8")
    for r in range(8):
        A(f"v_add_u32 v{V_W+r}, s{S_T1}, v{V_W+r}")
    A(f"s_mul_i32 s{S_KS}, s{S_BP}, 5")
    A(f"s_lshr_b32 s{S_KS}, s{S_KS}, 2")
    if not o.rot:
        A(f"s_mov_b32 s{S_KS}, 0")
    A(f"s_lshl_b32 s{S_KS}, s{S_KS}, 18")
    tab = []
    for ks in range(19):
        tab.append([f"s_add_u32 s{S_KS+ks+1}, s{S_KS+ks}, {1<<18}", f"s_cmp_eq_u32 s{S_KS+ks+1}, {20<<18}", f"s_cselect_b32 s{S_KS+ks+1}, 0, s{S_KS+ks+1}"])
    for t in tab[:2]:
        for x in t:
            A(x)
    tab = tab[2:]

    def wload(s, r):
        dst = vr(slot_rows(s)[r])
        if s == 39 and o.e39:
            dst = ar(r * 4)
        if s < 20:
            pol = o.pw0 if s < o.nfirst else o.pwq
            return g.vm(f"buffer_load_dwordx4 {dst}, v{V_W+r}, s[{S_WQ}:{S_WQ+3}], s{S_KS+s} offen {pol}", f"w{s}")
        v = V_WO0 if r < 4 else V_WO1
        pol = o.pw0 if (s - 20 < o.nfirst or (s >= 36 and o.c4first)) else o.pwo
        ci = s - 20 if not o.dp else (s - 4 if s < 24 else s - 24)
        return g.vm(f"buffer_load_dwordx4 {dst}, v{v}, s[{S_WO}:{S_WO+3}], s{S_CW+ci} offen offset:{(r%4)*1280} {pol}", f"w{s}")

    def wsoff(s):
        return None

    def xhalf(second):
        A(f"s_and_b32 s{S_T1}, s{S_HQ}, 1")
        if second:
            A(f"s_xor_b32 s{S_T1}, s{S_T1}, 1")
        if not o.coop:
            A(f"s_mov_b32 s{S_T1}, {second}")
        A(f"s_lshl_b32 s{S_T0}, s{S_BP}, 2")
        A(f"s_add_u32 s{S_T0}, s{S_T0}, s{S_W}")
        A(f"s_mul_i32 s{S_T0}, s{S_T0}, {16*1280}")
        A(f"s_mul_i32 s{S_STMP}, s{S_T1}, 640")
        A(f"s_add_u32 s{S_T0}, s{S_T0}, s{S_STMP}")
        A(f"s_mul_i32 s{S_T1}, s{S_T1}, 20")
        A(f"s_add_u32 s{S_T1}, s{S_T1}, s{S_W}")
        A(f"s_lshl_b32 s{S_T1}, s{S_T1}, 11")
        A(f"s_add_u32 m0, s{S_T1}, {LDS_X}")
        A("s_nop 0")
        for n in range(10):
            kb, m = n // 2, n % 2
            A(g.vm(f"buffer_load_dwordx4 v{V_LX if m else V_B}, s[{S_X}:{S_X+3}], s{S_T0} offen offset:{kb*128} {o.pxb if second else o.px} lds", "x"))
            if n < 9:
                A(f"s_add_u32 m0, m0, {1024 if m == 0 else 8192-128-1024}")
                if tab:
                    for x in tab.pop(0):
                        A(x)
                else:
                    A("s_nop 0")
    def xinit():
        A(f"s_lshl_b32 s{S_T0}, s{S_BP}, 2")
        A(f"s_add_u32 s{S_T0}, s{S_T0}, s{S_W}")
        A(f"s_mul_i32 s{S_T0}, s{S_T0}, {16*1280}")
        A(f"s_lshl_b32 s{S_KLDS}, s{S_W}, 11")
        A(f"s_add_u32 s{S_KLDS}, s{S_KLDS}, {LDS_X}")
        A(f"s_and_b32 s{S_T1}, s{S_HQ}, 1")
        A(f"s_mul_i32 s{S_T1}, s{S_T1}, 5")
        if o.xrot:
            A(f"s_lshr_b32 s{S_STMP}, s{S_HQ}, 1")
            A(f"s_add_u32 s{S_T1}, s{S_T1}, s{S_STMP}")
        A(f"s_lshl_b32 s{S_T1}, s{S_T1}, 7")

    def xblk(n, track=True):
        pol = o.px if n < 5 else o.pxb
        A(f"s_lshl_b32 s{S_STMP}, s{S_T1}, 6")
        A(f"s_add_u32 m0, s{S_STMP}, s{S_KLDS}")
        A(f"s_add_u32 s{S_STMP}, s{S_T0}, s{S_T1}")
        x = f"buffer_load_dwordx4 v{V_B}, s[{S_X}:{S_X+3}], s{S_STMP} offen {pol} lds"
        A(g.vm(x, "x") if track else x)
        A(f"s_add_u32 m0, m0, 1024")
        A(f"s_add_u32 s{S_T1}, s{S_T1}, 128")
        x = f"buffer_load_dwordx4 v{V_LX}, s[{S_X}:{S_X+3}], s{S_STMP} offen {pol} lds"
        A(g.vm(x, "x") if track else x)
        A(f"s_cmp_eq_u32 s{S_T1}, 1280")
        A(f"s_cselect_b32 s{S_T1}, 0, s{S_T1}")
        if track:
            for _ in range(2):
                if tab:
                    for t in tab.pop(0):
                        A(t)

    def pre(track=True):
        A(f"s_lshr_b32 s{S_ST}, s{S_BP}, 2")
        A(f"s_mul_i32 s{S_ST}, s{S_ST}, 5")
        A(f"s_add_u32 s{S_ST}, s{S_ST}, 4")
        A(f"s_lshl_b32 s{S_ST}, s{S_ST}, 4")
        A(f"s_and_b32 s{S_SC}, s{S_BP}, 3")
        A(f"s_add_u32 s{S_ST}, s{S_ST}, s{S_SC}")
        A(f"s_lshl_b32 s{S_ST}, s{S_ST}, 14")
        for r in range(2):
            x = f"buffer_load_dwordx4 {ar(248+4*r)}, v{V_W+r}, s[{S_WQ}:{S_WQ+3}], s{S_ST} offen"
            A(g.vm(x, "pre") if track else x)

    def items(lst, track=True, stamps=False):
        for ni, item in enumerate(lst):
            if o.diag and stamps and ni in (1, 2, 3):
                A(f"s_memtime s[{88+2*ni}:{89+2*ni}]") if ni < 2 else A(f"s_memtime s[{68+2*ni}:{69+2*ni}]")
            if item[0] == "c":
                A(f"s_waitcnt vmcnt({item[1:]})")
            elif item == "xa":
                xhalf(0)
            elif item == "xb":
                xhalf(1)
            elif item == "p":
                pre(track)
            elif item[0] == "x":
                for n in range(int(item[1]), int(item[2]) + 1):
                    xblk(n, track)
            else:
                sw = int(item[1:])
                for r in range(8):
                    if track:
                        A(wload(sw, r))
                    else:
                        sv = [list(q) for q in g.vq]
                        A(wload(sw, r))
                        g.vq = sv
    lst = o.order.split(",")
    if any(x[0] == "x" and len(x) == 3 for x in lst):
        xinit()
    if o.alt:
        alt = o.alt.split(",")
        assert sorted(alt) == sorted(lst[:len(alt)])
        A(f"s_bitcmp1_b32 s{S_BP}, {o.altbit}")
        A("s_cbranch_scc1 L_alt")
        keep, tab[:] = list(tab), []
        items(lst[:len(alt)], stamps=True)
        A("s_branch L_join")
        g.lab("L_alt")
        items(alt, track=False, stamps=True)
        g.lab("L_join")
        tab[:] = keep
        items(lst[len(alt):])
    else:
        items(lst, stamps=True)
    for t in tab:
        for x in t:
            A(x)
    tab[:] = []
    assert not tab
    A(f"s_mov_b32 s{S_T0}, s{S_C4U}")
    if o.diag:
        A("s_waitcnt lgkmcnt(0)")
        A("v_mov_b32 v24, 0")
        for k, sr in ((11, 88), (12, 90), (14, 72), (15, 74)):
            A(f"v_writelane_b32 v24, s{sr}, {k}")
    A(f"s_lshl_b32 s{S_KV}, s{S_BP}, 6")
    A(f"s_add_u32 s{S_KV}, s{S_KV}, s{S_T0}")
    A(f"s_lshl_b32 s{S_KV}, s{S_KV}, 13")
    A(f"s_add_u32 s{S_KV+1}, s{S_KV}, 4096")
    A(f"s_add_u32 s{S_KV+2}, s{S_KV}, 262144")
    A(f"s_add_u32 s{S_KV+3}, s{S_KV}, {262144+4096}")
    A(f"s_lshl_b32 s{S_KLDS}, s{S_W}, 14")
    A(f"s_mov_b32 s{S_PLO}, 0x05040100")
    A(f"s_mov_b32 s{S_PHI}, 0x07060302")
    A(f"s_mov_b32 s{S_SC}, 0x3e0293ee")
    A(f"s_mul_i32 s{S_T0}, s{S_HQ}, {512*1280}")
    A(f"s_lshl_b32 s{S_T1}, s{S_W}, 8")
    A(f"s_add_u32 s{S_T1}, s{S_T1}, s{S_T0}")
    if o.dp:
        A(f"s_lshr_b32 s{S_T1}, s{S_W}, 1")
        A(f"s_lshl_b32 s{S_T1}, s{S_T1}, 8")
        A(f"s_add_u32 s{S_T1}, s{S_T1}, s{S_T0}")
        A(f"s_and_b32 s{S_STMP}, s{S_W}, 1")
        A(f"s_mul_i32 s{S_STMP}, s{S_STMP}, {256*1280}")
        A(f"s_add_u32 s{S_T1}, s{S_T1}, s{S_STMP}")
        for n in range(8):
            A(f"s_add_u32 s{S_STMP}, s{S_BP}, {n}")
            A(f"s_and_b32 s{S_C4U}, s{S_STMP}, 3")
            A(f"s_bfe_u32 s{S_STMP}, s{S_STMP}, 0x10002")
            A(f"s_lshl_b32 s{S_STMP}, s{S_STMP}, 4")
            A(f"s_add_u32 s{S_STMP}, s{S_STMP}, s{S_C4U}")
            A(f"s_mul_i32 s{S_STMP}, s{S_STMP}, {8*1280}")
            A(f"s_add_u32 s{S_CW+n}, s{S_STMP}, s{S_T1}")
            A(f"s_add_u32 s{S_CW+8+n}, s{S_CW+n}, 512")
    for n in range(16 if not o.dp else 0):
        if o.rot:
            A(f"s_add_u32 s{S_STMP}, s{S_BP}, {n}")
            A(f"s_and_b32 s{S_STMP}, s{S_STMP}, 15")
        else:
            A(f"s_mov_b32 s{S_STMP}, {n}")
        A(f"s_and_b32 s{S_C4U}, s{S_STMP}, 3")
        A(f"s_lshr_b32 s{S_STMP}, s{S_STMP}, 2")
        A(f"s_lshl_b32 s{S_STMP}, s{S_STMP}, 4")
        A(f"s_add_u32 s{S_STMP}, s{S_STMP}, s{S_C4U}")
        A(f"s_mul_i32 s{S_STMP}, s{S_STMP}, {8*1280}")
        A(f"s_add_u32 s{S_CW+n}, s{S_STMP}, s{S_T1}")
    A(f"s_mul_i32 s{S_T1}, s{S_W}, {128*1280}")
    A(f"s_add_u32 s{S_T1}, s{S_T1}, s{S_T0}")
    A(f"s_add_u32 s{S_T1}, s{S_T1}, 1024")
    for n in range(4):
        A(f"s_add_u32 s{S_CW+16+n}, s{S_T1}, {n*8*1280}")
    A(f"s_lshr_b32 s{S_T0}, s2, 2")
    A(f"s_and_b32 s{S_T0}, s{S_T0}, 1")
    A(f"s_lshl_b32 s{S_T0}, s{S_T0}, 4")
    A(f"s_add_u32 s{S_T0}, s{S_T0}, s{S_BP}")
    A(f"s_lshl_b32 s{S_T0}, s{S_T0}, 3")
    A(f"s_add_u32 s{S_T0}, s{S_T0}, s{S_HQ}")
    A(f"s_mul_i32 s{S_ST}, s{S_T0}, {81920+o.pad}")
    if o.fuse:
        if o.diag:
            A(f"s_mov_b32 vcc_hi, s2")
        A(f"s_mov_b32 s2, s{S_T0}")
        A(f"s_cmp_lg_u32 s{S_W}, 0")
        A("s_cbranch_scc1 L_noclr")
        if o.fuse >= 2:
            flag_base(g, S_T0, S_STMP)
            A(f"v_mov_b32 v{V_TMP}, 0")
            A(f"v_lshlrev_b32 v{vt}, 7, v{vi}")
            A("s_mov_b64 exec, 15")
            A(f"buffer_store_dword v{V_TMP}, v{vt}, s[{S_WS}:{S_WS+3}], s{S_T0} offen sc1")
        else:
            A(f"s_lshl_b32 s{S_T0}, s2, 7")
            A(f"s_add_u32 s{S_T0}, s{S_T0}, {WS_FLAG}")
            A(f"v_mov_b32 v{V_TMP}, 0")
            A("s_mov_b64 exec, 1")
            A(f"buffer_store_dword v{V_TMP}, off, s[{S_WS}:{S_WS+3}], s{S_T0} sc1")
        A("s_mov_b64 exec, -1")
        g.lab("L_noclr")
    A(f"v_xor_b32 v{vt}, v{vi}, v{vG}")
    A(f"v_lshlrev_b32 v{vt}, 4, v{vt}")
    A(f"v_lshl_add_u32 v{V_KG}, v{vG}, 8, v{vt}")
    A(f"v_lshlrev_b32 v{vt}, 4, v{vi}")
    A(f"v_lshl_add_u32 v{V_VG}, v{vG}, 10, v{vt}")
    A(f"v_mul_u32_u24 v{V_WO0}, {32*1280}, v{vG}")
    A(f"v_add_u32 v{V_WO0}, v{V_WO0}, v{vt}")
    A(f"v_add_u32 v{V_WO1}, {4*1280}, v{V_WO0}")
    A(f"v_lshrrev_b32 v{vt}, 1, v{vi}")
    A(f"v_xor_b32 v{vt}, v{vt}, v{vG}")
    A(f"v_lshlrev_b32 v{vt}, 4, v{vt}")
    A(f"v_lshl_add_u32 v{V_LX}, v{vi}, 7, v{vt}")
    for n in range(20):
        A(f"s_lshr_b32 s{S_STMP}, s{S_KS+n}, 19")
        A(f"s_lshl_b32 s{S_STMP}, s{S_STMP}, 13")
        A(f"s_bfe_u32 s{S_C4U}, s{S_KS+n}, 0x10012")
        A(f"s_lshl_b32 s{S_C4U}, s{S_C4U}, 6")
        A(f"s_add_u32 s{S_STMP}, s{S_STMP}, {LDS_X}")
        A(f"s_or_b32 s{S_XC+n}, s{S_STMP}, s{S_C4U}")
    A(f"s_and_b32 s{S_GRP}, s{S_BP}, {o.ng-1}")
    if o.diag:
        A(f"v_mov_b32 v{V_TID}, v24")
        A(f"v_writelane_b32 v{V_TID}, s{S_TS}, 10")
        A(f"v_writelane_b32 v{V_TID}, s{S_TS+1}, 13")
        g.stamp(0)

    def kload(n):
        bt, m = n // 8, n % 8
        ins = []
        if m % 4 == 0:
            ins.append(f"s_add_u32 m0, s{S_KLDS}, {bt*8192 + (m//4)*4096}")
        ins.append(f"v_xor_b32 v{V_TMP}, {GFUN[m%4] << 6}, v{V_KG}")
        ins.append(("vm", f"buffer_load_dwordx4 v{V_TMP}, s[{S_K}:{S_K+3}], s{S_KV+bt*2+m//4} offen offset:{(m%4)*1024} {o.pk} lds", "k"))
        return ins

    def vload(n):
        bt, r = n // 8, n % 8
        return [("vm", f"buffer_load_dwordx4 {ar(A_V+n*4)}, v{V_VG}, s[{S_V}:{S_V+3}], s{S_KV+bt*2+r//4} offen offset:{(r%4)*256} {o.pv}", "v")]

    def baddr(s):
        if s < 20:
            return [f"v_xor_b32 v{V_B}, s{S_XC+s}, v{V_LX}"]
        if o.dp:
            if s < 24:
                return []
            return [f"v_add_u32 v{V_B}, s{S_CL}, v{V_KG}", f"v_xor_b32 v{V_VG}, 2048, v{V_B}", f"s_add_u32 s{S_CL}, s{S_CL}, 4096", f"s_and_b32 s{S_CL}, s{S_CL}, 0x7fff"]
        if s < 36:
            return [f"v_add_u32 v{V_B}, s{S_CL}, v{V_LX}", f"s_add_u32 s{S_CL}, s{S_CL}, 4096", f"s_and_b32 s{S_CL}, s{S_CL}, 0xffff"]
        return []

    def breads(s):
        buf = A_B + (s % 2) * 16
        if s < 20:
            return [f"ds_read_b128 {ar(buf+q*4)}, v{V_B} offset:{q*2048}" for q in range(4)]
        if o.dp:
            if s < 24:
                return [f"ds_read_b128 {ar(buf+q*4)}, v{V_W+q} offset:{(s-20)*4096}" for q in range(4)]
            return [f"ds_read_b128 {ar(buf+q*4)}, v{V_B if q < 2 else V_VG} offset:{(q%2)*1024}" for q in range(4)]
        if s < 36:
            return [f"ds_read_b128 {ar(buf+q*4)}, v{V_B} offset:{q*1024}" for q in range(4)]
        return [f"ds_read_b128 {ar(buf+q*4)}, v{V_W+q} offset:{(s-36)*4096}" for q in range(4)]

    def bread(s):
        return baddr(s) + breads(s)

    def emit(ins):
        if isinstance(ins, tuple):
            A(g.vm(ins[1], ins[2]))
        elif callable(ins):
            r = ins()
            if r:
                A(r)
        else:
            A(ins)

    DEF = (20, 21, 22) if o.defer == 3 else (21, 22)
    fq = []

    def cap(s, n):
        if n == 1:
            return 0, o.cape
        if n % 2 == 0:
            return o.capv, o.cape
        return (o.cap, o.cap) if n in (19, 21) else (1, 1)

    def dacc(s, q, j):
        if s < 24:
            return vr(128 + j * 4) if q == 0 else ar((96, 0, 32)[q - 1] + j * 4)
        if s < 32:
            return vr(192 + q * 32 + j * 4) if q < 2 else ar(128 + (q - 2) * 32 + j * 4)
        return ar(q * 32 + j * 4) if q < 2 else ar(192 + (q - 2) * 32 + j * 4)

    def step(s, first, last, extra, preperm=True, prefetchB=True):
        fill = [[] for _ in range(32)]
        rows = slot_rows(s)
        buf = A_B + (s % 2) * 16
        for t in range(3):
            for n, p in enumerate(perms(rows, t + 1, PERM + ((t + 1) % 2) * 8)):
                fill[t * 8 + (n // 2) * 2].append(p)
        late = o.spread
        if late and s >= 1 and s + 2 < 40 and s != 20 and not (o.defer and s + 2 in DEF) and not (o.e39 and s + 2 >= 38):
            for n, r in enumerate(range(8 - late, 8)):
                fill[11 + 2 * n].append(lambda r=r: wload(s + 2, r))
        if not last:
            ba = baddr(s + 1)
            g0 = 1
            if ba:
                fill[g0].append(ba[0])
                fill[g0] += ba[1:2]
                fill[17] += ba[2:]
                g0 += 2
            for n, x in enumerate(breads(s + 1)):
                fill[g0 + n * 2].append(lambda x=x: g.ds(x, f"b{s+1}"))
            fill[21].append(lambda: g.waitvm(f"w{s+1}"))
            for n, p in enumerate(perms(slot_rows(s + 1), 0, PERM)):
                fill[24 + (n // 2) * 2].append(p)
            fill[19].append(lambda: g.waitds(f"b{s+1}"))
        if o.e39 and 32 <= s < 36:
            for n, gp in enumerate((9, 17)):
                fill[gp].append(lambda r=(s - 32) * 2 + n: wload(39, r))
        if o.e39 and s == 35:
            late = 0
        if s + 3 < 40 and not (o.defer and s + 3 in DEF) and not (o.e39 and s == 36):
            gaps = [23, 25, 27, 29, 31] if late >= 3 else [23, 24, 25, 26, 27, 28, 29, 31]
            for r in range(8 - late):
                fill[gaps[r]].append(lambda r=r: wload(s + 3, r))
        if o.diag and o.steps:
            fill[28].append(f"s_memtime s[{S_TS}:{S_TS+1}]")
            fill[31].append(lambda: ("s_waitcnt lgkmcnt(0)", g.dq.clear())[0])
            fill[31].append(f"v_writelane_b32 v{V_TID}, s{S_TS}, {16+s}")
        for k, v in extra.items():
            fill[k] = fill[k] + v
        n = 0
        for t in range(4):
            for e in range(2):
                for q in range(4):
                    j = 2 * t + e
                    if o.dp and s >= 20:
                        d = dacc(s, q, j)
                    elif s < 36:
                        d = vr(ACC + q * 32 + j * 4)
                    else:
                        d = ar(A_C4 + q * 32 + j * 4)
                    A(mfma(d, vr(PERM + (t % 2) * 8 + e * 4), ar(buf + q * 4), "0" if first else d))
                    for x in fill[n]:
                        if o.exp and 24 <= s < 34:
                            if isinstance(x, str) and "noperm" in o.exp and x.startswith("v_perm"):
                                continue
                            if isinstance(x, str) and "nods" in o.exp and x.startswith("ds_read"):
                                continue
                            if callable(x) and "noload" in o.exp:
                                r = x()
                                if not (r and r.startswith("buffer_load")):
                                    A(r)
                                continue
                        emit(x)
                    cv_, co_ = cap(s, n)
                    while fq and fq[0][0] <= s * 32 + n:
                        if fq[0][2] == "v":
                            if cv_ <= 0:
                                break
                        elif co_ <= 0:
                            break
                        cv_ -= 1
                        co_ -= 1
                        emit(fq.pop(0)[1])
                    n += 1

    A(g.waitvm("x"))
    A("s_barrier")
    for x in bread(0):
        A(x)
    A(g.waitvm("w0"))
    for p in perms(slot_rows(0), 0, PERM):
        A(p)
    A("s_waitcnt lgkmcnt(0)")
    g.stamp(1)
    kvn = 0
    kst = [int(x) for x in o.kst.split(",")] if o.kst else []
    vst = [int(x) for x in o.vst.split(",")] if o.vst else []

    def burst(grp, fn, name):
        def f():
            out = []
            if o.ng > 1:
                out += [f"s_cmp_lg_u32 s{S_GRP}, {grp}", f"s_cbranch_scc1 L_{name}{grp}"]
            for n in range(16):
                for x in fn(n):
                    out.append(g.vm(x[1], x[2], grp) if isinstance(x, tuple) else x)
            t = "\n    ".join(out)
            if o.ng > 1:
                t += f"\nL_{name}{grp}:"
            return t
        return f
    for s in range(20):
        extra = {}
        if kst:
            for grp in range(o.ng):
                if kst[grp] == s:
                    extra.setdefault(31, []).append(burst(grp, kload, "kb"))
                if vst[grp] == s:
                    extra.setdefault(31, []).append(burst(grp, vload, "vb"))
        elif o.kv0 <= s and kvn < 16:
            for c in range(o.kvper):
                if kvn < 16:
                    extra.setdefault(10 + c * 6, []).extend(kload(kvn))
                    extra.setdefault(13 + c * 6, []).extend(vload(kvn))
                    kvn += 1
        if o.wopre and s == o.wopre:
            extra.setdefault(17, []).extend([f"s_lshl_b32 s{S_STMP}, s{S_HQ}, 4", f"s_add_u32 s{S_STMP}, s{S_STMP}, s{S_BP}"])
            extra.setdefault(19, []).extend([f"s_lshl_b32 s{S_STMP}, s{S_STMP}, 2", f"s_add_u32 s{S_STMP}, s{S_STMP}, s{S_W}"])
            extra.setdefault(21, []).extend([f"s_mul_i32 s{S_STMP}, s{S_STMP}, 10240", f"v_mbcnt_lo_u32_b32 v{V_TMP}, -1, 0"])
            extra.setdefault(23, []).extend([f"v_mbcnt_hi_u32_b32 v{V_TMP}, -1, v{V_TMP}"])
            extra.setdefault(25, []).extend([f"v_lshlrev_b32 v{V_TMP}, 7, v{V_TMP}"])
            extra.setdefault(31, []).extend([("vm", f"buffer_load_dword a240, v{V_TMP}, s[{S_WO}:{S_WO+3}], s{S_STMP} offen", "pre"),
                                             f"s_add_u32 s{S_STMP}, s{S_STMP}, 8192", "s_mov_b64 exec, 0xffff",
                                             ("vm", f"buffer_load_dword a241, v{V_TMP}, s[{S_WO}:{S_WO+3}], s{S_STMP} offen", "pre"),
                                             "s_mov_b64 exec, -1"])
        step(s, s == 0, s == 19, extra)
    assert kvn == 16 or kst
    if not o.defer:
        for r in range(8 - o.spread, 8):
            A(wload(22, r))
    g.stamp(2)

    vi, vG, vt, KA = 6, 7, 8, 2
    if o.fuse:
        A(f"s_load_dwordx2 s[{S_OUT}:{S_OUT+1}], s[0:1], 80")
        A(f"s_load_dwordx2 s[{S_DBG}:{S_DBG+1}], s[0:1], 88")
        A(f"s_mov_b32 s{S_OUT+2}, 2621440")
        A(f"s_mov_b32 s{S_DBG+2}, 256")
    A(f"s_movk_i32 s{S_G}, 0x78")
    A(f"v_lshrrev_b32 v{vG}, 10, v{V_VG}")
    A(f"v_bfe_u32 v{vi}, v{V_VG}, 4, 4")
    A(f"v_lshrrev_b32 v{vt}, 2, v{vi}")
    A(f"v_lshlrev_b32 v{vt}, 1, v{vt}")
    A(f"v_lshrrev_b32 v{vt}, v{vt}, s{S_G}")
    A(f"v_xor_b32 v{vt}, v{vt}, v{vG}")
    A(f"v_and_b32 v{vt}, 3, v{vt}")
    A(f"v_lshlrev_b32 v{vt}, 2, v{vt}")
    A(f"v_and_or_b32 v{vt}, v{vi}, 3, v{vt}")
    A(f"v_lshlrev_b32 v{vt}, 4, v{vt}")
    A(f"v_lshl_add_u32 v{vt}, v{vi}, 8, v{vt}")
    A(f"v_add_u32 v{KA}, s{S_KLDS}, v{vt}")
    for u in range(1, 4):
        A(f"v_xor_b32 v{KA+u}, {u*16}, v{KA}")
    A(f"v_lshlrev_b32 v{V_LX}, 8, v{vG}")
    A(f"v_lshl_add_u32 v{V_LX}, v{vi}, 4, v{V_LX}")
    def c4pre_b():
        A(f"s_mul_i32 s{S_T0}, s{S_BP}, {8*1280}")
        A(f"s_add_u32 s{S_T0}, s{S_T0}, s{S_CW+16}")
        A(f"v_mul_u32_u24 v{V_TMP}, {1280-256}, v{vG}")
        A(f"v_add_u32 v{V_TMP}, v{V_TMP}, v{V_LX}")
        A(g.vm(f"buffer_load_dwordx4 {ar(240)}, v{V_TMP}, s[{S_WO}:{S_WO+3}], s{S_T0} offen", "pre"))
        A(f"s_add_u32 s{S_T0}, s{S_T0}, {4*1280}")
        A(g.vm(f"buffer_load_dwordx4 {ar(244)}, v{V_TMP}, s[{S_WO}:{S_WO+3}], s{S_T0} offen", "pre"))
    A(g.waitvm("k"))
    if o.c4pre == 1:
        c4pre_b()
    if o.fuse:
        A("s_waitcnt lgkmcnt(0)")

    def kread(bt):
        for kb in range(2):
            for u in range(4):
                A(f"ds_read_b128 {ar(A_K+((bt*2+kb)*4+u)*4)}, v{KA+u} offset:{bt*8192+kb*4096}")
    QB = [PERM, 128, 144, 160]
    SA = 176
    cv = []
    for q in range(4):
        c = []
        for t in range(4):
            for u in range(4):
                c.append(f"v_cvt_pk_bf16_f32 v{QB[q]+u*4+t}, v{ACC+q*32+(2*t)*4+u}, v{ACC+q*32+(2*t+1)*4+u}")
        cv.append(c)
    kread(0)
    for x in cv[0]:
        A(x)
    A("s_waitcnt lgkmcnt(4)")
    kread(1)
    for x in cv[1]:
        A(x)
    A("s_waitcnt lgkmcnt(8)")

    def smfma(bt):
        r = []
        for u in range(4):
            for kb in range(2):
                for qq in range(2):
                    d = vr(SA + ((bt * 2 + kb) * 2 + qq) * 4)
                    r.append(mfma(d, ar(A_K + ((bt * 2 + kb) * 4 + u) * 4), vr(QB[bt * 2 + qq] + u * 4), "0" if u == 0 else d))
        return r
    s0 = smfma(0)
    rest = cv[2] + cv[3]
    A("s_nop 1")
    for n in range(16):
        A(s0[n])
        A(rest[2 * n])
        A(rest[2 * n + 1])
    A("s_waitcnt lgkmcnt(0)")
    A("s_nop 1")
    s1 = smfma(1)

    PB = 208
    TM = 224

    def softmax(q):
        bt, qq = q // 2, q % 2
        sv = [SA + ((bt * 2 + kb) * 2 + qq) * 4 + r for kb in range(2) for r in range(4)]
        m, t2 = TM + q * 4, TM + q * 4 + 1
        ph = []
        ph.append([f"v_max3_f32 v{m}, v{sv[0]}, v{sv[1]}, v{sv[2]}",
                   f"v_max3_f32 v{t2}, v{sv[3]}, v{sv[4]}, v{sv[5]}",
                   f"v_max3_f32 v{m}, v{m}, v{sv[6]}, v{sv[7]}",
                   f"v_max_f32 v{m}, v{m}, v{t2}",
                   f"v_mov_b32 v{t2}, v{m}"])
        ph.append([f"v_permlane32_swap_b32 v{m}, v{t2}"])
        ph.append([f"v_max_f32 v{m}, v{m}, v{t2}", f"v_mov_b32 v{t2}, v{m}"])
        ph.append([f"v_permlane16_swap_b32 v{m}, v{t2}"])
        ph.append([f"v_max_f32 v{m}, v{m}, v{t2}", f"v_mul_f32 v{m}, s{S_SC}, v{m}"] +
                  [f"v_fma_f32 v{x}, v{x}, s{S_SC}, -v{m}" for x in sv] +
                  [f"v_exp_f32 v{x}, v{x}" for x in sv])
        ph.append([f"v_add_f32 v{m}, v{sv[0]}, v{sv[1]}", f"v_add_f32 v{t2}, v{sv[2]}, v{sv[3]}",
                   f"v_add_f32 v{m}, v{m}, v{sv[4]}", f"v_add_f32 v{t2}, v{t2}, v{sv[5]}",
                   f"v_add_f32 v{m}, v{m}, v{sv[6]}", f"v_add_f32 v{t2}, v{t2}, v{sv[7]}",
                   f"v_add_f32 v{m}, v{m}, v{t2}", f"v_mov_b32 v{t2}, v{m}"])
        ph.append([f"v_permlane32_swap_b32 v{m}, v{t2}"])
        ph.append([f"v_add_f32 v{m}, v{m}, v{t2}", f"v_mov_b32 v{t2}, v{m}"])
        ph.append([f"v_permlane16_swap_b32 v{m}, v{t2}"])
        ph.append([f"v_add_f32 v{m}, v{m}, v{t2}"])
        ph.append([f"v_rcp_f32 v{m}, v{m}"])
        ph.append([f"v_mul_f32 v{x}, v{x}, v{m}" for x in sv])
        ph.append([f"v_cvt_pk_bf16_f32 v{PB+q*4+p}, v{sv[2*p]}, v{sv[2*p+1]}" for p in range(4)])
        return ph

    def softmax_pair(q0):
        a, b = softmax(q0), softmax(q0 + 1)
        out = []
        for pa, pb in zip(a, b):
            if pa[0].startswith("v_permlane"):
                out.append("s_nop 1")
            out += pa + pb
            if pa[0].startswith("v_rcp") or pa[0].startswith("v_permlane"):
                out.append("s_nop 0")
        return out
    sm0 = softmax_pair(0)
    for n in range(16):
        A(s1[n])
        if n >= 4:
            for _ in range(2):
                A(sm0.pop(0))
    for x in sm0:
        A(x)
    sm1 = softmax_pair(2)
    for n, x in enumerate(sm1):
        A(x)
        if o.defer == 2 and n % 12 == 11 and n // 12 < 8:
            A(wload(21, n // 12))
    g.stamp(3)
    A(g.waitvm("v"))
    dl = []
    if o.defer == 1:
        dl = [(21, r) for r in range(8)] + [(22, r) for r in range(8)]
    if o.defer == 2:
        dl = [(22, r) for r in range(8)]
    if o.defer == 3:
        for r in range(8):
            A(wload(20, r))
        dl = [(21, r) for r in range(8)] + [(22, r) for r in range(8)]
    OA = 128
    VT = 192
    VP1 = 224
    STG = 200

    def vperm(bt, t, dst):
        r = [f"v_accvgpr_read_b32 v{VT+x}, a{A_V+bt*32+x*4+t}" for x in range(8)]
        for e in range(2):
            for p in range(4):
                r.append(f"v_perm_b32 v{dst+e*4+p}, v{VT+2*p+1}, v{VT+2*p}, s{S_PLO if e == 0 else S_PHI}")
        return r
    for x in vperm(0, 0, PERM):
        A(x)
    for t in range(4):
        nxt = vperm(0, t + 1, PERM + ((t + 1) % 2) * 8) if t < 3 else vperm(1, 0, VP1)
        A("s_nop 1") if t == 0 else None
        k = 0
        for e in range(2):
            for qq in range(2):
                A(mfma(vr(OA + qq * 32 + (2 * t + e) * 4), vr(PERM + (t % 2) * 8 + e * 4), vr(PB + qq * 4), "0"))
                for x in nxt[k * 4:k * 4 + 4]:
                    A(x)
                if dl and (o.defer != 2 or k % 2):
                    A(wload(*dl.pop(0)))
                k += 1
        A("s_nop 0")
    assert not dl
    for t in range(1, 4):
        for x in vperm(1, t, VP1 + t * 8):
            A(x)
    A(f"v_add_u32 v{V_B}, s{S_KLDS}, v{V_LX}")

    def ocvt(bt, qq):
        r = []
        for u in range(4):
            st = STG + (u % 2) * 4
            for t in range(4):
                r.append(f"v_cvt_pk_bf16_f32 v{st+t}, v{OA+qq*32+(2*t)*4+u}, v{OA+qq*32+(2*t+1)*4+u}")
            r.append(f"ds_write_b128 v{V_B}, {vr(st)} offset:{u*4096+(bt*2+qq)*1024}")
        return r

    def pv1(qq):
        return [mfma(vr(OA + qq * 32 + j * 4), vr(VP1 + j * 4), vr(PB + (2 + qq) * 4), "0") for j in range(8)]
    for x in ocvt(0, 0):
        A(x)
    c = ocvt(0, 1)
    for mm in pv1(0):
        A(mm)
        for _ in range(3):
            if c:
                A(c.pop(0))
    assert not c
    m1 = pv1(1)
    c = ocvt(1, 0)
    for n, mm in enumerate(m1):
        A(mm)
    A("s_waitcnt lgkmcnt(4)")
    for x in c:
        A(x)
    for x in ocvt(1, 1):
        A(x)
    A(f"s_lshl_b32 s{S_T0}, s{S_W}, 10")
    A(f"v_add_u32 v{V_W}, s{S_T0}, v{V_B}")
    for x in range(1, 4):
        A(f"v_xor_b32 v{V_W+x}, {x*1024}, v{V_W}")
    A(f"s_lshl_b32 s{S_CL}, s{S_BP}, 12" if o.rot else f"s_mov_b32 s{S_CL}, 0")
    if o.dp:
        A(f"s_and_b32 s{S_CL}, s{S_CL}, 0x7fff")
        A(f"s_and_b32 s{S_T0}, s{S_W}, 1")
        A(f"s_mul_i32 s{S_T0}, s{S_T0}, {32768+2048}")
        A(f"v_add_u32 v{V_KG}, s{S_T0}, v{V_LX}")
        for x in range(1, 4):
            A(f"s_xor_b32 s{S_T0}, s{S_W}, {x}")
            A(f"s_mul_i32 s{S_T0}, s{S_T0}, {3*8192}")
            A(f"s_add_u32 s{S_T0}, s{S_T0}, {LDS_R + (x-1)*8192}")
            A(f"v_add_u32 v{5+x}, s{S_T0}, v{V_LX}")
        A(f"s_mul_i32 s{S_T0}, s{S_W}, {3*8192}")
        A(f"s_add_u32 s{S_T0}, s{S_T0}, {LDS_R}")
        A(f"v_add_u32 v9, s{S_T0}, v{V_LX}")
    A(g.waitvm("w20"))
    if o.fuse:
        A(f"s_cmp_lg_u32 s{S_W}, 0")
        A("s_cbranch_scc1 L_noann")
        A(f"s_lshr_b32 s{S_T0}, s2, 3")
        A(f"s_lshl_b32 s{S_T0}, s{S_T0}, 2")
        A(f"s_add_u32 s{S_T0}, s{S_T0}, 128")
        A(f"v_mov_b32 v{V_TMP}, 1")
        A("s_mov_b64 exec, 1")
        A(f"buffer_atomic_add v{V_TMP}, off, s[{S_DBG}:{S_DBG+3}], s{S_T0} sc1")
        A("s_mov_b64 exec, -1")
        g.lab("L_noann")
    for p in perms(slot_rows(20), 0, PERM):
        A(p)
    A("s_waitcnt lgkmcnt(0)")
    if not o.dp:
        A("s_barrier")
    for x in bread(20):
        A(x)
    A("s_waitcnt lgkmcnt(0)")
    g.stamp(4)
    if o.dp:
        stage_c_dp(g, step, fq, emit)
        finish(g)
        return

    for s in range(20, 36):
        extra = {}
        if o.c4pre and s == o.c4pre:
            extra[17] = [f"s_mul_i32 s{S_T0}, s{S_BP}, {8*1280}", f"s_add_u32 s{S_T0}, s{S_T0}, s{S_CW+16}"]
            extra[19] = [f"v_lshrrev_b32 v{V_TMP}, 8, v{V_LX}", f"v_mul_u32_u24 v{V_TMP}, {1280-256}, v{V_TMP}"]
            extra[21] = [f"v_add_u32 v{V_TMP}, v{V_TMP}, v{V_LX}"]
            extra[31] = [("vm", f"buffer_load_dwordx4 {ar(0)}, v{V_TMP}, s[{S_WO}:{S_WO+3}], s{S_T0} offen", "pre"),
                         f"s_add_u32 s{S_T0}, s{S_T0}, {4*1280}",
                         ("vm", f"buffer_load_dwordx4 {ar(4)}, v{V_TMP}, s[{S_WO}:{S_WO+3}], s{S_T0} offen", "pre")]
        if o.e39 and s == 35:
            extra = {11: [f"s_lshr_b32 s{S_KS+4}, s2, 3"], 13: [f"s_lshl_b32 s{S_KS+4}, s{S_KS+4}, 2"], 15: [f"s_add_u32 s{S_KS+4}, s{S_KS+4}, 128"],
                     19: [("vm", f"buffer_load_dword v{V_B}, off, s[{S_DBG}:{S_DBG+3}], s{S_KS+4} sc1", "clr")]}
        step(s, s == 20, False, extra)
    g.stamp(5)
    ST2 = V_W + 4
    stg = [6, 12]
    outs = []
    A(f"s_lshl_b32 s{S_T0}, s{S_W}, 14")
    A(f"s_add_u32 s{S_T0}, s{S_T0}, s{S_ST}")
    for q in range(4):
        A(f"s_add_u32 s{S_KS+q}, s{S_T0}, {q*4096}")
    T = S_KS
    if o.fuse == 3:
        A(f"v_lshrrev_b32 v{V_B}, 9, v{V_LX}")
        A(f"s_lshr_b32 s{T+9}, s{S_HQ}, 1")
        A(f"v_mul_u32_u24 v{V_B}, 1536, v{V_B}")
        A(f"s_bitcmp1_b32 s{S_HQ}, 0")
        A(f"s_cselect_b32 s{T+16}, 0, {-1 if o.own else 0}")
        A(f"s_cselect_b32 s{T+17}, {-1 if o.own else 0}, 0")
        A(f"v_add_u32 v{V_B}, v{V_B}, v{V_LX}")
    for q in range(4):
        for r in range(4):
            st = stg[r % 2]
            for t in range(4):
                x = f"v_cvt_pk_bf16_f32 v{st+t}, v{ACC+q*32+(2*t)*4+r}, v{ACC+q*32+(2*t+1)*4+r}"
                if o.fuse == 3 and r == 0 and t == 1:
                    x += f"\n    s_cmp_eq_u32 s{T+9}, {q}\n    s_cselect_b64 s[{T+26}:{T+27}], s[{T+16}:{T+17}], 0"
                if o.fuse == 3 and r == 0 and t == 2:
                    x += f"\n    v_cndmask_b32 v{V_TMP}, v{V_B}, 2.0, s[{T+26}:{T+27}]"
                outs.append(x)
            if o.fuse == 3:
                outs.append(("vm", f"buffer_store_dwordx4 {vr(st)}, v{V_TMP}, s[{S_WS}:{S_WS+3}], s{S_KS+q} offen offset:{r*512} {o.pst}", "st"))
            else:
                outs.append(("vm", f"buffer_store_dwordx4 {vr(st)}, v{V_LX}, s[{S_WS}:{S_WS+3}], s{S_KS+q} offen offset:{r*1024} {o.pst}", "st"))
    ex36 = {}
    if o.fuse:
        ex36 = {13: [f"s_lshr_b32 s{S_KS+4}, s2, 3"], 15: [f"s_lshl_b32 s{S_KS+4}, s{S_KS+4}, 2"], 17: [f"s_add_u32 s{S_KS+4}, s{S_KS+4}, 128"],
                31: [("vm", f"buffer_load_dword {'a96' if o.fuse == 3 else f'v{V_B}'}, off, s[{S_DBG}:{S_DBG+3}], s{S_KS+4} sc1", "clr")]}
    if o.e39:
        cps = [f"v_accvgpr_read_b32 v{RING+n}, a{n}" for n in range(32)]
        for s in range(36, 40):
            extra = {}
            for k in range(1 if s == 36 else 0, 32):
                extra[k] = []
                for rep in range(2 if (o.dens and k % 2 == 1) else 1):
                    if outs:
                        extra[k].append(outs.pop(0))
                if s == 36 and k == 23:
                    extra[k].append(lambda: g.waitvm("w39"))
                if cps and (s, k) >= ((37, 0) if not o.dens else (37, 12)):
                    extra[k].append(cps.pop(0))
            if s == 38:
                assert not cps
            step(s, s == 36, s == 39, extra)
    else:
        step(36, True, False, ex36)
    for s in range(37, 40 if not o.e39 else 0):
        extra = {}
        lo = 11 + 2 * o.spread if (s == 37 and o.spread) else 0
        for k in range(lo, 32):
            if outs:
                extra[k] = [outs.pop(0)]
                if s == 39 and k >= 24 and outs:
                    extra[k].append(outs.pop(0))
        step(s, False, s == 39, extra)
    for x in outs:
        emit(x)
    g.stamp(6)
    for x in range(1, 4):
        A(f"s_xor_b32 s{S_T0}, s{S_W}, {x}")
        A(f"s_mul_i32 s{S_T0}, s{S_T0}, {3*8192}")
        A(f"s_add_u32 s{S_T0}, s{S_T0}, {LDS_R + (x-1)*8192}")
        A(f"v_add_u32 v{V_W+x}, s{S_T0}, v{V_LX}")
    A(f"s_mul_i32 s{S_T0}, s{S_W}, {3*8192}")
    A(f"s_add_u32 s{S_T0}, s{S_T0}, {LDS_R}")
    A(f"v_add_u32 v{V_W}, s{S_T0}, v{V_LX}")
    if o.fuse == 3 and o.il:
        mark = len(g.L)
        pick(g, "m", 8, f"s{S_HQ}", own_main)
        blob = g.L[mark:]
        del g.L[mark:]
        for n in range(32):
            A(f"v_accvgpr_read_b32 v{ACC+n}, a{A_C4+n}")
        A(f"s_lshl_b32 s{S_T0}, s{S_W}, 12")
        A(f"s_add_u32 s{S_T0}, s{S_T0}, s{S_ST}")
        A(f"s_add_u32 s{S_T0}, s{S_T0}, 65536")
        tail3_addr(g)
        fl = g.L[mark:]
        del g.L[mark:]
        n = 0
        for j in range(8):
            for x in range(1, 4):
                A(f"ds_write_b128 v{V_W+x}, {ar(A_C4+x*32+j*4)} offset:{j*1024}")
                if n == 1:
                    g.L += blob
                elif n > 1:
                    k = -(-len(fl) // (24 - n))
                    while k < len(fl) and fl[k].split()[0].startswith("s_cselect"):
                        k += 1
                    g.L += fl[:k]
                    del fl[:k]
                if n % 4 == 3:
                    A(f"s_waitcnt lgkmcnt({o.il})")
                n += 1
        assert not fl
    else:
        A("s_nop 7")
        for x in range(1, 4):
            for j in range(8):
                A(f"ds_write_b128 v{V_W+x}, {ar(A_C4+x*32+j*4)} offset:{j*1024}")
            A("s_waitcnt lgkmcnt(6)")
        if o.fuse == 3:
            pick(g, "m", 8, f"s{S_HQ}", own_main)
        for n in range(32):
            A(f"v_accvgpr_read_b32 v{ACC+n}, a{A_C4+n}")
        A(f"s_lshl_b32 s{S_T0}, s{S_W}, 12")
        A(f"s_add_u32 s{S_T0}, s{S_T0}, s{S_ST}")
        A(f"s_add_u32 s{S_T0}, s{S_T0}, 65536")
        if o.fuse == 2:
            tail2_addr(g)
        if o.fuse == 3:
            tail3_addr(g)
    A("s_waitcnt lgkmcnt(0)")
    A("s_barrier")
    for x in range(3):
        for j in range(8):
            A(f"ds_read_b128 {vr(RING+x*32+j*4)}, v{V_W} offset:{x*8192+j*1024}")
            if x >= 1 and j == 3:
                A("s_waitcnt lgkmcnt(4)")
                if o.fuse >= 2 and o.ph == 2 and o.fa == 3 - x:
                    tail2_flag(g, 1)
                for n in range(32):
                    A(f"v_add_f32 v{ACC+n}, v{ACC+n}, v{RING+(x-1)*32+n}")
    A("s_waitcnt lgkmcnt(0)")
    for n in range(32):
        A(f"v_add_f32 v{ACC+n}, v{ACC+n}, v{RING+64+n}")
    for r in range(4):
        st = (PERM if o.fuse != 3 else ACC + 32) + r * 4
        for t in range(4):
            A(f"v_cvt_pk_bf16_f32 v{st+t}, v{ACC+(2*t)*4+r}, v{ACC+(2*t+1)*4+r}")
        if o.fuse >= 2 and o.ph == 2 and o.fa == 0 and r == 0:
            tail2_flag(g, 1)
        if o.fuse == 3:
            A(g.vm(f"buffer_store_dwordx4 {vr(st)}, v{VS3}, s[{S_WS}:{S_WS+3}], s{S_T0} offen offset:{r*128} {o.pst}", "st"))
        else:
            A(g.vm(f"buffer_store_dwordx4 {vr(st)}, v{V_LX}, s[{S_WS}:{S_WS+3}], s{S_T0} offen offset:{r*1024} {o.pst}", "st"))
    if o.fuse == 3:
        tail3(g)
    elif o.fuse == 2:
        tail2(g)
    elif o.fuse:
        fused_tail(g)
    finish(g)


def finish(g):
    o = g.o
    A = g.A
    if o.diag:
        g.stamp(7) if not o.fuse else None
        A("s_waitcnt vmcnt(0)")
        g.stamp(8)
        if o.fuse:
            A("s_mov_b32 s2, vcc_hi")
        A(f"s_memrealtime s[{S_TS}:{S_TS+1}]")
        A("s_waitcnt lgkmcnt(0)")
        A(f"v_writelane_b32 v{V_TID}, s{S_TS}, 9")
        A(f"s_lshl_b32 s{S_T0}, s2, 2")
        A(f"s_add_u32 s{S_T0}, s{S_T0}, s{S_W}")
        A(f"s_lshl_b32 s{S_T0}, s{S_T0}, 8")
        A(f"s_add_u32 s{S_T0}, s{S_T0}, 0x8000000")
        A(f"v_lshrrev_b32 v{V_TMP}, 2, v{V_LX}")
        A(f"buffer_store_dword v{V_TID}, v{V_TMP}, s[{S_WS}:{S_WS+3}], s{S_T0} offen")
        if o.diag == 3 and o.fuse:
            A(f"s_lshl_b32 s{S_T0}, s2, 2")
            A(f"s_add_u32 s{S_T0}, s{S_T0}, s{S_W}")
            A(f"s_cmp_lg_u32 s{S_T0}, {o.sel}")
            A("s_cbranch_scc1 L_main_end")
            A(f"v_readlane_b32 s{S_T0}, v{V_TID}, 56")
            A(f"v_readlane_b32 s{S_T1}, v{V_TID}, 57")
            A(f"v_readlane_b32 s{S_STMP}, v{V_TID}, 58")
            A("s_nop 3")
            A(f"v_writelane_b32 v{V_TID}, s{S_T0}, 12")
            A(f"v_writelane_b32 v{V_TID}, s{S_T1}, 14")
            A(f"v_writelane_b32 v{V_TID}, s{S_STMP}, 15")
            A("s_mov_b64 exec, 0xffff")
            A(f"buffer_store_dword v{V_TID}, v{V_TMP}, s[{S_DBG}:{S_DBG+3}], 0 offen")
        if o.diag == 2:
            A("s_load_dwordx2 s[32:33], s[0:1], 88")
            A("v_readlane_b32 s36, v0, 10")
            A("v_readlane_b32 s37, v0, 8")
            A("s_mov_b32 s34, 64")
            A("s_mov_b32 s35, 0x20000")
            A("s_not_b32 s36, s36")
            A("s_not_b32 s37, s37")
            A("v_writelane_b32 v0, s36, 11")
            A("v_writelane_b32 v0, s37, 12")
            A("s_waitcnt lgkmcnt(0)")
            A(f"buffer_atomic_umax v0, v{V_TMP}, s[32:35], 0 offen sc1")
    g.lab("L_main_end")
    A("s_endpgm")


def fused_tail(g):
    o = g.o
    A = g.A
    T = S_KS
    g.stamp(7)
    A(f"s_lshr_b32 s{T+5}, s2, 3")
    A(f"s_and_b32 s{T+6}, s2, 7")
    A(f"s_mul_i32 s{T+7}, s{T+5}, {8*(81920+o.pad)}")
    A(f"s_lshl_b32 s{T+8}, s{T+6}, 3")
    A(f"s_lshl_b32 s{T+9}, s{S_W}, 1")
    A(f"s_add_u32 s{T+8}, s{T+8}, s{T+9}")
    A(f"s_lshl_b32 s{T+9}, s{T+6}, 1")
    A(f"s_lshr_b32 s{T+10}, s{S_W}, 1")
    A(f"s_add_u32 s{T+9}, s{T+9}, s{T+10}")
    A(f"s_add_u32 s{T+9}, s{T+9}, 64")
    A(f"s_lshl_b32 s{T+10}, s{T+8}, 10")
    A(f"s_add_u32 s{T+10}, s{T+10}, s{T+7}")
    A(f"s_lshl_b32 s{T+11}, s{T+9}, 10")
    A(f"s_add_u32 s{T+11}, s{T+11}, s{T+7}")
    A(f"s_and_b32 s{T+12}, s{T+5}, 15")
    A(f"s_mul_i32 s{T+12}, s{T+12}, {4*40960}")
    A(f"s_lshr_b32 s{T+13}, s{T+5}, 4")
    A(f"s_mul_i32 s{T+13}, s{T+13}, 1280")
    A(f"s_add_u32 s{T+12}, s{T+12}, s{T+13}")
    for blk, dst in ((T+8, T+14), (T+9, T+15)):
        A(f"s_bfe_u32 s{T+13}, s{blk}, 0x20002")
        A(f"s_mul_i32 s{T+13}, s{T+13}, 40960")
        A(f"s_add_u32 s{dst}, s{T+12}, s{T+13}")
        A(f"s_lshr_b32 s{T+13}, s{blk}, 4")
        A(f"s_lshl_b32 s{T+13}, s{T+13}, 8")
        A(f"s_add_u32 s{dst}, s{dst}, s{T+13}")
        A(f"s_and_b32 s{T+13}, s{blk}, 3")
        A(f"s_lshl_b32 s{T+13}, s{T+13}, 4")
        A(f"s_add_u32 s{dst}, s{dst}, s{T+13}")
    A(f"s_bitcmp1_b32 s{S_W}, 0")
    A(f"s_cselect_b32 s{T+16}, 0, -1")
    A(f"s_cselect_b32 s{T+17}, -1, 0")
    A(f"s_mov_b32 s{T+18}, 0x3f80")
    A(f"s_mov_b32 s{T+19}, 0x3f800000")
    A(f"s_mov_b32 s{T+20}, 0xffff0000")
    VO, VF, VP = 2, 3, 4
    A(f"v_bfe_u32 v{VO}, v{V_LX}, 4, 4")
    A(f"v_lshrrev_b32 v{VF}, 8, v{V_LX}")
    A(f"v_mul_u32_u24 v{VO}, 2560, v{VO}")
    A(f"v_lshl_add_u32 v{VO}, v{VF}, 6, v{VO}")
    A(f"v_lshlrev_b32 v{VF}, 3, v{V_LX}")
    A(f"s_lshl_b32 s{T+21}, s2, 7")
    A(f"s_add_u32 s{T+21}, s{T+21}, {WS_FLAG}")
    A(f"s_lshl_b32 s{T+22}, s{T+5}, 10")
    A(f"s_add_u32 s{T+22}, s{T+22}, {WS_FLAG}")
    A(f"s_mov_b32 s{T+23}, {1<<20}")
    A(f"v_mov_b32 v{VP}, 1")
    A("s_waitcnt vmcnt(0)")
    A("s_barrier")
    g.stamp(56)
    A(f"s_cmp_lg_u32 s{S_W}, 0")
    A("s_cbranch_scc1 L_polled")
    A("s_mov_b64 exec, 1")
    A(f"buffer_store_dword v{VP}, off, s[{S_WS}:{S_WS+3}], s{T+21} sc1")
    g.lab("L_clr")
    A(f"v_readfirstlane_b32 s{T+24}, v{V_B}")
    A(f"s_sub_u32 s{T+23}, s{T+23}, 1")
    A("s_cbranch_scc1 L_polled")
    A(f"s_cmp_ge_u32 s{T+24}, 8")
    A("s_cbranch_scc1 L_poll0")
    A(f"buffer_load_dword v{V_B}, off, s[{S_DBG}:{S_DBG+3}], s{S_KS+4} sc1")
    A("s_waitcnt vmcnt(0)")
    A("s_branch L_clr")
    g.lab("L_poll0")
    A("s_mov_b64 exec, 0xff")
    g.lab("L_poll")
    A(f"buffer_load_dword v{VP}, v{VF}, s[{S_WS}:{S_WS+3}], s{T+22} offen sc1")
    A(f"s_sub_u32 s{T+23}, s{T+23}, 1")
    A("s_cbranch_scc1 L_polled")
    A("s_waitcnt vmcnt(0)")
    A(f"v_cmp_ne_u32 s[{T+24}:{T+25}], 1, v{VP}")
    A("s_nop 3")
    A(f"s_cmp_lg_u32 s{T+24}, 0")
    A("s_cbranch_scc1 L_poll")
    g.lab("L_polled")
    A("s_mov_b64 exec, -1")
    A("s_waitcnt vmcnt(0)")
    A("s_barrier")
    g.stamp(57)
    R = RING
    for h in range(8):
        A(f"buffer_load_dwordx4 {vr(R+h*12)}, v{V_LX}, s[{S_WS}:{S_WS+3}], s{T+10} offen sc1")
        A(f"buffer_load_dwordx4 {vr(R+h*12+4)}, v{V_LX}, s[{S_WS}:{S_WS+3}], s{T+10} offen offset:1024 sc1")
        A(f"s_mov_b64 exec, s[{T+16}:{T+17}]")
        A(f"buffer_load_dwordx4 {vr(R+h*12+8)}, v{V_LX}, s[{S_WS}:{S_WS+3}], s{T+11} offen sc1")
        A("s_mov_b64 exec, -1")
        if h < 7:
            A(f"s_add_u32 s{T+10}, s{T+10}, {81920+o.pad}")
            A(f"s_add_u32 s{T+11}, s{T+11}, {81920+o.pad}")
    for h in range(8):
        for b in range(3):
            A(f"s_waitcnt vmcnt({23-h*3-b})")
            for t in range(4):
                src = R + h * 12 + b * 4 + t
                d = ACC + b * 8 + 2 * t
                if h == 0:
                    A(f"v_lshlrev_b32 v{d}, 16, v{src}")
                    A(f"v_and_b32 v{d+1}, s{T+20}, v{src}")
                else:
                    A(f"v_dot2c_f32_bf16 v{d}, s{T+18}, v{src}")
                    A(f"v_dot2c_f32_bf16 v{d+1}, s{T+19}, v{src}")
    g.stamp(58)
    A("s_nop 1")
    for b in range(3):
        for t in range(4):
            A(f"v_cvt_pk_bf16_f32 v{PERM+b*4+t}, v{ACC+b*8+2*t}, v{ACC+b*8+2*t+1}")
        if b == 2:
            A(f"s_mov_b64 exec, s[{T+16}:{T+17}]")
        A(f"buffer_store_dwordx4 {vr(PERM+b*4)}, v{VO}, s[{S_OUT}:{S_OUT+3}], s{T+14+b//2} offen offset:{16*(b%2)} {o.pout}")
    if o.diag:
        A("s_mov_b64 exec, -1")


VO2, VF2, VP2, VQ2 = 6, 7, 8, 9


def flag_base(g, d, t):
    A = g.A
    if g.o.fl:
        A(f"s_lshr_b32 s{d}, s2, 3")
        A(f"s_lshl_b32 s{d}, s{d}, 9")
        A(f"s_and_b32 s{t}, s2, 7")
        A(f"s_lshl_b32 s{t}, s{t}, 2")
        A(f"s_add_u32 s{d}, s{d}, s{t}")
    else:
        A(f"s_lshl_b32 s{d}, s2, 9")
    A(f"s_add_u32 s{d}, s{d}, {WS_FLAG}")


def tail2_addr(g):
    o = g.o
    A = g.A
    T = S_KS
    A(f"s_lshr_b32 s{T+5}, s2, 3")
    A(f"s_and_b32 s{T+6}, s2, 7")
    A(f"s_mul_i32 s{T+7}, s{T+5}, {8*(81920+o.pad)}")
    A(f"s_lshl_b32 s{T+8}, s{T+6}, 3")
    A(f"s_mul_i32 s{T+9}, s{S_W}, 3")
    A(f"s_add_u32 s{T+8}, s{T+8}, s{T+9}")
    A(f"s_lshl_b32 s{T+9}, s{T+6}, 1")
    A(f"s_add_u32 s{T+9}, s{T+9}, 64")
    A(f"s_cmp_eq_u32 s{S_W}, 3")
    A(f"s_cselect_b32 s{T+8}, s{T+9}, s{T+8}")
    A(f"s_cselect_b32 s{T+17}, 2, 1")
    A(f"s_lshl_b32 s{T+10}, s{T+8}, 10")
    A(f"s_add_u32 s{T+10}, s{T+10}, s{T+7}")
    A(f"s_and_b32 s{T+12}, s{T+5}, 15")
    A(f"s_mul_i32 s{T+12}, s{T+12}, {4*40960}")
    A(f"s_lshr_b32 s{T+13}, s{T+5}, 4")
    A(f"s_mul_i32 s{T+13}, s{T+13}, 1280")
    A(f"s_add_u32 s{T+12}, s{T+12}, s{T+13}")
    for b in range(3):
        dst = T + 14 + b
        A(f"s_bfe_u32 s{T+13}, s{T+8}, 0x20002")
        A(f"s_mul_i32 s{T+13}, s{T+13}, 40960")
        A(f"s_add_u32 s{dst}, s{T+12}, s{T+13}")
        A(f"s_lshr_b32 s{T+13}, s{T+8}, 4")
        A(f"s_lshl_b32 s{T+13}, s{T+13}, 8")
        A(f"s_add_u32 s{dst}, s{dst}, s{T+13}")
        A(f"s_and_b32 s{T+13}, s{T+8}, 3")
        A(f"s_lshl_b32 s{T+13}, s{T+13}, 4")
        A(f"s_add_u32 s{dst}, s{dst}, s{T+13}")
        if b < 2:
            A(f"s_add_u32 s{T+8}, s{T+8}, 1")
    A(f"s_mov_b32 s{T+18}, 0x3f80")
    A(f"s_mov_b32 s{T+19}, 0x3f800000")
    A(f"s_mov_b32 s{T+20}, 0xffff0000")
    A(f"v_bfe_u32 v{VO2}, v{V_LX}, 4, 4")
    A(f"v_lshrrev_b32 v{VF2}, 8, v{V_LX}")
    A(f"v_mul_u32_u24 v{VO2}, 2560, v{VO2}")
    A(f"v_lshl_add_u32 v{VO2}, v{VF2}, 6, v{VO2}")
    if o.fl:
        A(f"v_lshrrev_b32 v{VF2}, 2, v{V_LX}")
    else:
        A(f"v_lshlrev_b32 v{VF2}, 5, v{V_LX}")
    flag_base(g, T + 21, T + 13)
    A(f"s_lshl_b32 s{T+13}, s{S_W}, 7")
    A(f"s_add_u32 s{T+21}, s{T+21}, s{T+13}")
    A(f"s_lshl_b32 s{T+22}, s{T+5}, {9 if o.fl else 12}")
    A(f"s_lshr_b32 s{T+13}, s{T+6}, 1")
    A(f"s_lshl_b32 s{T+13}, s{T+13}, 7")
    A(f"s_add_u32 s{T+22}, s{T+22}, s{T+13}")
    A(f"s_add_u32 s{T+22}, s{T+22}, {WS_FLAG}")
    A(f"s_mov_b32 s{T+23}, {1<<20}")
    A(f"v_mov_b32 v{VP2}, 1")
    A(f"v_mov_b32 v{VQ2}, 2")


def tail2_flag(g, val):
    A = g.A
    T = S_KS
    for k in range(len(g.vq)):
        g.vq[k] = []
    A("s_waitcnt vmcnt(0)")
    g.stamp(59)
    A("s_mov_b64 exec, 1")
    A(f"buffer_store_dword v{VP2}, off, s[{S_WS}:{S_WS+3}], s{T+21} sc1")
    A("s_mov_b64 exec, -1")


def tail2(g):
    o = g.o
    A = g.A
    T = S_KS
    g.stamp(7)
    A("s_mov_b64 exec, 1")
    g.lab("L_clr")
    A(f"v_readfirstlane_b32 s{T+24}, v{V_B}")
    A(f"s_sub_u32 s{T+23}, s{T+23}, 1")
    A("s_cbranch_scc1 L_polled")
    A(f"s_cmp_ge_u32 s{T+24}, 8")
    A("s_cbranch_scc1 L_poll0")
    A(f"buffer_load_dword v{V_B}, off, s[{S_DBG}:{S_DBG+3}], s{S_KS+4} sc1")
    A("s_waitcnt vmcnt(0)")
    A("s_branch L_clr")
    g.lab("L_poll0")
    A("s_mov_b64 exec, 0xff")
    A(f"buffer_load_dword v{VP2}, v{VF2}, s[{S_WS}:{S_WS+3}], s{T+22} offen sc1")
    A("s_waitcnt vmcnt(1)")
    g.stamp(56)
    A("s_mov_b64 exec, 1")
    A(f"buffer_store_dword v{VQ2}, off, s[{S_WS}:{S_WS+3}], s{T+21} sc1")
    A("s_mov_b64 exec, 0xff")
    A("s_waitcnt vmcnt(1)")
    g.stamp(61)
    g.lab("L_poll")
    A(f"v_cmp_gt_u32 s[{T+24}:{T+25}], s{T+17}, v{VP2}")
    A(f"s_sub_u32 s{T+23}, s{T+23}, 1")
    A("s_cbranch_scc1 L_polled")
    A("s_nop 2")
    A(f"s_cmp_eq_u32 s{T+24}, 0")
    A("s_cbranch_scc1 L_polled")
    A(f"buffer_load_dword v{VP2}, v{VF2}, s[{S_WS}:{S_WS+3}], s{T+22} offen sc1")
    A("s_waitcnt vmcnt(0)")
    A("s_branch L_poll")
    g.lab("L_polled")
    A("s_mov_b64 exec, -1")
    g.stamp(57)
    R = RING
    A(f"s_cmp_ge_u32 s{S_W}, 2")
    A("s_cbranch_scc1 L_two")
    for nb in (3, 2):
        if nb == 2:
            g.lab("L_two")
        for h in range(8):
            for b in range(nb):
                A(f"buffer_load_dwordx4 {vr(R+h*12+b*4)}, v{V_LX}, s[{S_WS}:{S_WS+3}], s{T+10} offen offset:{b*1024} sc1")
            if h < 7:
                A(f"s_add_u32 s{T+10}, s{T+10}, {81920+o.pad}")
        for h in range(8):
            for b in range(nb):
                A(f"s_waitcnt vmcnt({8*nb-1-h*nb-b})")
                for t in range(4):
                    src = R + h * 12 + b * 4 + t
                    d = ACC + b * 8 + 2 * t
                    if h == 0:
                        A(f"v_lshlrev_b32 v{d}, 16, v{src}")
                        A(f"v_and_b32 v{d+1}, s{T+20}, v{src}")
                    else:
                        A(f"v_dot2c_f32_bf16 v{d}, s{T+18}, v{src}")
                        A(f"v_dot2c_f32_bf16 v{d+1}, s{T+19}, v{src}")
        g.stamp(58)
        A("s_nop 1")
        for b in range(nb):
            for t in range(4):
                A(f"v_cvt_pk_bf16_f32 v{PERM+b*4+t}, v{ACC+b*8+2*t}, v{ACC+b*8+2*t+1}")
            A(f"buffer_store_dwordx4 {vr(PERM+b*4)}, v{VO2}, s[{S_OUT}:{S_OUT+3}], s{T+14+b} offen {o.pout}")
        if nb == 3:
            A("s_branch L_summed" if o.diag else "s_endpgm")
    g.lab("L_summed")


def pick(g, name, n, sel, body):
    A = g.A
    for k in range(n):
        if k < n - 1:
            A(f"s_cmp_lg_u32 {sel}, {k}")
            A(f"s_cbranch_scc1 L_pk{name}{k}")
        for x in body(k):
            A(x)
        if k < n - 1:
            A(f"s_branch L_pk{name}e")
            g.lab(f"L_pk{name}{k}")
    g.lab(f"L_pk{name}e")


VC3, VS3, VD3 = 12, 13, 14


def own_main(h):
    out = []
    for b in range(2):
        for j in range(8):
            x = ACC + (h >> 1) * 32 + j * 4 + 2 * b
            out.append(f"v_permlane32_swap_b32 v{x}, v{x+1}")
    for b in range(2):
        for j in range(8):
            out.append(f"v_mov_b32 v{PERM+b*8+j}, v{ACC+(h>>1)*32+j*4+2*b+(h&1)}")
    return out


def tail3_addr(g):
    o = g.o
    A = g.A
    T = S_KS
    assert o.fl
    A(f"v_accvgpr_read_b32 v{V_B}, a96")
    A(f"s_lshr_b32 s{T+5}, s2, 3")
    A(f"s_mul_i32 s{T+7}, s{T+5}, {8*(81920+o.pad)}")
    A(f"s_lshl_b32 s{T+8}, s{S_W}, 14")
    A(f"s_lshl_b32 s{T+6}, s{S_HQ}, 11")
    A(f"s_add_u32 s{T+8}, s{T+8}, s{T+6}")
    A(f"s_add_u32 s{T+10}, s{T+8}, s{T+7}")
    for k in range(8):
        A(f"s_add_u32 s{T+13}, s{S_HQ}, {k}")
        A(f"s_and_b32 s{T+13}, s{T+13}, 7")
        A(f"s_mul_i32 s{T+13}, s{T+13}, {81920+o.pad}")
        A(f"s_add_u32 s{S_XC+k}, s{T+10}, s{T+13}")
    A(f"s_lshl_b32 s{T+6}, s{S_W}, 12")
    A(f"s_lshl_b32 s{T+13}, s{S_HQ}, 9")
    A(f"s_add_u32 s{T+6}, s{T+6}, s{T+13}")
    A(f"s_add_u32 s{T+6}, s{T+6}, 65536")
    A(f"s_sub_u32 s{T+13}, s{T+6}, s{T+8}")
    A(f"v_add_u32 v{VC3}, s{T+13}, v{V_LX}")
    A(f"v_bfe_u32 v{VS3}, v{V_LX}, 6, 2")
    A(f"v_lshrrev_b32 v{VD3}, 9, v{V_LX}")
    A(f"v_lshl_add_u32 v{VS3}, v{VS3}, 1, v{VD3}")
    A(f"v_bfe_u32 v{VD3}, v{V_LX}, 4, 2")
    A(f"v_bfe_u32 v{VF2}, v{V_LX}, 8, 1")
    A(f"v_lshl_add_u32 v{VD3}, v{VD3}, 1, v{VF2}")
    A(f"v_lshlrev_b32 v{VD3}, 4, v{VD3}")
    A(f"v_lshl_add_u32 v{VS3}, v{VS3}, 9, v{VD3}")
    A(f"s_and_b32 s{T+12}, s{T+5}, 15")
    A(f"s_mul_i32 s{T+12}, s{T+12}, {4*40960}")
    A(f"s_lshr_b32 s{T+13}, s{T+5}, 4")
    A(f"s_mul_i32 s{T+13}, s{T+13}, 1280")
    A(f"s_add_u32 s{T+12}, s{T+12}, s{T+13}")
    A(f"s_and_b32 s{T+13}, s{S_HQ}, 1")
    A(f"s_lshl_b32 s{T+13}, s{T+13}, 7")
    A(f"s_add_u32 s{T+12}, s{T+12}, s{T+13}")
    A(f"s_mul_i32 s{T+13}, s{T+9}, 40960")
    A(f"s_add_u32 s{T+14}, s{T+12}, s{T+13}")
    A(f"s_lshl_b32 s{T+13}, s{S_W}, 8")
    A(f"s_add_u32 s{T+14}, s{T+14}, s{T+13}")
    A(f"s_lshl_b32 s{T+13}, s{S_W}, 2")
    A(f"s_add_u32 s{T+13}, s{T+13}, s{T+9}")
    A(f"s_mul_i32 s{T+13}, s{T+13}, 10240")
    A(f"s_add_u32 s{T+15}, s{T+12}, s{T+13}")
    A(f"s_add_u32 s{T+15}, s{T+15}, 1024")
    A(f"s_mov_b32 s{T+18}, 0x3f80")
    A(f"s_mov_b32 s{T+19}, 0x3f800000")
    A(f"s_mov_b32 s{T+20}, 0xffff0000")
    A(f"v_bfe_u32 v{VO2}, v{V_LX}, 4, 4")
    A(f"v_bfe_u32 v{VF2}, v{V_LX}, 8, 1")
    A(f"v_mul_u32_u24 v{VO2}, 2560, v{VO2}")
    A(f"v_lshl_add_u32 v{VO2}, v{VF2}, 6, v{VO2}")
    A(f"v_lshrrev_b32 v{VF2}, 9, v{V_LX}")
    A(f"v_lshl_add_u32 v{VO2}, v{VF2}, 4, v{VO2}")
    A(f"v_bfe_u32 v{VD3}, v{V_LX}, 5, 2")
    A(f"v_bfe_u32 v{VF2}, v{V_LX}, 4, 1")
    A(f"v_mul_u32_u24 v{VD3}, 2560, v{VD3}")
    A(f"v_lshl_add_u32 v{VD3}, v{VF2}, 6, v{VD3}")
    A(f"v_lshrrev_b32 v{VF2}, 7, v{V_LX}")
    A(f"v_lshl_add_u32 v{VD3}, v{VF2}, 4, v{VD3}")
    A(f"v_lshrrev_b32 v{VF2}, 2, v{V_LX}")
    A(f"s_lshl_b32 s{T+22}, s{T+5}, 9")
    A(f"s_lshl_b32 s{T+13}, s{S_W}, 7")
    A(f"s_add_u32 s{T+22}, s{T+22}, s{T+13}")
    A(f"s_add_u32 s{T+22}, s{T+22}, {WS_FLAG}")
    A(f"s_lshl_b32 s{T+13}, s{S_HQ}, 2")
    A(f"s_add_u32 s{T+21}, s{T+22}, s{T+13}")
    A(f"s_lshl_b32 s{T+13}, 1, s{S_HQ}")
    A(f"s_andn2_b32 s{T+28}, 0xff, s{T+13}")
    A(f"s_mov_b32 s{T+29}, 0")
    A(f"s_mov_b32 s{T+16}, -1")
    A(f"s_mov_b32 s{T+17}, 0")
    A(f"s_mov_b32 s{T+23}, {1<<20}")
    A(f"v_mov_b32 v{VP2}, 1")
    A(f"v_mov_b32 v{VQ2}, 2")


def tail3(g):
    o = g.o
    A = g.A
    T = S_KS
    WS = f"s[{S_WS}:{S_WS+3}]"
    PM = f"s[{T+28}:{T+29}]"
    HALF = f"s[{T+16}:{T+17}]"
    SM, SC, ST = PERM, ACC + 48, ACC + 64
    poll = f"buffer_load_dword v{VP2}, v{VF2}, {WS}, s{T+22} offen sc1"
    g.stamp(7)
    A("s_mov_b64 exec, 1")
    g.lab("L_clr")
    A(f"v_readfirstlane_b32 s{T+24}, v{V_B}")
    A(f"s_sub_u32 s{T+23}, s{T+23}, 1")
    A("s_cbranch_scc1 L_poll0")
    A(f"s_cmp_ge_u32 s{T+24}, 8")
    A("s_cbranch_scc1 L_poll0")
    A(f"buffer_load_dword v{V_B}, off, s[{S_DBG}:{S_DBG+3}], s{S_KS+4} sc1")
    A("s_waitcnt vmcnt(0)")
    A("s_branch L_clr")
    g.lab("L_poll0")
    A(f"s_max_i32 s{T+23}, s{T+23}, 0")
    A(f"s_mov_b64 exec, {PM}")
    A(poll)
    A("s_waitcnt vmcnt(1)")
    g.stamp(56)
    A("s_mov_b64 exec, 1")
    A(f"buffer_store_dword v{VQ2}, off, {WS}, s{T+21} sc1")
    A(f"s_mov_b64 exec, {PM}")
    A("s_waitcnt vmcnt(1)")
    g.stamp(61)

    def wait(val, lab):
        g.lab(lab)
        A(f"v_cmp_gt_u32 s[{T+24}:{T+25}], {val}, v{VP2}")
        A(f"s_sub_u32 s{T+23}, s{T+23}, 1")
        A(f"s_cbranch_scc1 {lab}e")
        A("s_nop 2")
        A(f"s_cmp_eq_u32 s{T+24}, 0")
        A(f"s_cbranch_scc1 {lab}e")
        A(poll)
        A("s_waitcnt vmcnt(0)")
        A(f"s_branch {lab}")
        g.lab(lab + "e")
        A(f"s_max_i32 s{T+23}, s{T+23}, 0")

    def summ(dst, src):
        for t in range(4):
            A(f"v_dot2c_f32_bf16 v{dst+2*t}, s{T+18}, v{src+t}")
            A(f"v_dot2c_f32_bf16 v{dst+2*t+1}, s{T+19}, v{src+t}")

    def main_sum(younger):
        for k in range(7):
            for b in range(2):
                A(f"s_waitcnt vmcnt({13-2*k-b+younger})")
                summ(SM + b * 8, RING + k * 12 + b * 4)

    def c4_loads():
        A(f"s_mov_b64 exec, {HALF}")
        for k in range(8):
            A(f"buffer_load_dwordx4 {vr(RING+k*12+8)}, v{VC3}, {WS}, s{S_XC+k} offen sc1")
        A("s_mov_b64 exec, -1")

    def rest():
        A("s_nop 1")
        for b in range(2):
            for t in range(4):
                A(f"v_cvt_pk_bf16_f32 v{ST+b*4+t}, v{SM+b*8+2*t}, v{SM+b*8+2*t+1}")
            A(f"buffer_store_dwordx4 {vr(ST+b*4)}, v{VO2}, s[{S_OUT}:{S_OUT+3}], s{T+14} offen offset:{32*b} {o.pout}")
        for k in range(8):
            A(f"s_waitcnt vmcnt({7-k+2})")
            if k == 0:
                for t in range(4):
                    A(f"v_lshlrev_b32 v{SC+2*t}, 16, v{RING+8+t}")
                    A(f"v_and_b32 v{SC+2*t+1}, s{T+20}, v{RING+8+t}")
            else:
                summ(SC, RING + k * 12 + 8)
        g.stamp(58)
        A("s_nop 1")
        for t in range(4):
            A(f"v_cvt_pk_bf16_f32 v{ST+8+t}, v{SC+2*t}, v{SC+2*t+1}")
        A(f"s_mov_b64 exec, {HALF}")
        A(f"buffer_store_dwordx4 {vr(ST+8)}, v{VD3}, s[{S_OUT}:{S_OUT+3}], s{T+15} offen {o.pout}")
        if o.diag:
            A("s_mov_b64 exec, -1")

    wait(1 if o.ph == 2 else 2, "L_p1")
    if o.ph == 2:
        A(f"v_cmp_gt_u32 s[{T+24}:{T+25}], 2, v{VP2}")
    A("s_mov_b64 exec, -1")
    g.stamp(57)
    for k in range(7):
        for b in range(2):
            A(f"buffer_load_dwordx4 {vr(RING+k*12+b*4)}, v{V_LX}, {WS}, s{S_XC+1+k} offen offset:{b*1024} sc1")
    if o.ph == 2:
        A(f"s_cmp_eq_u32 s{T+24}, 0")
        A("s_cbranch_scc1 L_fast")
        A(f"s_mov_b64 exec, {PM}")
        A(poll)
        A("s_mov_b64 exec, -1")
        main_sum(1)
        A("s_waitcnt vmcnt(0)")
        A(f"s_mov_b64 exec, {PM}")
        wait(2, "L_p2")
        c4_loads()
        rest()
        A("s_branch L_summed" if o.diag else "s_endpgm")
        g.lab("L_fast")
    c4_loads()
    main_sum(8)
    rest()
    g.lab("L_summed")


def stage_c_dp(g, step, fq, emit):
    o = g.o
    A = g.A
    T = S_KS
    WS = f"s[{S_WS}:{S_WS+3}]"

    def q(gap, ins, kind):
        fq.append((gap, ins, kind))

    def dsop(x, tag):
        return lambda: g.ds(x, tag)

    def waitall():
        for k in range(len(g.vq)):
            g.vq[k] = []
        return "s_waitcnt vmcnt(0)"

    def store(reg, soff, r):
        return ("vm", f"buffer_store_dwordx4 {vr(reg)}, v{V_LX}, {WS}, s{soff} offen offset:{r*1024} {o.pst}", "st")

    def pkadd(d, a):
        return f"v_pk_add_f32 v[{d}:{d+1}], v[{d}:{d+1}], v[{a}:{a+1}]"

    def cvts(dst, acc, r):
        return [f"v_cvt_pk_bf16_f32 v{dst+t}, v{acc+(2*t)*4+r}, v{acc+(2*t+1)*4+r}" for t in range(4)]
    A(f"s_lshl_b32 s{T}, s{S_W}, 13")
    A(f"s_add_u32 s{T}, s{T}, s{S_ST}")
    A(f"s_add_u32 s{T+1}, s{T}, 4096")
    A(f"s_add_u32 s{T+2}, s{T}, 32768")
    A(f"s_add_u32 s{T+3}, s{T}, {32768+4096}")
    A(f"s_lshl_b32 s{T+5}, s{S_W}, 12")
    A(f"s_add_u32 s{T+5}, s{T+5}, s{S_ST}")
    A(f"s_add_u32 s{T+5}, s{T+5}, 65536")
    A(f"s_lshr_b32 s{T+4}, s2, 3")
    A(f"s_lshl_b32 s{T+4}, s{T+4}, 2")
    A(f"s_add_u32 s{T+4}, s{T+4}, 128")
    A(f"s_xor_b32 s{T+6}, s{S_W}, 1")
    A(f"s_lshl_b32 s{T+6}, s{T+6}, 14")
    A(f"s_add_u32 s{T+6}, s{T+6}, {LDS_R}")
    A(f"s_lshl_b32 s{T+7}, s{S_W}, 14")
    A(f"s_add_u32 s{T+7}, s{T+7}, {LDS_R}")
    U = S_XC
    pre = []
    P = pre.append
    P(f"s_lshr_b32 s{U}, s2, 3")
    P(f"s_and_b32 s{U+1}, s2, 7")
    P(f"s_mul_i32 s{U+2}, s{U}, {8*(81920+o.pad)}")
    P(f"s_lshl_b32 s{U+3}, s{U+1}, 2")
    P(f"s_add_u32 s{U+3}, s{U+3}, s{S_W}")
    P(f"s_lshl_b32 s{U+4}, s{U+1}, 1")
    P(f"s_lshr_b32 s{U+5}, s{S_W}, 1")
    P(f"s_add_u32 s{U+4}, s{U+4}, s{U+5}")
    P(f"s_add_u32 s{U+4}, s{U+4}, 64")
    P(f"s_lshl_b32 s{U+5}, s{U+3}, 10")
    P(f"s_add_u32 s{U+5}, s{U+5}, s{U+2}")
    P(f"s_lshl_b32 s{U+6}, s{U+4}, 10")
    P(f"s_add_u32 s{U+6}, s{U+6}, s{U+2}")
    P(f"s_add_u32 s{U+7}, s{U+5}, 32768")
    P(f"s_and_b32 s{U+8}, s{U}, 15")
    P(f"s_mul_i32 s{U+8}, s{U+8}, {4*40960}")
    P(f"s_lshr_b32 s{U+9}, s{U}, 4")
    P(f"s_mul_i32 s{U+9}, s{U+9}, 1280")
    P(f"s_add_u32 s{U+8}, s{U+8}, s{U+9}")
    for blk, dst in ((U+3, U+10), (U+4, U+11)):
        P(f"s_bfe_u32 s{U+9}, s{blk}, 0x20002")
        P(f"s_mul_i32 s{U+9}, s{U+9}, 40960")
        P(f"s_add_u32 s{dst}, s{U+8}, s{U+9}")
        P(f"s_lshr_b32 s{U+9}, s{blk}, 4")
        P(f"s_lshl_b32 s{U+9}, s{U+9}, 8")
        P(f"s_add_u32 s{dst}, s{dst}, s{U+9}")
        P(f"s_and_b32 s{U+9}, s{blk}, 3")
        P(f"s_lshl_b32 s{U+9}, s{U+9}, 4")
        P(f"s_add_u32 s{dst}, s{dst}, s{U+9}")
    P(f"s_bitcmp1_b32 s{S_W}, 0\n    s_cselect_b32 s{U+12}, 0, -1\n    s_cselect_b32 s{U+13}, -1, 0")
    P(f"s_mov_b32 s{U+14}, 0x3f80")
    P(f"s_mov_b32 s{U+15}, 0x3f800000")
    P(f"s_mov_b32 s{U+16}, 0xffff0000")
    P(f"s_lshl_b32 s{U+17}, s{U}, 10")
    P(f"s_add_u32 s{U+17}, s{U+17}, {WS_FLAG}")
    P(f"s_mov_b32 s{U+18}, {1<<20}")
    for x in pre:
        A(x)
    pre = []
    for s in range(20, 23):
        step(s, s == 20, False, {})
    step(23, False, False, {0: ["s_barrier"]})
    g.stamp(5)
    G0 = 24 * 32 + 2
    C4 = (96, 0, 32)
    for j in range(8):
        for x in range(3):
            q(G0 + (j * 3 + x) * o.wpace, dsop(f"ds_write_b128 v{6+x}, {ar(C4[x]+j*4)} offset:{j*1024}", "cw"), "o")
    q(G0, lambda: g.waitds("cw"), "o")
    q(G0, "s_barrier", "o")
    rd = [(x, j) for x in range(3) for j in range(8)]

    def c4read(k):
        x, j = rd[k]
        q(G0, dsop(f"ds_read_b128 {vr(160+j*4)}, v9 offset:{x*8192+j*1024}", f"cr{k//4}"), "o")
    for k in range(8):
        c4read(k)
    for grp in range(6):
        q(G0, lambda grp=grp: g.waitds(f"cr{grp}"), "o")
        for k in range(grp * 4, grp * 4 + 4):
            j = rd[k][1]
            q(G0, pkadd(128 + j * 4, 160 + j * 4), "v")
            q(G0, pkadd(128 + j * 4 + 2, 160 + j * 4 + 2), "v")
        for k in range(grp * 4 + 8, min(grp * 4 + 12, 24)):
            c4read(k)
    q(G0, "s_barrier", "o")
    q(G0, f"v_add_u32 v6, s{T+6}, v{V_LX}", "v")
    q(G0, f"v_add_u32 v7, s{T+7}, v{V_LX}", "v")
    for r in range(4):
        for x in cvts(160 + r * 4, 128, r):
            q(G0, x, "v")
        q(G0, store(160 + r * 4, T + 5, r), "o")
    G1 = 32 * 32 + 2
    for j in range(8):
        for x in range(2):
            q(G1 + (j * 2 + x) * o.wpace, dsop(f"ds_write_b128 v6, {ar(128+x*32+j*4)} offset:{x*8192+j*1024}", "pw"), "o")
    q(G1, lambda: g.waitds("pw"), "o")
    q(G1, "s_barrier", "o")
    for x in range(2):
        for j in range(8):
            q(G1, dsop(f"ds_read_b128 {vr(128+x*32+j*4)}, v7 offset:{x*8192+j*1024}", f"pr{x}"), "o")
    for x in range(2):
        q(G1, lambda x=x: g.waitds(f"pr{x}"), "o")
        for n in range(16):
            q(G1, pkadd(192 + x * 32 + n * 2, 128 + x * 32 + n * 2), "v")
        for r in range(4):
            for c in cvts(128 + x * 32 + r * 4, 192 + x * 32, r):
                q(G1, c, "v")
            q(G1, store(128 + x * 32 + r * 4, T + x, r), "o")
    for s in range(24, 39):
        ex = {}
        if s == 36:
            ex[31] = [("vm", f"buffer_load_dword v5, off, s[{S_DBG}:{S_DBG+3}], s{T+4} sc1", "clr")]
        step(s, s in (24, 32), False, ex)
        if s == 31:
            g.stamp(6)
        g.left = getattr(g, "left", []) + [len(fq)]
    assert not fq, g.left
    VO, VF, VP, VC = 2, 3, 4, 5
    prev = [f"v_bfe_u32 v{VO}, v{V_LX}, 4, 4", f"v_lshrrev_b32 v{VF}, 8, v{V_LX}", f"v_mul_u32_u24 v{VO}, 2560, v{VO}",
            f"v_lshl_add_u32 v{VO}, v{VF}, 6, v{VO}", f"v_lshlrev_b32 v{VF}, 3, v{V_LX}"]
    FL = T + 8

    def flag(val, lab):
        return "\n    ".join([f"s_cmp_lg_u32 s{S_W}, 0", f"s_cbranch_scc1 {lab}", f"v_mov_b32 v{V_TMP}, {val}", "s_mov_b64 exec, 1",
                               f"buffer_store_dword v{V_TMP}, off, {WS}, s{FL} sc1", "s_mov_b64 exec, -1"]) + f"\n{lab}:"
    ex = {0: [f"s_lshl_b32 s{FL}, s2, 7"], 1: [f"s_add_u32 s{FL}, s{FL}, {WS_FLAG}", waitall], 3: ["s_barrier"], 5: [flag(1, "L_f1")]}
    acr = [f"v_accvgpr_read_b32 v{192+x*32+j*4+r}, a{x*32+j*4+r}" for j in range(8) for x in range(2) for r in range(4)]
    wr = [dsop(f"ds_write_b128 v6, {ar(192+x*32+j*4)} offset:{x*8192+j*1024}", "qw") for j in range(8) for x in range(2)]
    nw = na = 0
    for n in range(6, 32):
        ex.setdefault(n, [])
        if nw < 16 and n >= (nw // 2) * 4 + 7 and n % 4 in (3, 0):
            ex[n].append(wr[nw])
            nw += 1
        elif pre:
            ex[n].append(pre.pop(0))
        for _ in range(2 if (n % 2 or n >= 24) else 0):
            if prev:
                ex[n].append(prev.pop(0))
            elif na < 64 and n >= (na // 8) * 4 + 7:
                ex[n].append(acr[na])
                na += 1
    step(39, False, True, ex)
    g.stamp(7)
    for x in pre:
        A(x)
    if o.early:
        A("s_mov_b64 exec, 0xff")
        A(g.vm(f"buffer_load_dword v{VP}, v{VF}, {WS}, s{U+17} offen sc1", "poll"))
        A("s_mov_b64 exec, -1")
    cut = 48
    for x in acr[na:cut]:
        A(x)
    if o.verbose:
        print("left", g.left, "na", na, "nw", nw, "pre", len(pre), file=sys.stderr)
    A("s_nop 7")
    A("s_nop 3")
    for x in wr[nw:]:
        emit(x)
    for x in acr[max(na, cut):]:
        A(x)
    A(g.waitds("qw"))
    A("s_barrier")
    for x in range(2):
        for j in range(8):
            A(g.ds(f"ds_read_b128 {vr(128+x*32+j*4)}, v7 offset:{x*8192+j*1024}", f"qr{x*2+j//4}"))
    for x in range(2):
        for hj in range(2):
            A(g.waitds(f"qr{x*2+hj}"))
            for n in range(8):
                A(pkadd(192 + x * 32 + hj * 16 + n * 2, 128 + x * 32 + hj * 16 + n * 2))
        for r in range(4):
            for c in cvts(128 + x * 32 + r * 4, 192 + x * 32, r):
                A(c)
            emit(store(128 + x * 32 + r * 4, T + 2 + x, r))
    g.stamp(59)
    R, SUM = RING, 192

    def loads(early):
        for h in range(8):
            if early:
                A(f"buffer_load_dwordx4 {vr(R+h*8)}, v{V_LX}, {WS}, s{U+5} offen sc1")
                A(f"s_mov_b64 exec, s[{U+12}:{U+13}]")
                A(f"buffer_load_dwordx4 {vr(R+h*8+4)}, v{V_LX}, {WS}, s{U+6} offen sc1")
                A("s_mov_b64 exec, -1")
                if h < 7:
                    A(f"s_add_u32 s{U+5}, s{U+5}, {81920+o.pad}")
                    A(f"s_add_u32 s{U+6}, s{U+6}, {81920+o.pad}")
            else:
                A(f"buffer_load_dwordx4 {vr(R+64+h*4)}, v{V_LX}, {WS}, s{U+7} offen sc1")
                if h < 7:
                    A(f"s_add_u32 s{U+7}, s{U+7}, {81920+o.pad}")

    def sums(early, younger):
        nb = 2 if early else 1
        for h in range(8):
            for b in range(nb):
                A(f"s_waitcnt vmcnt({(8-h)*nb-b-1+younger})")
                for t in range(4):
                    src = (R + h * 8 + b * 4 + t) if early else (R + 64 + h * 4 + t)
                    d = SUM + (b if early else 2) * 8 + 2 * t
                    if h == 0:
                        A(f"v_lshlrev_b32 v{d}, 16, v{src}")
                        A(f"v_and_b32 v{d+1}, s{U+16}, v{src}")
                    else:
                        A(f"v_dot2c_f32_bf16 v{d}, s{U+14}, v{src}")
                        A(f"v_dot2c_f32_bf16 v{d+1}, s{U+15}, v{src}")
        A("s_nop 1")
        for b in ((0, 1) if early else (2,)):
            for t in range(4):
                A(f"v_cvt_pk_bf16_f32 v{SUM+24+b*4+t}, v{SUM+b*8+2*t}, v{SUM+b*8+2*t+1}")
            if b == 1:
                A(f"s_mov_b64 exec, s[{U+12}:{U+13}]")
            A(f"buffer_store_dwordx4 {vr(SUM+24+b*4)}, v{VO}, s[{S_OUT}:{S_OUT+3}], s{U+10+b%2} offen offset:{512*(b//2)} {o.pout}")
            if b == 1:
                A("s_mov_b64 exec, -1")
    E = U + 19

    def poll(lab, cmp_, val):
        A("s_mov_b64 exec, 1")
        g.lab(f"{lab}_clr")
        A(f"v_readfirstlane_b32 s{T+10}, v{VC}")
        A(f"s_sub_u32 s{U+18}, s{U+18}, 1")
        A(f"s_cbranch_scc1 {lab}_out")
        A(f"s_cmp_ge_u32 s{T+10}, 8")
        A(f"s_cbranch_scc1 {lab}_go")
        A(f"buffer_load_dword v{VC}, off, s[{S_DBG}:{S_DBG+3}], s{T+4} sc1")
        A("s_waitcnt vmcnt(0)")
        A(f"s_branch {lab}_clr")
        g.lab(f"{lab}_go")
        A("s_mov_b64 exec, 0xff")
        g.lab(f"{lab}_loop")
        A(f"buffer_load_dword v{VP}, v{VF}, {WS}, s{U+17} offen sc1")
        A("s_waitcnt vmcnt(0)")
        A(f"s_sub_u32 s{U+18}, s{U+18}, 1")
        A(f"s_cbranch_scc1 {lab}_out")
        A(f"v_cmp_{cmp_}_u32 s[{T+12}:{T+13}], {val}, v{VP}")
        A("s_nop 3")
        A(f"s_cmp_lg_u32 s{T+12}, 0")
        A(f"s_cbranch_scc1 {lab}_loop")
        g.lab(f"{lab}_out")
        A("s_mov_b64 exec, -1")
    if o.diag:
        A(f"s_mov_b32 s{E}, 0")
    if o.early:
        A(g.waitvm("poll"))
        A(f"v_readfirstlane_b32 s{T+10}, v{VC}")
        A("s_mov_b64 exec, 0xff")
        A(f"v_cmp_eq_u32 s[{T+12}:{T+13}], 0, v{VP}")
        A("s_mov_b64 exec, -1")
        A(f"s_cmp_lt_u32 s{T+10}, 8")
        A("s_cbranch_scc1 L_late")
        A(f"s_cmp_lg_u32 s{T+12}, 0")
        A("s_cbranch_scc1 L_late")
        if o.diag:
            A(f"s_mov_b32 s{E}, 1")
        loads(True)
        A("s_waitcnt vmcnt(16)")
        A("s_barrier")
        A(flag(2, "L_f2a"))
        g.stamp(56)
        A(f"s_cmp_lg_u32 s{S_W}, 0")
        A("s_cbranch_scc1 L_s0")
        sums(True, 1)
        A("s_branch L_wait")
    g.lab("L_late")
    A(waitall())
    A("s_barrier")
    A(flag(2, "L_f2b"))
    g.stamp(56)
    poll("L_p1", "eq", 0)
    loads(True)
    g.lab("L_s0")
    sums(True, 0)
    A(f"s_cmp_lg_u32 s{S_W}, 0")
    A("s_cbranch_scc1 L_polled")
    g.lab("L_wait")
    poll("L_p2", "ne", 2)
    g.lab("L_polled")
    A("s_barrier")
    g.stamp(57)
    loads(False)
    sums(False, 0)
    g.stamp(58)
    if o.diag:
        A(f"v_writelane_b32 v{V_TID}, s{E}, 60")


def gen_reduce(g):
    o = g.o
    A = g.A
    K = "reduce_kernel"
    g.L.append(f".globl {K}\n.p2align 8\n.type {K},@function")
    g.lab(K)
    A("s_cmp_ge_u32 s2, 640")
    A("s_cbranch_scc1 L_red_end")
    if o.diag >= 2:
        A("s_memrealtime s[20:21]")
    A("s_load_dwordx2 s[4:5], s[0:1], 80")
    A("s_load_dwordx2 s[8:9], s[0:1], 96")
    A("v_lshrrev_b32 v1, 6, v0")
    A("v_and_b32 v0, 63, v0")
    A("v_readfirstlane_b32 s3, v1")
    A("s_lshl_b32 s12, s2, 2")
    A("s_mov_b32 s6, 2621440")
    A("s_mov_b32 s7, 0x20000")
    A("s_mov_b32 s10, 268435456")
    A("s_mov_b32 s11, 0x20000")
    A("s_add_u32 s12, s12, s3")
    A("s_mul_i32 s13, s12, 52429")
    A("s_lshr_b32 s13, s13, 22")
    A("s_mul_i32 s14, s13, 80")
    A("s_sub_u32 s14, s12, s14")
    A("s_mul_i32 s15, s13, 655360")
    A("s_lshl_b32 s16, s14, 10")
    A("s_add_u32 s15, s15, s16")
    A("v_lshlrev_b32 v1, 4, v0")
    A("s_waitcnt lgkmcnt(0)")
    for h in range(8):
        A(f"buffer_load_dwordx4 {vr(4+h*4)}, v1, s[8:11], s15 offen {o.pld}")
        if h < 7:
            A("s_add_u32 s15, s15, 81920")
    A("s_and_b32 s16, s13, 15")
    A("s_lshl_b32 s16, s16, 2")
    A("s_bfe_u32 s17, s14, 0x20002")
    A("s_add_u32 s16, s16, s17")
    A("s_mul_i32 s16, s16, 40960")
    A("s_lshr_b32 s17, s13, 4")
    A("s_mul_i32 s17, s17, 1280")
    A("s_add_u32 s16, s16, s17")
    A("s_lshr_b32 s17, s14, 4")
    A("s_lshl_b32 s17, s17, 8")
    A("s_add_u32 s16, s16, s17")
    A("s_and_b32 s17, s14, 3")
    A("s_lshl_b32 s17, s17, 4")
    A("s_add_u32 s16, s16, s17")
    A("v_and_b32 v2, 15, v0")
    A("v_lshrrev_b32 v3, 4, v0")
    A("v_mul_u32_u24 v2, 2560, v2")
    A("v_lshl_add_u32 v2, v3, 6, v2")
    A("s_mov_b32 s18, 0xffff0000")
    for h in range(8):
        A(f"s_waitcnt vmcnt({7-h})")
        for t in range(4):
            src = 4 + h * 4 + t
            if h == 0:
                A(f"v_lshlrev_b32 v{40+2*t}, 16, v{src}")
                A(f"v_and_b32 v{41+2*t}, s18, v{src}")
            else:
                A(f"v_lshlrev_b32 v{48+2*t}, 16, v{src}")
                A(f"v_and_b32 v{49+2*t}, s18, v{src}")
        if h:
            for n in range(8):
                A(f"v_add_f32 v{40+n}, v{40+n}, v{48+n}")
    for t in range(4):
        A(f"v_cvt_pk_bf16_f32 v{4+t}, v{40+2*t}, v{41+2*t}")
    A(f"buffer_store_dwordx4 {vr(4)}, v2, s[4:7], s16 offen")
    if o.diag == 2:
        A("s_waitcnt vmcnt(0)")
        A("s_memrealtime s[22:23]")
        A("s_load_dwordx2 s[24:25], s[0:1], 88")
        A("s_mov_b32 s26, 64")
        A("s_mov_b32 s27, 0x20000")
        A("s_waitcnt lgkmcnt(0)")
        A("v_mov_b32 v8, 0")
        A("s_not_b32 s21, s20")
        A("v_writelane_b32 v8, s20, 13")
        A("v_writelane_b32 v8, s21, 14")
        A("v_writelane_b32 v8, s22, 15")
        A("v_lshlrev_b32 v9, 2, v0")
        A("buffer_atomic_umax v8, v9, s[24:27], 0 offen sc1")
    if o.diag == 3:
        A("s_cmp_lg_u32 s12, 2000")
        A("s_cbranch_scc1 L_red_end")
        A("s_waitcnt vmcnt(0)")
        A("s_memrealtime s[22:23]")
        A("s_load_dwordx2 s[24:25], s[0:1], 88")
        A("s_mov_b32 s26, 64")
        A("s_mov_b32 s27, 0x20000")
        A("v_lshlrev_b32 v9, 2, v0")
        A(f"s_mov_b32 s15, {0x8000000 + o.sel*256}")
        A("buffer_load_dword v8, v9, s[8:11], s15 offen sc1")
        A("s_waitcnt vmcnt(0) lgkmcnt(0)")
        A("v_writelane_b32 v8, s20, 14")
        A("v_writelane_b32 v8, s22, 15")
        A("buffer_store_dword v8, v9, s[24:27], 0 offen")
    g.lab("L_red_end")
    A("s_endpgm")


def desc(name, vg, acc, sg):
    return f""".amdhsa_kernel {name}
  .amdhsa_next_free_vgpr {vg}
  .amdhsa_next_free_sgpr {sg}
  .amdhsa_accum_offset {acc}
  .amdhsa_group_segment_fixed_size 0
  .amdhsa_kernarg_size 104
  .amdhsa_user_sgpr_count 2
  .amdhsa_user_sgpr_kernarg_segment_ptr 1
  .amdhsa_system_sgpr_workgroup_id_x 1
.end_amdhsa_kernel"""


def build(o):
    g = Gen(o)
    head = [l.rstrip("\n") for l in open(f"cdna_kernels/{NAME}.s.ref") if l.startswith(";   offset") or l.startswith("; Kernarg")]
    if o.fuse:
        head.append(f"; @launch grid=(256,1,1) block=(256,1,1) lds={LDS_BYTES}")
    else:
        head.append(f"; @launch kernel={NAME}_kernel grid=(256,1,1) block=(256,1,1) lds={LDS_BYTES}")
        head.append(f"; @launch kernel=reduce_kernel grid=(640,1,1) block=(256,1,1) lds=0")
    for _ in range(o.noop):
        head.append(f"; @launch kernel=noop_kernel grid=(1,1,1) block=(64,1,1) lds=0")
    head.append('.amdgcn_target "amdgcn-amd-amdhsa--gfx950"')
    head.append(".text")
    gen_main(g)
    if not o.fuse:
        gen_reduce(g)
    g.lab("L_code_end")
    if o.noop:
        g.L.append(".globl noop_kernel\n.p2align 8\n.type noop_kernel,@function\nnoop_kernel:\n    s_endpgm")
    tail = ['.section .rodata,"a"', ".p2align 6", desc(f"{NAME}_kernel", 512, 256, 102)]
    if not o.fuse:
        tail += [".p2align 6", desc("reduce_kernel", 64, 64, 32)]
    if o.noop:
        tail += [".p2align 6", desc("noop_kernel", 64, 64, 32)]
    return "\n".join(head + g.L + tail) + "\n"


def opts(argv=None):
    p = argparse.ArgumentParser()
    p.add_argument("-o", default=f"cdna_kernels/{NAME}.s")
    p.add_argument("--diag", type=int, default=0)
    p.add_argument("--warm", type=int, default=1)
    p.add_argument("--noop", type=int, default=0)
    p.add_argument("--fuse", type=int, default=0)
    p.add_argument("--dp", type=int, default=0)
    p.add_argument("--verbose", type=int, default=0)
    p.add_argument("--cap", type=int, default=2)
    p.add_argument("--wpace", type=int, default=4)
    p.add_argument("--cape", type=int, default=1)
    p.add_argument("--capv", type=int, default=0)
    p.add_argument("--early", type=int, default=1)
    p.add_argument("--wopre", type=int, default=0)
    p.add_argument("--e39", type=int, default=0)
    p.add_argument("--fa", type=int, default=0)
    p.add_argument("--ph", type=int, default=2)
    p.add_argument("--il", type=int, default=0)
    p.add_argument("--own", type=int, default=1)
    p.add_argument("--fl", type=int, default=0)
    p.add_argument("--dens", type=int, default=0)
    p.add_argument("--defer", type=int, default=0)
    p.add_argument("--xrot", type=int, default=1)
    p.add_argument("--alt", default="")
    p.add_argument("--altbit", type=int, default=0)
    p.add_argument("--pad", type=int, default=0)
    p.add_argument("--c4pre", type=int, default=0)
    p.add_argument("--exp", default="")
    p.add_argument("--steps", type=int, default=0)
    p.add_argument("--ng", type=int, default=1)
    p.add_argument("--kst", default="")
    p.add_argument("--vst", default="")
    p.add_argument("--order", default="xa,xb,w0,w1,w2")
    p.add_argument("--coop", type=int, default=0)
    p.add_argument("--nfirst", type=int, default=0)
    p.add_argument("--c4first", type=int, default=0)
    p.add_argument("--sel", type=int, default=401)
    p.add_argument("--rot", type=int, default=1)
    p.add_argument("--spread", type=int, default=3)
    p.add_argument("--kv0", type=int, default=0)
    p.add_argument("--kvper", type=int, default=1)
    for k, d in (("px", ""), ("pxb", ""), ("pw0", "nt"), ("pwq", ""), ("pwo", ""), ("pk", "nt"), ("pv", "nt"), ("pst", "sc1"), ("pld", ""), ("pout", "")):
        p.add_argument("--" + k, default=d)
    return p.parse_args(argv)


if __name__ == "__main__":
    o = opts()
    open(o.o, "w").write(build(o))
```

```python
import sys, argparse

NAME = "concat_heads__gqa_block_cached__mha_block_cached__near_ridge"

V_TID = 0
V_TMP = 1
V_W = 2
V_B = 10
V_LX = 11
V_KG = 12
V_VG = 13
V_WO0 = 14
V_WO1 = 15
PERM = 16
RING = 32
ACC = 128
A_V = 0
A_B = 64
A_K = 128
A_C4 = 128

S_X, S_K, S_V, S_WQ, S_WO, S_WS = 8, 12, 16, 20, 24, 28
S_W = 3
S_BP = 4
S_HQ = 5
S_T0, S_T1 = 6, 7
S_KS = 32
S_CW = 52
S_XC = 72
S_KV = 8
S_CL = 95
S_ST = 92
S_PLO, S_PHI = 93, 94
S_KLDS = 96
S_SC = 97
S_C4U = 98
S_GRP = 7
S_STMP = 99
S_TS = 100
S_G = 95

S_OUT, S_DBG = 12, 16
WS_FLAG = 0x2000000
LDS_O = 0
LDS_X = 65536
LDS_R = 65536
LDS_BYTES = 163840
GFUN = [0, 2, 3, 1]


class Gen:
    def __init__(self, o):
        self.o = o
        self.L = []
        self.ng = o.ng
        self.vq = [[] for _ in range(self.ng)]
        self.nlab = 0
        self.dq = []

    def A(self, s):
        if s:
            self.L.append("    " + s)

    def lab(self, s):
        self.L.append(s + ":")

    def vm(self, s, tag, grp=None):
        for k, q in enumerate(self.vq):
            if grp is None or grp == k:
                q.append(tag)
                assert len(q) <= 63, "vmcnt overflow"
        return s

    def waitvm(self, tag):
        ns = []
        for k, q in enumerate(self.vq):
            idx = max((i for i, t in enumerate(q) if t == tag), default=-1)
            ns.append(None if idx < 0 else len(q) - 1 - idx)
            self.vq[k] = q[idx + 1:]
        vals = sorted(set(n for n in ns if n is not None))
        if not vals:
            return None
        lo = vals[0]
        big = [k for k, n in enumerate(ns) if n is not None and n > lo]
        if len(big) != 1:
            return f"s_waitcnt vmcnt({lo})"
        self.nlab += 1
        return (f"s_cmp_eq_u32 s{S_GRP}, {big[0]}\n    s_cbranch_scc1 L_w{self.nlab}\n    s_waitcnt vmcnt({lo})\n"
                f"L_w{self.nlab}:\n    s_waitcnt vmcnt({ns[big[0]]})")

    def ds(self, s, tag):
        self.dq.append(tag)
        return s

    def waitds(self, tag):
        idx = max((i for i, t in enumerate(self.dq) if t == tag), default=-1)
        if idx < 0:
            return None
        n = len(self.dq) - 1 - idx
        self.dq = self.dq[idx + 1:]
        return f"s_waitcnt lgkmcnt({min(n, 15)})"

    def stamp(self, k):
        if not self.o.diag:
            return
        A = self.A
        A(f"{'s_memtime' if self.o.diag != 2 else 's_memrealtime'} s[{S_TS}:{S_TS+1}]")
        A("s_waitcnt lgkmcnt(0)")
        A(f"v_writelane_b32 v{V_TID}, s{S_TS}, {k}")


def mfma(d, a, b, c):
    return f"v_mfma_f32_16x16x32_bf16 {d}, {a}, {b}, {c}"


def vr(n, k=4):
    return f"v[{n}:{n+k-1}]"


def ar(n, k=4):
    return f"a[{n}:{n+k-1}]"


def perms(src_rows, t, dst):
    out = []
    for e in range(2):
        for p in range(4):
            sel = S_PLO if e == 0 else S_PHI
            out.append(f"v_perm_b32 v{dst+e*4+p}, v{src_rows[2*p+1]+t}, v{src_rows[2*p]+t}, s{sel}")
    return out


def slot_rows(s):
    return [RING + (s % 3) * 32 + r * 4 for r in range(8)]


def gen_main(g):
    o = g.o
    A = g.A
    K = f"{NAME}_kernel"
    g.L.append(f".globl {K}\n.p2align 8\n.type {K},@function")
    g.lab(K)
    A("s_cmp_ge_u32 s2, 256")
    A("s_cbranch_scc1 L_main_end")
    if o.diag:
        A(f"{'s_memtime' if o.diag != 2 else 's_memrealtime'} s[54:55]")
        A(f"s_memrealtime s[56:57]")
    A("s_load_dwordx16 s[32:47], s[0:1], 0")
    A("s_load_dwordx4 s[48:51], s[0:1], 64")
    A("s_load_dwordx2 s[28:29], s[0:1], 96")
    A(f"v_lshrrev_b32 v{V_TMP}, 6, v0")
    A(f"v_and_b32 v0, 63, v0")
    A(f"v_readfirstlane_b32 s{S_W}, v{V_TMP}")
    A(f"s_lshr_b32 s{S_T0}, s2, 3")
    if o.warm:
        A("s_getpc_b64 s[52:53]")
        g.lab("L_pc")
        A(f"s_sub_u32 s52, s52, L_pc-{K}")
        A("s_subb_u32 s53, s53, 0")
        A(f"s_lshl_b32 s{S_T1}, s{S_T0}, 2")
        A(f"s_add_u32 s{S_T1}, s{S_T1}, s{S_W}")
        A(f"s_min_u32 s{S_T1}, s{S_T1}, (L_code_end-{K})/1024-1")
        A(f"s_lshl_b32 s{S_T1}, s{S_T1}, 10")
        A(f"v_lshl_add_u32 v{V_TMP}, v0, 4, s{S_T1}")
        A(g.vm(f"global_load_dwordx4 {vr(PERM)}, v{V_TMP}, s[52:53]", "warm"))
    A(f"s_lshr_b32 s{S_BP}, s{S_T0}, 1")
    A(f"s_and_b32 s{S_T0}, s{S_T0}, 1")
    A(f"s_and_b32 s{S_HQ}, s2, 3")
    A(f"s_lshl_b32 s{S_HQ}, s{S_HQ}, 1")
    A(f"s_add_u32 s{S_HQ}, s{S_HQ}, s{S_T0}")
    vi, vG, vt, vt2 = 20, 21, 22, 23
    A(f"s_movk_i32 s{S_G}, 0x78")
    A(f"v_and_b32 v{vi}, 15, v0")
    A(f"v_lshrrev_b32 v{vG}, 4, v0")
    A(f"v_xor_b32 v{vt}, v{vG}, v0")
    A(f"v_and_b32 v{vt}, 7, v{vt}")
    A(f"v_lshlrev_b32 v{vt}, 4, v{vt}")
    A(f"v_lshrrev_b32 v{vt2}, 3, v0")
    A(f"v_mul_u32_u24 v{vt2}, 1280, v{vt2}")
    A(f"v_add_u32 v{V_B}, v{vt}, v{vt2}")
    A(f"v_xor_b32 v{vt}, 64, v{vt}")
    A(f"v_add_u32 v{vt2}, {8*1280}, v{vt2}")
    A(f"v_add_u32 v{V_LX}, v{vt}, v{vt2}")
    A(f"v_lshlrev_b32 v{vt}, 4, v{vi}")
    A(f"v_lshl_add_u32 v{V_W}, v{vG}, 16, v{vt}")
    for r in range(1, 8):
        A(f"v_add_u32 v{V_W+r}, {r*8192}, v{V_W}")
    A("s_bitcmp1_b32 s2, 2")
    A("s_waitcnt lgkmcnt(0)")
    if o.diag:
        A(f"s_mov_b32 s{S_TS}, s54")
        A(f"s_mov_b32 s{S_TS+1}, s56")
        A("s_memtime s[88:89]")
    for dst, a, b in ((S_X, 32, 42), (S_K, 34, 44), (S_V, 36, 46), (S_WQ, 38, 48), (S_WO, 40, 50)):
        A(f"s_cselect_b32 s{dst}, s{b}, s{a}")
        A(f"s_cselect_b32 s{dst+1}, s{b+1}, s{a+1}")
    for dst, n in ((S_X, 1310720), (S_K, 8388608), (S_V, 8388608), (S_WQ, 5242880), (S_WO, 5242880), (S_WS, 268435456)):
        A(f"s_mov_b32 s{dst+2}, {n}")
        A(f"s_mov_b32 s{dst+3}, 0x20000")
    A(f"s_lshl_b32 s{S_C4U}, s{S_HQ}, 2")
    A(f"s_add_u32 s{S_C4U}, s{S_C4U}, s{S_W}")
    A(f"s_lshl_b32 s{S_T1}, s{S_C4U}, 8")
    for r in range(8):
        A(f"v_add_u32 v{V_W+r}, s{S_T1}, v{V_W+r}")
    A(f"s_mul_i32 s{S_KS}, s{S_BP}, 5")
    A(f"s_lshr_b32 s{S_KS}, s{S_KS}, 2")
    if not o.rot:
        A(f"s_mov_b32 s{S_KS}, 0")
    A(f"s_lshl_b32 s{S_KS}, s{S_KS}, 18")
    tab = []
    for ks in range(19):
        tab.append([f"s_add_u32 s{S_KS+ks+1}, s{S_KS+ks}, {1<<18}", f"s_cmp_eq_u32 s{S_KS+ks+1}, {20<<18}", f"s_cselect_b32 s{S_KS+ks+1}, 0, s{S_KS+ks+1}"])
    for t in tab[:2]:
        for x in t:
            A(x)
    tab = tab[2:]

    def wload(s, r):
        dst = vr(slot_rows(s)[r])
        if s == 39 and o.e39:
            dst = ar(r * 4)
        if s < 20:
            pol = o.pw0 if s < o.nfirst else o.pwq
            return g.vm(f"buffer_load_dwordx4 {dst}, v{V_W+r}, s[{S_WQ}:{S_WQ+3}], s{S_KS+s} offen {pol}", f"w{s}")
        v = V_WO0 if r < 4 else V_WO1
        pol = o.pw0 if (s - 20 < o.nfirst or (s >= 36 and o.c4first)) else o.pwo
        ci = s - 20 if not o.dp else (s - 4 if s < 24 else s - 24)
        return g.vm(f"buffer_load_dwordx4 {dst}, v{v}, s[{S_WO}:{S_WO+3}], s{S_CW+ci} offen offset:{(r%4)*1280} {pol}", f"w{s}")

    def wsoff(s):
        return None

    def xhalf(second):
        A(f"s_and_b32 s{S_T1}, s{S_HQ}, 1")
        if second:
            A(f"s_xor_b32 s{S_T1}, s{S_T1}, 1")
        if not o.coop:
            A(f"s_mov_b32 s{S_T1}, {second}")
        A(f"s_lshl_b32 s{S_T0}, s{S_BP}, 2")
        A(f"s_add_u32 s{S_T0}, s{S_T0}, s{S_W}")
        A(f"s_mul_i32 s{S_T0}, s{S_T0}, {16*1280}")
        A(f"s_mul_i32 s{S_STMP}, s{S_T1}, 640")
        A(f"s_add_u32 s{S_T0}, s{S_T0}, s{S_STMP}")
        A(f"s_mul_i32 s{S_T1}, s{S_T1}, 20")
        A(f"s_add_u32 s{S_T1}, s{S_T1}, s{S_W}")
        A(f"s_lshl_b32 s{S_T1}, s{S_T1}, 11")
        A(f"s_add_u32 m0, s{S_T1}, {LDS_X}")
        A("s_nop 0")
        for n in range(10):
            kb, m = n // 2, n % 2
            A(g.vm(f"buffer_load_dwordx4 v{V_LX if m else V_B}, s[{S_X}:{S_X+3}], s{S_T0} offen offset:{kb*128} {o.pxb if second else o.px} lds", "x"))
            if n < 9:
                A(f"s_add_u32 m0, m0, {1024 if m == 0 else 8192-128-1024}")
                if tab:
                    for x in tab.pop(0):
                        A(x)
                else:
                    A("s_nop 0")
    def xinit():
        A(f"s_lshl_b32 s{S_T0}, s{S_BP}, 2")
        A(f"s_add_u32 s{S_T0}, s{S_T0}, s{S_W}")
        A(f"s_mul_i32 s{S_T0}, s{S_T0}, {16*1280}")
        A(f"s_lshl_b32 s{S_KLDS}, s{S_W}, 11")
        A(f"s_add_u32 s{S_KLDS}, s{S_KLDS}, {LDS_X}")
        A(f"s_and_b32 s{S_T1}, s{S_HQ}, 1")
        A(f"s_mul_i32 s{S_T1}, s{S_T1}, 5")
        if o.xrot:
            A(f"s_lshr_b32 s{S_STMP}, s{S_HQ}, 1")
            A(f"s_add_u32 s{S_T1}, s{S_T1}, s{S_STMP}")
        A(f"s_lshl_b32 s{S_T1}, s{S_T1}, 7")

    def xblk(n, track=True):
        pol = o.px if n < 5 else o.pxb
        A(f"s_lshl_b32 s{S_STMP}, s{S_T1}, 6")
        A(f"s_add_u32 m0, s{S_STMP}, s{S_KLDS}")
        A(f"s_add_u32 s{S_STMP}, s{S_T0}, s{S_T1}")
        x = f"buffer_load_dwordx4 v{V_B}, s[{S_X}:{S_X+3}], s{S_STMP} offen {pol} lds"
        A(g.vm(x, "x") if track else x)
        A(f"s_add_u32 m0, m0, 1024")
        A(f"s_add_u32 s{S_T1}, s{S_T1}, 128")
        x = f"buffer_load_dwordx4 v{V_LX}, s[{S_X}:{S_X+3}], s{S_STMP} offen {pol} lds"
        A(g.vm(x, "x") if track else x)
        A(f"s_cmp_eq_u32 s{S_T1}, 1280")
        A(f"s_cselect_b32 s{S_T1}, 0, s{S_T1}")
        if track:
            for _ in range(2):
                if tab:
                    for t in tab.pop(0):
                        A(t)

    def pre(track=True):
        A(f"s_lshr_b32 s{S_ST}, s{S_BP}, 2")
        A(f"s_mul_i32 s{S_ST}, s{S_ST}, 5")
        A(f"s_add_u32 s{S_ST}, s{S_ST}, 4")
        A(f"s_lshl_b32 s{S_ST}, s{S_ST}, 4")
        A(f"s_and_b32 s{S_SC}, s{S_BP}, 3")
        A(f"s_add_u32 s{S_ST}, s{S_ST}, s{S_SC}")
        A(f"s_lshl_b32 s{S_ST}, s{S_ST}, 14")
        for r in range(2):
            x = f"buffer_load_dwordx4 {ar(248+4*r)}, v{V_W+r}, s[{S_WQ}:{S_WQ+3}], s{S_ST} offen"
            A(g.vm(x, "pre") if track else x)

    def items(lst, track=True, stamps=False):
        for ni, item in enumerate(lst):
            if o.diag and stamps and ni in (1, 2, 3):
                A(f"s_memtime s[{88+2*ni}:{89+2*ni}]") if ni < 2 else A(f"s_memtime s[{68+2*ni}:{69+2*ni}]")
            if item[0] == "c":
                A(f"s_waitcnt vmcnt({item[1:]})")
            elif item == "xa":
                xhalf(0)
            elif item == "xb":
                xhalf(1)
            elif item == "p":
                pre(track)
            elif item[0] == "x":
                for n in range(int(item[1]), int(item[2]) + 1):
                    xblk(n, track)
            else:
                sw = int(item[1:])
                for r in range(8):
                    if track:
                        A(wload(sw, r))
                    else:
                        sv = [list(q) for q in g.vq]
                        A(wload(sw, r))
                        g.vq = sv
    lst = o.order.split(",")
    if any(x[0] == "x" and len(x) == 3 for x in lst):
        xinit()
    if o.alt:
        alt = o.alt.split(",")
        assert sorted(alt) == sorted(lst[:len(alt)])
        A(f"s_bitcmp1_b32 s{S_BP}, {o.altbit}")
        A("s_cbranch_scc1 L_alt")
        keep, tab[:] = list(tab), []
        items(lst[:len(alt)], stamps=True)
        A("s_branch L_join")
        g.lab("L_alt")
        items(alt, track=False, stamps=True)
        g.lab("L_join")
        tab[:] = keep
        items(lst[len(alt):])
    else:
        items(lst, stamps=True)
    for t in tab:
        for x in t:
            A(x)
    tab[:] = []
    assert not tab
    A(f"s_mov_b32 s{S_T0}, s{S_C4U}")
    if o.diag:
        A("s_waitcnt lgkmcnt(0)")
        A("v_mov_b32 v24, 0")
        for k, sr in ((11, 88), (12, 90), (14, 72), (15, 74)):
            A(f"v_writelane_b32 v24, s{sr}, {k}")
    A(f"s_lshl_b32 s{S_KV}, s{S_BP}, 6")
    A(f"s_add_u32 s{S_KV}, s{S_KV}, s{S_T0}")
    A(f"s_lshl_b32 s{S_KV}, s{S_KV}, 13")
    A(f"s_add_u32 s{S_KV+1}, s{S_KV}, 4096")
    A(f"s_add_u32 s{S_KV+2}, s{S_KV}, 262144")
    A(f"s_add_u32 s{S_KV+3}, s{S_KV}, {262144+4096}")
    A(f"s_lshl_b32 s{S_KLDS}, s{S_W}, 14")
    A(f"s_mov_b32 s{S_PLO}, 0x05040100")
    A(f"s_mov_b32 s{S_PHI}, 0x07060302")
    A(f"s_mov_b32 s{S_SC}, 0x3e0293ee")
    A(f"s_mul_i32 s{S_T0}, s{S_HQ}, {512*1280}")
    A(f"s_lshl_b32 s{S_T1}, s{S_W}, 8")
    A(f"s_add_u32 s{S_T1}, s{S_T1}, s{S_T0}")
    if o.dp:
        A(f"s_lshr_b32 s{S_T1}, s{S_W}, 1")
        A(f"s_lshl_b32 s{S_T1}, s{S_T1}, 8")
        A(f"s_add_u32 s{S_T1}, s{S_T1}, s{S_T0}")
        A(f"s_and_b32 s{S_STMP}, s{S_W}, 1")
        A(f"s_mul_i32 s{S_STMP}, s{S_STMP}, {256*1280}")
        A(f"s_add_u32 s{S_T1}, s{S_T1}, s{S_STMP}")
        for n in range(8):
            A(f"s_add_u32 s{S_STMP}, s{S_BP}, {n}")
            A(f"s_and_b32 s{S_C4U}, s{S_STMP}, 3")
            A(f"s_bfe_u32 s{S_STMP}, s{S_STMP}, 0x10002")
            A(f"s_lshl_b32 s{S_STMP}, s{S_STMP}, 4")
            A(f"s_add_u32 s{S_STMP}, s{S_STMP}, s{S_C4U}")
            A(f"s_mul_i32 s{S_STMP}, s{S_STMP}, {8*1280}")
            A(f"s_add_u32 s{S_CW+n}, s{S_STMP}, s{S_T1}")
            A(f"s_add_u32 s{S_CW+8+n}, s{S_CW+n}, 512")
    for n in range(16 if not o.dp else 0):
        if o.rot:
            A(f"s_add_u32 s{S_STMP}, s{S_BP}, {n}")
            A(f"s_and_b32 s{S_STMP}, s{S_STMP}, 15")
        else:
            A(f"s_mov_b32 s{S_STMP}, {n}")
        A(f"s_and_b32 s{S_C4U}, s{S_STMP}, 3")
        A(f"s_lshr_b32 s{S_STMP}, s{S_STMP}, 2")
        A(f"s_lshl_b32 s{S_STMP}, s{S_STMP}, 4")
        A(f"s_add_u32 s{S_STMP}, s{S_STMP}, s{S_C4U}")
        A(f"s_mul_i32 s{S_STMP}, s{S_STMP}, {8*1280}")
        A(f"s_add_u32 s{S_CW+n}, s{S_STMP}, s{S_T1}")
    A(f"s_mul_i32 s{S_T1}, s{S_W}, {128*1280}")
    A(f"s_add_u32 s{S_T1}, s{S_T1}, s{S_T0}")
    A(f"s_add_u32 s{S_T1}, s{S_T1}, 1024")
    for n in range(4):
        A(f"s_add_u32 s{S_CW+16+n}, s{S_T1}, {n*8*1280}")
    A(f"s_lshr_b32 s{S_T0}, s2, 2")
    A(f"s_and_b32 s{S_T0}, s{S_T0}, 1")
    A(f"s_lshl_b32 s{S_T0}, s{S_T0}, 4")
    A(f"s_add_u32 s{S_T0}, s{S_T0}, s{S_BP}")
    A(f"s_lshl_b32 s{S_T0}, s{S_T0}, 3")
    A(f"s_add_u32 s{S_T0}, s{S_T0}, s{S_HQ}")
    A(f"s_mul_i32 s{S_ST}, s{S_T0}, {81920+o.pad}")
    if o.fuse:
        if o.diag:
            A(f"s_mov_b32 vcc_hi, s2")
        A(f"s_mov_b32 s2, s{S_T0}")
        A(f"s_cmp_lg_u32 s{S_W}, 0")
        A("s_cbranch_scc1 L_noclr")
        if o.fuse >= 2:
            flag_base(g, S_T0, S_STMP)
            A(f"v_mov_b32 v{V_TMP}, 0")
            A(f"v_lshlrev_b32 v{vt}, 7, v{vi}")
            A("s_mov_b64 exec, 15")
            A(f"buffer_store_dword v{V_TMP}, v{vt}, s[{S_WS}:{S_WS+3}], s{S_T0} offen sc1")
        else:
            A(f"s_lshl_b32 s{S_T0}, s2, 7")
            A(f"s_add_u32 s{S_T0}, s{S_T0}, {WS_FLAG}")
            A(f"v_mov_b32 v{V_TMP}, 0")
            A("s_mov_b64 exec, 1")
            A(f"buffer_store_dword v{V_TMP}, off, s[{S_WS}:{S_WS+3}], s{S_T0} sc1")
        A("s_mov_b64 exec, -1")
        g.lab("L_noclr")
    A(f"v_xor_b32 v{vt}, v{vi}, v{vG}")
    A(f"v_lshlrev_b32 v{vt}, 4, v{vt}")
    A(f"v_lshl_add_u32 v{V_KG}, v{vG}, 8, v{vt}")
    A(f"v_lshlrev_b32 v{vt}, 4, v{vi}")
    A(f"v_lshl_add_u32 v{V_VG}, v{vG}, 10, v{vt}")
    A(f"v_mul_u32_u24 v{V_WO0}, {32*1280}, v{vG}")
    A(f"v_add_u32 v{V_WO0}, v{V_WO0}, v{vt}")
    A(f"v_add_u32 v{V_WO1}, {4*1280}, v{V_WO0}")
    A(f"v_lshrrev_b32 v{vt}, 1, v{vi}")
    A(f"v_xor_b32 v{vt}, v{vt}, v{vG}")
    A(f"v_lshlrev_b32 v{vt}, 4, v{vt}")
    A(f"v_lshl_add_u32 v{V_LX}, v{vi}, 7, v{vt}")
    for n in range(20):
        A(f"s_lshr_b32 s{S_STMP}, s{S_KS+n}, 19")
        A(f"s_lshl_b32 s{S_STMP}, s{S_STMP}, 13")
        A(f"s_bfe_u32 s{S_C4U}, s{S_KS+n}, 0x10012")
        A(f"s_lshl_b32 s{S_C4U}, s{S_C4U}, 6")
        A(f"s_add_u32 s{S_STMP}, s{S_STMP}, {LDS_X}")
        A(f"s_or_b32 s{S_XC+n}, s{S_STMP}, s{S_C4U}")
    A(f"s_and_b32 s{S_GRP}, s{S_BP}, {o.ng-1}")
    if o.diag:
        A(f"v_mov_b32 v{V_TID}, v24")
        A(f"v_writelane_b32 v{V_TID}, s{S_TS}, 10")
        A(f"v_writelane_b32 v{V_TID}, s{S_TS+1}, 13")
        g.stamp(0)

    def kload(n):
        bt, m = n // 8, n % 8
        ins = []
        if m % 4 == 0:
            ins.append(f"s_add_u32 m0, s{S_KLDS}, {bt*8192 + (m//4)*4096}")
        ins.append(f"v_xor_b32 v{V_TMP}, {GFUN[m%4] << 6}, v{V_KG}")
        ins.append(("vm", f"buffer_load_dwordx4 v{V_TMP}, s[{S_K}:{S_K+3}], s{S_KV+bt*2+m//4} offen offset:{(m%4)*1024} {o.pk} lds", "k"))
        return ins

    def vload(n):
        bt, r = n // 8, n % 8
        return [("vm", f"buffer_load_dwordx4 {ar(A_V+n*4)}, v{V_VG}, s[{S_V}:{S_V+3}], s{S_KV+bt*2+r//4} offen offset:{(r%4)*256} {o.pv}", "v")]

    def baddr(s):
        if s < 20:
            return [f"v_xor_b32 v{V_B}, s{S_XC+s}, v{V_LX}"]
        if o.dp:
            if s < 24:
                return []
            return [f"v_add_u32 v{V_B}, s{S_CL}, v{V_KG}", f"v_xor_b32 v{V_VG}, 2048, v{V_B}", f"s_add_u32 s{S_CL}, s{S_CL}, 4096", f"s_and_b32 s{S_CL}, s{S_CL}, 0x7fff"]
        if s < 36:
            return [f"v_add_u32 v{V_B}, s{S_CL}, v{V_LX}", f"s_add_u32 s{S_CL}, s{S_CL}, 4096", f"s_and_b32 s{S_CL}, s{S_CL}, 0xffff"]
        return []

    def breads(s):
        buf = A_B + (s % 2) * 16
        if s < 20:
            return [f"ds_read_b128 {ar(buf+q*4)}, v{V_B} offset:{q*2048}" for q in range(4)]
        if o.dp:
            if s < 24:
                return [f"ds_read_b128 {ar(buf+q*4)}, v{V_W+q} offset:{(s-20)*4096}" for q in range(4)]
            return [f"ds_read_b128 {ar(buf+q*4)}, v{V_B if q < 2 else V_VG} offset:{(q%2)*1024}" for q in range(4)]
        if s < 36:
            return [f"ds_read_b128 {ar(buf+q*4)}, v{V_B} offset:{q*1024}" for q in range(4)]
        return [f"ds_read_b128 {ar(buf+q*4)}, v{V_W+q} offset:{(s-36)*4096}" for q in range(4)]

    def bread(s):
        return baddr(s) + breads(s)

    def emit(ins):
        if isinstance(ins, tuple):
            A(g.vm(ins[1], ins[2]))
        elif callable(ins):
            r = ins()
            if r:
                A(r)
        else:
            A(ins)

    DEF = (20, 21, 22) if o.defer == 3 else (21, 22)
    fq = []

    def cap(s, n):
        if n == 1:
            return 0, o.cape
        if n % 2 == 0:
            return o.capv, o.cape
        return (o.cap, o.cap) if n in (19, 21) else (1, 1)

    def dacc(s, q, j):
        if s < 24:
            return vr(128 + j * 4) if q == 0 else ar((96, 0, 32)[q - 1] + j * 4)
        if s < 32:
            return vr(192 + q * 32 + j * 4) if q < 2 else ar(128 + (q - 2) * 32 + j * 4)
        return ar(q * 32 + j * 4) if q < 2 else ar(192 + (q - 2) * 32 + j * 4)

    def step(s, first, last, extra, preperm=True, prefetchB=True):
        fill = [[] for _ in range(32)]
        rows = slot_rows(s)
        buf = A_B + (s % 2) * 16
        for t in range(3):
            for n, p in enumerate(perms(rows, t + 1, PERM + ((t + 1) % 2) * 8)):
                fill[t * 8 + (n // 2) * 2].append(p)
        late = o.spread
        if late and s >= 1 and s + 2 < 40 and s != 20 and not (o.defer and s + 2 in DEF) and not (o.e39 and s + 2 >= 38):
            for n, r in enumerate(range(8 - late, 8)):
                fill[11 + 2 * n].append(lambda r=r: wload(s + 2, r))
        if not last:
            ba = baddr(s + 1)
            g0 = 1
            if ba:
                fill[g0].append(ba[0])
                fill[g0] += ba[1:2]
                fill[17] += ba[2:]
                g0 += 2
            for n, x in enumerate(breads(s + 1)):
                fill[g0 + n * 2].append(lambda x=x: g.ds(x, f"b{s+1}"))
            fill[21].append(lambda: g.waitvm(f"w{s+1}"))
            for n, p in enumerate(perms(slot_rows(s + 1), 0, PERM)):
                fill[24 + (n // 2) * 2].append(p)
            fill[19].append(lambda: g.waitds(f"b{s+1}"))
        if o.e39 and 32 <= s < 36:
            for n, gp in enumerate((9, 17)):
                fill[gp].append(lambda r=(s - 32) * 2 + n: wload(39, r))
        if o.e39 and s == 35:
            late = 0
        if s + 3 < 40 and not (o.defer and s + 3 in DEF) and not (o.e39 and s == 36):
            gaps = [23, 25, 27, 29, 31] if late >= 3 else [23, 24, 25, 26, 27, 28, 29, 31]
            for r in range(8 - late):
                fill[gaps[r]].append(lambda r=r: wload(s + 3, r))
        if o.diag and o.steps:
            fill[28].append(f"s_memtime s[{S_TS}:{S_TS+1}]")
            fill[31].append(lambda: ("s_waitcnt lgkmcnt(0)", g.dq.clear())[0])
            fill[31].append(f"v_writelane_b32 v{V_TID}, s{S_TS}, {16+s}")
        for k, v in extra.items():
            fill[k] = fill[k] + v
        n = 0
        for t in range(4):
            for e in range(2):
                for q in range(4):
                    j = 2 * t + e
                    if o.dp and s >= 20:
                        d = dacc(s, q, j)
                    elif s < 36:
                        d = vr(ACC + q * 32 + j * 4)
                    else:
                        d = ar(A_C4 + q * 32 + j * 4)
                    A(mfma(d, vr(PERM + (t % 2) * 8 + e * 4), ar(buf + q * 4), "0" if first else d))
                    for x in fill[n]:
                        if o.exp and 24 <= s < 34:
                            if isinstance(x, str) and "noperm" in o.exp and x.startswith("v_perm"):
                                continue
                            if isinstance(x, str) and "nods" in o.exp and x.startswith("ds_read"):
                                continue
                            if callable(x) and "noload" in o.exp:
                                r = x()
                                if not (r and r.startswith("buffer_load")):
                                    A(r)
                                continue
                        emit(x)
                    cv_, co_ = cap(s, n)
                    while fq and fq[0][0] <= s * 32 + n:
                        if fq[0][2] == "v":
                            if cv_ <= 0:
                                break
                        elif co_ <= 0:
                            break
                        cv_ -= 1
                        co_ -= 1
                        emit(fq.pop(0)[1])
                    n += 1

    A(g.waitvm("x"))
    A("s_barrier")
    for x in bread(0):
        A(x)
    A(g.waitvm("w0"))
    for p in perms(slot_rows(0), 0, PERM):
        A(p)
    A("s_waitcnt lgkmcnt(0)")
    g.stamp(1)
    kvn = 0
    kst = [int(x) for x in o.kst.split(",")] if o.kst else []
    vst = [int(x) for x in o.vst.split(",")] if o.vst else []

    def burst(grp, fn, name):
        def f():
            out = []
            if o.ng > 1:
                out += [f"s_cmp_lg_u32 s{S_GRP}, {grp}", f"s_cbranch_scc1 L_{name}{grp}"]
            for n in range(16):
                for x in fn(n):
                    out.append(g.vm(x[1], x[2], grp) if isinstance(x, tuple) else x)
            t = "\n    ".join(out)
            if o.ng > 1:
                t += f"\nL_{name}{grp}:"
            return t
        return f
    for s in range(20):
        extra = {}
        if kst:
            for grp in range(o.ng):
                if kst[grp] == s:
                    extra.setdefault(31, []).append(burst(grp, kload, "kb"))
                if vst[grp] == s:
                    extra.setdefault(31, []).append(burst(grp, vload, "vb"))
        elif o.kv0 <= s and kvn < 16:
            for c in range(o.kvper):
                if kvn < 16:
                    extra.setdefault(10 + c * 6, []).extend(kload(kvn))
                    extra.setdefault(13 + c * 6, []).extend(vload(kvn))
                    kvn += 1
        if o.wopre and s == o.wopre:
            extra.setdefault(17, []).extend([f"s_lshl_b32 s{S_STMP}, s{S_HQ}, 4", f"s_add_u32 s{S_STMP}, s{S_STMP}, s{S_BP}"])
            extra.setdefault(19, []).extend([f"s_lshl_b32 s{S_STMP}, s{S_STMP}, 2", f"s_add_u32 s{S_STMP}, s{S_STMP}, s{S_W}"])
            extra.setdefault(21, []).extend([f"s_mul_i32 s{S_STMP}, s{S_STMP}, 10240", f"v_mbcnt_lo_u32_b32 v{V_TMP}, -1, 0"])
            extra.setdefault(23, []).extend([f"v_mbcnt_hi_u32_b32 v{V_TMP}, -1, v{V_TMP}"])
            extra.setdefault(25, []).extend([f"v_lshlrev_b32 v{V_TMP}, 7, v{V_TMP}"])
            extra.setdefault(31, []).extend([("vm", f"buffer_load_dword a240, v{V_TMP}, s[{S_WO}:{S_WO+3}], s{S_STMP} offen", "pre"),
                                             f"s_add_u32 s{S_STMP}, s{S_STMP}, 8192", "s_mov_b64 exec, 0xffff",
                                             ("vm", f"buffer_load_dword a241, v{V_TMP}, s[{S_WO}:{S_WO+3}], s{S_STMP} offen", "pre"),
                                             "s_mov_b64 exec, -1"])
        step(s, s == 0, s == 19, extra)
    assert kvn == 16 or kst
    if not o.defer:
        for r in range(8 - o.spread, 8):
            A(wload(22, r))
    g.stamp(2)

    vi, vG, vt, KA = 6, 7, 8, 2
    if o.fuse:
        A(f"s_load_dwordx2 s[{S_OUT}:{S_OUT+1}], s[0:1], 80")
        A(f"s_load_dwordx2 s[{S_DBG}:{S_DBG+1}], s[0:1], 88")
        A(f"s_mov_b32 s{S_OUT+2}, 2621440")
        A(f"s_mov_b32 s{S_DBG+2}, 256")
    A(f"s_movk_i32 s{S_G}, 0x78")
    A(f"v_lshrrev_b32 v{vG}, 10, v{V_VG}")
    A(f"v_bfe_u32 v{vi}, v{V_VG}, 4, 4")
    A(f"v_lshrrev_b32 v{vt}, 2, v{vi}")
    A(f"v_lshlrev_b32 v{vt}, 1, v{vt}")
    A(f"v_lshrrev_b32 v{vt}, v{vt}, s{S_G}")
    A(f"v_xor_b32 v{vt}, v{vt}, v{vG}")
    A(f"v_and_b32 v{vt}, 3, v{vt}")
    A(f"v_lshlrev_b32 v{vt}, 2, v{vt}")
    A(f"v_and_or_b32 v{vt}, v{vi}, 3, v{vt}")
    A(f"v_lshlrev_b32 v{vt}, 4, v{vt}")
    A(f"v_lshl_add_u32 v{vt}, v{vi}, 8, v{vt}")
    A(f"v_add_u32 v{KA}, s{S_KLDS}, v{vt}")
    for u in range(1, 4):
        A(f"v_xor_b32 v{KA+u}, {u*16}, v{KA}")
    A(f"v_lshlrev_b32 v{V_LX}, 8, v{vG}")
    A(f"v_lshl_add_u32 v{V_LX}, v{vi}, 4, v{V_LX}")
    def c4pre_b():
        A(f"s_mul_i32 s{S_T0}, s{S_BP}, {8*1280}")
        A(f"s_add_u32 s{S_T0}, s{S_T0}, s{S_CW+16}")
        A(f"v_mul_u32_u24 v{V_TMP}, {1280-256}, v{vG}")
        A(f"v_add_u32 v{V_TMP}, v{V_TMP}, v{V_LX}")
        A(g.vm(f"buffer_load_dwordx4 {ar(240)}, v{V_TMP}, s[{S_WO}:{S_WO+3}], s{S_T0} offen", "pre"))
        A(f"s_add_u32 s{S_T0}, s{S_T0}, {4*1280}")
        A(g.vm(f"buffer_load_dwordx4 {ar(244)}, v{V_TMP}, s[{S_WO}:{S_WO+3}], s{S_T0} offen", "pre"))
    A(g.waitvm("k"))
    if o.c4pre == 1:
        c4pre_b()
    if o.fuse:
        A("s_waitcnt lgkmcnt(0)")

    def kread(bt):
        for kb in range(2):
            for u in range(4):
                A(f"ds_read_b128 {ar(A_K+((bt*2+kb)*4+u)*4)}, v{KA+u} offset:{bt*8192+kb*4096}")
    QB = [PERM, 128, 144, 160]
    SA = 176
    cv = []
    for q in range(4):
        c = []
        for t in range(4):
            for u in range(4):
                c.append(f"v_cvt_pk_bf16_f32 v{QB[q]+u*4+t}, v{ACC+q*32+(2*t)*4+u}, v{ACC+q*32+(2*t+1)*4+u}")
        cv.append(c)
    kread(0)
    for x in cv[0]:
        A(x)
    A("s_waitcnt lgkmcnt(4)")
    kread(1)
    for x in cv[1]:
        A(x)
    A("s_waitcnt lgkmcnt(8)")

    def smfma(bt):
        r = []
        for u in range(4):
            for kb in range(2):
                for qq in range(2):
                    d = vr(SA + ((bt * 2 + kb) * 2 + qq) * 4)
                    r.append(mfma(d, ar(A_K + ((bt * 2 + kb) * 4 + u) * 4), vr(QB[bt * 2 + qq] + u * 4), "0" if u == 0 else d))
        return r
    s0 = smfma(0)
    rest = cv[2] + cv[3]
    A("s_nop 1")
    for n in range(16):
        A(s0[n])
        A(rest[2 * n])
        A(rest[2 * n + 1])
    A("s_waitcnt lgkmcnt(0)")
    A("s_nop 1")
    s1 = smfma(1)

    PB = 208
    TM = 224

    def softmax(q):
        bt, qq = q // 2, q % 2
        sv = [SA + ((bt * 2 + kb) * 2 + qq) * 4 + r for kb in range(2) for r in range(4)]
        m, t2 = TM + q * 4, TM + q * 4 + 1
        ph = []
        ph.append([f"v_max3_f32 v{m}, v{sv[0]}, v{sv[1]}, v{sv[2]}",
                   f"v_max3_f32 v{t2}, v{sv[3]}, v{sv[4]}, v{sv[5]}",
                   f"v_max3_f32 v{m}, v{m}, v{sv[6]}, v{sv[7]}",
                   f"v_max_f32 v{m}, v{m}, v{t2}",
                   f"v_mov_b32 v{t2}, v{m}"])
        ph.append([f"v_permlane32_swap_b32 v{m}, v{t2}"])
        ph.append([f"v_max_f32 v{m}, v{m}, v{t2}", f"v_mov_b32 v{t2}, v{m}"])
        ph.append([f"v_permlane16_swap_b32 v{m}, v{t2}"])
        ph.append([f"v_max_f32 v{m}, v{m}, v{t2}", f"v_mul_f32 v{m}, s{S_SC}, v{m}"] +
                  [f"v_fma_f32 v{x}, v{x}, s{S_SC}, -v{m}" for x in sv] +
                  [f"v_exp_f32 v{x}, v{x}" for x in sv])
        ph.append([f"v_add_f32 v{m}, v{sv[0]}, v{sv[1]}", f"v_add_f32 v{t2}, v{sv[2]}, v{sv[3]}",
                   f"v_add_f32 v{m}, v{m}, v{sv[4]}", f"v_add_f32 v{t2}, v{t2}, v{sv[5]}",
                   f"v_add_f32 v{m}, v{m}, v{sv[6]}", f"v_add_f32 v{t2}, v{t2}, v{sv[7]}",
                   f"v_add_f32 v{m}, v{m}, v{t2}", f"v_mov_b32 v{t2}, v{m}"])
        ph.append([f"v_permlane32_swap_b32 v{m}, v{t2}"])
        ph.append([f"v_add_f32 v{m}, v{m}, v{t2}", f"v_mov_b32 v{t2}, v{m}"])
        ph.append([f"v_permlane16_swap_b32 v{m}, v{t2}"])
        ph.append([f"v_add_f32 v{m}, v{m}, v{t2}"])
        ph.append([f"v_rcp_f32 v{m}, v{m}"])
        ph.append([f"v_mul_f32 v{x}, v{x}, v{m}" for x in sv])
        ph.append([f"v_cvt_pk_bf16_f32 v{PB+q*4+p}, v{sv[2*p]}, v{sv[2*p+1]}" for p in range(4)])
        return ph

    def softmax_pair(q0):
        a, b = softmax(q0), softmax(q0 + 1)
        out = []
        for pa, pb in zip(a, b):
            if pa[0].startswith("v_permlane"):
                out.append("s_nop 1")
            out += pa + pb
            if pa[0].startswith("v_rcp") or pa[0].startswith("v_permlane"):
                out.append("s_nop 0")
        return out
    sm0 = softmax_pair(0)
    for n in range(16):
        A(s1[n])
        if n >= 4:
            for _ in range(2):
                A(sm0.pop(0))
    for x in sm0:
        A(x)
    sm1 = softmax_pair(2)
    for n, x in enumerate(sm1):
        A(x)
        if o.defer == 2 and n % 12 == 11 and n // 12 < 8:
            A(wload(21, n // 12))
    g.stamp(3)
    A(g.waitvm("v"))
    dl = []
    if o.defer == 1:
        dl = [(21, r) for r in range(8)] + [(22, r) for r in range(8)]
    if o.defer == 2:
        dl = [(22, r) for r in range(8)]
    if o.defer == 3:
        for r in range(8):
            A(wload(20, r))
        dl = [(21, r) for r in range(8)] + [(22, r) for r in range(8)]
    OA = 128
    VT = 192
    VP1 = 224
    STG = 200

    def vperm(bt, t, dst):
        r = [f"v_accvgpr_read_b32 v{VT+x}, a{A_V+bt*32+x*4+t}" for x in range(8)]
        for e in range(2):
            for p in range(4):
                r.append(f"v_perm_b32 v{dst+e*4+p}, v{VT+2*p+1}, v{VT+2*p}, s{S_PLO if e == 0 else S_PHI}")
        return r
    for x in vperm(0, 0, PERM):
        A(x)
    for t in range(4):
        nxt = vperm(0, t + 1, PERM + ((t + 1) % 2) * 8) if t < 3 else vperm(1, 0, VP1)
        A("s_nop 1") if t == 0 else None
        k = 0
        for e in range(2):
            for qq in range(2):
                A(mfma(vr(OA + qq * 32 + (2 * t + e) * 4), vr(PERM + (t % 2) * 8 + e * 4), vr(PB + qq * 4), "0"))
                for x in nxt[k * 4:k * 4 + 4]:
                    A(x)
                if dl and (o.defer != 2 or k % 2):
                    A(wload(*dl.pop(0)))
                k += 1
        A("s_nop 0")
    assert not dl
    for t in range(1, 4):
        for x in vperm(1, t, VP1 + t * 8):
            A(x)
    A(f"v_add_u32 v{V_B}, s{S_KLDS}, v{V_LX}")

    def ocvt(bt, qq):
        r = []
        for u in range(4):
            st = STG + (u % 2) * 4
            for t in range(4):
                r.append(f"v_cvt_pk_bf16_f32 v{st+t}, v{OA+qq*32+(2*t)*4+u}, v{OA+qq*32+(2*t+1)*4+u}")
            r.append(f"ds_write_b128 v{V_B}, {vr(st)} offset:{u*4096+(bt*2+qq)*1024}")
        return r

    def pv1(qq):
        return [mfma(vr(OA + qq * 32 + j * 4), vr(VP1 + j * 4), vr(PB + (2 + qq) * 4), "0") for j in range(8)]
    for x in ocvt(0, 0):
        A(x)
    c = ocvt(0, 1)
    for mm in pv1(0):
        A(mm)
        for _ in range(3):
            if c:
                A(c.pop(0))
    assert not c
    m1 = pv1(1)
    c = ocvt(1, 0)
    for n, mm in enumerate(m1):
        A(mm)
    A("s_waitcnt lgkmcnt(4)")
    for x in c:
        A(x)
    for x in ocvt(1, 1):
        A(x)
    A(f"s_lshl_b32 s{S_T0}, s{S_W}, 10")
    A(f"v_add_u32 v{V_W}, s{S_T0}, v{V_B}")
    for x in range(1, 4):
        A(f"v_xor_b32 v{V_W+x}, {x*1024}, v{V_W}")
    A(f"s_lshl_b32 s{S_CL}, s{S_BP}, 12" if o.rot else f"s_mov_b32 s{S_CL}, 0")
    if o.dp:
        A(f"s_and_b32 s{S_CL}, s{S_CL}, 0x7fff")
        A(f"s_and_b32 s{S_T0}, s{S_W}, 1")
        A(f"s_mul_i32 s{S_T0}, s{S_T0}, {32768+2048}")
        A(f"v_add_u32 v{V_KG}, s{S_T0}, v{V_LX}")
        for x in range(1, 4):
            A(f"s_xor_b32 s{S_T0}, s{S_W}, {x}")
            A(f"s_mul_i32 s{S_T0}, s{S_T0}, {3*8192}")
            A(f"s_add_u32 s{S_T0}, s{S_T0}, {LDS_R + (x-1)*8192}")
            A(f"v_add_u32 v{5+x}, s{S_T0}, v{V_LX}")
        A(f"s_mul_i32 s{S_T0}, s{S_W}, {3*8192}")
        A(f"s_add_u32 s{S_T0}, s{S_T0}, {LDS_R}")
        A(f"v_add_u32 v9, s{S_T0}, v{V_LX}")
    A(g.waitvm("w20"))
    if o.fuse:
        A(f"s_cmp_lg_u32 s{S_W}, 0")
        A("s_cbranch_scc1 L_noann")
        A(f"s_lshr_b32 s{S_T0}, s2, 3")
        A(f"s_lshl_b32 s{S_T0}, s{S_T0}, 2")
        A(f"s_add_u32 s{S_T0}, s{S_T0}, 128")
        A(f"v_mov_b32 v{V_TMP}, 1")
        A("s_mov_b64 exec, 1")
        A(f"buffer_atomic_add v{V_TMP}, off, s[{S_DBG}:{S_DBG+3}], s{S_T0} sc1")
        A("s_mov_b64 exec, -1")
        g.lab("L_noann")
    for p in perms(slot_rows(20), 0, PERM):
        A(p)
    A("s_waitcnt lgkmcnt(0)")
    if not o.dp:
        A("s_barrier")
    for x in bread(20):
        A(x)
    A("s_waitcnt lgkmcnt(0)")
    g.stamp(4)
    if o.dp:
        stage_c_dp(g, step, fq, emit)
        finish(g)
        return

    for s in range(20, 36):
        extra = {}
        if o.c4pre and s == o.c4pre:
            extra[17] = [f"s_mul_i32 s{S_T0}, s{S_BP}, {8*1280}", f"s_add_u32 s{S_T0}, s{S_T0}, s{S_CW+16}"]
            extra[19] = [f"v_lshrrev_b32 v{V_TMP}, 8, v{V_LX}", f"v_mul_u32_u24 v{V_TMP}, {1280-256}, v{V_TMP}"]
            extra[21] = [f"v_add_u32 v{V_TMP}, v{V_TMP}, v{V_LX}"]
            extra[31] = [("vm", f"buffer_load_dwordx4 {ar(0)}, v{V_TMP}, s[{S_WO}:{S_WO+3}], s{S_T0} offen", "pre"),
                         f"s_add_u32 s{S_T0}, s{S_T0}, {4*1280}",
                         ("vm", f"buffer_load_dwordx4 {ar(4)}, v{V_TMP}, s[{S_WO}:{S_WO+3}], s{S_T0} offen", "pre")]
        if o.e39 and s == 35:
            extra = {11: [f"s_lshr_b32 s{S_KS+4}, s2, 3"], 13: [f"s_lshl_b32 s{S_KS+4}, s{S_KS+4}, 2"], 15: [f"s_add_u32 s{S_KS+4}, s{S_KS+4}, 128"],
                     19: [("vm", f"buffer_load_dword v{V_B}, off, s[{S_DBG}:{S_DBG+3}], s{S_KS+4} sc1", "clr")]}
        step(s, s == 20, False, extra)
    g.stamp(5)
    ST2 = V_W + 4
    stg = [6, 12]
    outs = []
    A(f"s_lshl_b32 s{S_T0}, s{S_W}, 14")
    A(f"s_add_u32 s{S_T0}, s{S_T0}, s{S_ST}")
    for q in range(4):
        A(f"s_add_u32 s{S_KS+q}, s{S_T0}, {q*4096}")
    T = S_KS
    if o.fuse == 3:
        A(f"v_lshrrev_b32 v{V_B}, 9, v{V_LX}")
        A(f"s_lshr_b32 s{T+9}, s{S_HQ}, 1")
        A(f"v_mul_u32_u24 v{V_B}, 1536, v{V_B}")
        A(f"s_bitcmp1_b32 s{S_HQ}, 0")
        A(f"s_cselect_b32 s{T+16}, 0, {-1 if o.own else 0}")
        A(f"s_cselect_b32 s{T+17}, {-1 if o.own else 0}, 0")
        A(f"v_add_u32 v{V_B}, v{V_B}, v{V_LX}")
    for q in range(4):
        for r in range(4):
            st = stg[r % 2]
            for t in range(4):
                x = f"v_cvt_pk_bf16_f32 v{st+t}, v{ACC+q*32+(2*t)*4+r}, v{ACC+q*32+(2*t+1)*4+r}"
                if o.fuse == 3 and r == 0 and t == 1:
                    x += f"\n    s_cmp_eq_u32 s{T+9}, {q}\n    s_cselect_b64 s[{T+26}:{T+27}], s[{T+16}:{T+17}], 0"
                if o.fuse == 3 and r == 0 and t == 2:
                    x += f"\n    v_cndmask_b32 v{V_TMP}, v{V_B}, 2.0, s[{T+26}:{T+27}]"
                outs.append(x)
            if o.fuse == 3:
                outs.append(("vm", f"buffer_store_dwordx4 {vr(st)}, v{V_TMP}, s[{S_WS}:{S_WS+3}], s{S_KS+q} offen offset:{r*512} {o.pst}", "st"))
            else:
                outs.append(("vm", f"buffer_store_dwordx4 {vr(st)}, v{V_LX}, s[{S_WS}:{S_WS+3}], s{S_KS+q} offen offset:{r*1024} {o.pst}", "st"))
    ex36 = {}
    if o.fuse:
        ex36 = {13: [f"s_lshr_b32 s{S_KS+4}, s2, 3"], 15: [f"s_lshl_b32 s{S_KS+4}, s{S_KS+4}, 2"], 17: [f"s_add_u32 s{S_KS+4}, s{S_KS+4}, 128"],
                31: [("vm", f"buffer_load_dword {'a96' if o.fuse == 3 else f'v{V_B}'}, off, s[{S_DBG}:{S_DBG+3}], s{S_KS+4} sc1", "clr")]}
    if o.e39:
        cps = [f"v_accvgpr_read_b32 v{RING+n}, a{n}" for n in range(32)]
        for s in range(36, 40):
            extra = {}
            for k in range(1 if s == 36 else 0, 32):
                extra[k] = []
                for rep in range(2 if (o.dens and k % 2 == 1) else 1):
                    if outs:
                        extra[k].append(outs.pop(0))
                if s == 36 and k == 23:
                    extra[k].append(lambda: g.waitvm("w39"))
                if cps and (s, k) >= ((37, 0) if not o.dens else (37, 12)):
                    extra[k].append(cps.pop(0))
            if s == 38:
                assert not cps
            step(s, s == 36, s == 39, extra)
    else:
        step(36, True, False, ex36)
    for s in range(37, 40 if not o.e39 else 0):
        extra = {}
        lo = 11 + 2 * o.spread if (s == 37 and o.spread) else 0
        for k in range(lo, 32):
            if outs:
                extra[k] = [outs.pop(0)]
                if s == 39 and k >= 24 and outs:
                    extra[k].append(outs.pop(0))
        step(s, False, s == 39, extra)
    for x in outs:
        emit(x)
    g.stamp(6)
    for x in range(1, 4):
        A(f"s_xor_b32 s{S_T0}, s{S_W}, {x}")
        A(f"s_mul_i32 s{S_T0}, s{S_T0}, {3*8192}")
        A(f"s_add_u32 s{S_T0}, s{S_T0}, {LDS_R + (x-1)*8192}")
        A(f"v_add_u32 v{V_W+x}, s{S_T0}, v{V_LX}")
    A(f"s_mul_i32 s{S_T0}, s{S_W}, {3*8192}")
    A(f"s_add_u32 s{S_T0}, s{S_T0}, {LDS_R}")
    A(f"v_add_u32 v{V_W}, s{S_T0}, v{V_LX}")
    if o.fuse == 3 and o.il:
        mark = len(g.L)
        pick(g, "m", 8, f"s{S_HQ}", own_main)
        blob = g.L[mark:]
        del g.L[mark:]
        for n in range(32):
            A(f"v_accvgpr_read_b32 v{ACC+n}, a{A_C4+n}")
        A(f"s_lshl_b32 s{S_T0}, s{S_W}, 12")
        A(f"s_add_u32 s{S_T0}, s{S_T0}, s{S_ST}")
        A(f"s_add_u32 s{S_T0}, s{S_T0}, 65536")
        tail3_addr(g)
        fl = g.L[mark:]
        del g.L[mark:]
        n = 0
        for j in range(8):
            for x in range(1, 4):
                A(f"ds_write_b128 v{V_W+x}, {ar(A_C4+x*32+j*4)} offset:{j*1024}")
                if n == 1:
                    g.L += blob
                elif n > 1:
                    k = -(-len(fl) // (24 - n))
                    while k < len(fl) and fl[k].split()[0].startswith("s_cselect"):
                        k += 1
                    g.L += fl[:k]
                    del fl[:k]
                if n % 4 == 3:
                    A(f"s_waitcnt lgkmcnt({o.il})")
                n += 1
        assert not fl
    else:
        A("s_nop 7")
        for x in range(1, 4):
            for j in range(8):
                A(f"ds_write_b128 v{V_W+x}, {ar(A_C4+x*32+j*4)} offset:{j*1024}")
            A("s_waitcnt lgkmcnt(6)")
        if o.fuse == 3:
            pick(g, "m", 8, f"s{S_HQ}", own_main)
        for n in range(32):
            A(f"v_accvgpr_read_b32 v{ACC+n}, a{A_C4+n}")
        A(f"s_lshl_b32 s{S_T0}, s{S_W}, 12")
        A(f"s_add_u32 s{S_T0}, s{S_T0}, s{S_ST}")
        A(f"s_add_u32 s{S_T0}, s{S_T0}, 65536")
        if o.fuse == 2:
            tail2_addr(g)
        if o.fuse == 3:
            tail3_addr(g)
    A("s_waitcnt lgkmcnt(0)")
    A("s_barrier")
    for x in range(3):
        for j in range(8):
            A(f"ds_read_b128 {vr(RING+x*32+j*4)}, v{V_W} offset:{x*8192+j*1024}")
            if x >= 1 and j == 3:
                A("s_waitcnt lgkmcnt(4)")
                if o.fuse >= 2 and o.ph == 2 and o.fa == 3 - x:
                    tail2_flag(g, 1)
                for n in range(32):
                    A(f"v_add_f32 v{ACC+n}, v{ACC+n}, v{RING+(x-1)*32+n}")
    A("s_waitcnt lgkmcnt(0)")
    for n in range(32):
        A(f"v_add_f32 v{ACC+n}, v{ACC+n}, v{RING+64+n}")
    for r in range(4):
        st = (PERM if o.fuse != 3 else ACC + 32) + r * 4
        for t in range(4):
            A(f"v_cvt_pk_bf16_f32 v{st+t}, v{ACC+(2*t)*4+r}, v{ACC+(2*t+1)*4+r}")
        if o.fuse >= 2 and o.ph == 2 and o.fa == 0 and r == 0:
            tail2_flag(g, 1)
        if o.fuse == 3:
            A(g.vm(f"buffer_store_dwordx4 {vr(st)}, v{VS3}, s[{S_WS}:{S_WS+3}], s{S_T0} offen offset:{r*128} {o.pst}", "st"))
        else:
            A(g.vm(f"buffer_store_dwordx4 {vr(st)}, v{V_LX}, s[{S_WS}:{S_WS+3}], s{S_T0} offen offset:{r*1024} {o.pst}", "st"))
    if o.fuse == 3:
        tail3(g)
    elif o.fuse == 2:
        tail2(g)
    elif o.fuse:
        fused_tail(g)
    finish(g)


def finish(g):
    o = g.o
    A = g.A
    if o.diag:
        g.stamp(7) if not o.fuse else None
        A("s_waitcnt vmcnt(0)")
        g.stamp(8)
        if o.fuse:
            A("s_mov_b32 s2, vcc_hi")
        A(f"s_memrealtime s[{S_TS}:{S_TS+1}]")
        A("s_waitcnt lgkmcnt(0)")
        A(f"v_writelane_b32 v{V_TID}, s{S_TS}, 9")
        A(f"s_lshl_b32 s{S_T0}, s2, 2")
        A(f"s_add_u32 s{S_T0}, s{S_T0}, s{S_W}")
        A(f"s_lshl_b32 s{S_T0}, s{S_T0}, 8")
        A(f"s_add_u32 s{S_T0}, s{S_T0}, 0x8000000")
        A(f"v_lshrrev_b32 v{V_TMP}, 2, v{V_LX}")
        A(f"buffer_store_dword v{V_TID}, v{V_TMP}, s[{S_WS}:{S_WS+3}], s{S_T0} offen")
        if o.diag == 3 and o.fuse:
            A(f"s_lshl_b32 s{S_T0}, s2, 2")
            A(f"s_add_u32 s{S_T0}, s{S_T0}, s{S_W}")
            A(f"s_cmp_lg_u32 s{S_T0}, {o.sel}")
            A("s_cbranch_scc1 L_main_end")
            A(f"v_readlane_b32 s{S_T0}, v{V_TID}, 56")
            A(f"v_readlane_b32 s{S_T1}, v{V_TID}, 57")
            A(f"v_readlane_b32 s{S_STMP}, v{V_TID}, 58")
            A("s_nop 3")
            A(f"v_writelane_b32 v{V_TID}, s{S_T0}, 12")
            A(f"v_writelane_b32 v{V_TID}, s{S_T1}, 14")
            A(f"v_writelane_b32 v{V_TID}, s{S_STMP}, 15")
            A("s_mov_b64 exec, 0xffff")
            A(f"buffer_store_dword v{V_TID}, v{V_TMP}, s[{S_DBG}:{S_DBG+3}], 0 offen")
        if o.diag == 2:
            A("s_load_dwordx2 s[32:33], s[0:1], 88")
            A("v_readlane_b32 s36, v0, 10")
            A("v_readlane_b32 s37, v0, 8")
            A("s_mov_b32 s34, 64")
            A("s_mov_b32 s35, 0x20000")
            A("s_not_b32 s36, s36")
            A("s_not_b32 s37, s37")
            A("v_writelane_b32 v0, s36, 11")
            A("v_writelane_b32 v0, s37, 12")
            A("s_waitcnt lgkmcnt(0)")
            A(f"buffer_atomic_umax v0, v{V_TMP}, s[32:35], 0 offen sc1")
    g.lab("L_main_end")
    A("s_endpgm")


def fused_tail(g):
    o = g.o
    A = g.A
    T = S_KS
    g.stamp(7)
    A(f"s_lshr_b32 s{T+5}, s2, 3")
    A(f"s_and_b32 s{T+6}, s2, 7")
    A(f"s_mul_i32 s{T+7}, s{T+5}, {8*(81920+o.pad)}")
    A(f"s_lshl_b32 s{T+8}, s{T+6}, 3")
    A(f"s_lshl_b32 s{T+9}, s{S_W}, 1")
    A(f"s_add_u32 s{T+8}, s{T+8}, s{T+9}")
    A(f"s_lshl_b32 s{T+9}, s{T+6}, 1")
    A(f"s_lshr_b32 s{T+10}, s{S_W}, 1")
    A(f"s_add_u32 s{T+9}, s{T+9}, s{T+10}")
    A(f"s_add_u32 s{T+9}, s{T+9}, 64")
    A(f"s_lshl_b32 s{T+10}, s{T+8}, 10")
    A(f"s_add_u32 s{T+10}, s{T+10}, s{T+7}")
    A(f"s_lshl_b32 s{T+11}, s{T+9}, 10")
    A(f"s_add_u32 s{T+11}, s{T+11}, s{T+7}")
    A(f"s_and_b32 s{T+12}, s{T+5}, 15")
    A(f"s_mul_i32 s{T+12}, s{T+12}, {4*40960}")
    A(f"s_lshr_b32 s{T+13}, s{T+5}, 4")
    A(f"s_mul_i32 s{T+13}, s{T+13}, 1280")
    A(f"s_add_u32 s{T+12}, s{T+12}, s{T+13}")
    for blk, dst in ((T+8, T+14), (T+9, T+15)):
        A(f"s_bfe_u32 s{T+13}, s{blk}, 0x20002")
        A(f"s_mul_i32 s{T+13}, s{T+13}, 40960")
        A(f"s_add_u32 s{dst}, s{T+12}, s{T+13}")
        A(f"s_lshr_b32 s{T+13}, s{blk}, 4")
        A(f"s_lshl_b32 s{T+13}, s{T+13}, 8")
        A(f"s_add_u32 s{dst}, s{dst}, s{T+13}")
        A(f"s_and_b32 s{T+13}, s{blk}, 3")
        A(f"s_lshl_b32 s{T+13}, s{T+13}, 4")
        A(f"s_add_u32 s{dst}, s{dst}, s{T+13}")
    A(f"s_bitcmp1_b32 s{S_W}, 0")
    A(f"s_cselect_b32 s{T+16}, 0, -1")
    A(f"s_cselect_b32 s{T+17}, -1, 0")
    A(f"s_mov_b32 s{T+18}, 0x3f80")
    A(f"s_mov_b32 s{T+19}, 0x3f800000")
    A(f"s_mov_b32 s{T+20}, 0xffff0000")
    VO, VF, VP = 2, 3, 4
    A(f"v_bfe_u32 v{VO}, v{V_LX}, 4, 4")
    A(f"v_lshrrev_b32 v{VF}, 8, v{V_LX}")
    A(f"v_mul_u32_u24 v{VO}, 2560, v{VO}")
    A(f"v_lshl_add_u32 v{VO}, v{VF}, 6, v{VO}")
    A(f"v_lshlrev_b32 v{VF}, 3, v{V_LX}")
    A(f"s_lshl_b32 s{T+21}, s2, 7")
    A(f"s_add_u32 s{T+21}, s{T+21}, {WS_FLAG}")
    A(f"s_lshl_b32 s{T+22}, s{T+5}, 10")
    A(f"s_add_u32 s{T+22}, s{T+22}, {WS_FLAG}")
    A(f"s_mov_b32 s{T+23}, {1<<20}")
    A(f"v_mov_b32 v{VP}, 1")
    A("s_waitcnt vmcnt(0)")
    A("s_barrier")
    g.stamp(56)
    A(f"s_cmp_lg_u32 s{S_W}, 0")
    A("s_cbranch_scc1 L_polled")
    A("s_mov_b64 exec, 1")
    A(f"buffer_store_dword v{VP}, off, s[{S_WS}:{S_WS+3}], s{T+21} sc1")
    g.lab("L_clr")
    A(f"v_readfirstlane_b32 s{T+24}, v{V_B}")
    A(f"s_sub_u32 s{T+23}, s{T+23}, 1")
    A("s_cbranch_scc1 L_polled")
    A(f"s_cmp_ge_u32 s{T+24}, 8")
    A("s_cbranch_scc1 L_poll0")
    A(f"buffer_load_dword v{V_B}, off, s[{S_DBG}:{S_DBG+3}], s{S_KS+4} sc1")
    A("s_waitcnt vmcnt(0)")
    A("s_branch L_clr")
    g.lab("L_poll0")
    A("s_mov_b64 exec, 0xff")
    g.lab("L_poll")
    A(f"buffer_load_dword v{VP}, v{VF}, s[{S_WS}:{S_WS+3}], s{T+22} offen sc1")
    A(f"s_sub_u32 s{T+23}, s{T+23}, 1")
    A("s_cbranch_scc1 L_polled")
    A("s_waitcnt vmcnt(0)")
    A(f"v_cmp_ne_u32 s[{T+24}:{T+25}], 1, v{VP}")
    A("s_nop 3")
    A(f"s_cmp_lg_u32 s{T+24}, 0")
    A("s_cbranch_scc1 L_poll")
    g.lab("L_polled")
    A("s_mov_b64 exec, -1")
    A("s_waitcnt vmcnt(0)")
    A("s_barrier")
    g.stamp(57)
    R = RING
    for h in range(8):
        A(f"buffer_load_dwordx4 {vr(R+h*12)}, v{V_LX}, s[{S_WS}:{S_WS+3}], s{T+10} offen sc1")
        A(f"buffer_load_dwordx4 {vr(R+h*12+4)}, v{V_LX}, s[{S_WS}:{S_WS+3}], s{T+10} offen offset:1024 sc1")
        A(f"s_mov_b64 exec, s[{T+16}:{T+17}]")
        A(f"buffer_load_dwordx4 {vr(R+h*12+8)}, v{V_LX}, s[{S_WS}:{S_WS+3}], s{T+11} offen sc1")
        A("s_mov_b64 exec, -1")
        if h < 7:
            A(f"s_add_u32 s{T+10}, s{T+10}, {81920+o.pad}")
            A(f"s_add_u32 s{T+11}, s{T+11}, {81920+o.pad}")
    for h in range(8):
        for b in range(3):
            A(f"s_waitcnt vmcnt({23-h*3-b})")
            for t in range(4):
                src = R + h * 12 + b * 4 + t
                d = ACC + b * 8 + 2 * t
                if h == 0:
                    A(f"v_lshlrev_b32 v{d}, 16, v{src}")
                    A(f"v_and_b32 v{d+1}, s{T+20}, v{src}")
                else:
                    A(f"v_dot2c_f32_bf16 v{d}, s{T+18}, v{src}")
                    A(f"v_dot2c_f32_bf16 v{d+1}, s{T+19}, v{src}")
    g.stamp(58)
    A("s_nop 1")
    for b in range(3):
        for t in range(4):
            A(f"v_cvt_pk_bf16_f32 v{PERM+b*4+t}, v{ACC+b*8+2*t}, v{ACC+b*8+2*t+1}")
        if b == 2:
            A(f"s_mov_b64 exec, s[{T+16}:{T+17}]")
        A(f"buffer_store_dwordx4 {vr(PERM+b*4)}, v{VO}, s[{S_OUT}:{S_OUT+3}], s{T+14+b//2} offen offset:{16*(b%2)} {o.pout}")
    if o.diag:
        A("s_mov_b64 exec, -1")


VO2, VF2, VP2, VQ2 = 6, 7, 8, 9


def flag_base(g, d, t):
    A = g.A
    if g.o.fl:
        A(f"s_lshr_b32 s{d}, s2, 3")
        A(f"s_lshl_b32 s{d}, s{d}, 9")
        A(f"s_and_b32 s{t}, s2, 7")
        A(f"s_lshl_b32 s{t}, s{t}, 2")
        A(f"s_add_u32 s{d}, s{d}, s{t}")
    else:
        A(f"s_lshl_b32 s{d}, s2, 9")
    A(f"s_add_u32 s{d}, s{d}, {WS_FLAG}")


def tail2_addr(g):
    o = g.o
    A = g.A
    T = S_KS
    A(f"s_lshr_b32 s{T+5}, s2, 3")
    A(f"s_and_b32 s{T+6}, s2, 7")
    A(f"s_mul_i32 s{T+7}, s{T+5}, {8*(81920+o.pad)}")
    A(f"s_lshl_b32 s{T+8}, s{T+6}, 3")
    A(f"s_mul_i32 s{T+9}, s{S_W}, 3")
    A(f"s_add_u32 s{T+8}, s{T+8}, s{T+9}")
    A(f"s_lshl_b32 s{T+9}, s{T+6}, 1")
    A(f"s_add_u32 s{T+9}, s{T+9}, 64")
    A(f"s_cmp_eq_u32 s{S_W}, 3")
    A(f"s_cselect_b32 s{T+8}, s{T+9}, s{T+8}")
    A(f"s_cselect_b32 s{T+17}, 2, 1")
    A(f"s_lshl_b32 s{T+10}, s{T+8}, 10")
    A(f"s_add_u32 s{T+10}, s{T+10}, s{T+7}")
    A(f"s_and_b32 s{T+12}, s{T+5}, 15")
    A(f"s_mul_i32 s{T+12}, s{T+12}, {4*40960}")
    A(f"s_lshr_b32 s{T+13}, s{T+5}, 4")
    A(f"s_mul_i32 s{T+13}, s{T+13}, 1280")
    A(f"s_add_u32 s{T+12}, s{T+12}, s{T+13}")
    for b in range(3):
        dst = T + 14 + b
        A(f"s_bfe_u32 s{T+13}, s{T+8}, 0x20002")
        A(f"s_mul_i32 s{T+13}, s{T+13}, 40960")
        A(f"s_add_u32 s{dst}, s{T+12}, s{T+13}")
        A(f"s_lshr_b32 s{T+13}, s{T+8}, 4")
        A(f"s_lshl_b32 s{T+13}, s{T+13}, 8")
        A(f"s_add_u32 s{dst}, s{dst}, s{T+13}")
        A(f"s_and_b32 s{T+13}, s{T+8}, 3")
        A(f"s_lshl_b32 s{T+13}, s{T+13}, 4")
        A(f"s_add_u32 s{dst}, s{dst}, s{T+13}")
        if b < 2:
            A(f"s_add_u32 s{T+8}, s{T+8}, 1")
    A(f"s_mov_b32 s{T+18}, 0x3f80")
    A(f"s_mov_b32 s{T+19}, 0x3f800000")
    A(f"s_mov_b32 s{T+20}, 0xffff0000")
    A(f"v_bfe_u32 v{VO2}, v{V_LX}, 4, 4")
    A(f"v_lshrrev_b32 v{VF2}, 8, v{V_LX}")
    A(f"v_mul_u32_u24 v{VO2}, 2560, v{VO2}")
    A(f"v_lshl_add_u32 v{VO2}, v{VF2}, 6, v{VO2}")
    if o.fl:
        A(f"v_lshrrev_b32 v{VF2}, 2, v{V_LX}")
    else:
        A(f"v_lshlrev_b32 v{VF2}, 5, v{V_LX}")
    flag_base(g, T + 21, T + 13)
    A(f"s_lshl_b32 s{T+13}, s{S_W}, 7")
    A(f"s_add_u32 s{T+21}, s{T+21}, s{T+13}")
    A(f"s_lshl_b32 s{T+22}, s{T+5}, {9 if o.fl else 12}")
    A(f"s_lshr_b32 s{T+13}, s{T+6}, 1")
    A(f"s_lshl_b32 s{T+13}, s{T+13}, 7")
    A(f"s_add_u32 s{T+22}, s{T+22}, s{T+13}")
    A(f"s_add_u32 s{T+22}, s{T+22}, {WS_FLAG}")
    A(f"s_mov_b32 s{T+23}, {1<<20}")
    A(f"v_mov_b32 v{VP2}, 1")
    A(f"v_mov_b32 v{VQ2}, 2")


def tail2_flag(g, val):
    A = g.A
    T = S_KS
    for k in range(len(g.vq)):
        g.vq[k] = []
    A("s_waitcnt vmcnt(0)")
    g.stamp(59)
    A("s_mov_b64 exec, 1")
    A(f"buffer_store_dword v{VP2}, off, s[{S_WS}:{S_WS+3}], s{T+21} sc1")
    A("s_mov_b64 exec, -1")


def tail2(g):
    o = g.o
    A = g.A
    T = S_KS
    g.stamp(7)
    A("s_mov_b64 exec, 1")
    g.lab("L_clr")
    A(f"v_readfirstlane_b32 s{T+24}, v{V_B}")
    A(f"s_sub_u32 s{T+23}, s{T+23}, 1")
    A("s_cbranch_scc1 L_polled")
    A(f"s_cmp_ge_u32 s{T+24}, 8")
    A("s_cbranch_scc1 L_poll0")
    A(f"buffer_load_dword v{V_B}, off, s[{S_DBG}:{S_DBG+3}], s{S_KS+4} sc1")
    A("s_waitcnt vmcnt(0)")
    A("s_branch L_clr")
    g.lab("L_poll0")
    A("s_mov_b64 exec, 0xff")
    A(f"buffer_load_dword v{VP2}, v{VF2}, s[{S_WS}:{S_WS+3}], s{T+22} offen sc1")
    A("s_waitcnt vmcnt(1)")
    g.stamp(56)
    A("s_mov_b64 exec, 1")
    A(f"buffer_store_dword v{VQ2}, off, s[{S_WS}:{S_WS+3}], s{T+21} sc1")
    A("s_mov_b64 exec, 0xff")
    A("s_waitcnt vmcnt(1)")
    g.stamp(61)
    g.lab("L_poll")
    A(f"v_cmp_gt_u32 s[{T+24}:{T+25}], s{T+17}, v{VP2}")
    A(f"s_sub_u32 s{T+23}, s{T+23}, 1")
    A("s_cbranch_scc1 L_polled")
    A("s_nop 2")
    A(f"s_cmp_eq_u32 s{T+24}, 0")
    A("s_cbranch_scc1 L_polled")
    A(f"buffer_load_dword v{VP2}, v{VF2}, s[{S_WS}:{S_WS+3}], s{T+22} offen sc1")
    A("s_waitcnt vmcnt(0)")
    A("s_branch L_poll")
    g.lab("L_polled")
    A("s_mov_b64 exec, -1")
    g.stamp(57)
    R = RING
    A(f"s_cmp_ge_u32 s{S_W}, 2")
    A("s_cbranch_scc1 L_two")
    for nb in (3, 2):
        if nb == 2:
            g.lab("L_two")
        for h in range(8):
            for b in range(nb):
                A(f"buffer_load_dwordx4 {vr(R+h*12+b*4)}, v{V_LX}, s[{S_WS}:{S_WS+3}], s{T+10} offen offset:{b*1024} sc1")
            if h < 7:
                A(f"s_add_u32 s{T+10}, s{T+10}, {81920+o.pad}")
        for h in range(8):
            for b in range(nb):
                A(f"s_waitcnt vmcnt({8*nb-1-h*nb-b})")
                for t in range(4):
                    src = R + h * 12 + b * 4 + t
                    d = ACC + b * 8 + 2 * t
                    if h == 0:
                        A(f"v_lshlrev_b32 v{d}, 16, v{src}")
                        A(f"v_and_b32 v{d+1}, s{T+20}, v{src}")
                    else:
                        A(f"v_dot2c_f32_bf16 v{d}, s{T+18}, v{src}")
                        A(f"v_dot2c_f32_bf16 v{d+1}, s{T+19}, v{src}")
        g.stamp(58)
        A("s_nop 1")
        for b in range(nb):
            for t in range(4):
                A(f"v_cvt_pk_bf16_f32 v{PERM+b*4+t}, v{ACC+b*8+2*t}, v{ACC+b*8+2*t+1}")
            A(f"buffer_store_dwordx4 {vr(PERM+b*4)}, v{VO2}, s[{S_OUT}:{S_OUT+3}], s{T+14+b} offen {o.pout}")
        if nb == 3:
            A("s_branch L_summed" if o.diag else "s_endpgm")
    g.lab("L_summed")


def pick(g, name, n, sel, body):
    A = g.A
    for k in range(n):
        if k < n - 1:
            A(f"s_cmp_lg_u32 {sel}, {k}")
            A(f"s_cbranch_scc1 L_pk{name}{k}")
        for x in body(k):
            A(x)
        if k < n - 1:
            A(f"s_branch L_pk{name}e")
            g.lab(f"L_pk{name}{k}")
    g.lab(f"L_pk{name}e")


VC3, VS3, VD3 = 12, 13, 14


def own_main(h):
    out = []
    for b in range(2):
        for j in range(8):
            x = ACC + (h >> 1) * 32 + j * 4 + 2 * b
            out.append(f"v_permlane32_swap_b32 v{x}, v{x+1}")
    for b in range(2):
        for j in range(8):
            out.append(f"v_mov_b32 v{PERM+b*8+j}, v{ACC+(h>>1)*32+j*4+2*b+(h&1)}")
    return out


def tail3_addr(g):
    o = g.o
    A = g.A
    T = S_KS
    assert o.fl
    A(f"v_accvgpr_read_b32 v{V_B}, a96")
    A(f"s_lshr_b32 s{T+5}, s2, 3")
    A(f"s_mul_i32 s{T+7}, s{T+5}, {8*(81920+o.pad)}")
    A(f"s_lshl_b32 s{T+8}, s{S_W}, 14")
    A(f"s_lshl_b32 s{T+6}, s{S_HQ}, 11")
    A(f"s_add_u32 s{T+8}, s{T+8}, s{T+6}")
    A(f"s_add_u32 s{T+10}, s{T+8}, s{T+7}")
    for k in range(8):
        A(f"s_add_u32 s{T+13}, s{S_HQ}, {k}")
        A(f"s_and_b32 s{T+13}, s{T+13}, 7")
        A(f"s_mul_i32 s{T+13}, s{T+13}, {81920+o.pad}")
        A(f"s_add_u32 s{S_XC+k}, s{T+10}, s{T+13}")
    A(f"s_lshl_b32 s{T+6}, s{S_W}, 12")
    A(f"s_lshl_b32 s{T+13}, s{S_HQ}, 9")
    A(f"s_add_u32 s{T+6}, s{T+6}, s{T+13}")
    A(f"s_add_u32 s{T+6}, s{T+6}, 65536")
    A(f"s_sub_u32 s{T+13}, s{T+6}, s{T+8}")
    A(f"v_add_u32 v{VC3}, s{T+13}, v{V_LX}")
    A(f"v_bfe_u32 v{VS3}, v{V_LX}, 6, 2")
    A(f"v_lshrrev_b32 v{VD3}, 9, v{V_LX}")
    A(f"v_lshl_add_u32 v{VS3}, v{VS3}, 1, v{VD3}")
    A(f"v_bfe_u32 v{VD3}, v{V_LX}, 4, 2")
    A(f"v_bfe_u32 v{VF2}, v{V_LX}, 8, 1")
    A(f"v_lshl_add_u32 v{VD3}, v{VD3}, 1, v{VF2}")
    A(f"v_lshlrev_b32 v{VD3}, 4, v{VD3}")
    A(f"v_lshl_add_u32 v{VS3}, v{VS3}, 9, v{VD3}")
    A(f"s_and_b32 s{T+12}, s{T+5}, 15")
    A(f"s_mul_i32 s{T+12}, s{T+12}, {4*40960}")
    A(f"s_lshr_b32 s{T+13}, s{T+5}, 4")
    A(f"s_mul_i32 s{T+13}, s{T+13}, 1280")
    A(f"s_add_u32 s{T+12}, s{T+12}, s{T+13}")
    A(f"s_and_b32 s{T+13}, s{S_HQ}, 1")
    A(f"s_lshl_b32 s{T+13}, s{T+13}, 7")
    A(f"s_add_u32 s{T+12}, s{T+12}, s{T+13}")
    A(f"s_mul_i32 s{T+13}, s{T+9}, 40960")
    A(f"s_add_u32 s{T+14}, s{T+12}, s{T+13}")
    A(f"s_lshl_b32 s{T+13}, s{S_W}, 8")
    A(f"s_add_u32 s{T+14}, s{T+14}, s{T+13}")
    A(f"s_lshl_b32 s{T+13}, s{S_W}, 2")
    A(f"s_add_u32 s{T+13}, s{T+13}, s{T+9}")
    A(f"s_mul_i32 s{T+13}, s{T+13}, 10240")
    A(f"s_add_u32 s{T+15}, s{T+12}, s{T+13}")
    A(f"s_add_u32 s{T+15}, s{T+15}, 1024")
    A(f"s_mov_b32 s{T+18}, 0x3f80")
    A(f"s_mov_b32 s{T+19}, 0x3f800000")
    A(f"s_mov_b32 s{T+20}, 0xffff0000")
    A(f"v_bfe_u32 v{VO2}, v{V_LX}, 4, 4")
    A(f"v_bfe_u32 v{VF2}, v{V_LX}, 8, 1")
    A(f"v_mul_u32_u24 v{VO2}, 2560, v{VO2}")
    A(f"v_lshl_add_u32 v{VO2}, v{VF2}, 6, v{VO2}")
    A(f"v_lshrrev_b32 v{VF2}, 9, v{V_LX}")
    A(f"v_lshl_add_u32 v{VO2}, v{VF2}, 4, v{VO2}")
    if o.full:
        A(f"v_bfe_u32 v{VF2}, v{V_LX}, 7, 1")
        A(f"v_mul_u32_u24 v{VF2}, {8*2560-32}, v{VF2}")
        A(f"v_sub_u32 v{VO2}, v{VO2}, v{VF2}")
    A(f"v_bfe_u32 v{VD3}, v{V_LX}, 5, 2")
    A(f"v_bfe_u32 v{VF2}, v{V_LX}, 4, 1")
    A(f"v_mul_u32_u24 v{VD3}, 2560, v{VD3}")
    A(f"v_lshl_add_u32 v{VD3}, v{VF2}, 6, v{VD3}")
    A(f"v_lshrrev_b32 v{VF2}, 7, v{V_LX}")
    A(f"v_lshl_add_u32 v{VD3}, v{VF2}, 4, v{VD3}")
    A(f"v_lshrrev_b32 v{VF2}, 2, v{V_LX}")
    A(f"s_lshl_b32 s{T+22}, s{T+5}, 9")
    A(f"s_lshl_b32 s{T+13}, s{S_W}, 7")
    A(f"s_add_u32 s{T+22}, s{T+22}, s{T+13}")
    A(f"s_add_u32 s{T+22}, s{T+22}, {WS_FLAG}")
    A(f"s_lshl_b32 s{T+13}, s{S_HQ}, 2")
    A(f"s_add_u32 s{T+21}, s{T+22}, s{T+13}")
    A(f"s_lshl_b32 s{T+13}, 1, s{S_HQ}")
    A(f"s_andn2_b32 s{T+28}, 0xff, s{T+13}")
    A(f"s_mov_b32 s{T+29}, 0")
    A(f"s_mov_b32 s{T+16}, -1")
    A(f"s_mov_b32 s{T+17}, 0")
    A(f"s_mov_b32 s{T+23}, {1<<20}")
    A(f"v_mov_b32 v{VP2}, 1")
    A(f"v_mov_b32 v{VQ2}, 2")


def tail3(g):
    o = g.o
    A = g.A
    T = S_KS
    WS = f"s[{S_WS}:{S_WS+3}]"
    PM = f"s[{T+28}:{T+29}]"
    HALF = f"s[{T+16}:{T+17}]"
    SM, SC, ST = PERM, ACC + 48, ACC + 64
    poll = f"buffer_load_dword v{VP2}, v{VF2}, {WS}, s{T+22} offen sc1"
    g.stamp(7)
    A("s_mov_b64 exec, 1")
    g.lab("L_clr")
    A(f"v_readfirstlane_b32 s{T+24}, v{V_B}")
    A(f"s_sub_u32 s{T+23}, s{T+23}, 1")
    A("s_cbranch_scc1 L_poll0")
    A(f"s_cmp_ge_u32 s{T+24}, 8")
    A("s_cbranch_scc1 L_poll0")
    A(f"buffer_load_dword v{V_B}, off, s[{S_DBG}:{S_DBG+3}], s{S_KS+4} sc1")
    A("s_waitcnt vmcnt(0)")
    A("s_branch L_clr")
    g.lab("L_poll0")
    A(f"s_max_i32 s{T+23}, s{T+23}, 0")
    A(f"s_mov_b64 exec, {PM}")
    A(poll)
    A("s_waitcnt vmcnt(1)")
    g.stamp(56)
    A("s_mov_b64 exec, 1")
    A(f"buffer_store_dword v{VQ2}, off, {WS}, s{T+21} sc1")
    A(f"s_mov_b64 exec, {PM}")
    A("s_waitcnt vmcnt(1)")
    g.stamp(61)

    def wait(val, lab):
        g.lab(lab)
        A(f"v_cmp_gt_u32 s[{T+24}:{T+25}], {val}, v{VP2}")
        A(f"s_sub_u32 s{T+23}, s{T+23}, 1")
        A(f"s_cbranch_scc1 {lab}e")
        A("s_nop 2")
        A(f"s_cmp_eq_u32 s{T+24}, 0")
        A(f"s_cbranch_scc1 {lab}e")
        A(poll)
        A("s_waitcnt vmcnt(0)")
        A(f"s_branch {lab}")
        g.lab(lab + "e")
        A(f"s_max_i32 s{T+23}, s{T+23}, 0")

    def summ(dst, src):
        for t in range(4):
            A(f"v_dot2c_f32_bf16 v{dst+2*t}, s{T+18}, v{src+t}")
            A(f"v_dot2c_f32_bf16 v{dst+2*t+1}, s{T+19}, v{src+t}")

    def main_sum(younger):
        for k in range(7):
            for b in range(2):
                A(f"s_waitcnt vmcnt({13-2*k-b+younger})")
                summ(SM + b * 8, RING + k * 12 + b * 4)

    def c4_loads():
        A(f"s_mov_b64 exec, {HALF}")
        for k in range(8):
            A(f"buffer_load_dwordx4 {vr(RING+k*12+8)}, v{VC3}, {WS}, s{S_XC+k} offen sc1")
        A("s_mov_b64 exec, -1")

    def rest():
        A("s_nop 1")
        if o.full:
            for b in range(2):
                for t in range(4):
                    A(f"v_cvt_pk_bf16_f32 v{ST+b*4+t}, v{SM+b*8+2*t}, v{SM+b*8+2*t+1}")
            for t in range(4):
                A(f"v_mov_b32 v{ST+12+t}, v{ST+t}")
            A(f"s_add_u32 s{T+13}, s{T+14}, {8*2560}")
            for t in range(4):
                A(f"v_mov_b32_dpp v{ST+t}, v{ST+4+t} row_ror:8 row_mask:0xf bank_mask:0xc")
            for t in range(4):
                A(f"v_mov_b32_dpp v{ST+4+t}, v{ST+12+t} row_ror:8 row_mask:0xf bank_mask:0x3")
            A(f"buffer_store_dwordx4 {vr(ST)}, v{VO2}, s[{S_OUT}:{S_OUT+3}], s{T+14} offen {o.pout}")
            A(f"buffer_store_dwordx4 {vr(ST+4)}, v{VO2}, s[{S_OUT}:{S_OUT+3}], s{T+13} offen {o.pout}")
        for b in range(2 if not o.full else 0):
            for t in range(4):
                A(f"v_cvt_pk_bf16_f32 v{ST+b*4+t}, v{SM+b*8+2*t}, v{SM+b*8+2*t+1}")
            A(f"buffer_store_dwordx4 {vr(ST+b*4)}, v{VO2}, s[{S_OUT}:{S_OUT+3}], s{T+14} offen offset:{32*b} {o.pout}")
        for k in range(8):
            A(f"s_waitcnt vmcnt({7-k+2})")
            if k == 0:
                for t in range(4):
                    A(f"v_lshlrev_b32 v{SC+2*t}, 16, v{RING+8+t}")
                    A(f"v_and_b32 v{SC+2*t+1}, s{T+20}, v{RING+8+t}")
            else:
                summ(SC, RING + k * 12 + 8)
        g.stamp(58)
        A("s_nop 1")
        for t in range(4):
            A(f"v_cvt_pk_bf16_f32 v{ST+8+t}, v{SC+2*t}, v{SC+2*t+1}")
        A(f"s_mov_b64 exec, {HALF}")
        A(f"buffer_store_dwordx4 {vr(ST+8)}, v{VD3}, s[{S_OUT}:{S_OUT+3}], s{T+15} offen {o.pout}")
        if o.diag:
            A("s_mov_b64 exec, -1")

    wait(1 if o.ph == 2 else 2, "L_p1")
    if o.ph == 2:
        A(f"v_cmp_gt_u32 s[{T+24}:{T+25}], 2, v{VP2}")
    A("s_mov_b64 exec, -1")
    g.stamp(57)
    for k in range(7):
        for b in range(2):
            A(f"buffer_load_dwordx4 {vr(RING+k*12+b*4)}, v{V_LX}, {WS}, s{S_XC+1+k} offen offset:{b*1024} sc1")
    if o.ph == 2:
        A(f"s_cmp_eq_u32 s{T+24}, 0")
        A("s_cbranch_scc1 L_fast")
        A(f"s_mov_b64 exec, {PM}")
        A(poll)
        A("s_mov_b64 exec, -1")
        main_sum(1)
        A("s_waitcnt vmcnt(0)")
        A(f"s_mov_b64 exec, {PM}")
        wait(2, "L_p2")
        c4_loads()
        rest()
        A("s_branch L_summed" if o.diag else "s_endpgm")
        g.lab("L_fast")
    c4_loads()
    main_sum(8)
    rest()
    g.lab("L_summed")


def stage_c_dp(g, step, fq, emit):
    o = g.o
    A = g.A
    T = S_KS
    WS = f"s[{S_WS}:{S_WS+3}]"

    def q(gap, ins, kind):
        fq.append((gap, ins, kind))

    def dsop(x, tag):
        return lambda: g.ds(x, tag)

    def waitall():
        for k in range(len(g.vq)):
            g.vq[k] = []
        return "s_waitcnt vmcnt(0)"

    def store(reg, soff, r):
        return ("vm", f"buffer_store_dwordx4 {vr(reg)}, v{V_LX}, {WS}, s{soff} offen offset:{r*1024} {o.pst}", "st")

    def pkadd(d, a):
        return f"v_pk_add_f32 v[{d}:{d+1}], v[{d}:{d+1}], v[{a}:{a+1}]"

    def cvts(dst, acc, r):
        return [f"v_cvt_pk_bf16_f32 v{dst+t}, v{acc+(2*t)*4+r}, v{acc+(2*t+1)*4+r}" for t in range(4)]
    A(f"s_lshl_b32 s{T}, s{S_W}, 13")
    A(f"s_add_u32 s{T}, s{T}, s{S_ST}")
    A(f"s_add_u32 s{T+1}, s{T}, 4096")
    A(f"s_add_u32 s{T+2}, s{T}, 32768")
    A(f"s_add_u32 s{T+3}, s{T}, {32768+4096}")
    A(f"s_lshl_b32 s{T+5}, s{S_W}, 12")
    A(f"s_add_u32 s{T+5}, s{T+5}, s{S_ST}")
    A(f"s_add_u32 s{T+5}, s{T+5}, 65536")
    A(f"s_lshr_b32 s{T+4}, s2, 3")
    A(f"s_lshl_b32 s{T+4}, s{T+4}, 2")
    A(f"s_add_u32 s{T+4}, s{T+4}, 128")
    A(f"s_xor_b32 s{T+6}, s{S_W}, 1")
    A(f"s_lshl_b32 s{T+6}, s{T+6}, 14")
    A(f"s_add_u32 s{T+6}, s{T+6}, {LDS_R}")
    A(f"s_lshl_b32 s{T+7}, s{S_W}, 14")
    A(f"s_add_u32 s{T+7}, s{T+7}, {LDS_R}")
    U = S_XC
    pre = []
    P = pre.append
    P(f"s_lshr_b32 s{U}, s2, 3")
    P(f"s_and_b32 s{U+1}, s2, 7")
    P(f"s_mul_i32 s{U+2}, s{U}, {8*(81920+o.pad)}")
    P(f"s_lshl_b32 s{U+3}, s{U+1}, 2")
    P(f"s_add_u32 s{U+3}, s{U+3}, s{S_W}")
    P(f"s_lshl_b32 s{U+4}, s{U+1}, 1")
    P(f"s_lshr_b32 s{U+5}, s{S_W}, 1")
    P(f"s_add_u32 s{U+4}, s{U+4}, s{U+5}")
    P(f"s_add_u32 s{U+4}, s{U+4}, 64")
    P(f"s_lshl_b32 s{U+5}, s{U+3}, 10")
    P(f"s_add_u32 s{U+5}, s{U+5}, s{U+2}")
    P(f"s_lshl_b32 s{U+6}, s{U+4}, 10")
    P(f"s_add_u32 s{U+6}, s{U+6}, s{U+2}")
    P(f"s_add_u32 s{U+7}, s{U+5}, 32768")
    P(f"s_and_b32 s{U+8}, s{U}, 15")
    P(f"s_mul_i32 s{U+8}, s{U+8}, {4*40960}")
    P(f"s_lshr_b32 s{U+9}, s{U}, 4")
    P(f"s_mul_i32 s{U+9}, s{U+9}, 1280")
    P(f"s_add_u32 s{U+8}, s{U+8}, s{U+9}")
    for blk, dst in ((U+3, U+10), (U+4, U+11)):
        P(f"s_bfe_u32 s{U+9}, s{blk}, 0x20002")
        P(f"s_mul_i32 s{U+9}, s{U+9}, 40960")
        P(f"s_add_u32 s{dst}, s{U+8}, s{U+9}")
        P(f"s_lshr_b32 s{U+9}, s{blk}, 4")
        P(f"s_lshl_b32 s{U+9}, s{U+9}, 8")
        P(f"s_add_u32 s{dst}, s{dst}, s{U+9}")
        P(f"s_and_b32 s{U+9}, s{blk}, 3")
        P(f"s_lshl_b32 s{U+9}, s{U+9}, 4")
        P(f"s_add_u32 s{dst}, s{dst}, s{U+9}")
    P(f"s_bitcmp1_b32 s{S_W}, 0\n    s_cselect_b32 s{U+12}, 0, -1\n    s_cselect_b32 s{U+13}, -1, 0")
    P(f"s_mov_b32 s{U+14}, 0x3f80")
    P(f"s_mov_b32 s{U+15}, 0x3f800000")
    P(f"s_mov_b32 s{U+16}, 0xffff0000")
    P(f"s_lshl_b32 s{U+17}, s{U}, 10")
    P(f"s_add_u32 s{U+17}, s{U+17}, {WS_FLAG}")
    P(f"s_mov_b32 s{U+18}, {1<<20}")
    for x in pre:
        A(x)
    pre = []
    for s in range(20, 23):
        step(s, s == 20, False, {})
    step(23, False, False, {0: ["s_barrier"]})
    g.stamp(5)
    G0 = 24 * 32 + 2
    C4 = (96, 0, 32)
    for j in range(8):
        for x in range(3):
            q(G0 + (j * 3 + x) * o.wpace, dsop(f"ds_write_b128 v{6+x}, {ar(C4[x]+j*4)} offset:{j*1024}", "cw"), "o")
    q(G0, lambda: g.waitds("cw"), "o")
    q(G0, "s_barrier", "o")
    rd = [(x, j) for x in range(3) for j in range(8)]

    def c4read(k):
        x, j = rd[k]
        q(G0, dsop(f"ds_read_b128 {vr(160+j*4)}, v9 offset:{x*8192+j*1024}", f"cr{k//4}"), "o")
    for k in range(8):
        c4read(k)
    for grp in range(6):
        q(G0, lambda grp=grp: g.waitds(f"cr{grp}"), "o")
        for k in range(grp * 4, grp * 4 + 4):
            j = rd[k][1]
            q(G0, pkadd(128 + j * 4, 160 + j * 4), "v")
            q(G0, pkadd(128 + j * 4 + 2, 160 + j * 4 + 2), "v")
        for k in range(grp * 4 + 8, min(grp * 4 + 12, 24)):
            c4read(k)
    q(G0, "s_barrier", "o")
    q(G0, f"v_add_u32 v6, s{T+6}, v{V_LX}", "v")
    q(G0, f"v_add_u32 v7, s{T+7}, v{V_LX}", "v")
    for r in range(4):
        for x in cvts(160 + r * 4, 128, r):
            q(G0, x, "v")
        q(G0, store(160 + r * 4, T + 5, r), "o")
    G1 = 32 * 32 + 2
    for j in range(8):
        for x in range(2):
            q(G1 + (j * 2 + x) * o.wpace, dsop(f"ds_write_b128 v6, {ar(128+x*32+j*4)} offset:{x*8192+j*1024}", "pw"), "o")
    q(G1, lambda: g.waitds("pw"), "o")
    q(G1, "s_barrier", "o")
    for x in range(2):
        for j in range(8):
            q(G1, dsop(f"ds_read_b128 {vr(128+x*32+j*4)}, v7 offset:{x*8192+j*1024}", f"pr{x}"), "o")
    for x in range(2):
        q(G1, lambda x=x: g.waitds(f"pr{x}"), "o")
        for n in range(16):
            q(G1, pkadd(192 + x * 32 + n * 2, 128 + x * 32 + n * 2), "v")
        for r in range(4):
            for c in cvts(128 + x * 32 + r * 4, 192 + x * 32, r):
                q(G1, c, "v")
            q(G1, store(128 + x * 32 + r * 4, T + x, r), "o")
    for s in range(24, 39):
        ex = {}
        if s == 36:
            ex[31] = [("vm", f"buffer_load_dword v5, off, s[{S_DBG}:{S_DBG+3}], s{T+4} sc1", "clr")]
        step(s, s in (24, 32), False, ex)
        if s == 31:
            g.stamp(6)
        g.left = getattr(g, "left", []) + [len(fq)]
    assert not fq, g.left
    VO, VF, VP, VC = 2, 3, 4, 5
    prev = [f"v_bfe_u32 v{VO}, v{V_LX}, 4, 4", f"v_lshrrev_b32 v{VF}, 8, v{V_LX}", f"v_mul_u32_u24 v{VO}, 2560, v{VO}",
            f"v_lshl_add_u32 v{VO}, v{VF}, 6, v{VO}", f"v_lshlrev_b32 v{VF}, 3, v{V_LX}"]
    FL = T + 8

    def flag(val, lab):
        return "\n    ".join([f"s_cmp_lg_u32 s{S_W}, 0", f"s_cbranch_scc1 {lab}", f"v_mov_b32 v{V_TMP}, {val}", "s_mov_b64 exec, 1",
                               f"buffer_store_dword v{V_TMP}, off, {WS}, s{FL} sc1", "s_mov_b64 exec, -1"]) + f"\n{lab}:"
    ex = {0: [f"s_lshl_b32 s{FL}, s2, 7"], 1: [f"s_add_u32 s{FL}, s{FL}, {WS_FLAG}", waitall], 3: ["s_barrier"], 5: [flag(1, "L_f1")]}
    acr = [f"v_accvgpr_read_b32 v{192+x*32+j*4+r}, a{x*32+j*4+r}" for j in range(8) for x in range(2) for r in range(4)]
    wr = [dsop(f"ds_write_b128 v6, {ar(192+x*32+j*4)} offset:{x*8192+j*1024}", "qw") for j in range(8) for x in range(2)]
    nw = na = 0
    for n in range(6, 32):
        ex.setdefault(n, [])
        if nw < 16 and n >= (nw // 2) * 4 + 7 and n % 4 in (3, 0):
            ex[n].append(wr[nw])
            nw += 1
        elif pre:
            ex[n].append(pre.pop(0))
        for _ in range(2 if (n % 2 or n >= 24) else 0):
            if prev:
                ex[n].append(prev.pop(0))
            elif na < 64 and n >= (na // 8) * 4 + 7:
                ex[n].append(acr[na])
                na += 1
    step(39, False, True, ex)
    g.stamp(7)
    for x in pre:
        A(x)
    if o.early:
        A("s_mov_b64 exec, 0xff")
        A(g.vm(f"buffer_load_dword v{VP}, v{VF}, {WS}, s{U+17} offen sc1", "poll"))
        A("s_mov_b64 exec, -1")
    cut = 48
    for x in acr[na:cut]:
        A(x)
    if o.verbose:
        print("left", g.left, "na", na, "nw", nw, "pre", len(pre), file=sys.stderr)
    A("s_nop 7")
    A("s_nop 3")
    for x in wr[nw:]:
        emit(x)
    for x in acr[max(na, cut):]:
        A(x)
    A(g.waitds("qw"))
    A("s_barrier")
    for x in range(2):
        for j in range(8):
            A(g.ds(f"ds_read_b128 {vr(128+x*32+j*4)}, v7 offset:{x*8192+j*1024}", f"qr{x*2+j//4}"))
    for x in range(2):
        for hj in range(2):
            A(g.waitds(f"qr{x*2+hj}"))
            for n in range(8):
                A(pkadd(192 + x * 32 + hj * 16 + n * 2, 128 + x * 32 + hj * 16 + n * 2))
        for r in range(4):
            for c in cvts(128 + x * 32 + r * 4, 192 + x * 32, r):
                A(c)
            emit(store(128 + x * 32 + r * 4, T + 2 + x, r))
    g.stamp(59)
    R, SUM = RING, 192

    def loads(early):
        for h in range(8):
            if early:
                A(f"buffer_load_dwordx4 {vr(R+h*8)}, v{V_LX}, {WS}, s{U+5} offen sc1")
                A(f"s_mov_b64 exec, s[{U+12}:{U+13}]")
                A(f"buffer_load_dwordx4 {vr(R+h*8+4)}, v{V_LX}, {WS}, s{U+6} offen sc1")
                A("s_mov_b64 exec, -1")
                if h < 7:
                    A(f"s_add_u32 s{U+5}, s{U+5}, {81920+o.pad}")
                    A(f"s_add_u32 s{U+6}, s{U+6}, {81920+o.pad}")
            else:
                A(f"buffer_load_dwordx4 {vr(R+64+h*4)}, v{V_LX}, {WS}, s{U+7} offen sc1")
                if h < 7:
                    A(f"s_add_u32 s{U+7}, s{U+7}, {81920+o.pad}")

    def sums(early, younger):
        nb = 2 if early else 1
        for h in range(8):
            for b in range(nb):
                A(f"s_waitcnt vmcnt({(8-h)*nb-b-1+younger})")
                for t in range(4):
                    src = (R + h * 8 + b * 4 + t) if early else (R + 64 + h * 4 + t)
                    d = SUM + (b if early else 2) * 8 + 2 * t
                    if h == 0:
                        A(f"v_lshlrev_b32 v{d}, 16, v{src}")
                        A(f"v_and_b32 v{d+1}, s{U+16}, v{src}")
                    else:
                        A(f"v_dot2c_f32_bf16 v{d}, s{U+14}, v{src}")
                        A(f"v_dot2c_f32_bf16 v{d+1}, s{U+15}, v{src}")
        A("s_nop 1")
        for b in ((0, 1) if early else (2,)):
            for t in range(4):
                A(f"v_cvt_pk_bf16_f32 v{SUM+24+b*4+t}, v{SUM+b*8+2*t}, v{SUM+b*8+2*t+1}")
            if b == 1:
                A(f"s_mov_b64 exec, s[{U+12}:{U+13}]")
            A(f"buffer_store_dwordx4 {vr(SUM+24+b*4)}, v{VO}, s[{S_OUT}:{S_OUT+3}], s{U+10+b%2} offen offset:{512*(b//2)} {o.pout}")
            if b == 1:
                A("s_mov_b64 exec, -1")
    E = U + 19

    def poll(lab, cmp_, val):
        A("s_mov_b64 exec, 1")
        g.lab(f"{lab}_clr")
        A(f"v_readfirstlane_b32 s{T+10}, v{VC}")
        A(f"s_sub_u32 s{U+18}, s{U+18}, 1")
        A(f"s_cbranch_scc1 {lab}_out")
        A(f"s_cmp_ge_u32 s{T+10}, 8")
        A(f"s_cbranch_scc1 {lab}_go")
        A(f"buffer_load_dword v{VC}, off, s[{S_DBG}:{S_DBG+3}], s{T+4} sc1")
        A("s_waitcnt vmcnt(0)")
        A(f"s_branch {lab}_clr")
        g.lab(f"{lab}_go")
        A("s_mov_b64 exec, 0xff")
        g.lab(f"{lab}_loop")
        A(f"buffer_load_dword v{VP}, v{VF}, {WS}, s{U+17} offen sc1")
        A("s_waitcnt vmcnt(0)")
        A(f"s_sub_u32 s{U+18}, s{U+18}, 1")
        A(f"s_cbranch_scc1 {lab}_out")
        A(f"v_cmp_{cmp_}_u32 s[{T+12}:{T+13}], {val}, v{VP}")
        A("s_nop 3")
        A(f"s_cmp_lg_u32 s{T+12}, 0")
        A(f"s_cbranch_scc1 {lab}_loop")
        g.lab(f"{lab}_out")
        A("s_mov_b64 exec, -1")
    if o.diag:
        A(f"s_mov_b32 s{E}, 0")
    if o.early:
        A(g.waitvm("poll"))
        A(f"v_readfirstlane_b32 s{T+10}, v{VC}")
        A("s_mov_b64 exec, 0xff")
        A(f"v_cmp_eq_u32 s[{T+12}:{T+13}], 0, v{VP}")
        A("s_mov_b64 exec, -1")
        A(f"s_cmp_lt_u32 s{T+10}, 8")
        A("s_cbranch_scc1 L_late")
        A(f"s_cmp_lg_u32 s{T+12}, 0")
        A("s_cbranch_scc1 L_late")
        if o.diag:
            A(f"s_mov_b32 s{E}, 1")
        loads(True)
        A("s_waitcnt vmcnt(16)")
        A("s_barrier")
        A(flag(2, "L_f2a"))
        g.stamp(56)
        A(f"s_cmp_lg_u32 s{S_W}, 0")
        A("s_cbranch_scc1 L_s0")
        sums(True, 1)
        A("s_branch L_wait")
    g.lab("L_late")
    A(waitall())
    A("s_barrier")
    A(flag(2, "L_f2b"))
    g.stamp(56)
    poll("L_p1", "eq", 0)
    loads(True)
    g.lab("L_s0")
    sums(True, 0)
    A(f"s_cmp_lg_u32 s{S_W}, 0")
    A("s_cbranch_scc1 L_polled")
    g.lab("L_wait")
    poll("L_p2", "ne", 2)
    g.lab("L_polled")
    A("s_barrier")
    g.stamp(57)
    loads(False)
    sums(False, 0)
    g.stamp(58)
    if o.diag:
        A(f"v_writelane_b32 v{V_TID}, s{E}, 60")


def gen_reduce(g):
    o = g.o
    A = g.A
    K = "reduce_kernel"
    g.L.append(f".globl {K}\n.p2align 8\n.type {K},@function")
    g.lab(K)
    A("s_cmp_ge_u32 s2, 640")
    A("s_cbranch_scc1 L_red_end")
    if o.diag >= 2:
        A("s_memrealtime s[20:21]")
    A("s_load_dwordx2 s[4:5], s[0:1], 80")
    A("s_load_dwordx2 s[8:9], s[0:1], 96")
    A("v_lshrrev_b32 v1, 6, v0")
    A("v_and_b32 v0, 63, v0")
    A("v_readfirstlane_b32 s3, v1")
    A("s_lshl_b32 s12, s2, 2")
    A("s_mov_b32 s6, 2621440")
    A("s_mov_b32 s7, 0x20000")
    A("s_mov_b32 s10, 268435456")
    A("s_mov_b32 s11, 0x20000")
    A("s_add_u32 s12, s12, s3")
    A("s_mul_i32 s13, s12, 52429")
    A("s_lshr_b32 s13, s13, 22")
    A("s_mul_i32 s14, s13, 80")
    A("s_sub_u32 s14, s12, s14")
    A("s_mul_i32 s15, s13, 655360")
    A("s_lshl_b32 s16, s14, 10")
    A("s_add_u32 s15, s15, s16")
    A("v_lshlrev_b32 v1, 4, v0")
    A("s_waitcnt lgkmcnt(0)")
    for h in range(8):
        A(f"buffer_load_dwordx4 {vr(4+h*4)}, v1, s[8:11], s15 offen {o.pld}")
        if h < 7:
            A("s_add_u32 s15, s15, 81920")
    A("s_and_b32 s16, s13, 15")
    A("s_lshl_b32 s16, s16, 2")
    A("s_bfe_u32 s17, s14, 0x20002")
    A("s_add_u32 s16, s16, s17")
    A("s_mul_i32 s16, s16, 40960")
    A("s_lshr_b32 s17, s13, 4")
    A("s_mul_i32 s17, s17, 1280")
    A("s_add_u32 s16, s16, s17")
    A("s_lshr_b32 s17, s14, 4")
    A("s_lshl_b32 s17, s17, 8")
    A("s_add_u32 s16, s16, s17")
    A("s_and_b32 s17, s14, 3")
    A("s_lshl_b32 s17, s17, 4")
    A("s_add_u32 s16, s16, s17")
    A("v_and_b32 v2, 15, v0")
    A("v_lshrrev_b32 v3, 4, v0")
    A("v_mul_u32_u24 v2, 2560, v2")
    A("v_lshl_add_u32 v2, v3, 6, v2")
    A("s_mov_b32 s18, 0xffff0000")
    for h in range(8):
        A(f"s_waitcnt vmcnt({7-h})")
        for t in range(4):
            src = 4 + h * 4 + t
            if h == 0:
                A(f"v_lshlrev_b32 v{40+2*t}, 16, v{src}")
                A(f"v_and_b32 v{41+2*t}, s18, v{src}")
            else:
                A(f"v_lshlrev_b32 v{48+2*t}, 16, v{src}")
                A(f"v_and_b32 v{49+2*t}, s18, v{src}")
        if h:
            for n in range(8):
                A(f"v_add_f32 v{40+n}, v{40+n}, v{48+n}")
    for t in range(4):
        A(f"v_cvt_pk_bf16_f32 v{4+t}, v{40+2*t}, v{41+2*t}")
    A(f"buffer_store_dwordx4 {vr(4)}, v2, s[4:7], s16 offen")
    if o.diag == 2:
        A("s_waitcnt vmcnt(0)")
        A("s_memrealtime s[22:23]")
        A("s_load_dwordx2 s[24:25], s[0:1], 88")
        A("s_mov_b32 s26, 64")
        A("s_mov_b32 s27, 0x20000")
        A("s_waitcnt lgkmcnt(0)")
        A("v_mov_b32 v8, 0")
        A("s_not_b32 s21, s20")
        A("v_writelane_b32 v8, s20, 13")
        A("v_writelane_b32 v8, s21, 14")
        A("v_writelane_b32 v8, s22, 15")
        A("v_lshlrev_b32 v9, 2, v0")
        A("buffer_atomic_umax v8, v9, s[24:27], 0 offen sc1")
    if o.diag == 3:
        A("s_cmp_lg_u32 s12, 2000")
        A("s_cbranch_scc1 L_red_end")
        A("s_waitcnt vmcnt(0)")
        A("s_memrealtime s[22:23]")
        A("s_load_dwordx2 s[24:25], s[0:1], 88")
        A("s_mov_b32 s26, 64")
        A("s_mov_b32 s27, 0x20000")
        A("v_lshlrev_b32 v9, 2, v0")
        A(f"s_mov_b32 s15, {0x8000000 + o.sel*256}")
        A("buffer_load_dword v8, v9, s[8:11], s15 offen sc1")
        A("s_waitcnt vmcnt(0) lgkmcnt(0)")
        A("v_writelane_b32 v8, s20, 14")
        A("v_writelane_b32 v8, s22, 15")
        A("buffer_store_dword v8, v9, s[24:27], 0 offen")
    g.lab("L_red_end")
    A("s_endpgm")


def desc(name, vg, acc, sg):
    return f""".amdhsa_kernel {name}
  .amdhsa_next_free_vgpr {vg}
  .amdhsa_next_free_sgpr {sg}
  .amdhsa_accum_offset {acc}
  .amdhsa_group_segment_fixed_size 0
  .amdhsa_kernarg_size 104
  .amdhsa_user_sgpr_count 2
  .amdhsa_user_sgpr_kernarg_segment_ptr 1
  .amdhsa_system_sgpr_workgroup_id_x 1
.end_amdhsa_kernel"""


def build(o):
    g = Gen(o)
    head = [l.rstrip("\n") for l in open(f"cdna_kernels/{NAME}.s.ref") if l.startswith(";   offset") or l.startswith("; Kernarg")]
    if o.fuse:
        head.append(f"; @launch grid=(256,1,1) block=(256,1,1) lds={LDS_BYTES}")
    else:
        head.append(f"; @launch kernel={NAME}_kernel grid=(256,1,1) block=(256,1,1) lds={LDS_BYTES}")
        head.append(f"; @launch kernel=reduce_kernel grid=(640,1,1) block=(256,1,1) lds=0")
    for _ in range(o.noop):
        head.append(f"; @launch kernel=noop_kernel grid=(1,1,1) block=(64,1,1) lds=0")
    head.append('.amdgcn_target "amdgcn-amd-amdhsa--gfx950"')
    head.append(".text")
    gen_main(g)
    if not o.fuse:
        gen_reduce(g)
    g.lab("L_code_end")
    if o.noop:
        g.L.append(".globl noop_kernel\n.p2align 8\n.type noop_kernel,@function\nnoop_kernel:\n    s_endpgm")
    tail = ['.section .rodata,"a"', ".p2align 6", desc(f"{NAME}_kernel", 512, 256, 102)]
    if not o.fuse:
        tail += [".p2align 6", desc("reduce_kernel", 64, 64, 32)]
    if o.noop:
        tail += [".p2align 6", desc("noop_kernel", 64, 64, 32)]
    return "\n".join(head + g.L + tail) + "\n"


def opts(argv=None):
    p = argparse.ArgumentParser()
    p.add_argument("-o", default=f"cdna_kernels/{NAME}.s")
    p.add_argument("--diag", type=int, default=0)
    p.add_argument("--warm", type=int, default=1)
    p.add_argument("--noop", type=int, default=0)
    p.add_argument("--fuse", type=int, default=0)
    p.add_argument("--dp", type=int, default=0)
    p.add_argument("--verbose", type=int, default=0)
    p.add_argument("--cap", type=int, default=2)
    p.add_argument("--wpace", type=int, default=4)
    p.add_argument("--cape", type=int, default=1)
    p.add_argument("--capv", type=int, default=0)
    p.add_argument("--early", type=int, default=1)
    p.add_argument("--wopre", type=int, default=0)
    p.add_argument("--e39", type=int, default=0)
    p.add_argument("--fa", type=int, default=0)
    p.add_argument("--ph", type=int, default=2)
    p.add_argument("--full", type=int, default=0)
    p.add_argument("--il", type=int, default=0)
    p.add_argument("--own", type=int, default=1)
    p.add_argument("--fl", type=int, default=0)
    p.add_argument("--dens", type=int, default=0)
    p.add_argument("--defer", type=int, default=0)
    p.add_argument("--xrot", type=int, default=1)
    p.add_argument("--alt", default="")
    p.add_argument("--altbit", type=int, default=0)
    p.add_argument("--pad", type=int, default=0)
    p.add_argument("--c4pre", type=int, default=0)
    p.add_argument("--exp", default="")
    p.add_argument("--steps", type=int, default=0)
    p.add_argument("--ng", type=int, default=1)
    p.add_argument("--kst", default="")
    p.add_argument("--vst", default="")
    p.add_argument("--order", default="xa,xb,w0,w1,w2")
    p.add_argument("--coop", type=int, default=0)
    p.add_argument("--nfirst", type=int, default=0)
    p.add_argument("--c4first", type=int, default=0)
    p.add_argument("--sel", type=int, default=401)
    p.add_argument("--rot", type=int, default=1)
    p.add_argument("--spread", type=int, default=3)
    p.add_argument("--kv0", type=int, default=0)
    p.add_argument("--kvper", type=int, default=1)
    for k, d in (("px", ""), ("pxb", ""), ("pw0", "nt"), ("pwq", ""), ("pwo", ""), ("pk", "nt"), ("pv", "nt"), ("pst", "sc1"), ("pld", ""), ("pout", "")):
        p.add_argument("--" + k, default=d)
    return p.parse_args(argv)


if __name__ == "__main__":
    o = opts()
    open(o.o, "w").write(build(o))
```

```python
import sys, argparse

NAME = "concat_heads__gqa_block_cached__mha_block_cached__near_ridge"

V_TID = 0
V_TMP = 1
V_W = 2
V_B = 10
V_LX = 11
V_KG = 12
V_VG = 13
V_WO0 = 14
V_WO1 = 15
PERM = 16
RING = 32
ACC = 128
A_V = 0
A_B = 64
A_K = 128
A_C4 = 128

S_X, S_K, S_V, S_WQ, S_WO, S_WS = 8, 12, 16, 20, 24, 28
S_W = 3
S_BP = 4
S_HQ = 5
S_T0, S_T1 = 6, 7
S_KS = 32
S_CW = 52
S_XC = 72
S_KV = 8
S_CL = 95
S_ST = 92
S_PLO, S_PHI = 93, 94
S_KLDS = 96
S_SC = 97
S_C4U = 98
S_GRP = 7
S_STMP = 99
S_TS = 100
S_G = 95

S_OUT, S_DBG = 12, 16
WS_FLAG = 0x2000000
LDS_O = 0
LDS_X = 65536
LDS_R = 65536
LDS_BYTES = 163840
GFUN = [0, 2, 3, 1]


class Gen:
    def __init__(self, o):
        self.o = o
        self.L = []
        self.ng = o.ng
        self.vq = [[] for _ in range(self.ng)]
        self.nlab = 0
        self.dq = []

    def A(self, s):
        if s:
            self.L.append("    " + s)

    def lab(self, s):
        self.L.append(s + ":")

    def vm(self, s, tag, grp=None):
        for k, q in enumerate(self.vq):
            if grp is None or grp == k:
                q.append(tag)
                assert len(q) <= 63, "vmcnt overflow"
        return s

    def waitvm(self, tag):
        ns = []
        for k, q in enumerate(self.vq):
            idx = max((i for i, t in enumerate(q) if t == tag), default=-1)
            ns.append(None if idx < 0 else len(q) - 1 - idx)
            self.vq[k] = q[idx + 1:]
        vals = sorted(set(n for n in ns if n is not None))
        if not vals:
            return None
        lo = vals[0]
        big = [k for k, n in enumerate(ns) if n is not None and n > lo]
        if len(big) != 1:
            return f"s_waitcnt vmcnt({lo})"
        self.nlab += 1
        return (f"s_cmp_eq_u32 s{S_GRP}, {big[0]}\n    s_cbranch_scc1 L_w{self.nlab}\n    s_waitcnt vmcnt({lo})\n"
                f"L_w{self.nlab}:\n    s_waitcnt vmcnt({ns[big[0]]})")

    def ds(self, s, tag):
        self.dq.append(tag)
        return s

    def waitds(self, tag):
        idx = max((i for i, t in enumerate(self.dq) if t == tag), default=-1)
        if idx < 0:
            return None
        n = len(self.dq) - 1 - idx
        self.dq = self.dq[idx + 1:]
        return f"s_waitcnt lgkmcnt({min(n, 15)})"

    def stamp(self, k):
        if not self.o.diag:
            return
        A = self.A
        A(f"{'s_memtime' if self.o.diag != 2 else 's_memrealtime'} s[{S_TS}:{S_TS+1}]")
        A("s_waitcnt lgkmcnt(0)")
        A(f"v_writelane_b32 v{V_TID}, s{S_TS}, {k}")


def mfma(d, a, b, c):
    return f"v_mfma_f32_16x16x32_bf16 {d}, {a}, {b}, {c}"


def vr(n, k=4):
    return f"v[{n}:{n+k-1}]"


def ar(n, k=4):
    return f"a[{n}:{n+k-1}]"


def perms(src_rows, t, dst):
    out = []
    for e in range(2):
        for p in range(4):
            sel = S_PLO if e == 0 else S_PHI
            out.append(f"v_perm_b32 v{dst+e*4+p}, v{src_rows[2*p+1]+t}, v{src_rows[2*p]+t}, s{sel}")
    return out


def slot_rows(s):
    return [RING + (s % 3) * 32 + r * 4 for r in range(8)]


def gen_main(g):
    o = g.o
    A = g.A
    K = f"{NAME}_kernel"
    g.L.append(f".globl {K}\n.p2align 8\n.type {K},@function")
    g.lab(K)
    A("s_cmp_ge_u32 s2, 256")
    A("s_cbranch_scc1 L_main_end")
    if o.diag:
        A(f"{'s_memtime' if o.diag != 2 else 's_memrealtime'} s[54:55]")
        A(f"s_memrealtime s[56:57]")
    A("s_load_dwordx16 s[32:47], s[0:1], 0")
    A("s_load_dwordx4 s[48:51], s[0:1], 64")
    A("s_load_dwordx2 s[28:29], s[0:1], 96")
    A(f"v_lshrrev_b32 v{V_TMP}, 6, v0")
    A(f"v_and_b32 v0, 63, v0")
    A(f"v_readfirstlane_b32 s{S_W}, v{V_TMP}")
    A(f"s_lshr_b32 s{S_T0}, s2, 3")
    if o.warm:
        A("s_getpc_b64 s[52:53]")
        g.lab("L_pc")
        A(f"s_sub_u32 s52, s52, L_pc-{K}")
        A("s_subb_u32 s53, s53, 0")
        A(f"s_lshl_b32 s{S_T1}, s{S_T0}, 2")
        A(f"s_add_u32 s{S_T1}, s{S_T1}, s{S_W}")
        A(f"s_min_u32 s{S_T1}, s{S_T1}, (L_code_end-{K})/1024-1")
        A(f"s_lshl_b32 s{S_T1}, s{S_T1}, 10")
        A(f"v_lshl_add_u32 v{V_TMP}, v0, 4, s{S_T1}")
        A(g.vm(f"global_load_dwordx4 {vr(PERM)}, v{V_TMP}, s[52:53]", "warm"))
    A(f"s_lshr_b32 s{S_BP}, s{S_T0}, 1")
    A(f"s_and_b32 s{S_T0}, s{S_T0}, 1")
    A(f"s_and_b32 s{S_HQ}, s2, 3")
    A(f"s_lshl_b32 s{S_HQ}, s{S_HQ}, 1")
    A(f"s_add_u32 s{S_HQ}, s{S_HQ}, s{S_T0}")
    vi, vG, vt, vt2 = 20, 21, 22, 23
    A(f"s_movk_i32 s{S_G}, 0x78")
    A(f"v_and_b32 v{vi}, 15, v0")
    A(f"v_lshrrev_b32 v{vG}, 4, v0")
    A(f"v_xor_b32 v{vt}, v{vG}, v0")
    A(f"v_and_b32 v{vt}, 7, v{vt}")
    A(f"v_lshlrev_b32 v{vt}, 4, v{vt}")
    A(f"v_lshrrev_b32 v{vt2}, 3, v0")
    A(f"v_mul_u32_u24 v{vt2}, 1280, v{vt2}")
    A(f"v_add_u32 v{V_B}, v{vt}, v{vt2}")
    A(f"v_xor_b32 v{vt}, 64, v{vt}")
    A(f"v_add_u32 v{vt2}, {8*1280}, v{vt2}")
    A(f"v_add_u32 v{V_LX}, v{vt}, v{vt2}")
    A(f"v_lshlrev_b32 v{vt}, 4, v{vi}")
    A(f"v_lshl_add_u32 v{V_W}, v{vG}, 16, v{vt}")
    for r in range(1, 8):
        A(f"v_add_u32 v{V_W+r}, {r*8192}, v{V_W}")
    A("s_bitcmp1_b32 s2, 2")
    A("s_waitcnt lgkmcnt(0)")
    if o.diag:
        A(f"s_mov_b32 s{S_TS}, s54")
        A(f"s_mov_b32 s{S_TS+1}, s56")
        A("s_memtime s[88:89]")
    for dst, a, b in ((S_X, 32, 42), (S_K, 34, 44), (S_V, 36, 46), (S_WQ, 38, 48), (S_WO, 40, 50)):
        A(f"s_cselect_b32 s{dst}, s{b}, s{a}")
        A(f"s_cselect_b32 s{dst+1}, s{b+1}, s{a+1}")
    for dst, n in ((S_X, 1310720), (S_K, 8388608), (S_V, 8388608), (S_WQ, 5242880), (S_WO, 5242880), (S_WS, 268435456)):
        A(f"s_mov_b32 s{dst+2}, {n}")
        A(f"s_mov_b32 s{dst+3}, 0x20000")
    A(f"s_lshl_b32 s{S_C4U}, s{S_HQ}, 2")
    A(f"s_add_u32 s{S_C4U}, s{S_C4U}, s{S_W}")
    A(f"s_lshl_b32 s{S_T1}, s{S_C4U}, 8")
    for r in range(8):
        A(f"v_add_u32 v{V_W+r}, s{S_T1}, v{V_W+r}")
    A(f"s_mul_i32 s{S_KS}, s{S_BP}, 5")
    A(f"s_lshr_b32 s{S_KS}, s{S_KS}, 2")
    if not o.rot:
        A(f"s_mov_b32 s{S_KS}, 0")
    A(f"s_lshl_b32 s{S_KS}, s{S_KS}, 18")
    tab = []
    for ks in range(19):
        tab.append([f"s_add_u32 s{S_KS+ks+1}, s{S_KS+ks}, {1<<18}", f"s_cmp_eq_u32 s{S_KS+ks+1}, {20<<18}", f"s_cselect_b32 s{S_KS+ks+1}, 0, s{S_KS+ks+1}"])
    for t in tab[:2]:
        for x in t:
            A(x)
    tab = tab[2:]

    def wload(s, r):
        dst = vr(slot_rows(s)[r])
        if s == 39 and o.e39:
            dst = ar(r * 4)
        if s < 20:
            pol = o.pw0 if s < o.nfirst else o.pwq
            return g.vm(f"buffer_load_dwordx4 {dst}, v{V_W+r}, s[{S_WQ}:{S_WQ+3}], s{S_KS+s} offen {pol}", f"w{s}")
        v = V_WO0 if r < 4 else V_WO1
        pol = o.pw0 if (s - 20 < o.nfirst or (s >= 36 and o.c4first)) else o.pwo
        ci = s - 20 if not o.dp else (s - 4 if s < 24 else s - 24)
        return g.vm(f"buffer_load_dwordx4 {dst}, v{v}, s[{S_WO}:{S_WO+3}], s{S_CW+ci} offen offset:{(r%4)*1280} {pol}", f"w{s}")

    def wsoff(s):
        return None

    def xhalf(second):
        A(f"s_and_b32 s{S_T1}, s{S_HQ}, 1")
        if second:
            A(f"s_xor_b32 s{S_T1}, s{S_T1}, 1")
        if not o.coop:
            A(f"s_mov_b32 s{S_T1}, {second}")
        A(f"s_lshl_b32 s{S_T0}, s{S_BP}, 2")
        A(f"s_add_u32 s{S_T0}, s{S_T0}, s{S_W}")
        A(f"s_mul_i32 s{S_T0}, s{S_T0}, {16*1280}")
        A(f"s_mul_i32 s{S_STMP}, s{S_T1}, 640")
        A(f"s_add_u32 s{S_T0}, s{S_T0}, s{S_STMP}")
        A(f"s_mul_i32 s{S_T1}, s{S_T1}, 20")
        A(f"s_add_u32 s{S_T1}, s{S_T1}, s{S_W}")
        A(f"s_lshl_b32 s{S_T1}, s{S_T1}, 11")
        A(f"s_add_u32 m0, s{S_T1}, {LDS_X}")
        A("s_nop 0")
        for n in range(10):
            kb, m = n // 2, n % 2
            A(g.vm(f"buffer_load_dwordx4 v{V_LX if m else V_B}, s[{S_X}:{S_X+3}], s{S_T0} offen offset:{kb*128} {o.pxb if second else o.px} lds", "x"))
            if n < 9:
                A(f"s_add_u32 m0, m0, {1024 if m == 0 else 8192-128-1024}")
                if tab:
                    for x in tab.pop(0):
                        A(x)
                else:
                    A("s_nop 0")
    def xinit():
        A(f"s_lshl_b32 s{S_T0}, s{S_BP}, 2")
        A(f"s_add_u32 s{S_T0}, s{S_T0}, s{S_W}")
        A(f"s_mul_i32 s{S_T0}, s{S_T0}, {16*1280}")
        A(f"s_lshl_b32 s{S_KLDS}, s{S_W}, 11")
        A(f"s_add_u32 s{S_KLDS}, s{S_KLDS}, {LDS_X}")
        A(f"s_and_b32 s{S_T1}, s{S_HQ}, 1")
        A(f"s_mul_i32 s{S_T1}, s{S_T1}, 5")
        if o.xrot:
            A(f"s_lshr_b32 s{S_STMP}, s{S_HQ}, 1")
            A(f"s_add_u32 s{S_T1}, s{S_T1}, s{S_STMP}")
        A(f"s_lshl_b32 s{S_T1}, s{S_T1}, 7")

    def xblk(n, track=True):
        pol = o.px if n < 5 else o.pxb
        A(f"s_lshl_b32 s{S_STMP}, s{S_T1}, 6")
        A(f"s_add_u32 m0, s{S_STMP}, s{S_KLDS}")
        A(f"s_add_u32 s{S_STMP}, s{S_T0}, s{S_T1}")
        x = f"buffer_load_dwordx4 v{V_B}, s[{S_X}:{S_X+3}], s{S_STMP} offen {pol} lds"
        A(g.vm(x, "x") if track else x)
        A(f"s_add_u32 m0, m0, 1024")
        A(f"s_add_u32 s{S_T1}, s{S_T1}, 128")
        x = f"buffer_load_dwordx4 v{V_LX}, s[{S_X}:{S_X+3}], s{S_STMP} offen {pol} lds"
        A(g.vm(x, "x") if track else x)
        A(f"s_cmp_eq_u32 s{S_T1}, 1280")
        A(f"s_cselect_b32 s{S_T1}, 0, s{S_T1}")
        if track:
            for _ in range(2):
                if tab:
                    for t in tab.pop(0):
                        A(t)

    def pre(track=True):
        A(f"s_lshr_b32 s{S_ST}, s{S_BP}, 2")
        A(f"s_mul_i32 s{S_ST}, s{S_ST}, 5")
        A(f"s_add_u32 s{S_ST}, s{S_ST}, 4")
        A(f"s_lshl_b32 s{S_ST}, s{S_ST}, 4")
        A(f"s_and_b32 s{S_SC}, s{S_BP}, 3")
        A(f"s_add_u32 s{S_ST}, s{S_ST}, s{S_SC}")
        A(f"s_lshl_b32 s{S_ST}, s{S_ST}, 14")
        for r in range(2):
            x = f"buffer_load_dwordx4 {ar(248+4*r)}, v{V_W+r}, s[{S_WQ}:{S_WQ+3}], s{S_ST} offen"
            A(g.vm(x, "pre") if track else x)

    def items(lst, track=True, stamps=False):
        for ni, item in enumerate(lst):
            if o.diag and stamps and ni in (1, 2, 3):
                A(f"s_memtime s[{88+2*ni}:{89+2*ni}]") if ni < 2 else A(f"s_memtime s[{68+2*ni}:{69+2*ni}]")
            if item[0] == "c":
                A(f"s_waitcnt vmcnt({item[1:]})")
            elif item == "xa":
                xhalf(0)
            elif item == "xb":
                xhalf(1)
            elif item == "p":
                pre(track)
            elif item[0] == "x":
                for n in range(int(item[1]), int(item[2]) + 1):
                    xblk(n, track)
            else:
                sw = int(item[1:])
                for r in range(8):
                    if track:
                        A(wload(sw, r))
                    else:
                        sv = [list(q) for q in g.vq]
                        A(wload(sw, r))
                        g.vq = sv
    lst = o.order.split(",")
    if any(x[0] == "x" and len(x) == 3 for x in lst):
        xinit()
    if o.alt:
        alt = o.alt.split(",")
        assert sorted(alt) == sorted(lst[:len(alt)])
        A(f"s_bitcmp1_b32 s{S_BP}, {o.altbit}")
        A("s_cbranch_scc1 L_alt")
        keep, tab[:] = list(tab), []
        items(lst[:len(alt)], stamps=True)
        A("s_branch L_join")
        g.lab("L_alt")
        items(alt, track=False, stamps=True)
        g.lab("L_join")
        tab[:] = keep
        items(lst[len(alt):])
    else:
        items(lst, stamps=True)
    for t in tab:
        for x in t:
            A(x)
    tab[:] = []
    assert not tab
    A(f"s_mov_b32 s{S_T0}, s{S_C4U}")
    if o.diag:
        A("s_waitcnt lgkmcnt(0)")
        A("v_mov_b32 v24, 0")
        for k, sr in ((11, 88), (12, 90), (14, 72), (15, 74)):
            A(f"v_writelane_b32 v24, s{sr}, {k}")
    A(f"s_lshl_b32 s{S_KV}, s{S_BP}, 6")
    A(f"s_add_u32 s{S_KV}, s{S_KV}, s{S_T0}")
    A(f"s_lshl_b32 s{S_KV}, s{S_KV}, 13")
    A(f"s_add_u32 s{S_KV+1}, s{S_KV}, 4096")
    A(f"s_add_u32 s{S_KV+2}, s{S_KV}, 262144")
    A(f"s_add_u32 s{S_KV+3}, s{S_KV}, {262144+4096}")
    A(f"s_lshl_b32 s{S_KLDS}, s{S_W}, 14")
    A(f"s_mov_b32 s{S_PLO}, 0x05040100")
    A(f"s_mov_b32 s{S_PHI}, 0x07060302")
    A(f"s_mov_b32 s{S_SC}, 0x3e0293ee")
    A(f"s_mul_i32 s{S_T0}, s{S_HQ}, {512*1280}")
    A(f"s_lshl_b32 s{S_T1}, s{S_W}, 8")
    A(f"s_add_u32 s{S_T1}, s{S_T1}, s{S_T0}")
    if o.dp:
        A(f"s_lshr_b32 s{S_T1}, s{S_W}, 1")
        A(f"s_lshl_b32 s{S_T1}, s{S_T1}, 8")
        A(f"s_add_u32 s{S_T1}, s{S_T1}, s{S_T0}")
        A(f"s_and_b32 s{S_STMP}, s{S_W}, 1")
        A(f"s_mul_i32 s{S_STMP}, s{S_STMP}, {256*1280}")
        A(f"s_add_u32 s{S_T1}, s{S_T1}, s{S_STMP}")
        for n in range(8):
            A(f"s_add_u32 s{S_STMP}, s{S_BP}, {n}")
            A(f"s_and_b32 s{S_C4U}, s{S_STMP}, 3")
            A(f"s_bfe_u32 s{S_STMP}, s{S_STMP}, 0x10002")
            A(f"s_lshl_b32 s{S_STMP}, s{S_STMP}, 4")
            A(f"s_add_u32 s{S_STMP}, s{S_STMP}, s{S_C4U}")
            A(f"s_mul_i32 s{S_STMP}, s{S_STMP}, {8*1280}")
            A(f"s_add_u32 s{S_CW+n}, s{S_STMP}, s{S_T1}")
            A(f"s_add_u32 s{S_CW+8+n}, s{S_CW+n}, 512")
    for n in range(16 if not o.dp else 0):
        if o.rot:
            A(f"s_add_u32 s{S_STMP}, s{S_BP}, {n}")
            A(f"s_and_b32 s{S_STMP}, s{S_STMP}, 15")
        else:
            A(f"s_mov_b32 s{S_STMP}, {n}")
        A(f"s_and_b32 s{S_C4U}, s{S_STMP}, 3")
        A(f"s_lshr_b32 s{S_STMP}, s{S_STMP}, 2")
        A(f"s_lshl_b32 s{S_STMP}, s{S_STMP}, 4")
        A(f"s_add_u32 s{S_STMP}, s{S_STMP}, s{S_C4U}")
        A(f"s_mul_i32 s{S_STMP}, s{S_STMP}, {8*1280}")
        A(f"s_add_u32 s{S_CW+n}, s{S_STMP}, s{S_T1}")
    A(f"s_mul_i32 s{S_T1}, s{S_W}, {128*1280}")
    A(f"s_add_u32 s{S_T1}, s{S_T1}, s{S_T0}")
    A(f"s_add_u32 s{S_T1}, s{S_T1}, 1024")
    for n in range(4):
        A(f"s_add_u32 s{S_CW+16+n}, s{S_T1}, {n*8*1280}")
    A(f"s_lshr_b32 s{S_T0}, s2, 2")
    A(f"s_and_b32 s{S_T0}, s{S_T0}, 1")
    A(f"s_lshl_b32 s{S_T0}, s{S_T0}, 4")
    A(f"s_add_u32 s{S_T0}, s{S_T0}, s{S_BP}")
    A(f"s_lshl_b32 s{S_T0}, s{S_T0}, 3")
    A(f"s_add_u32 s{S_T0}, s{S_T0}, s{S_HQ}")
    A(f"s_mul_i32 s{S_ST}, s{S_T0}, {81920+o.pad}")
    if o.fuse:
        if o.diag:
            A(f"s_mov_b32 vcc_hi, s2")
        A(f"s_mov_b32 s2, s{S_T0}")
        A(f"s_cmp_lg_u32 s{S_W}, 0")
        A("s_cbranch_scc1 L_noclr")
        if o.fuse >= 2:
            flag_base(g, S_T0, S_STMP)
            A(f"v_mov_b32 v{V_TMP}, 0")
            A(f"v_lshlrev_b32 v{vt}, 7, v{vi}")
            A("s_mov_b64 exec, 15")
            A(f"buffer_store_dword v{V_TMP}, v{vt}, s[{S_WS}:{S_WS+3}], s{S_T0} offen sc1")
        else:
            A(f"s_lshl_b32 s{S_T0}, s2, 7")
            A(f"s_add_u32 s{S_T0}, s{S_T0}, {WS_FLAG}")
            A(f"v_mov_b32 v{V_TMP}, 0")
            A("s_mov_b64 exec, 1")
            A(f"buffer_store_dword v{V_TMP}, off, s[{S_WS}:{S_WS+3}], s{S_T0} sc1")
        A("s_mov_b64 exec, -1")
        g.lab("L_noclr")
    A(f"v_xor_b32 v{vt}, v{vi}, v{vG}")
    A(f"v_lshlrev_b32 v{vt}, 4, v{vt}")
    A(f"v_lshl_add_u32 v{V_KG}, v{vG}, 8, v{vt}")
    A(f"v_lshlrev_b32 v{vt}, 4, v{vi}")
    A(f"v_lshl_add_u32 v{V_VG}, v{vG}, 10, v{vt}")
    A(f"v_mul_u32_u24 v{V_WO0}, {32*1280}, v{vG}")
    A(f"v_add_u32 v{V_WO0}, v{V_WO0}, v{vt}")
    A(f"v_add_u32 v{V_WO1}, {4*1280}, v{V_WO0}")
    A(f"v_lshrrev_b32 v{vt}, 1, v{vi}")
    A(f"v_xor_b32 v{vt}, v{vt}, v{vG}")
    A(f"v_lshlrev_b32 v{vt}, 4, v{vt}")
    A(f"v_lshl_add_u32 v{V_LX}, v{vi}, 7, v{vt}")
    for n in range(20):
        A(f"s_lshr_b32 s{S_STMP}, s{S_KS+n}, 19")
        A(f"s_lshl_b32 s{S_STMP}, s{S_STMP}, 13")
        A(f"s_bfe_u32 s{S_C4U}, s{S_KS+n}, 0x10012")
        A(f"s_lshl_b32 s{S_C4U}, s{S_C4U}, 6")
        A(f"s_add_u32 s{S_STMP}, s{S_STMP}, {LDS_X}")
        A(f"s_or_b32 s{S_XC+n}, s{S_STMP}, s{S_C4U}")
    A(f"s_and_b32 s{S_GRP}, s{S_BP}, {o.ng-1}")
    if o.diag:
        A(f"v_mov_b32 v{V_TID}, v24")
        A(f"v_writelane_b32 v{V_TID}, s{S_TS}, 10")
        A(f"v_writelane_b32 v{V_TID}, s{S_TS+1}, 13")
        g.stamp(0)

    def kload(n):
        bt, m = n // 8, n % 8
        ins = []
        if m % 4 == 0:
            ins.append(f"s_add_u32 m0, s{S_KLDS}, {bt*8192 + (m//4)*4096}")
        ins.append(f"v_xor_b32 v{V_TMP}, {GFUN[m%4] << 6}, v{V_KG}")
        ins.append(("vm", f"buffer_load_dwordx4 v{V_TMP}, s[{S_K}:{S_K+3}], s{S_KV+bt*2+m//4} offen offset:{(m%4)*1024} {o.pk} lds", "k"))
        return ins

    def vload(n):
        bt, r = n // 8, n % 8
        return [("vm", f"buffer_load_dwordx4 {ar(A_V+n*4)}, v{V_VG}, s[{S_V}:{S_V+3}], s{S_KV+bt*2+r//4} offen offset:{(r%4)*256} {o.pv}", "v")]

    def baddr(s):
        if s < 20:
            return [f"v_xor_b32 v{V_B}, s{S_XC+s}, v{V_LX}"]
        if o.dp:
            if s < 24:
                return []
            return [f"v_add_u32 v{V_B}, s{S_CL}, v{V_KG}", f"v_xor_b32 v{V_VG}, 2048, v{V_B}", f"s_add_u32 s{S_CL}, s{S_CL}, 4096", f"s_and_b32 s{S_CL}, s{S_CL}, 0x7fff"]
        if s < 36:
            return [f"v_add_u32 v{V_B}, s{S_CL}, v{V_LX}", f"s_add_u32 s{S_CL}, s{S_CL}, 4096", f"s_and_b32 s{S_CL}, s{S_CL}, 0xffff"]
        return []

    def breads(s):
        buf = A_B + (s % 2) * 16
        if s < 20:
            return [f"ds_read_b128 {ar(buf+q*4)}, v{V_B} offset:{q*2048}" for q in range(4)]
        if o.dp:
            if s < 24:
                return [f"ds_read_b128 {ar(buf+q*4)}, v{V_W+q} offset:{(s-20)*4096}" for q in range(4)]
            return [f"ds_read_b128 {ar(buf+q*4)}, v{V_B if q < 2 else V_VG} offset:{(q%2)*1024}" for q in range(4)]
        if s < 36:
            return [f"ds_read_b128 {ar(buf+q*4)}, v{V_B} offset:{q*1024}" for q in range(4)]
        return [f"ds_read_b128 {ar(buf+q*4)}, v{V_W+q} offset:{(s-36)*4096}" for q in range(4)]

    def bread(s):
        return baddr(s) + breads(s)

    def emit(ins):
        if isinstance(ins, tuple):
            A(g.vm(ins[1], ins[2]))
        elif callable(ins):
            r = ins()
            if r:
                A(r)
        else:
            A(ins)

    DEF = (20, 21, 22) if o.defer == 3 else (21, 22)
    fq = []

    def cap(s, n):
        if n == 1:
            return 0, o.cape
        if n % 2 == 0:
            return o.capv, o.cape
        return (o.cap, o.cap) if n in (19, 21) else (1, 1)

    def dacc(s, q, j):
        if s < 24:
            return vr(128 + j * 4) if q == 0 else ar((96, 0, 32)[q - 1] + j * 4)
        if s < 32:
            return vr(192 + q * 32 + j * 4) if q < 2 else ar(128 + (q - 2) * 32 + j * 4)
        return ar(q * 32 + j * 4) if q < 2 else ar(192 + (q - 2) * 32 + j * 4)

    def step(s, first, last, extra, preperm=True, prefetchB=True):
        fill = [[] for _ in range(32)]
        rows = slot_rows(s)
        buf = A_B + (s % 2) * 16
        for t in range(3):
            for n, p in enumerate(perms(rows, t + 1, PERM + ((t + 1) % 2) * 8)):
                fill[t * 8 + (n // 2) * 2].append(p)
        late = o.spread
        if late and s >= 1 and s + 2 < 40 and s != 20 and not (o.defer and s + 2 in DEF) and not (o.e39 and s + 2 >= 38):
            for n, r in enumerate(range(8 - late, 8)):
                fill[11 + 2 * n].append(lambda r=r: wload(s + 2, r))
        if not last:
            ba = baddr(s + 1)
            g0 = 1
            if ba:
                fill[g0].append(ba[0])
                fill[g0] += ba[1:2]
                fill[17] += ba[2:]
                g0 += 2
            for n, x in enumerate(breads(s + 1)):
                fill[g0 + n * 2].append(lambda x=x: g.ds(x, f"b{s+1}"))
            fill[21].append(lambda: g.waitvm(f"w{s+1}"))
            for n, p in enumerate(perms(slot_rows(s + 1), 0, PERM)):
                fill[24 + (n // 2) * 2].append(p)
            fill[19].append(lambda: g.waitds(f"b{s+1}"))
        if o.e39 and 32 <= s < 36:
            for n, gp in enumerate((9, 17)):
                fill[gp].append(lambda r=(s - 32) * 2 + n: wload(39, r))
        if o.e39 and s == 35:
            late = 0
        if s + 3 < 40 and not (o.defer and s + 3 in DEF) and not (o.e39 and s == 36):
            gaps = [23, 25, 27, 29, 31] if late >= 3 else [23, 24, 25, 26, 27, 28, 29, 31]
            for r in range(8 - late):
                fill[gaps[r]].append(lambda r=r: wload(s + 3, r))
        if o.diag and o.steps:
            fill[28].append(f"s_memtime s[{S_TS}:{S_TS+1}]")
            fill[31].append(lambda: ("s_waitcnt lgkmcnt(0)", g.dq.clear())[0])
            fill[31].append(f"v_writelane_b32 v{V_TID}, s{S_TS}, {16+s}")
        for k, v in extra.items():
            fill[k] = fill[k] + v
        n = 0
        for t in range(4):
            for e in range(2):
                for q in range(4):
                    j = 2 * t + e
                    if o.dp and s >= 20:
                        d = dacc(s, q, j)
                    elif s < 36:
                        d = vr(ACC + q * 32 + j * 4)
                    else:
                        d = ar(A_C4 + q * 32 + j * 4)
                    A(mfma(d, vr(PERM + (t % 2) * 8 + e * 4), ar(buf + q * 4), "0" if first else d))
                    for x in fill[n]:
                        if o.exp and 24 <= s < 34:
                            if isinstance(x, str) and "noperm" in o.exp and x.startswith("v_perm"):
                                continue
                            if isinstance(x, str) and "nods" in o.exp and x.startswith("ds_read"):
                                continue
                            if callable(x) and "noload" in o.exp:
                                r = x()
                                if not (r and r.startswith("buffer_load")):
                                    A(r)
                                continue
                        emit(x)
                    cv_, co_ = cap(s, n)
                    while fq and fq[0][0] <= s * 32 + n:
                        if fq[0][2] == "v":
                            if cv_ <= 0:
                                break
                        elif co_ <= 0:
                            break
                        cv_ -= 1
                        co_ -= 1
                        emit(fq.pop(0)[1])
                    n += 1

    if o.ph == 3:
        for n in range(4):
            A(f"v_accvgpr_write_b32 a{100+n}, -1")
    A(g.waitvm("x"))
    A("s_barrier")
    for x in bread(0):
        A(x)
    A(g.waitvm("w0"))
    for p in perms(slot_rows(0), 0, PERM):
        A(p)
    A("s_waitcnt lgkmcnt(0)")
    g.stamp(1)
    kvn = 0
    kst = [int(x) for x in o.kst.split(",")] if o.kst else []
    vst = [int(x) for x in o.vst.split(",")] if o.vst else []

    def burst(grp, fn, name):
        def f():
            out = []
            if o.ng > 1:
                out += [f"s_cmp_lg_u32 s{S_GRP}, {grp}", f"s_cbranch_scc1 L_{name}{grp}"]
            for n in range(16):
                for x in fn(n):
                    out.append(g.vm(x[1], x[2], grp) if isinstance(x, tuple) else x)
            t = "\n    ".join(out)
            if o.ng > 1:
                t += f"\nL_{name}{grp}:"
            return t
        return f
    for s in range(20):
        extra = {}
        if kst:
            for grp in range(o.ng):
                if kst[grp] == s:
                    extra.setdefault(31, []).append(burst(grp, kload, "kb"))
                if vst[grp] == s:
                    extra.setdefault(31, []).append(burst(grp, vload, "vb"))
        elif o.kv0 <= s and kvn < 16:
            for c in range(o.kvper):
                if kvn < 16:
                    extra.setdefault(10 + c * 6, []).extend(kload(kvn))
                    extra.setdefault(13 + c * 6, []).extend(vload(kvn))
                    kvn += 1
        if o.wopre and s == o.wopre:
            extra.setdefault(17, []).extend([f"s_lshl_b32 s{S_STMP}, s{S_HQ}, 4", f"s_add_u32 s{S_STMP}, s{S_STMP}, s{S_BP}"])
            extra.setdefault(19, []).extend([f"s_lshl_b32 s{S_STMP}, s{S_STMP}, 2", f"s_add_u32 s{S_STMP}, s{S_STMP}, s{S_W}"])
            extra.setdefault(21, []).extend([f"s_mul_i32 s{S_STMP}, s{S_STMP}, 10240", f"v_mbcnt_lo_u32_b32 v{V_TMP}, -1, 0"])
            extra.setdefault(23, []).extend([f"v_mbcnt_hi_u32_b32 v{V_TMP}, -1, v{V_TMP}"])
            extra.setdefault(25, []).extend([f"v_lshlrev_b32 v{V_TMP}, 7, v{V_TMP}"])
            extra.setdefault(31, []).extend([("vm", f"buffer_load_dword a240, v{V_TMP}, s[{S_WO}:{S_WO+3}], s{S_STMP} offen", "pre"),
                                             f"s_add_u32 s{S_STMP}, s{S_STMP}, 8192", "s_mov_b64 exec, 0xffff",
                                             ("vm", f"buffer_load_dword a241, v{V_TMP}, s[{S_WO}:{S_WO+3}], s{S_STMP} offen", "pre"),
                                             "s_mov_b64 exec, -1"])
        step(s, s == 0, s == 19, extra)
    assert kvn == 16 or kst
    if not o.defer:
        for r in range(8 - o.spread, 8):
            A(wload(22, r))
    g.stamp(2)

    vi, vG, vt, KA = 6, 7, 8, 2
    if o.fuse:
        A(f"s_load_dwordx2 s[{S_OUT}:{S_OUT+1}], s[0:1], 80")
        A(f"s_load_dwordx2 s[{S_DBG}:{S_DBG+1}], s[0:1], 88")
        A(f"s_mov_b32 s{S_OUT+2}, 2621440")
        A(f"s_mov_b32 s{S_DBG+2}, 256")
    A(f"s_movk_i32 s{S_G}, 0x78")
    A(f"v_lshrrev_b32 v{vG}, 10, v{V_VG}")
    A(f"v_bfe_u32 v{vi}, v{V_VG}, 4, 4")
    A(f"v_lshrrev_b32 v{vt}, 2, v{vi}")
    A(f"v_lshlrev_b32 v{vt}, 1, v{vt}")
    A(f"v_lshrrev_b32 v{vt}, v{vt}, s{S_G}")
    A(f"v_xor_b32 v{vt}, v{vt}, v{vG}")
    A(f"v_and_b32 v{vt}, 3, v{vt}")
    A(f"v_lshlrev_b32 v{vt}, 2, v{vt}")
    A(f"v_and_or_b32 v{vt}, v{vi}, 3, v{vt}")
    A(f"v_lshlrev_b32 v{vt}, 4, v{vt}")
    A(f"v_lshl_add_u32 v{vt}, v{vi}, 8, v{vt}")
    A(f"v_add_u32 v{KA}, s{S_KLDS}, v{vt}")
    for u in range(1, 4):
        A(f"v_xor_b32 v{KA+u}, {u*16}, v{KA}")
    A(f"v_lshlrev_b32 v{V_LX}, 8, v{vG}")
    A(f"v_lshl_add_u32 v{V_LX}, v{vi}, 4, v{V_LX}")
    def c4pre_b():
        A(f"s_mul_i32 s{S_T0}, s{S_BP}, {8*1280}")
        A(f"s_add_u32 s{S_T0}, s{S_T0}, s{S_CW+16}")
        A(f"v_mul_u32_u24 v{V_TMP}, {1280-256}, v{vG}")
        A(f"v_add_u32 v{V_TMP}, v{V_TMP}, v{V_LX}")
        A(g.vm(f"buffer_load_dwordx4 {ar(240)}, v{V_TMP}, s[{S_WO}:{S_WO+3}], s{S_T0} offen", "pre"))
        A(f"s_add_u32 s{S_T0}, s{S_T0}, {4*1280}")
        A(g.vm(f"buffer_load_dwordx4 {ar(244)}, v{V_TMP}, s[{S_WO}:{S_WO+3}], s{S_T0} offen", "pre"))
    A(g.waitvm("k"))
    if o.c4pre == 1:
        c4pre_b()
    if o.ph == 3:
        A(f"s_lshl_b32 s{S_T0}, s{S_W}, 12")
        A(f"s_add_u32 s{S_T0}, s{S_T0}, s{S_ST}")
        A(f"s_add_u32 s{S_T0}, s{S_T0}, 65536")
        for r in range(4):
            A(g.vm(f"buffer_store_dwordx4 {ar(100)}, v{V_LX}, s[{S_WS}:{S_WS+3}], s{S_T0} offen offset:{r*1024} sc1", "mark"))
    if o.fuse:
        A("s_waitcnt lgkmcnt(0)")

    def kread(bt):
        for kb in range(2):
            for u in range(4):
                A(f"ds_read_b128 {ar(A_K+((bt*2+kb)*4+u)*4)}, v{KA+u} offset:{bt*8192+kb*4096}")
    QB = [PERM, 128, 144, 160]
    SA = 176
    cv = []
    for q in range(4):
        c = []
        for t in range(4):
            for u in range(4):
                c.append(f"v_cvt_pk_bf16_f32 v{QB[q]+u*4+t}, v{ACC+q*32+(2*t)*4+u}, v{ACC+q*32+(2*t+1)*4+u}")
        cv.append(c)
    kread(0)
    for x in cv[0]:
        A(x)
    A("s_waitcnt lgkmcnt(4)")
    kread(1)
    for x in cv[1]:
        A(x)
    A("s_waitcnt lgkmcnt(8)")

    def smfma(bt):
        r = []
        for u in range(4):
            for kb in range(2):
                for qq in range(2):
                    d = vr(SA + ((bt * 2 + kb) * 2 + qq) * 4)
                    r.append(mfma(d, ar(A_K + ((bt * 2 + kb) * 4 + u) * 4), vr(QB[bt * 2 + qq] + u * 4), "0" if u == 0 else d))
        return r
    s0 = smfma(0)
    rest = cv[2] + cv[3]
    A("s_nop 1")
    for n in range(16):
        A(s0[n])
        A(rest[2 * n])
        A(rest[2 * n + 1])
    A("s_waitcnt lgkmcnt(0)")
    A("s_nop 1")
    s1 = smfma(1)

    PB = 208
    TM = 224

    def softmax(q):
        bt, qq = q // 2, q % 2
        sv = [SA + ((bt * 2 + kb) * 2 + qq) * 4 + r for kb in range(2) for r in range(4)]
        m, t2 = TM + q * 4, TM + q * 4 + 1
        ph = []
        ph.append([f"v_max3_f32 v{m}, v{sv[0]}, v{sv[1]}, v{sv[2]}",
                   f"v_max3_f32 v{t2}, v{sv[3]}, v{sv[4]}, v{sv[5]}",
                   f"v_max3_f32 v{m}, v{m}, v{sv[6]}, v{sv[7]}",
                   f"v_max_f32 v{m}, v{m}, v{t2}",
                   f"v_mov_b32 v{t2}, v{m}"])
        ph.append([f"v_permlane32_swap_b32 v{m}, v{t2}"])
        ph.append([f"v_max_f32 v{m}, v{m}, v{t2}", f"v_mov_b32 v{t2}, v{m}"])
        ph.append([f"v_permlane16_swap_b32 v{m}, v{t2}"])
        ph.append([f"v_max_f32 v{m}, v{m}, v{t2}", f"v_mul_f32 v{m}, s{S_SC}, v{m}"] +
                  [f"v_fma_f32 v{x}, v{x}, s{S_SC}, -v{m}" for x in sv] +
                  [f"v_exp_f32 v{x}, v{x}" for x in sv])
        ph.append([f"v_add_f32 v{m}, v{sv[0]}, v{sv[1]}", f"v_add_f32 v{t2}, v{sv[2]}, v{sv[3]}",
                   f"v_add_f32 v{m}, v{m}, v{sv[4]}", f"v_add_f32 v{t2}, v{t2}, v{sv[5]}",
                   f"v_add_f32 v{m}, v{m}, v{sv[6]}", f"v_add_f32 v{t2}, v{t2}, v{sv[7]}",
                   f"v_add_f32 v{m}, v{m}, v{t2}", f"v_mov_b32 v{t2}, v{m}"])
        ph.append([f"v_permlane32_swap_b32 v{m}, v{t2}"])
        ph.append([f"v_add_f32 v{m}, v{m}, v{t2}", f"v_mov_b32 v{t2}, v{m}"])
        ph.append([f"v_permlane16_swap_b32 v{m}, v{t2}"])
        ph.append([f"v_add_f32 v{m}, v{m}, v{t2}"])
        ph.append([f"v_rcp_f32 v{m}, v{m}"])
        ph.append([f"v_mul_f32 v{x}, v{x}, v{m}" for x in sv])
        ph.append([f"v_cvt_pk_bf16_f32 v{PB+q*4+p}, v{sv[2*p]}, v{sv[2*p+1]}" for p in range(4)])
        return ph

    def softmax_pair(q0):
        a, b = softmax(q0), softmax(q0 + 1)
        out = []
        for pa, pb in zip(a, b):
            if pa[0].startswith("v_permlane"):
                out.append("s_nop 1")
            out += pa + pb
            if pa[0].startswith("v_rcp") or pa[0].startswith("v_permlane"):
                out.append("s_nop 0")
        return out
    sm0 = softmax_pair(0)
    for n in range(16):
        A(s1[n])
        if n >= 4:
            for _ in range(2):
                A(sm0.pop(0))
    for x in sm0:
        A(x)
    sm1 = softmax_pair(2)
    for n, x in enumerate(sm1):
        A(x)
        if o.defer == 2 and n % 12 == 11 and n // 12 < 8:
            A(wload(21, n // 12))
    g.stamp(3)
    A(g.waitvm("v"))
    dl = []
    if o.defer == 1:
        dl = [(21, r) for r in range(8)] + [(22, r) for r in range(8)]
    if o.defer == 2:
        dl = [(22, r) for r in range(8)]
    if o.defer == 3:
        for r in range(8):
            A(wload(20, r))
        dl = [(21, r) for r in range(8)] + [(22, r) for r in range(8)]
    OA = 128
    VT = 192
    VP1 = 224
    STG = 200

    def vperm(bt, t, dst):
        r = [f"v_accvgpr_read_b32 v{VT+x}, a{A_V+bt*32+x*4+t}" for x in range(8)]
        for e in range(2):
            for p in range(4):
                r.append(f"v_perm_b32 v{dst+e*4+p}, v{VT+2*p+1}, v{VT+2*p}, s{S_PLO if e == 0 else S_PHI}")
        return r
    for x in vperm(0, 0, PERM):
        A(x)
    for t in range(4):
        nxt = vperm(0, t + 1, PERM + ((t + 1) % 2) * 8) if t < 3 else vperm(1, 0, VP1)
        A("s_nop 1") if t == 0 else None
        k = 0
        for e in range(2):
            for qq in range(2):
                A(mfma(vr(OA + qq * 32 + (2 * t + e) * 4), vr(PERM + (t % 2) * 8 + e * 4), vr(PB + qq * 4), "0"))
                for x in nxt[k * 4:k * 4 + 4]:
                    A(x)
                if dl and (o.defer != 2 or k % 2):
                    A(wload(*dl.pop(0)))
                k += 1
        A("s_nop 0")
    assert not dl
    for t in range(1, 4):
        for x in vperm(1, t, VP1 + t * 8):
            A(x)
    A(f"v_add_u32 v{V_B}, s{S_KLDS}, v{V_LX}")

    def ocvt(bt, qq):
        r = []
        for u in range(4):
            st = STG + (u % 2) * 4
            for t in range(4):
                r.append(f"v_cvt_pk_bf16_f32 v{st+t}, v{OA+qq*32+(2*t)*4+u}, v{OA+qq*32+(2*t+1)*4+u}")
            r.append(f"ds_write_b128 v{V_B}, {vr(st)} offset:{u*4096+(bt*2+qq)*1024}")
        return r

    def pv1(qq):
        return [mfma(vr(OA + qq * 32 + j * 4), vr(VP1 + j * 4), vr(PB + (2 + qq) * 4), "0") for j in range(8)]
    for x in ocvt(0, 0):
        A(x)
    c = ocvt(0, 1)
    for mm in pv1(0):
        A(mm)
        for _ in range(3):
            if c:
                A(c.pop(0))
    assert not c
    m1 = pv1(1)
    c = ocvt(1, 0)
    for n, mm in enumerate(m1):
        A(mm)
    A("s_waitcnt lgkmcnt(4)")
    for x in c:
        A(x)
    for x in ocvt(1, 1):
        A(x)
    A(f"s_lshl_b32 s{S_T0}, s{S_W}, 10")
    A(f"v_add_u32 v{V_W}, s{S_T0}, v{V_B}")
    for x in range(1, 4):
        A(f"v_xor_b32 v{V_W+x}, {x*1024}, v{V_W}")
    A(f"s_lshl_b32 s{S_CL}, s{S_BP}, 12" if o.rot else f"s_mov_b32 s{S_CL}, 0")
    if o.dp:
        A(f"s_and_b32 s{S_CL}, s{S_CL}, 0x7fff")
        A(f"s_and_b32 s{S_T0}, s{S_W}, 1")
        A(f"s_mul_i32 s{S_T0}, s{S_T0}, {32768+2048}")
        A(f"v_add_u32 v{V_KG}, s{S_T0}, v{V_LX}")
        for x in range(1, 4):
            A(f"s_xor_b32 s{S_T0}, s{S_W}, {x}")
            A(f"s_mul_i32 s{S_T0}, s{S_T0}, {3*8192}")
            A(f"s_add_u32 s{S_T0}, s{S_T0}, {LDS_R + (x-1)*8192}")
            A(f"v_add_u32 v{5+x}, s{S_T0}, v{V_LX}")
        A(f"s_mul_i32 s{S_T0}, s{S_W}, {3*8192}")
        A(f"s_add_u32 s{S_T0}, s{S_T0}, {LDS_R}")
        A(f"v_add_u32 v9, s{S_T0}, v{V_LX}")
    A(g.waitvm("w20"))
    def announce():
        A(f"s_cmp_lg_u32 s{S_W}, 0")
        A("s_cbranch_scc1 L_noann")
        A(f"s_lshr_b32 s{S_T0}, s2, 3")
        A(f"s_lshl_b32 s{S_T0}, s{S_T0}, 2")
        A(f"s_add_u32 s{S_T0}, s{S_T0}, 128")
        A(f"v_mov_b32 v{V_TMP}, 1")
        A("s_mov_b64 exec, 1")
        A(f"buffer_atomic_add v{V_TMP}, off, s[{S_DBG}:{S_DBG+3}], s{S_T0} sc1")
        A("s_mov_b64 exec, -1")
        g.lab("L_noann")
    if o.ph == 3:
        A(g.waitvm("mark"))
    elif o.fuse:
        announce()
    for p in perms(slot_rows(20), 0, PERM):
        A(p)
    A("s_waitcnt lgkmcnt(0)")
    if not o.dp:
        A("s_barrier")
    for x in bread(20):
        A(x)
    if o.ph == 3:
        announce()
    A("s_waitcnt lgkmcnt(0)")
    g.stamp(4)
    if o.dp:
        stage_c_dp(g, step, fq, emit)
        finish(g)
        return

    for s in range(20, 36):
        extra = {}
        if o.c4pre and s == o.c4pre:
            extra[17] = [f"s_mul_i32 s{S_T0}, s{S_BP}, {8*1280}", f"s_add_u32 s{S_T0}, s{S_T0}, s{S_CW+16}"]
            extra[19] = [f"v_lshrrev_b32 v{V_TMP}, 8, v{V_LX}", f"v_mul_u32_u24 v{V_TMP}, {1280-256}, v{V_TMP}"]
            extra[21] = [f"v_add_u32 v{V_TMP}, v{V_TMP}, v{V_LX}"]
            extra[31] = [("vm", f"buffer_load_dwordx4 {ar(0)}, v{V_TMP}, s[{S_WO}:{S_WO+3}], s{S_T0} offen", "pre"),
                         f"s_add_u32 s{S_T0}, s{S_T0}, {4*1280}",
                         ("vm", f"buffer_load_dwordx4 {ar(4)}, v{V_TMP}, s[{S_WO}:{S_WO+3}], s{S_T0} offen", "pre")]
        if o.e39 and s == 35:
            extra = {11: [f"s_lshr_b32 s{S_KS+4}, s2, 3"], 13: [f"s_lshl_b32 s{S_KS+4}, s{S_KS+4}, 2"], 15: [f"s_add_u32 s{S_KS+4}, s{S_KS+4}, 128"],
                     19: [("vm", f"buffer_load_dword v{V_B}, off, s[{S_DBG}:{S_DBG+3}], s{S_KS+4} sc1", "clr")]}
        step(s, s == 20, False, extra)
    g.stamp(5)
    ST2 = V_W + 4
    stg = [6, 12]
    outs = []
    A(f"s_lshl_b32 s{S_T0}, s{S_W}, 14")
    A(f"s_add_u32 s{S_T0}, s{S_T0}, s{S_ST}")
    for q in range(4):
        A(f"s_add_u32 s{S_KS+q}, s{S_T0}, {q*4096}")
    T = S_KS
    if o.fuse == 3:
        A(f"v_lshrrev_b32 v{V_B}, 9, v{V_LX}")
        A(f"s_lshr_b32 s{T+9}, s{S_HQ}, 1")
        A(f"v_mul_u32_u24 v{V_B}, 1536, v{V_B}")
        A(f"s_bitcmp1_b32 s{S_HQ}, 0")
        A(f"s_cselect_b32 s{T+16}, 0, {-1 if o.own else 0}")
        A(f"s_cselect_b32 s{T+17}, {-1 if o.own else 0}, 0")
        A(f"v_add_u32 v{V_B}, v{V_B}, v{V_LX}")
    for q in range(4):
        for r in range(4):
            st = stg[r % 2]
            for t in range(4):
                x = f"v_cvt_pk_bf16_f32 v{st+t}, v{ACC+q*32+(2*t)*4+r}, v{ACC+q*32+(2*t+1)*4+r}"
                if o.fuse == 3 and r == 0 and t == 1:
                    x += f"\n    s_cmp_eq_u32 s{T+9}, {q}\n    s_cselect_b64 s[{T+26}:{T+27}], s[{T+16}:{T+17}], 0"
                if o.fuse == 3 and r == 0 and t == 2:
                    x += f"\n    v_cndmask_b32 v{V_TMP}, v{V_B}, 2.0, s[{T+26}:{T+27}]"
                outs.append(x)
            if o.fuse == 3:
                outs.append(("vm", f"buffer_store_dwordx4 {vr(st)}, v{V_TMP}, s[{S_WS}:{S_WS+3}], s{S_KS+q} offen offset:{r*512} {o.pst}", "st"))
            else:
                outs.append(("vm", f"buffer_store_dwordx4 {vr(st)}, v{V_LX}, s[{S_WS}:{S_WS+3}], s{S_KS+q} offen offset:{r*1024} {o.pst}", "st"))
    ex36 = {}
    if o.fuse:
        ex36 = {13: [f"s_lshr_b32 s{S_KS+4}, s2, 3"], 15: [f"s_lshl_b32 s{S_KS+4}, s{S_KS+4}, 2"], 17: [f"s_add_u32 s{S_KS+4}, s{S_KS+4}, 128"],
                31: [("vm", f"buffer_load_dword {'a96' if o.fuse == 3 else f'v{V_B}'}, off, s[{S_DBG}:{S_DBG+3}], s{S_KS+4} sc1", "clr")]}
    if o.e39:
        cps = [f"v_accvgpr_read_b32 v{RING+n}, a{n}" for n in range(32)]
        for s in range(36, 40):
            extra = {}
            for k in range(1 if s == 36 else 0, 32):
                extra[k] = []
                for rep in range(2 if (o.dens and k % 2 == 1) else 1):
                    if outs:
                        extra[k].append(outs.pop(0))
                if s == 36 and k == 23:
                    extra[k].append(lambda: g.waitvm("w39"))
                if cps and (s, k) >= ((37, 0) if not o.dens else (37, 12)):
                    extra[k].append(cps.pop(0))
            if s == 38:
                assert not cps
            step(s, s == 36, s == 39, extra)
    else:
        step(36, True, False, ex36)
    for s in range(37, 40 if not o.e39 else 0):
        extra = {}
        lo = 11 + 2 * o.spread if (s == 37 and o.spread) else 0
        for k in range(lo, 32):
            if outs:
                extra[k] = [outs.pop(0)]
                if s == 39 and k >= 24 and outs:
                    extra[k].append(outs.pop(0))
        step(s, False, s == 39, extra)
    for x in outs:
        emit(x)
    g.stamp(6)
    for x in range(1, 4):
        A(f"s_xor_b32 s{S_T0}, s{S_W}, {x}")
        A(f"s_mul_i32 s{S_T0}, s{S_T0}, {3*8192}")
        A(f"s_add_u32 s{S_T0}, s{S_T0}, {LDS_R + (x-1)*8192}")
        A(f"v_add_u32 v{V_W+x}, s{S_T0}, v{V_LX}")
    A(f"s_mul_i32 s{S_T0}, s{S_W}, {3*8192}")
    A(f"s_add_u32 s{S_T0}, s{S_T0}, {LDS_R}")
    A(f"v_add_u32 v{V_W}, s{S_T0}, v{V_LX}")
    if o.fuse == 3 and o.il:
        mark = len(g.L)
        pick(g, "m", 8, f"s{S_HQ}", own_main)
        blob = g.L[mark:]
        del g.L[mark:]
        for n in range(32):
            A(f"v_accvgpr_read_b32 v{ACC+n}, a{A_C4+n}")
        A(f"s_lshl_b32 s{S_T0}, s{S_W}, 12")
        A(f"s_add_u32 s{S_T0}, s{S_T0}, s{S_ST}")
        A(f"s_add_u32 s{S_T0}, s{S_T0}, 65536")
        tail3_addr(g)
        fl = g.L[mark:]
        del g.L[mark:]
        n = 0
        for j in range(8):
            for x in range(1, 4):
                A(f"ds_write_b128 v{V_W+x}, {ar(A_C4+x*32+j*4)} offset:{j*1024}")
                if n == 1:
                    g.L += blob
                elif n > 1:
                    k = -(-len(fl) // (24 - n))
                    while k < len(fl) and fl[k].split()[0].startswith("s_cselect"):
                        k += 1
                    g.L += fl[:k]
                    del fl[:k]
                if n % 4 == 3:
                    A(f"s_waitcnt lgkmcnt({o.il})")
                n += 1
        assert not fl
    else:
        A("s_nop 7")
        for x in range(1, 4):
            for j in range(8):
                A(f"ds_write_b128 v{V_W+x}, {ar(A_C4+x*32+j*4)} offset:{j*1024}")
            A("s_waitcnt lgkmcnt(6)")
        if o.fuse == 3:
            pick(g, "m", 8, f"s{S_HQ}", own_main)
        for n in range(32):
            A(f"v_accvgpr_read_b32 v{ACC+n}, a{A_C4+n}")
        A(f"s_lshl_b32 s{S_T0}, s{S_W}, 12")
        A(f"s_add_u32 s{S_T0}, s{S_T0}, s{S_ST}")
        A(f"s_add_u32 s{S_T0}, s{S_T0}, 65536")
        if o.fuse == 2:
            tail2_addr(g)
        if o.fuse == 3:
            tail3_addr(g)
    A("s_waitcnt lgkmcnt(0)")
    A("s_barrier")
    for x in range(3):
        for j in range(8):
            A(f"ds_read_b128 {vr(RING+x*32+j*4)}, v{V_W} offset:{x*8192+j*1024}")
            if x >= 1 and j == 3:
                A("s_waitcnt lgkmcnt(4)")
                if o.fuse >= 2 and o.ph >= 2 and o.fa == 3 - x:
                    tail2_flag(g, 1)
                    if o.ph == 3:
                        tail4_poll(g)
                for n in range(32):
                    A(f"v_add_f32 v{ACC+n}, v{ACC+n}, v{RING+(x-1)*32+n}")
    A("s_waitcnt lgkmcnt(0)")
    for n in range(32):
        A(f"v_add_f32 v{ACC+n}, v{ACC+n}, v{RING+64+n}")
    for r in range(4):
        st = (PERM if o.fuse != 3 else ACC + 32) + r * 4
        for t in range(4):
            A(f"v_cvt_pk_bf16_f32 v{st+t}, v{ACC+(2*t)*4+r}, v{ACC+(2*t+1)*4+r}")
        if o.fuse >= 2 and o.ph == 2 and o.fa == 0 and r == 0:
            tail2_flag(g, 1)
        if o.fuse == 3:
            A(g.vm(f"buffer_store_dwordx4 {vr(st)}, v{VS3}, s[{S_WS}:{S_WS+3}], s{S_T0} offen offset:{r*128} {o.pst}", "st"))
        else:
            A(g.vm(f"buffer_store_dwordx4 {vr(st)}, v{V_LX}, s[{S_WS}:{S_WS+3}], s{S_T0} offen offset:{r*1024} {o.pst}", "st"))
    if o.ph == 3:
        tail4(g)
    elif o.fuse == 3:
        tail3(g)
    elif o.fuse == 2:
        tail2(g)
    elif o.fuse:
        fused_tail(g)
    finish(g)


def finish(g):
    o = g.o
    A = g.A
    if o.diag:
        g.stamp(7) if not o.fuse else None
        A("s_waitcnt vmcnt(0)")
        g.stamp(8)
        if o.fuse:
            A("s_mov_b32 s2, vcc_hi")
        A(f"s_memrealtime s[{S_TS}:{S_TS+1}]")
        A("s_waitcnt lgkmcnt(0)")
        A(f"v_writelane_b32 v{V_TID}, s{S_TS}, 9")
        A(f"s_lshl_b32 s{S_T0}, s2, 2")
        A(f"s_add_u32 s{S_T0}, s{S_T0}, s{S_W}")
        A(f"s_lshl_b32 s{S_T0}, s{S_T0}, 8")
        A(f"s_add_u32 s{S_T0}, s{S_T0}, 0x8000000")
        A(f"v_lshrrev_b32 v{V_TMP}, 2, v{V_LX}")
        A(f"buffer_store_dword v{V_TID}, v{V_TMP}, s[{S_WS}:{S_WS+3}], s{S_T0} offen")
        if o.diag == 3 and o.fuse:
            A(f"s_lshl_b32 s{S_T0}, s2, 2")
            A(f"s_add_u32 s{S_T0}, s{S_T0}, s{S_W}")
            A(f"s_cmp_lg_u32 s{S_T0}, {o.sel}")
            A("s_cbranch_scc1 L_main_end")
            A(f"v_readlane_b32 s{S_T0}, v{V_TID}, 56")
            A(f"v_readlane_b32 s{S_T1}, v{V_TID}, 57")
            A(f"v_readlane_b32 s{S_STMP}, v{V_TID}, 58")
            A("s_nop 3")
            A(f"v_writelane_b32 v{V_TID}, s{S_T0}, 12")
            A(f"v_writelane_b32 v{V_TID}, s{S_T1}, 14")
            A(f"v_writelane_b32 v{V_TID}, s{S_STMP}, 15")
            A("s_mov_b64 exec, 0xffff")
            A(f"buffer_store_dword v{V_TID}, v{V_TMP}, s[{S_DBG}:{S_DBG+3}], 0 offen")
        if o.diag == 2:
            A("s_load_dwordx2 s[32:33], s[0:1], 88")
            A("v_readlane_b32 s36, v0, 10")
            A("v_readlane_b32 s37, v0, 8")
            A("s_mov_b32 s34, 64")
            A("s_mov_b32 s35, 0x20000")
            A("s_not_b32 s36, s36")
            A("s_not_b32 s37, s37")
            A("v_writelane_b32 v0, s36, 11")
            A("v_writelane_b32 v0, s37, 12")
            A("s_waitcnt lgkmcnt(0)")
            A(f"buffer_atomic_umax v0, v{V_TMP}, s[32:35], 0 offen sc1")
    g.lab("L_main_end")
    A("s_endpgm")


def fused_tail(g):
    o = g.o
    A = g.A
    T = S_KS
    g.stamp(7)
    A(f"s_lshr_b32 s{T+5}, s2, 3")
    A(f"s_and_b32 s{T+6}, s2, 7")
    A(f"s_mul_i32 s{T+7}, s{T+5}, {8*(81920+o.pad)}")
    A(f"s_lshl_b32 s{T+8}, s{T+6}, 3")
    A(f"s_lshl_b32 s{T+9}, s{S_W}, 1")
    A(f"s_add_u32 s{T+8}, s{T+8}, s{T+9}")
    A(f"s_lshl_b32 s{T+9}, s{T+6}, 1")
    A(f"s_lshr_b32 s{T+10}, s{S_W}, 1")
    A(f"s_add_u32 s{T+9}, s{T+9}, s{T+10}")
    A(f"s_add_u32 s{T+9}, s{T+9}, 64")
    A(f"s_lshl_b32 s{T+10}, s{T+8}, 10")
    A(f"s_add_u32 s{T+10}, s{T+10}, s{T+7}")
    A(f"s_lshl_b32 s{T+11}, s{T+9}, 10")
    A(f"s_add_u32 s{T+11}, s{T+11}, s{T+7}")
    A(f"s_and_b32 s{T+12}, s{T+5}, 15")
    A(f"s_mul_i32 s{T+12}, s{T+12}, {4*40960}")
    A(f"s_lshr_b32 s{T+13}, s{T+5}, 4")
    A(f"s_mul_i32 s{T+13}, s{T+13}, 1280")
    A(f"s_add_u32 s{T+12}, s{T+12}, s{T+13}")
    for blk, dst in ((T+8, T+14), (T+9, T+15)):
        A(f"s_bfe_u32 s{T+13}, s{blk}, 0x20002")
        A(f"s_mul_i32 s{T+13}, s{T+13}, 40960")
        A(f"s_add_u32 s{dst}, s{T+12}, s{T+13}")
        A(f"s_lshr_b32 s{T+13}, s{blk}, 4")
        A(f"s_lshl_b32 s{T+13}, s{T+13}, 8")
        A(f"s_add_u32 s{dst}, s{dst}, s{T+13}")
        A(f"s_and_b32 s{T+13}, s{blk}, 3")
        A(f"s_lshl_b32 s{T+13}, s{T+13}, 4")
        A(f"s_add_u32 s{dst}, s{dst}, s{T+13}")
    A(f"s_bitcmp1_b32 s{S_W}, 0")
    A(f"s_cselect_b32 s{T+16}, 0, -1")
    A(f"s_cselect_b32 s{T+17}, -1, 0")
    A(f"s_mov_b32 s{T+18}, 0x3f80")
    A(f"s_mov_b32 s{T+19}, 0x3f800000")
    A(f"s_mov_b32 s{T+20}, 0xffff0000")
    VO, VF, VP = 2, 3, 4
    A(f"v_bfe_u32 v{VO}, v{V_LX}, 4, 4")
    A(f"v_lshrrev_b32 v{VF}, 8, v{V_LX}")
    A(f"v_mul_u32_u24 v{VO}, 2560, v{VO}")
    A(f"v_lshl_add_u32 v{VO}, v{VF}, 6, v{VO}")
    A(f"v_lshlrev_b32 v{VF}, 3, v{V_LX}")
    A(f"s_lshl_b32 s{T+21}, s2, 7")
    A(f"s_add_u32 s{T+21}, s{T+21}, {WS_FLAG}")
    A(f"s_lshl_b32 s{T+22}, s{T+5}, 10")
    A(f"s_add_u32 s{T+22}, s{T+22}, {WS_FLAG}")
    A(f"s_mov_b32 s{T+23}, {1<<20}")
    A(f"v_mov_b32 v{VP}, 1")
    A("s_waitcnt vmcnt(0)")
    A("s_barrier")
    g.stamp(56)
    A(f"s_cmp_lg_u32 s{S_W}, 0")
    A("s_cbranch_scc1 L_polled")
    A("s_mov_b64 exec, 1")
    A(f"buffer_store_dword v{VP}, off, s[{S_WS}:{S_WS+3}], s{T+21} sc1")
    g.lab("L_clr")
    A(f"v_readfirstlane_b32 s{T+24}, v{V_B}")
    A(f"s_sub_u32 s{T+23}, s{T+23}, 1")
    A("s_cbranch_scc1 L_polled")
    A(f"s_cmp_ge_u32 s{T+24}, 8")
    A("s_cbranch_scc1 L_poll0")
    A(f"buffer_load_dword v{V_B}, off, s[{S_DBG}:{S_DBG+3}], s{S_KS+4} sc1")
    A("s_waitcnt vmcnt(0)")
    A("s_branch L_clr")
    g.lab("L_poll0")
    A("s_mov_b64 exec, 0xff")
    g.lab("L_poll")
    A(f"buffer_load_dword v{VP}, v{VF}, s[{S_WS}:{S_WS+3}], s{T+22} offen sc1")
    A(f"s_sub_u32 s{T+23}, s{T+23}, 1")
    A("s_cbranch_scc1 L_polled")
    A("s_waitcnt vmcnt(0)")
    A(f"v_cmp_ne_u32 s[{T+24}:{T+25}], 1, v{VP}")
    A("s_nop 3")
    A(f"s_cmp_lg_u32 s{T+24}, 0")
    A("s_cbranch_scc1 L_poll")
    g.lab("L_polled")
    A("s_mov_b64 exec, -1")
    A("s_waitcnt vmcnt(0)")
    A("s_barrier")
    g.stamp(57)
    R = RING
    for h in range(8):
        A(f"buffer_load_dwordx4 {vr(R+h*12)}, v{V_LX}, s[{S_WS}:{S_WS+3}], s{T+10} offen sc1")
        A(f"buffer_load_dwordx4 {vr(R+h*12+4)}, v{V_LX}, s[{S_WS}:{S_WS+3}], s{T+10} offen offset:1024 sc1")
        A(f"s_mov_b64 exec, s[{T+16}:{T+17}]")
        A(f"buffer_load_dwordx4 {vr(R+h*12+8)}, v{V_LX}, s[{S_WS}:{S_WS+3}], s{T+11} offen sc1")
        A("s_mov_b64 exec, -1")
        if h < 7:
            A(f"s_add_u32 s{T+10}, s{T+10}, {81920+o.pad}")
            A(f"s_add_u32 s{T+11}, s{T+11}, {81920+o.pad}")
    for h in range(8):
        for b in range(3):
            A(f"s_waitcnt vmcnt({23-h*3-b})")
            for t in range(4):
                src = R + h * 12 + b * 4 + t
                d = ACC + b * 8 + 2 * t
                if h == 0:
                    A(f"v_lshlrev_b32 v{d}, 16, v{src}")
                    A(f"v_and_b32 v{d+1}, s{T+20}, v{src}")
                else:
                    A(f"v_dot2c_f32_bf16 v{d}, s{T+18}, v{src}")
                    A(f"v_dot2c_f32_bf16 v{d+1}, s{T+19}, v{src}")
    g.stamp(58)
    A("s_nop 1")
    for b in range(3):
        for t in range(4):
            A(f"v_cvt_pk_bf16_f32 v{PERM+b*4+t}, v{ACC+b*8+2*t}, v{ACC+b*8+2*t+1}")
        if b == 2:
            A(f"s_mov_b64 exec, s[{T+16}:{T+17}]")
        A(f"buffer_store_dwordx4 {vr(PERM+b*4)}, v{VO}, s[{S_OUT}:{S_OUT+3}], s{T+14+b//2} offen offset:{16*(b%2)} {o.pout}")
    if o.diag:
        A("s_mov_b64 exec, -1")


VO2, VF2, VP2, VQ2 = 6, 7, 8, 9


def flag_base(g, d, t):
    A = g.A
    if g.o.fl:
        A(f"s_lshr_b32 s{d}, s2, 3")
        A(f"s_lshl_b32 s{d}, s{d}, 9")
        A(f"s_and_b32 s{t}, s2, 7")
        A(f"s_lshl_b32 s{t}, s{t}, 2")
        A(f"s_add_u32 s{d}, s{d}, s{t}")
    else:
        A(f"s_lshl_b32 s{d}, s2, 9")
    A(f"s_add_u32 s{d}, s{d}, {WS_FLAG}")


def tail2_addr(g):
    o = g.o
    A = g.A
    T = S_KS
    A(f"s_lshr_b32 s{T+5}, s2, 3")
    A(f"s_and_b32 s{T+6}, s2, 7")
    A(f"s_mul_i32 s{T+7}, s{T+5}, {8*(81920+o.pad)}")
    A(f"s_lshl_b32 s{T+8}, s{T+6}, 3")
    A(f"s_mul_i32 s{T+9}, s{S_W}, 3")
    A(f"s_add_u32 s{T+8}, s{T+8}, s{T+9}")
    A(f"s_lshl_b32 s{T+9}, s{T+6}, 1")
    A(f"s_add_u32 s{T+9}, s{T+9}, 64")
    A(f"s_cmp_eq_u32 s{S_W}, 3")
    A(f"s_cselect_b32 s{T+8}, s{T+9}, s{T+8}")
    A(f"s_cselect_b32 s{T+17}, 2, 1")
    A(f"s_lshl_b32 s{T+10}, s{T+8}, 10")
    A(f"s_add_u32 s{T+10}, s{T+10}, s{T+7}")
    A(f"s_and_b32 s{T+12}, s{T+5}, 15")
    A(f"s_mul_i32 s{T+12}, s{T+12}, {4*40960}")
    A(f"s_lshr_b32 s{T+13}, s{T+5}, 4")
    A(f"s_mul_i32 s{T+13}, s{T+13}, 1280")
    A(f"s_add_u32 s{T+12}, s{T+12}, s{T+13}")
    for b in range(3):
        dst = T + 14 + b
        A(f"s_bfe_u32 s{T+13}, s{T+8}, 0x20002")
        A(f"s_mul_i32 s{T+13}, s{T+13}, 40960")
        A(f"s_add_u32 s{dst}, s{T+12}, s{T+13}")
        A(f"s_lshr_b32 s{T+13}, s{T+8}, 4")
        A(f"s_lshl_b32 s{T+13}, s{T+13}, 8")
        A(f"s_add_u32 s{dst}, s{dst}, s{T+13}")
        A(f"s_and_b32 s{T+13}, s{T+8}, 3")
        A(f"s_lshl_b32 s{T+13}, s{T+13}, 4")
        A(f"s_add_u32 s{dst}, s{dst}, s{T+13}")
        if b < 2:
            A(f"s_add_u32 s{T+8}, s{T+8}, 1")
    A(f"s_mov_b32 s{T+18}, 0x3f80")
    A(f"s_mov_b32 s{T+19}, 0x3f800000")
    A(f"s_mov_b32 s{T+20}, 0xffff0000")
    A(f"v_bfe_u32 v{VO2}, v{V_LX}, 4, 4")
    A(f"v_lshrrev_b32 v{VF2}, 8, v{V_LX}")
    A(f"v_mul_u32_u24 v{VO2}, 2560, v{VO2}")
    A(f"v_lshl_add_u32 v{VO2}, v{VF2}, 6, v{VO2}")
    if o.fl:
        A(f"v_lshrrev_b32 v{VF2}, 2, v{V_LX}")
    else:
        A(f"v_lshlrev_b32 v{VF2}, 5, v{V_LX}")
    flag_base(g, T + 21, T + 13)
    A(f"s_lshl_b32 s{T+13}, s{S_W}, 7")
    A(f"s_add_u32 s{T+21}, s{T+21}, s{T+13}")
    A(f"s_lshl_b32 s{T+22}, s{T+5}, {9 if o.fl else 12}")
    A(f"s_lshr_b32 s{T+13}, s{T+6}, 1")
    A(f"s_lshl_b32 s{T+13}, s{T+13}, 7")
    A(f"s_add_u32 s{T+22}, s{T+22}, s{T+13}")
    A(f"s_add_u32 s{T+22}, s{T+22}, {WS_FLAG}")
    A(f"s_mov_b32 s{T+23}, {1<<20}")
    A(f"v_mov_b32 v{VP2}, 1")
    A(f"v_mov_b32 v{VQ2}, 2")


def tail2_flag(g, val):
    A = g.A
    T = S_KS
    for k in range(len(g.vq)):
        g.vq[k] = []
    A("s_waitcnt vmcnt(0)")
    g.stamp(59)
    A("s_mov_b64 exec, 1")
    A(f"buffer_store_dword v{VP2}, off, s[{S_WS}:{S_WS+3}], s{T+21} sc1")
    A("s_mov_b64 exec, -1")


def tail2(g):
    o = g.o
    A = g.A
    T = S_KS
    g.stamp(7)
    A("s_mov_b64 exec, 1")
    g.lab("L_clr")
    A(f"v_readfirstlane_b32 s{T+24}, v{V_B}")
    A(f"s_sub_u32 s{T+23}, s{T+23}, 1")
    A("s_cbranch_scc1 L_polled")
    A(f"s_cmp_ge_u32 s{T+24}, 8")
    A("s_cbranch_scc1 L_poll0")
    A(f"buffer_load_dword v{V_B}, off, s[{S_DBG}:{S_DBG+3}], s{S_KS+4} sc1")
    A("s_waitcnt vmcnt(0)")
    A("s_branch L_clr")
    g.lab("L_poll0")
    A("s_mov_b64 exec, 0xff")
    A(f"buffer_load_dword v{VP2}, v{VF2}, s[{S_WS}:{S_WS+3}], s{T+22} offen sc1")
    A("s_waitcnt vmcnt(1)")
    g.stamp(56)
    A("s_mov_b64 exec, 1")
    A(f"buffer_store_dword v{VQ2}, off, s[{S_WS}:{S_WS+3}], s{T+21} sc1")
    A("s_mov_b64 exec, 0xff")
    A("s_waitcnt vmcnt(1)")
    g.stamp(61)
    g.lab("L_poll")
    A(f"v_cmp_gt_u32 s[{T+24}:{T+25}], s{T+17}, v{VP2}")
    A(f"s_sub_u32 s{T+23}, s{T+23}, 1")
    A("s_cbranch_scc1 L_polled")
    A("s_nop 2")
    A(f"s_cmp_eq_u32 s{T+24}, 0")
    A("s_cbranch_scc1 L_polled")
    A(f"buffer_load_dword v{VP2}, v{VF2}, s[{S_WS}:{S_WS+3}], s{T+22} offen sc1")
    A("s_waitcnt vmcnt(0)")
    A("s_branch L_poll")
    g.lab("L_polled")
    A("s_mov_b64 exec, -1")
    g.stamp(57)
    R = RING
    A(f"s_cmp_ge_u32 s{S_W}, 2")
    A("s_cbranch_scc1 L_two")
    for nb in (3, 2):
        if nb == 2:
            g.lab("L_two")
        for h in range(8):
            for b in range(nb):
                A(f"buffer_load_dwordx4 {vr(R+h*12+b*4)}, v{V_LX}, s[{S_WS}:{S_WS+3}], s{T+10} offen offset:{b*1024} sc1")
            if h < 7:
                A(f"s_add_u32 s{T+10}, s{T+10}, {81920+o.pad}")
        for h in range(8):
            for b in range(nb):
                A(f"s_waitcnt vmcnt({8*nb-1-h*nb-b})")
                for t in range(4):
                    src = R + h * 12 + b * 4 + t
                    d = ACC + b * 8 + 2 * t
                    if h == 0:
                        A(f"v_lshlrev_b32 v{d}, 16, v{src}")
                        A(f"v_and_b32 v{d+1}, s{T+20}, v{src}")
                    else:
                        A(f"v_dot2c_f32_bf16 v{d}, s{T+18}, v{src}")
                        A(f"v_dot2c_f32_bf16 v{d+1}, s{T+19}, v{src}")
        g.stamp(58)
        A("s_nop 1")
        for b in range(nb):
            for t in range(4):
                A(f"v_cvt_pk_bf16_f32 v{PERM+b*4+t}, v{ACC+b*8+2*t}, v{ACC+b*8+2*t+1}")
            A(f"buffer_store_dwordx4 {vr(PERM+b*4)}, v{VO2}, s[{S_OUT}:{S_OUT+3}], s{T+14+b} offen {o.pout}")
        if nb == 3:
            A("s_branch L_summed" if o.diag else "s_endpgm")
    g.lab("L_summed")


def pick(g, name, n, sel, body):
    A = g.A
    for k in range(n):
        if k < n - 1:
            A(f"s_cmp_lg_u32 {sel}, {k}")
            A(f"s_cbranch_scc1 L_pk{name}{k}")
        for x in body(k):
            A(x)
        if k < n - 1:
            A(f"s_branch L_pk{name}e")
            g.lab(f"L_pk{name}{k}")
    g.lab(f"L_pk{name}e")


VC3, VS3, VD3 = 12, 13, 14


def own_main(h):
    out = []
    for b in range(2):
        for j in range(8):
            x = ACC + (h >> 1) * 32 + j * 4 + 2 * b
            out.append(f"v_permlane32_swap_b32 v{x}, v{x+1}")
    for b in range(2):
        for j in range(8):
            out.append(f"v_mov_b32 v{PERM+b*8+j}, v{ACC+(h>>1)*32+j*4+2*b+(h&1)}")
    return out


def tail3_addr(g):
    o = g.o
    A = g.A
    T = S_KS
    assert o.fl
    A(f"v_accvgpr_read_b32 v{V_B}, a96")
    A(f"s_lshr_b32 s{T+5}, s2, 3")
    A(f"s_mul_i32 s{T+7}, s{T+5}, {8*(81920+o.pad)}")
    A(f"s_lshl_b32 s{T+8}, s{S_W}, 14")
    A(f"s_lshl_b32 s{T+6}, s{S_HQ}, 11")
    A(f"s_add_u32 s{T+8}, s{T+8}, s{T+6}")
    A(f"s_add_u32 s{T+10}, s{T+8}, s{T+7}")
    for k in range(8):
        A(f"s_add_u32 s{T+13}, s{S_HQ}, {k}")
        A(f"s_and_b32 s{T+13}, s{T+13}, 7")
        A(f"s_mul_i32 s{T+13}, s{T+13}, {81920+o.pad}")
        A(f"s_add_u32 s{S_XC+k}, s{T+10}, s{T+13}")
    A(f"s_lshl_b32 s{T+6}, s{S_W}, 12")
    A(f"s_lshl_b32 s{T+13}, s{S_HQ}, 9")
    A(f"s_add_u32 s{T+6}, s{T+6}, s{T+13}")
    A(f"s_add_u32 s{T+6}, s{T+6}, 65536")
    A(f"s_sub_u32 s{T+13}, s{T+6}, s{T+8}")
    A(f"v_add_u32 v{VC3}, s{T+13}, v{V_LX}")
    A(f"v_bfe_u32 v{VS3}, v{V_LX}, 6, 2")
    A(f"v_lshrrev_b32 v{VD3}, 9, v{V_LX}")
    A(f"v_lshl_add_u32 v{VS3}, v{VS3}, 1, v{VD3}")
    A(f"v_bfe_u32 v{VD3}, v{V_LX}, 4, 2")
    A(f"v_bfe_u32 v{VF2}, v{V_LX}, 8, 1")
    A(f"v_lshl_add_u32 v{VD3}, v{VD3}, 1, v{VF2}")
    A(f"v_lshlrev_b32 v{VD3}, 4, v{VD3}")
    A(f"v_lshl_add_u32 v{VS3}, v{VS3}, 9, v{VD3}")
    A(f"s_and_b32 s{T+12}, s{T+5}, 15")
    A(f"s_mul_i32 s{T+12}, s{T+12}, {4*40960}")
    A(f"s_lshr_b32 s{T+13}, s{T+5}, 4")
    A(f"s_mul_i32 s{T+13}, s{T+13}, 1280")
    A(f"s_add_u32 s{T+12}, s{T+12}, s{T+13}")
    A(f"s_and_b32 s{T+13}, s{S_HQ}, 1")
    A(f"s_lshl_b32 s{T+13}, s{T+13}, 7")
    A(f"s_add_u32 s{T+12}, s{T+12}, s{T+13}")
    A(f"s_mul_i32 s{T+13}, s{T+9}, 40960")
    A(f"s_add_u32 s{T+14}, s{T+12}, s{T+13}")
    A(f"s_lshl_b32 s{T+13}, s{S_W}, 8")
    A(f"s_add_u32 s{T+14}, s{T+14}, s{T+13}")
    A(f"s_lshl_b32 s{T+13}, s{S_W}, 2")
    A(f"s_add_u32 s{T+13}, s{T+13}, s{T+9}")
    A(f"s_mul_i32 s{T+13}, s{T+13}, 10240")
    A(f"s_add_u32 s{T+15}, s{T+12}, s{T+13}")
    A(f"s_add_u32 s{T+15}, s{T+15}, 1024")
    A(f"s_mov_b32 s{T+18}, 0x3f80")
    A(f"s_mov_b32 s{T+19}, 0x3f800000")
    A(f"s_mov_b32 s{T+20}, 0xffff0000")
    A(f"v_bfe_u32 v{VO2}, v{V_LX}, 4, 4")
    A(f"v_bfe_u32 v{VF2}, v{V_LX}, 8, 1")
    A(f"v_mul_u32_u24 v{VO2}, 2560, v{VO2}")
    A(f"v_lshl_add_u32 v{VO2}, v{VF2}, 6, v{VO2}")
    A(f"v_lshrrev_b32 v{VF2}, 9, v{V_LX}")
    A(f"v_lshl_add_u32 v{VO2}, v{VF2}, 4, v{VO2}")
    if o.full:
        A(f"v_bfe_u32 v{VF2}, v{V_LX}, 7, 1")
        A(f"v_mul_u32_u24 v{VF2}, {8*2560-32}, v{VF2}")
        A(f"v_sub_u32 v{VO2}, v{VO2}, v{VF2}")
    A(f"v_bfe_u32 v{VD3}, v{V_LX}, 5, 2")
    A(f"v_bfe_u32 v{VF2}, v{V_LX}, 4, 1")
    A(f"v_mul_u32_u24 v{VD3}, 2560, v{VD3}")
    A(f"v_lshl_add_u32 v{VD3}, v{VF2}, 6, v{VD3}")
    A(f"v_lshrrev_b32 v{VF2}, 7, v{V_LX}")
    A(f"v_lshl_add_u32 v{VD3}, v{VF2}, 4, v{VD3}")
    A(f"v_lshrrev_b32 v{VF2}, 2, v{V_LX}")
    A(f"s_lshl_b32 s{T+22}, s{T+5}, 9")
    A(f"s_lshl_b32 s{T+13}, s{S_W}, 7")
    A(f"s_add_u32 s{T+22}, s{T+22}, s{T+13}")
    A(f"s_add_u32 s{T+22}, s{T+22}, {WS_FLAG}")
    A(f"s_lshl_b32 s{T+13}, s{S_HQ}, 2")
    A(f"s_add_u32 s{T+21}, s{T+22}, s{T+13}")
    A(f"s_lshl_b32 s{T+13}, 1, s{S_HQ}")
    A(f"s_andn2_b32 s{T+28}, 0xff, s{T+13}")
    A(f"s_mov_b32 s{T+29}, 0")
    A(f"s_mov_b32 s{T+16}, -1")
    A(f"s_mov_b32 s{T+17}, 0")
    A(f"s_mov_b32 s{T+23}, {1<<20}")
    A(f"v_mov_b32 v{VP2}, 1")
    A(f"v_mov_b32 v{VQ2}, 2")


def tail3(g):
    o = g.o
    A = g.A
    T = S_KS
    WS = f"s[{S_WS}:{S_WS+3}]"
    PM = f"s[{T+28}:{T+29}]"
    HALF = f"s[{T+16}:{T+17}]"
    SM, SC, ST = PERM, ACC + 48, ACC + 64
    poll = f"buffer_load_dword v{VP2}, v{VF2}, {WS}, s{T+22} offen sc1"
    g.stamp(7)
    A("s_mov_b64 exec, 1")
    g.lab("L_clr")
    A(f"v_readfirstlane_b32 s{T+24}, v{V_B}")
    A(f"s_sub_u32 s{T+23}, s{T+23}, 1")
    A("s_cbranch_scc1 L_poll0")
    A(f"s_cmp_ge_u32 s{T+24}, 8")
    A("s_cbranch_scc1 L_poll0")
    A(f"buffer_load_dword v{V_B}, off, s[{S_DBG}:{S_DBG+3}], s{S_KS+4} sc1")
    A("s_waitcnt vmcnt(0)")
    A("s_branch L_clr")
    g.lab("L_poll0")
    A(f"s_max_i32 s{T+23}, s{T+23}, 0")
    A(f"s_mov_b64 exec, {PM}")
    A(poll)
    A("s_waitcnt vmcnt(1)")
    g.stamp(56)
    A("s_mov_b64 exec, 1")
    A(f"buffer_store_dword v{VQ2}, off, {WS}, s{T+21} sc1")
    A(f"s_mov_b64 exec, {PM}")
    A("s_waitcnt vmcnt(1)")
    g.stamp(61)

    def wait(val, lab):
        g.lab(lab)
        A(f"v_cmp_gt_u32 s[{T+24}:{T+25}], {val}, v{VP2}")
        A(f"s_sub_u32 s{T+23}, s{T+23}, 1")
        A(f"s_cbranch_scc1 {lab}e")
        A("s_nop 2")
        A(f"s_cmp_eq_u32 s{T+24}, 0")
        A(f"s_cbranch_scc1 {lab}e")
        A(poll)
        A("s_waitcnt vmcnt(0)")
        A(f"s_branch {lab}")
        g.lab(lab + "e")
        A(f"s_max_i32 s{T+23}, s{T+23}, 0")

    def summ(dst, src):
        for t in range(4):
            A(f"v_dot2c_f32_bf16 v{dst+2*t}, s{T+18}, v{src+t}")
            A(f"v_dot2c_f32_bf16 v{dst+2*t+1}, s{T+19}, v{src+t}")

    def main_sum(younger):
        for k in range(7):
            for b in range(2):
                A(f"s_waitcnt vmcnt({13-2*k-b+younger})")
                summ(SM + b * 8, RING + k * 12 + b * 4)

    def c4_loads():
        A(f"s_mov_b64 exec, {HALF}")
        for k in range(8):
            A(f"buffer_load_dwordx4 {vr(RING+k*12+8)}, v{VC3}, {WS}, s{S_XC+k} offen sc1")
        A("s_mov_b64 exec, -1")

    def rest():
        A("s_nop 1")
        if o.full:
            for b in range(2):
                for t in range(4):
                    A(f"v_cvt_pk_bf16_f32 v{ST+b*4+t}, v{SM+b*8+2*t}, v{SM+b*8+2*t+1}")
            for t in range(4):
                A(f"v_mov_b32 v{ST+12+t}, v{ST+t}")
            A(f"s_add_u32 s{T+13}, s{T+14}, {8*2560}")
            for t in range(4):
                A(f"v_mov_b32_dpp v{ST+t}, v{ST+4+t} row_ror:8 row_mask:0xf bank_mask:0xc")
            for t in range(4):
                A(f"v_mov_b32_dpp v{ST+4+t}, v{ST+12+t} row_ror:8 row_mask:0xf bank_mask:0x3")
            A(f"buffer_store_dwordx4 {vr(ST)}, v{VO2}, s[{S_OUT}:{S_OUT+3}], s{T+14} offen {o.pout}")
            A(f"buffer_store_dwordx4 {vr(ST+4)}, v{VO2}, s[{S_OUT}:{S_OUT+3}], s{T+13} offen {o.pout}")
        for b in range(2 if not o.full else 0):
            for t in range(4):
                A(f"v_cvt_pk_bf16_f32 v{ST+b*4+t}, v{SM+b*8+2*t}, v{SM+b*8+2*t+1}")
            A(f"buffer_store_dwordx4 {vr(ST+b*4)}, v{VO2}, s[{S_OUT}:{S_OUT+3}], s{T+14} offen offset:{32*b} {o.pout}")
        for k in range(8):
            A(f"s_waitcnt vmcnt({7-k+2})")
            if k == 0:
                for t in range(4):
                    A(f"v_lshlrev_b32 v{SC+2*t}, 16, v{RING+8+t}")
                    A(f"v_and_b32 v{SC+2*t+1}, s{T+20}, v{RING+8+t}")
            else:
                summ(SC, RING + k * 12 + 8)
        g.stamp(58)
        A("s_nop 1")
        for t in range(4):
            A(f"v_cvt_pk_bf16_f32 v{ST+8+t}, v{SC+2*t}, v{SC+2*t+1}")
        A(f"s_mov_b64 exec, {HALF}")
        A(f"buffer_store_dwordx4 {vr(ST+8)}, v{VD3}, s[{S_OUT}:{S_OUT+3}], s{T+15} offen {o.pout}")
        if o.diag:
            A("s_mov_b64 exec, -1")

    wait(1 if o.ph == 2 else 2, "L_p1")
    if o.ph == 2:
        A(f"v_cmp_gt_u32 s[{T+24}:{T+25}], 2, v{VP2}")
    A("s_mov_b64 exec, -1")
    g.stamp(57)
    for k in range(7):
        for b in range(2):
            A(f"buffer_load_dwordx4 {vr(RING+k*12+b*4)}, v{V_LX}, {WS}, s{S_XC+1+k} offen offset:{b*1024} sc1")
    if o.ph == 2:
        A(f"s_cmp_eq_u32 s{T+24}, 0")
        A("s_cbranch_scc1 L_fast")
        A(f"s_mov_b64 exec, {PM}")
        A(poll)
        A("s_mov_b64 exec, -1")
        main_sum(1)
        A("s_waitcnt vmcnt(0)")
        A(f"s_mov_b64 exec, {PM}")
        wait(2, "L_p2")
        c4_loads()
        rest()
        A("s_branch L_summed" if o.diag else "s_endpgm")
        g.lab("L_fast")
    c4_loads()
    main_sum(8)
    rest()
    g.lab("L_summed")


def tail4_poll(g):
    A = g.A
    T = S_KS
    A("s_mov_b64 exec, 1")
    g.lab("L_clr")
    A(f"v_readfirstlane_b32 s{T+24}, v{V_B}")
    A(f"s_sub_u32 s{T+23}, s{T+23}, 1")
    A("s_cbranch_scc1 L_poll0")
    A(f"s_cmp_ge_u32 s{T+24}, 8")
    A("s_cbranch_scc1 L_poll0")
    A(f"buffer_load_dword v{V_B}, off, s[{S_DBG}:{S_DBG+3}], s{S_KS+4} sc1")
    A("s_waitcnt vmcnt(0)")
    A("s_branch L_clr")
    g.lab("L_poll0")
    A(f"s_max_i32 s{T+23}, s{T+23}, 0")
    A(f"s_mov_b64 exec, s[{T+28}:{T+29}]")
    A(f"buffer_load_dword v15, v{VF2}, s[{S_WS}:{S_WS+3}], s{T+22} offen sc1")
    A("s_mov_b64 exec, -1")


def tail4(g):
    o = g.o
    A = g.A
    T = S_KS
    WS = f"s[{S_WS}:{S_WS+3}]"
    PM = f"s[{T+28}:{T+29}]"
    HALF = f"s[{T+16}:{T+17}]"
    SM, SC, ST, VP, VM = PERM, ACC + 48, ACC + 64, 15, ACC + 80
    PEND, OK2 = T + 11, T + 10
    poll = f"buffer_load_dword v{VP}, v{VF2}, {WS}, s{T+22} offen sc1"
    g.stamp(7)
    A(f"s_mov_b64 exec, {PM}")
    A("s_waitcnt vmcnt(4)")
    g.stamp(61)
    g.lab("L_p1")
    A(f"v_cmp_gt_u32 s[{T+24}:{T+25}], 1, v{VP}")
    A(f"s_sub_u32 s{T+23}, s{T+23}, 1")
    A("s_cbranch_scc1 L_p1e")
    A("s_nop 2")
    A(f"s_cmp_eq_u32 s{T+24}, 0")
    A("s_cbranch_scc1 L_p1e")
    A(poll)
    A("s_waitcnt vmcnt(0)")
    A("s_branch L_p1")
    g.lab("L_p1e")
    A(f"s_max_i32 s{T+23}, s{T+23}, 0")
    A("s_mov_b64 exec, -1")
    g.stamp(57)
    for k in range(7):
        for b in range(2):
            A(f"buffer_load_dwordx4 {vr(RING+k*12+b*4)}, v{V_LX}, {WS}, s{S_XC+1+k} offen offset:{b*1024} sc1")
    A(f"s_mov_b64 exec, {HALF}")
    order = [1, 2, 3, 4, 5, 6, 7, 0]
    for k in order:
        A(f"buffer_load_dwordx4 {vr(RING+k*12+8)}, v{VC3}, {WS}, s{S_XC+k} offen sc1")
    A("s_mov_b64 exec, -1")

    def summ(dst, src):
        for t in range(4):
            A(f"v_dot2c_f32_bf16 v{dst+2*t}, s{T+18}, v{src+t}")
            A(f"v_dot2c_f32_bf16 v{dst+2*t+1}, s{T+19}, v{src+t}")

    for k in range(7):
        for b in range(2):
            A(f"s_waitcnt vmcnt({13-2*k-b+8+(1 if (k, b) > (0, 0) else 0)})")
            if (k, b) == (0, 0):
                g.stamp(56)
                A("s_mov_b64 exec, 1")
                A(f"buffer_store_dword v{VQ2}, off, {WS}, s{T+21} sc1")
                A("s_mov_b64 exec, -1")
            summ(SM + b * 8, RING + k * 12 + b * 4)
    A("s_nop 1")
    assert o.full
    for b in range(2):
        for t in range(4):
            A(f"v_cvt_pk_bf16_f32 v{ST+b*4+t}, v{SM+b*8+2*t}, v{SM+b*8+2*t+1}")
    for t in range(4):
        A(f"v_mov_b32 v{ST+12+t}, v{ST+t}")
    A(f"s_add_u32 s{T+13}, s{T+14}, {8*2560}")
    for t in range(4):
        A(f"v_mov_b32_dpp v{ST+t}, v{ST+4+t} row_ror:8 row_mask:0xf bank_mask:0xc")
    for t in range(4):
        A(f"v_mov_b32_dpp v{ST+4+t}, v{ST+12+t} row_ror:8 row_mask:0xf bank_mask:0x3")
    A(f"buffer_store_dwordx4 {vr(ST)}, v{VO2}, s[{S_OUT}:{S_OUT+3}], s{T+14} offen {o.pout}")
    A(f"buffer_store_dwordx4 {vr(ST+4)}, v{VO2}, s[{S_OUT}:{S_OUT+3}], s{T+13} offen {o.pout}")
    A(f"s_mov_b64 exec, {HALF}")
    A(f"s_mov_b32 s{OK2}, 1")
    A("s_waitcnt vmcnt(3)")
    g.lab("L_chk")
    for k in range(8):
        x = RING + k * 12 + 8
        A(f"v_max3_u32 v{VM+k}, v{x}, v{x+1}, v{x+2}")
    for k in range(8):
        A(f"v_max_u32 v{VM+k}, v{VM+k}, v{RING+k*12+11}")
    for k in range(8):
        A(f"v_cmp_eq_u32 s[{S_XC+8+2*(k%4)}:{S_XC+9+2*(k%4)}], -1, v{VM+k}")
        if k % 4 == 3:
            if k == 3:
                A(f"s_mov_b32 s{PEND}, 0")
            A("s_nop 3")
            for kk in range(k - 3, k + 1):
                A(f"s_cmp_lg_u32 s{S_XC+8+2*(kk%4)}, 0")
                A(f"s_cselect_b32 s{T+13}, {1 << kk}, 0")
                A(f"s_or_b32 s{PEND}, s{PEND}, s{T+13}")
    A("s_cbranch_scc0 L_chke")
    A(f"s_cmp_eq_u32 s{OK2}, 0")
    A("s_cbranch_scc1 L_chke")
    A(f"s_sub_u32 s{T+23}, s{T+23}, 1")
    A("s_cbranch_scc1 L_chke")
    A("s_mov_b64 exec, 0xff")
    A(f"v_cmp_gt_u32 s[{T+24}:{T+25}], 2, v8")
    A(f"buffer_load_dword v8, v{VF2}, {WS}, s{T+22} offen sc1")
    A(f"s_mov_b64 exec, {HALF}")
    for k in range(8):
        A(f"s_bitcmp0_b32 s{PEND}, {k}")
        A(f"s_cbranch_scc1 L_nr{k}")
        A(f"buffer_load_dwordx4 {vr(RING+k*12+8)}, v{VC3}, {WS}, s{S_XC+k} offen sc1")
        g.lab(f"L_nr{k}")
    A(f"s_mov_b32 s{OK2}, s{T+24}")
    A("s_waitcnt vmcnt(0)")
    A("s_branch L_chk")
    g.lab("L_chke")
    for t in range(4):
        A(f"v_lshlrev_b32 v{SC+2*t}, 16, v{RING+8+t}")
        A(f"v_and_b32 v{SC+2*t+1}, s{T+20}, v{RING+8+t}")
    for k in range(1, 8):
        summ(SC, RING + k * 12 + 8)
    g.stamp(58)
    A("s_nop 1")
    for t in range(4):
        A(f"v_cvt_pk_bf16_f32 v{ST+8+t}, v{SC+2*t}, v{SC+2*t+1}")
    A(f"buffer_store_dwordx4 {vr(ST+8)}, v{VD3}, s[{S_OUT}:{S_OUT+3}], s{T+15} offen {o.pout}")
    if o.diag:
        A("s_mov_b64 exec, -1")


def stage_c_dp(g, step, fq, emit):
    o = g.o
    A = g.A
    T = S_KS
    WS = f"s[{S_WS}:{S_WS+3}]"

    def q(gap, ins, kind):
        fq.append((gap, ins, kind))

    def dsop(x, tag):
        return lambda: g.ds(x, tag)

    def waitall():
        for k in range(len(g.vq)):
            g.vq[k] = []
        return "s_waitcnt vmcnt(0)"

    def store(reg, soff, r):
        return ("vm", f"buffer_store_dwordx4 {vr(reg)}, v{V_LX}, {WS}, s{soff} offen offset:{r*1024} {o.pst}", "st")

    def pkadd(d, a):
        return f"v_pk_add_f32 v[{d}:{d+1}], v[{d}:{d+1}], v[{a}:{a+1}]"

    def cvts(dst, acc, r):
        return [f"v_cvt_pk_bf16_f32 v{dst+t}, v{acc+(2*t)*4+r}, v{acc+(2*t+1)*4+r}" for t in range(4)]
    A(f"s_lshl_b32 s{T}, s{S_W}, 13")
    A(f"s_add_u32 s{T}, s{T}, s{S_ST}")
    A(f"s_add_u32 s{T+1}, s{T}, 4096")
    A(f"s_add_u32 s{T+2}, s{T}, 32768")
    A(f"s_add_u32 s{T+3}, s{T}, {32768+4096}")
    A(f"s_lshl_b32 s{T+5}, s{S_W}, 12")
    A(f"s_add_u32 s{T+5}, s{T+5}, s{S_ST}")
    A(f"s_add_u32 s{T+5}, s{T+5}, 65536")
    A(f"s_lshr_b32 s{T+4}, s2, 3")
    A(f"s_lshl_b32 s{T+4}, s{T+4}, 2")
    A(f"s_add_u32 s{T+4}, s{T+4}, 128")
    A(f"s_xor_b32 s{T+6}, s{S_W}, 1")
    A(f"s_lshl_b32 s{T+6}, s{T+6}, 14")
    A(f"s_add_u32 s{T+6}, s{T+6}, {LDS_R}")
    A(f"s_lshl_b32 s{T+7}, s{S_W}, 14")
    A(f"s_add_u32 s{T+7}, s{T+7}, {LDS_R}")
    U = S_XC
    pre = []
    P = pre.append
    P(f"s_lshr_b32 s{U}, s2, 3")
    P(f"s_and_b32 s{U+1}, s2, 7")
    P(f"s_mul_i32 s{U+2}, s{U}, {8*(81920+o.pad)}")
    P(f"s_lshl_b32 s{U+3}, s{U+1}, 2")
    P(f"s_add_u32 s{U+3}, s{U+3}, s{S_W}")
    P(f"s_lshl_b32 s{U+4}, s{U+1}, 1")
    P(f"s_lshr_b32 s{U+5}, s{S_W}, 1")
    P(f"s_add_u32 s{U+4}, s{U+4}, s{U+5}")
    P(f"s_add_u32 s{U+4}, s{U+4}, 64")
    P(f"s_lshl_b32 s{U+5}, s{U+3}, 10")
    P(f"s_add_u32 s{U+5}, s{U+5}, s{U+2}")
    P(f"s_lshl_b32 s{U+6}, s{U+4}, 10")
    P(f"s_add_u32 s{U+6}, s{U+6}, s{U+2}")
    P(f"s_add_u32 s{U+7}, s{U+5}, 32768")
    P(f"s_and_b32 s{U+8}, s{U}, 15")
    P(f"s_mul_i32 s{U+8}, s{U+8}, {4*40960}")
    P(f"s_lshr_b32 s{U+9}, s{U}, 4")
    P(f"s_mul_i32 s{U+9}, s{U+9}, 1280")
    P(f"s_add_u32 s{U+8}, s{U+8}, s{U+9}")
    for blk, dst in ((U+3, U+10), (U+4, U+11)):
        P(f"s_bfe_u32 s{U+9}, s{blk}, 0x20002")
        P(f"s_mul_i32 s{U+9}, s{U+9}, 40960")
        P(f"s_add_u32 s{dst}, s{U+8}, s{U+9}")
        P(f"s_lshr_b32 s{U+9}, s{blk}, 4")
        P(f"s_lshl_b32 s{U+9}, s{U+9}, 8")
        P(f"s_add_u32 s{dst}, s{dst}, s{U+9}")
        P(f"s_and_b32 s{U+9}, s{blk}, 3")
        P(f"s_lshl_b32 s{U+9}, s{U+9}, 4")
        P(f"s_add_u32 s{dst}, s{dst}, s{U+9}")
    P(f"s_bitcmp1_b32 s{S_W}, 0\n    s_cselect_b32 s{U+12}, 0, -1\n    s_cselect_b32 s{U+13}, -1, 0")
    P(f"s_mov_b32 s{U+14}, 0x3f80")
    P(f"s_mov_b32 s{U+15}, 0x3f800000")
    P(f"s_mov_b32 s{U+16}, 0xffff0000")
    P(f"s_lshl_b32 s{U+17}, s{U}, 10")
    P(f"s_add_u32 s{U+17}, s{U+17}, {WS_FLAG}")
    P(f"s_mov_b32 s{U+18}, {1<<20}")
    for x in pre:
        A(x)
    pre = []
    for s in range(20, 23):
        step(s, s == 20, False, {})
    step(23, False, False, {0: ["s_barrier"]})
    g.stamp(5)
    G0 = 24 * 32 + 2
    C4 = (96, 0, 32)
    for j in range(8):
        for x in range(3):
            q(G0 + (j * 3 + x) * o.wpace, dsop(f"ds_write_b128 v{6+x}, {ar(C4[x]+j*4)} offset:{j*1024}", "cw"), "o")
    q(G0, lambda: g.waitds("cw"), "o")
    q(G0, "s_barrier", "o")
    rd = [(x, j) for x in range(3) for j in range(8)]

    def c4read(k):
        x, j = rd[k]
        q(G0, dsop(f"ds_read_b128 {vr(160+j*4)}, v9 offset:{x*8192+j*1024}", f"cr{k//4}"), "o")
    for k in range(8):
        c4read(k)
    for grp in range(6):
        q(G0, lambda grp=grp: g.waitds(f"cr{grp}"), "o")
        for k in range(grp * 4, grp * 4 + 4):
            j = rd[k][1]
            q(G0, pkadd(128 + j * 4, 160 + j * 4), "v")
            q(G0, pkadd(128 + j * 4 + 2, 160 + j * 4 + 2), "v")
        for k in range(grp * 4 + 8, min(grp * 4 + 12, 24)):
            c4read(k)
    q(G0, "s_barrier", "o")
    q(G0, f"v_add_u32 v6, s{T+6}, v{V_LX}", "v")
    q(G0, f"v_add_u32 v7, s{T+7}, v{V_LX}", "v")
    for r in range(4):
        for x in cvts(160 + r * 4, 128, r):
            q(G0, x, "v")
        q(G0, store(160 + r * 4, T + 5, r), "o")
    G1 = 32 * 32 + 2
    for j in range(8):
        for x in range(2):
            q(G1 + (j * 2 + x) * o.wpace, dsop(f"ds_write_b128 v6, {ar(128+x*32+j*4)} offset:{x*8192+j*1024}", "pw"), "o")
    q(G1, lambda: g.waitds("pw"), "o")
    q(G1, "s_barrier", "o")
    for x in range(2):
        for j in range(8):
            q(G1, dsop(f"ds_read_b128 {vr(128+x*32+j*4)}, v7 offset:{x*8192+j*1024}", f"pr{x}"), "o")
    for x in range(2):
        q(G1, lambda x=x: g.waitds(f"pr{x}"), "o")
        for n in range(16):
            q(G1, pkadd(192 + x * 32 + n * 2, 128 + x * 32 + n * 2), "v")
        for r in range(4):
            for c in cvts(128 + x * 32 + r * 4, 192 + x * 32, r):
                q(G1, c, "v")
            q(G1, store(128 + x * 32 + r * 4, T + x, r), "o")
    for s in range(24, 39):
        ex = {}
        if s == 36:
            ex[31] = [("vm", f"buffer_load_dword v5, off, s[{S_DBG}:{S_DBG+3}], s{T+4} sc1", "clr")]
        step(s, s in (24, 32), False, ex)
        if s == 31:
            g.stamp(6)
        g.left = getattr(g, "left", []) + [len(fq)]
    assert not fq, g.left
    VO, VF, VP, VC = 2, 3, 4, 5
    prev = [f"v_bfe_u32 v{VO}, v{V_LX}, 4, 4", f"v_lshrrev_b32 v{VF}, 8, v{V_LX}", f"v_mul_u32_u24 v{VO}, 2560, v{VO}",
            f"v_lshl_add_u32 v{VO}, v{VF}, 6, v{VO}", f"v_lshlrev_b32 v{VF}, 3, v{V_LX}"]
    FL = T + 8

    def flag(val, lab):
        return "\n    ".join([f"s_cmp_lg_u32 s{S_W}, 0", f"s_cbranch_scc1 {lab}", f"v_mov_b32 v{V_TMP}, {val}", "s_mov_b64 exec, 1",
                               f"buffer_store_dword v{V_TMP}, off, {WS}, s{FL} sc1", "s_mov_b64 exec, -1"]) + f"\n{lab}:"
    ex = {0: [f"s_lshl_b32 s{FL}, s2, 7"], 1: [f"s_add_u32 s{FL}, s{FL}, {WS_FLAG}", waitall], 3: ["s_barrier"], 5: [flag(1, "L_f1")]}
    acr = [f"v_accvgpr_read_b32 v{192+x*32+j*4+r}, a{x*32+j*4+r}" for j in range(8) for x in range(2) for r in range(4)]
    wr = [dsop(f"ds_write_b128 v6, {ar(192+x*32+j*4)} offset:{x*8192+j*1024}", "qw") for j in range(8) for x in range(2)]
    nw = na = 0
    for n in range(6, 32):
        ex.setdefault(n, [])
        if nw < 16 and n >= (nw // 2) * 4 + 7 and n % 4 in (3, 0):
            ex[n].append(wr[nw])
            nw += 1
        elif pre:
            ex[n].append(pre.pop(0))
        for _ in range(2 if (n % 2 or n >= 24) else 0):
            if prev:
                ex[n].append(prev.pop(0))
            elif na < 64 and n >= (na // 8) * 4 + 7:
                ex[n].append(acr[na])
                na += 1
    step(39, False, True, ex)
    g.stamp(7)
    for x in pre:
        A(x)
    if o.early:
        A("s_mov_b64 exec, 0xff")
        A(g.vm(f"buffer_load_dword v{VP}, v{VF}, {WS}, s{U+17} offen sc1", "poll"))
        A("s_mov_b64 exec, -1")
    cut = 48
    for x in acr[na:cut]:
        A(x)
    if o.verbose:
        print("left", g.left, "na", na, "nw", nw, "pre", len(pre), file=sys.stderr)
    A("s_nop 7")
    A("s_nop 3")
    for x in wr[nw:]:
        emit(x)
    for x in acr[max(na, cut):]:
        A(x)
    A(g.waitds("qw"))
    A("s_barrier")
    for x in range(2):
        for j in range(8):
            A(g.ds(f"ds_read_b128 {vr(128+x*32+j*4)}, v7 offset:{x*8192+j*1024}", f"qr{x*2+j//4}"))
    for x in range(2):
        for hj in range(2):
            A(g.waitds(f"qr{x*2+hj}"))
            for n in range(8):
                A(pkadd(192 + x * 32 + hj * 16 + n * 2, 128 + x * 32 + hj * 16 + n * 2))
        for r in range(4):
            for c in cvts(128 + x * 32 + r * 4, 192 + x * 32, r):
                A(c)
            emit(store(128 + x * 32 + r * 4, T + 2 + x, r))
    g.stamp(59)
    R, SUM = RING, 192

    def loads(early):
        for h in range(8):
            if early:
                A(f"buffer_load_dwordx4 {vr(R+h*8)}, v{V_LX}, {WS}, s{U+5} offen sc1")
                A(f"s_mov_b64 exec, s[{U+12}:{U+13}]")
                A(f"buffer_load_dwordx4 {vr(R+h*8+4)}, v{V_LX}, {WS}, s{U+6} offen sc1")
                A("s_mov_b64 exec, -1")
                if h < 7:
                    A(f"s_add_u32 s{U+5}, s{U+5}, {81920+o.pad}")
                    A(f"s_add_u32 s{U+6}, s{U+6}, {81920+o.pad}")
            else:
                A(f"buffer_load_dwordx4 {vr(R+64+h*4)}, v{V_LX}, {WS}, s{U+7} offen sc1")
                if h < 7:
                    A(f"s_add_u32 s{U+7}, s{U+7}, {81920+o.pad}")

    def sums(early, younger):
        nb = 2 if early else 1
        for h in range(8):
            for b in range(nb):
                A(f"s_waitcnt vmcnt({(8-h)*nb-b-1+younger})")
                for t in range(4):
                    src = (R + h * 8 + b * 4 + t) if early else (R + 64 + h * 4 + t)
                    d = SUM + (b if early else 2) * 8 + 2 * t
                    if h == 0:
                        A(f"v_lshlrev_b32 v{d}, 16, v{src}")
                        A(f"v_and_b32 v{d+1}, s{U+16}, v{src}")
                    else:
                        A(f"v_dot2c_f32_bf16 v{d}, s{U+14}, v{src}")
                        A(f"v_dot2c_f32_bf16 v{d+1}, s{U+15}, v{src}")
        A("s_nop 1")
        for b in ((0, 1) if early else (2,)):
            for t in range(4):
                A(f"v_cvt_pk_bf16_f32 v{SUM+24+b*4+t}, v{SUM+b*8+2*t}, v{SUM+b*8+2*t+1}")
            if b == 1:
                A(f"s_mov_b64 exec, s[{U+12}:{U+13}]")
            A(f"buffer_store_dwordx4 {vr(SUM+24+b*4)}, v{VO}, s[{S_OUT}:{S_OUT+3}], s{U+10+b%2} offen offset:{512*(b//2)} {o.pout}")
            if b == 1:
                A("s_mov_b64 exec, -1")
    E = U + 19

    def poll(lab, cmp_, val):
        A("s_mov_b64 exec, 1")
        g.lab(f"{lab}_clr")
        A(f"v_readfirstlane_b32 s{T+10}, v{VC}")
        A(f"s_sub_u32 s{U+18}, s{U+18}, 1")
        A(f"s_cbranch_scc1 {lab}_out")
        A(f"s_cmp_ge_u32 s{T+10}, 8")
        A(f"s_cbranch_scc1 {lab}_go")
        A(f"buffer_load_dword v{VC}, off, s[{S_DBG}:{S_DBG+3}], s{T+4} sc1")
        A("s_waitcnt vmcnt(0)")
        A(f"s_branch {lab}_clr")
        g.lab(f"{lab}_go")
        A("s_mov_b64 exec, 0xff")
        g.lab(f"{lab}_loop")
        A(f"buffer_load_dword v{VP}, v{VF}, {WS}, s{U+17} offen sc1")
        A("s_waitcnt vmcnt(0)")
        A(f"s_sub_u32 s{U+18}, s{U+18}, 1")
        A(f"s_cbranch_scc1 {lab}_out")
        A(f"v_cmp_{cmp_}_u32 s[{T+12}:{T+13}], {val}, v{VP}")
        A("s_nop 3")
        A(f"s_cmp_lg_u32 s{T+12}, 0")
        A(f"s_cbranch_scc1 {lab}_loop")
        g.lab(f"{lab}_out")
        A("s_mov_b64 exec, -1")
    if o.diag:
        A(f"s_mov_b32 s{E}, 0")
    if o.early:
        A(g.waitvm("poll"))
        A(f"v_readfirstlane_b32 s{T+10}, v{VC}")
        A("s_mov_b64 exec, 0xff")
        A(f"v_cmp_eq_u32 s[{T+12}:{T+13}], 0, v{VP}")
        A("s_mov_b64 exec, -1")
        A(f"s_cmp_lt_u32 s{T+10}, 8")
        A("s_cbranch_scc1 L_late")
        A(f"s_cmp_lg_u32 s{T+12}, 0")
        A("s_cbranch_scc1 L_late")
        if o.diag:
            A(f"s_mov_b32 s{E}, 1")
        loads(True)
        A("s_waitcnt vmcnt(16)")
        A("s_barrier")
        A(flag(2, "L_f2a"))
        g.stamp(56)
        A(f"s_cmp_lg_u32 s{S_W}, 0")
        A("s_cbranch_scc1 L_s0")
        sums(True, 1)
        A("s_branch L_wait")
    g.lab("L_late")
    A(waitall())
    A("s_barrier")
    A(flag(2, "L_f2b"))
    g.stamp(56)
    poll("L_p1", "eq", 0)
    loads(True)
    g.lab("L_s0")
    sums(True, 0)
    A(f"s_cmp_lg_u32 s{S_W}, 0")
    A("s_cbranch_scc1 L_polled")
    g.lab("L_wait")
    poll("L_p2", "ne", 2)
    g.lab("L_polled")
    A("s_barrier")
    g.stamp(57)
    loads(False)
    sums(False, 0)
    g.stamp(58)
    if o.diag:
        A(f"v_writelane_b32 v{V_TID}, s{E}, 60")


def gen_reduce(g):
    o = g.o
    A = g.A
    K = "reduce_kernel"
    g.L.append(f".globl {K}\n.p2align 8\n.type {K},@function")
    g.lab(K)
    A("s_cmp_ge_u32 s2, 640")
    A("s_cbranch_scc1 L_red_end")
    if o.diag >= 2:
        A("s_memrealtime s[20:21]")
    A("s_load_dwordx2 s[4:5], s[0:1], 80")
    A("s_load_dwordx2 s[8:9], s[0:1], 96")
    A("v_lshrrev_b32 v1, 6, v0")
    A("v_and_b32 v0, 63, v0")
    A("v_readfirstlane_b32 s3, v1")
    A("s_lshl_b32 s12, s2, 2")
    A("s_mov_b32 s6, 2621440")
    A("s_mov_b32 s7, 0x20000")
    A("s_mov_b32 s10, 268435456")
    A("s_mov_b32 s11, 0x20000")
    A("s_add_u32 s12, s12, s3")
    A("s_mul_i32 s13, s12, 52429")
    A("s_lshr_b32 s13, s13, 22")
    A("s_mul_i32 s14, s13, 80")
    A("s_sub_u32 s14, s12, s14")
    A("s_mul_i32 s15, s13, 655360")
    A("s_lshl_b32 s16, s14, 10")
    A("s_add_u32 s15, s15, s16")
    A("v_lshlrev_b32 v1, 4, v0")
    A("s_waitcnt lgkmcnt(0)")
    for h in range(8):
        A(f"buffer_load_dwordx4 {vr(4+h*4)}, v1, s[8:11], s15 offen {o.pld}")
        if h < 7:
            A("s_add_u32 s15, s15, 81920")
    A("s_and_b32 s16, s13, 15")
    A("s_lshl_b32 s16, s16, 2")
    A("s_bfe_u32 s17, s14, 0x20002")
    A("s_add_u32 s16, s16, s17")
    A("s_mul_i32 s16, s16, 40960")
    A("s_lshr_b32 s17, s13, 4")
    A("s_mul_i32 s17, s17, 1280")
    A("s_add_u32 s16, s16, s17")
    A("s_lshr_b32 s17, s14, 4")
    A("s_lshl_b32 s17, s17, 8")
    A("s_add_u32 s16, s16, s17")
    A("s_and_b32 s17, s14, 3")
    A("s_lshl_b32 s17, s17, 4")
    A("s_add_u32 s16, s16, s17")
    A("v_and_b32 v2, 15, v0")
    A("v_lshrrev_b32 v3, 4, v0")
    A("v_mul_u32_u24 v2, 2560, v2")
    A("v_lshl_add_u32 v2, v3, 6, v2")
    A("s_mov_b32 s18, 0xffff0000")
    for h in range(8):
        A(f"s_waitcnt vmcnt({7-h})")
        for t in range(4):
            src = 4 + h * 4 + t
            if h == 0:
                A(f"v_lshlrev_b32 v{40+2*t}, 16, v{src}")
                A(f"v_and_b32 v{41+2*t}, s18, v{src}")
            else:
                A(f"v_lshlrev_b32 v{48+2*t}, 16, v{src}")
                A(f"v_and_b32 v{49+2*t}, s18, v{src}")
        if h:
            for n in range(8):
                A(f"v_add_f32 v{40+n}, v{40+n}, v{48+n}")
    for t in range(4):
        A(f"v_cvt_pk_bf16_f32 v{4+t}, v{40+2*t}, v{41+2*t}")
    A(f"buffer_store_dwordx4 {vr(4)}, v2, s[4:7], s16 offen")
    if o.diag == 2:
        A("s_waitcnt vmcnt(0)")
        A("s_memrealtime s[22:23]")
        A("s_load_dwordx2 s[24:25], s[0:1], 88")
        A("s_mov_b32 s26, 64")
        A("s_mov_b32 s27, 0x20000")
        A("s_waitcnt lgkmcnt(0)")
        A("v_mov_b32 v8, 0")
        A("s_not_b32 s21, s20")
        A("v_writelane_b32 v8, s20, 13")
        A("v_writelane_b32 v8, s21, 14")
        A("v_writelane_b32 v8, s22, 15")
        A("v_lshlrev_b32 v9, 2, v0")
        A("buffer_atomic_umax v8, v9, s[24:27], 0 offen sc1")
    if o.diag == 3:
        A("s_cmp_lg_u32 s12, 2000")
        A("s_cbranch_scc1 L_red_end")
        A("s_waitcnt vmcnt(0)")
        A("s_memrealtime s[22:23]")
        A("s_load_dwordx2 s[24:25], s[0:1], 88")
        A("s_mov_b32 s26, 64")
        A("s_mov_b32 s27, 0x20000")
        A("v_lshlrev_b32 v9, 2, v0")
        A(f"s_mov_b32 s15, {0x8000000 + o.sel*256}")
        A("buffer_load_dword v8, v9, s[8:11], s15 offen sc1")
        A("s_waitcnt vmcnt(0) lgkmcnt(0)")
        A("v_writelane_b32 v8, s20, 14")
        A("v_writelane_b32 v8, s22, 15")
        A("buffer_store_dword v8, v9, s[24:27], 0 offen")
    g.lab("L_red_end")
    A("s_endpgm")


def desc(name, vg, acc, sg):
    return f""".amdhsa_kernel {name}
  .amdhsa_next_free_vgpr {vg}
  .amdhsa_next_free_sgpr {sg}
  .amdhsa_accum_offset {acc}
  .amdhsa_group_segment_fixed_size 0
  .amdhsa_kernarg_size 104
  .amdhsa_user_sgpr_count 2
  .amdhsa_user_sgpr_kernarg_segment_ptr 1
  .amdhsa_system_sgpr_workgroup_id_x 1
.end_amdhsa_kernel"""


def build(o):
    g = Gen(o)
    head = [l.rstrip("\n") for l in open(f"cdna_kernels/{NAME}.s.ref") if l.startswith(";   offset") or l.startswith("; Kernarg")]
    if o.fuse:
        head.append(f"; @launch grid=(256,1,1) block=(256,1,1) lds={LDS_BYTES}")
    else:
        head.append(f"; @launch kernel={NAME}_kernel grid=(256,1,1) block=(256,1,1) lds={LDS_BYTES}")
        head.append(f"; @launch kernel=reduce_kernel grid=(640,1,1) block=(256,1,1) lds=0")
    for _ in range(o.noop):
        head.append(f"; @launch kernel=noop_kernel grid=(1,1,1) block=(64,1,1) lds=0")
    head.append('.amdgcn_target "amdgcn-amd-amdhsa--gfx950"')
    head.append(".text")
    gen_main(g)
    if not o.fuse:
        gen_reduce(g)
    g.lab("L_code_end")
    if o.noop:
        g.L.append(".globl noop_kernel\n.p2align 8\n.type noop_kernel,@function\nnoop_kernel:\n    s_endpgm")
    tail = ['.section .rodata,"a"', ".p2align 6", desc(f"{NAME}_kernel", 512, 256, 102)]
    if not o.fuse:
        tail += [".p2align 6", desc("reduce_kernel", 64, 64, 32)]
    if o.noop:
        tail += [".p2align 6", desc("noop_kernel", 64, 64, 32)]
    return "\n".join(head + g.L + tail) + "\n"


def opts(argv=None):
    p = argparse.ArgumentParser()
    p.add_argument("-o", default=f"cdna_kernels/{NAME}.s")
    p.add_argument("--diag", type=int, default=0)
    p.add_argument("--warm", type=int, default=1)
    p.add_argument("--noop", type=int, default=0)
    p.add_argument("--fuse", type=int, default=0)
    p.add_argument("--dp", type=int, default=0)
    p.add_argument("--verbose", type=int, default=0)
    p.add_argument("--cap", type=int, default=2)
    p.add_argument("--wpace", type=int, default=4)
    p.add_argument("--cape", type=int, default=1)
    p.add_argument("--capv", type=int, default=0)
    p.add_argument("--early", type=int, default=1)
    p.add_argument("--wopre", type=int, default=0)
    p.add_argument("--e39", type=int, default=0)
    p.add_argument("--fa", type=int, default=0)
    p.add_argument("--ph", type=int, default=2)
    p.add_argument("--full", type=int, default=0)
    p.add_argument("--il", type=int, default=0)
    p.add_argument("--own", type=int, default=1)
    p.add_argument("--fl", type=int, default=0)
    p.add_argument("--dens", type=int, default=0)
    p.add_argument("--defer", type=int, default=0)
    p.add_argument("--xrot", type=int, default=1)
    p.add_argument("--alt", default="")
    p.add_argument("--altbit", type=int, default=0)
    p.add_argument("--pad", type=int, default=0)
    p.add_argument("--c4pre", type=int, default=0)
    p.add_argument("--exp", default="")
    p.add_argument("--steps", type=int, default=0)
    p.add_argument("--ng", type=int, default=1)
    p.add_argument("--kst", default="")
    p.add_argument("--vst", default="")
    p.add_argument("--order", default="xa,xb,w0,w1,w2")
    p.add_argument("--coop", type=int, default=0)
    p.add_argument("--nfirst", type=int, default=0)
    p.add_argument("--c4first", type=int, default=0)
    p.add_argument("--sel", type=int, default=401)
    p.add_argument("--rot", type=int, default=1)
    p.add_argument("--spread", type=int, default=3)
    p.add_argument("--kv0", type=int, default=0)
    p.add_argument("--kvper", type=int, default=1)
    for k, d in (("px", ""), ("pxb", ""), ("pw0", "nt"), ("pwq", ""), ("pwo", ""), ("pk", "nt"), ("pv", "nt"), ("pst", "sc1"), ("pld", ""), ("pout", "")):
        p.add_argument("--" + k, default=d)
    return p.parse_args(argv)


if __name__ == "__main__":
    o = opts()
    open(o.o, "w").write(build(o))
```

```python
import sys, argparse

NAME = "concat_heads__gqa_block_cached__mha_block_cached__near_ridge"

V_TID = 0
V_TMP = 1
V_W = 2
V_B = 10
V_LX = 11
V_KG = 12
V_VG = 13
V_WO0 = 14
V_WO1 = 15
PERM = 16
RING = 32
ACC = 128
A_V = 0
A_B = 64
A_K = 128
A_C4 = 128

S_X, S_K, S_V, S_WQ, S_WO, S_WS = 8, 12, 16, 20, 24, 28
S_W = 3
S_BP = 4
S_HQ = 5
S_T0, S_T1 = 6, 7
S_KS = 32
S_CW = 52
S_XC = 72
S_KV = 8
S_CL = 95
S_ST = 92
S_PLO, S_PHI = 93, 94
S_KLDS = 96
S_SC = 97
S_C4U = 98
S_GRP = 7
S_STMP = 99
S_TS = 100
S_G = 95

S_OUT, S_DBG = 12, 16
WS_FLAG = 0x2000000
LDS_O = 0
LDS_X = 65536
LDS_R = 65536
LDS_BYTES = 163840
GFUN = [0, 2, 3, 1]


class Gen:
    def __init__(self, o):
        self.o = o
        self.L = []
        self.ng = o.ng
        self.vq = [[] for _ in range(self.ng)]
        self.nlab = 0
        self.dq = []

    def A(self, s):
        if s:
            self.L.append("    " + s)

    def lab(self, s):
        self.L.append(s + ":")

    def vm(self, s, tag, grp=None):
        for k, q in enumerate(self.vq):
            if grp is None or grp == k:
                q.append(tag)
                assert len(q) <= 63, "vmcnt overflow"
        return s

    def waitvm(self, tag):
        ns = []
        for k, q in enumerate(self.vq):
            idx = max((i for i, t in enumerate(q) if t == tag), default=-1)
            ns.append(None if idx < 0 else len(q) - 1 - idx)
            self.vq[k] = q[idx + 1:]
        vals = sorted(set(n for n in ns if n is not None))
        if not vals:
            return None
        lo = vals[0]
        big = [k for k, n in enumerate(ns) if n is not None and n > lo]
        if len(big) != 1:
            return f"s_waitcnt vmcnt({lo})"
        self.nlab += 1
        return (f"s_cmp_eq_u32 s{S_GRP}, {big[0]}\n    s_cbranch_scc1 L_w{self.nlab}\n    s_waitcnt vmcnt({lo})\n"
                f"L_w{self.nlab}:\n    s_waitcnt vmcnt({ns[big[0]]})")

    def ds(self, s, tag):
        self.dq.append(tag)
        return s

    def waitds(self, tag):
        idx = max((i for i, t in enumerate(self.dq) if t == tag), default=-1)
        if idx < 0:
            return None
        n = len(self.dq) - 1 - idx
        self.dq = self.dq[idx + 1:]
        return f"s_waitcnt lgkmcnt({min(n, 15)})"

    def stamp(self, k):
        if not self.o.diag:
            return
        A = self.A
        A(f"{'s_memtime' if self.o.diag != 2 else 's_memrealtime'} s[{S_TS}:{S_TS+1}]")
        A("s_waitcnt lgkmcnt(0)")
        A(f"v_writelane_b32 v{V_TID}, s{S_TS}, {k}")


def mfma(d, a, b, c):
    return f"v_mfma_f32_16x16x32_bf16 {d}, {a}, {b}, {c}"


def vr(n, k=4):
    return f"v[{n}:{n+k-1}]"


def ar(n, k=4):
    return f"a[{n}:{n+k-1}]"


def perms(src_rows, t, dst):
    out = []
    for e in range(2):
        for p in range(4):
            sel = S_PLO if e == 0 else S_PHI
            out.append(f"v_perm_b32 v{dst+e*4+p}, v{src_rows[2*p+1]+t}, v{src_rows[2*p]+t}, s{sel}")
    return out


def slot_rows(s):
    return [RING + (s % 3) * 32 + r * 4 for r in range(8)]


def gen_main(g):
    o = g.o
    A = g.A
    K = f"{NAME}_kernel"
    g.L.append(f".globl {K}\n.p2align 8\n.type {K},@function")
    g.lab(K)
    A("s_cmp_ge_u32 s2, 256")
    A("s_cbranch_scc1 L_main_end")
    if o.diag:
        A(f"{'s_memtime' if o.diag != 2 else 's_memrealtime'} s[54:55]")
        A(f"s_memrealtime s[56:57]")
    A("s_load_dwordx16 s[32:47], s[0:1], 0")
    A("s_load_dwordx4 s[48:51], s[0:1], 64")
    A("s_load_dwordx2 s[28:29], s[0:1], 96")
    A(f"v_lshrrev_b32 v{V_TMP}, 6, v0")
    A(f"v_and_b32 v0, 63, v0")
    A(f"v_readfirstlane_b32 s{S_W}, v{V_TMP}")
    A(f"s_lshr_b32 s{S_T0}, s2, 3")
    if o.warm:
        A("s_getpc_b64 s[52:53]")
        g.lab("L_pc")
        A(f"s_sub_u32 s52, s52, L_pc-{K}")
        A("s_subb_u32 s53, s53, 0")
        A(f"s_lshl_b32 s{S_T1}, s{S_T0}, 2")
        A(f"s_add_u32 s{S_T1}, s{S_T1}, s{S_W}")
        A(f"s_min_u32 s{S_T1}, s{S_T1}, (L_code_end-{K})/1024-1")
        A(f"s_lshl_b32 s{S_T1}, s{S_T1}, 10")
        A(f"v_lshl_add_u32 v{V_TMP}, v0, 4, s{S_T1}")
        A(g.vm(f"global_load_dwordx4 {vr(PERM)}, v{V_TMP}, s[52:53]", "warm"))
    A(f"s_lshr_b32 s{S_BP}, s{S_T0}, 1")
    A(f"s_and_b32 s{S_T0}, s{S_T0}, 1")
    A(f"s_and_b32 s{S_HQ}, s2, 3")
    A(f"s_lshl_b32 s{S_HQ}, s{S_HQ}, 1")
    A(f"s_add_u32 s{S_HQ}, s{S_HQ}, s{S_T0}")
    vi, vG, vt, vt2 = 20, 21, 22, 23
    A(f"s_movk_i32 s{S_G}, 0x78")
    A(f"v_and_b32 v{vi}, 15, v0")
    A(f"v_lshrrev_b32 v{vG}, 4, v0")
    A(f"v_xor_b32 v{vt}, v{vG}, v0")
    A(f"v_and_b32 v{vt}, 7, v{vt}")
    A(f"v_lshlrev_b32 v{vt}, 4, v{vt}")
    A(f"v_lshrrev_b32 v{vt2}, 3, v0")
    A(f"v_mul_u32_u24 v{vt2}, 1280, v{vt2}")
    A(f"v_add_u32 v{V_B}, v{vt}, v{vt2}")
    A(f"v_xor_b32 v{vt}, 64, v{vt}")
    A(f"v_add_u32 v{vt2}, {8*1280}, v{vt2}")
    A(f"v_add_u32 v{V_LX}, v{vt}, v{vt2}")
    A(f"v_lshlrev_b32 v{vt}, 4, v{vi}")
    A(f"v_lshl_add_u32 v{V_W}, v{vG}, 16, v{vt}")
    for r in range(1, 8):
        A(f"v_add_u32 v{V_W+r}, {r*8192}, v{V_W}")
    A("s_bitcmp1_b32 s2, 2")
    A("s_waitcnt lgkmcnt(0)")
    if o.diag:
        A(f"s_mov_b32 s{S_TS}, s54")
        A(f"s_mov_b32 s{S_TS+1}, s56")
        A("s_memtime s[88:89]")
    for dst, a, b in ((S_X, 32, 42), (S_K, 34, 44), (S_V, 36, 46), (S_WQ, 38, 48), (S_WO, 40, 50)):
        A(f"s_cselect_b32 s{dst}, s{b}, s{a}")
        A(f"s_cselect_b32 s{dst+1}, s{b+1}, s{a+1}")
    for dst, n in ((S_X, 1310720), (S_K, 8388608), (S_V, 8388608), (S_WQ, 5242880), (S_WO, 5242880), (S_WS, 268435456)):
        A(f"s_mov_b32 s{dst+2}, {n}")
        A(f"s_mov_b32 s{dst+3}, 0x20000")
    A(f"s_lshl_b32 s{S_C4U}, s{S_HQ}, 2")
    A(f"s_add_u32 s{S_C4U}, s{S_C4U}, s{S_W}")
    A(f"s_lshl_b32 s{S_T1}, s{S_C4U}, 8")
    for r in range(8):
        A(f"v_add_u32 v{V_W+r}, s{S_T1}, v{V_W+r}")
    A(f"s_mul_i32 s{S_KS}, s{S_BP}, 5")
    A(f"s_lshr_b32 s{S_KS}, s{S_KS}, 2")
    if not o.rot:
        A(f"s_mov_b32 s{S_KS}, 0")
    A(f"s_lshl_b32 s{S_KS}, s{S_KS}, 18")
    tab = []
    for ks in range(19):
        tab.append([f"s_add_u32 s{S_KS+ks+1}, s{S_KS+ks}, {1<<18}", f"s_cmp_eq_u32 s{S_KS+ks+1}, {20<<18}", f"s_cselect_b32 s{S_KS+ks+1}, 0, s{S_KS+ks+1}"])
    for t in tab[:2]:
        for x in t:
            A(x)
    tab = tab[2:]

    def wload(s, r):
        dst = vr(slot_rows(s)[r])
        if s == 39 and o.e39:
            dst = ar(r * 4)
        if s < 20:
            pol = o.pw0 if s < o.nfirst else o.pwq
            return g.vm(f"buffer_load_dwordx4 {dst}, v{V_W+r}, s[{S_WQ}:{S_WQ+3}], s{S_KS+s} offen {pol}", f"w{s}")
        v = V_WO0 if r < 4 else V_WO1
        pol = o.pw0 if (s - 20 < o.nfirst or (s >= 36 and o.c4first)) else o.pwo
        ci = s - 20 if not o.dp else (s - 4 if s < 24 else s - 24)
        return g.vm(f"buffer_load_dwordx4 {dst}, v{v}, s[{S_WO}:{S_WO+3}], s{S_CW+ci} offen offset:{(r%4)*1280} {pol}", f"w{s}")

    def wsoff(s):
        return None

    def xhalf(second):
        A(f"s_and_b32 s{S_T1}, s{S_HQ}, 1")
        if second:
            A(f"s_xor_b32 s{S_T1}, s{S_T1}, 1")
        if not o.coop:
            A(f"s_mov_b32 s{S_T1}, {second}")
        A(f"s_lshl_b32 s{S_T0}, s{S_BP}, 2")
        A(f"s_add_u32 s{S_T0}, s{S_T0}, s{S_W}")
        A(f"s_mul_i32 s{S_T0}, s{S_T0}, {16*1280}")
        A(f"s_mul_i32 s{S_STMP}, s{S_T1}, 640")
        A(f"s_add_u32 s{S_T0}, s{S_T0}, s{S_STMP}")
        A(f"s_mul_i32 s{S_T1}, s{S_T1}, 20")
        A(f"s_add_u32 s{S_T1}, s{S_T1}, s{S_W}")
        A(f"s_lshl_b32 s{S_T1}, s{S_T1}, 11")
        A(f"s_add_u32 m0, s{S_T1}, {LDS_X}")
        A("s_nop 0")
        for n in range(10):
            kb, m = n // 2, n % 2
            A(g.vm(f"buffer_load_dwordx4 v{V_LX if m else V_B}, s[{S_X}:{S_X+3}], s{S_T0} offen offset:{kb*128} {o.pxb if second else o.px} lds", "x"))
            if n < 9:
                A(f"s_add_u32 m0, m0, {1024 if m == 0 else 8192-128-1024}")
                if tab:
                    for x in tab.pop(0):
                        A(x)
                else:
                    A("s_nop 0")
    def xinit():
        A(f"s_lshl_b32 s{S_T0}, s{S_BP}, 2")
        A(f"s_add_u32 s{S_T0}, s{S_T0}, s{S_W}")
        A(f"s_mul_i32 s{S_T0}, s{S_T0}, {16*1280}")
        A(f"s_lshl_b32 s{S_KLDS}, s{S_W}, 11")
        A(f"s_add_u32 s{S_KLDS}, s{S_KLDS}, {LDS_X}")
        A(f"s_and_b32 s{S_T1}, s{S_HQ}, 1")
        A(f"s_mul_i32 s{S_T1}, s{S_T1}, 5")
        if o.xrot:
            A(f"s_lshr_b32 s{S_STMP}, s{S_HQ}, 1")
            A(f"s_add_u32 s{S_T1}, s{S_T1}, s{S_STMP}")
        A(f"s_lshl_b32 s{S_T1}, s{S_T1}, 7")

    def xblk(n, track=True):
        pol = o.px if n < 5 else o.pxb
        A(f"s_lshl_b32 s{S_STMP}, s{S_T1}, 6")
        A(f"s_add_u32 m0, s{S_STMP}, s{S_KLDS}")
        A(f"s_add_u32 s{S_STMP}, s{S_T0}, s{S_T1}")
        x = f"buffer_load_dwordx4 v{V_B}, s[{S_X}:{S_X+3}], s{S_STMP} offen {pol} lds"
        A(g.vm(x, "x") if track else x)
        A(f"s_add_u32 m0, m0, 1024")
        A(f"s_add_u32 s{S_T1}, s{S_T1}, 128")
        x = f"buffer_load_dwordx4 v{V_LX}, s[{S_X}:{S_X+3}], s{S_STMP} offen {pol} lds"
        A(g.vm(x, "x") if track else x)
        A(f"s_cmp_eq_u32 s{S_T1}, 1280")
        A(f"s_cselect_b32 s{S_T1}, 0, s{S_T1}")
        if track:
            for _ in range(2):
                if tab:
                    for t in tab.pop(0):
                        A(t)

    def pre(track=True):
        A(f"s_lshr_b32 s{S_ST}, s{S_BP}, 2")
        A(f"s_mul_i32 s{S_ST}, s{S_ST}, 5")
        A(f"s_add_u32 s{S_ST}, s{S_ST}, 4")
        A(f"s_lshl_b32 s{S_ST}, s{S_ST}, 4")
        A(f"s_and_b32 s{S_SC}, s{S_BP}, 3")
        A(f"s_add_u32 s{S_ST}, s{S_ST}, s{S_SC}")
        A(f"s_lshl_b32 s{S_ST}, s{S_ST}, 14")
        for r in range(2):
            x = f"buffer_load_dwordx4 {ar(248+4*r)}, v{V_W+r}, s[{S_WQ}:{S_WQ+3}], s{S_ST} offen"
            A(g.vm(x, "pre") if track else x)

    def items(lst, track=True, stamps=False):
        for ni, item in enumerate(lst):
            if o.diag and stamps and ni in (1, 2, 3):
                A(f"s_memtime s[{88+2*ni}:{89+2*ni}]") if ni < 2 else A(f"s_memtime s[{68+2*ni}:{69+2*ni}]")
            if item[0] == "c":
                A(f"s_waitcnt vmcnt({item[1:]})")
            elif item == "xa":
                xhalf(0)
            elif item == "xb":
                xhalf(1)
            elif item == "p":
                pre(track)
            elif item[0] == "x":
                for n in range(int(item[1]), int(item[2]) + 1):
                    xblk(n, track)
            else:
                sw = int(item[1:])
                for r in range(8):
                    if track:
                        A(wload(sw, r))
                    else:
                        sv = [list(q) for q in g.vq]
                        A(wload(sw, r))
                        g.vq = sv
    lst = o.order.split(",")
    if any(x[0] == "x" and len(x) == 3 for x in lst):
        xinit()
    if o.alt:
        alt = o.alt.split(",")
        assert sorted(alt) == sorted(lst[:len(alt)])
        A(f"s_bitcmp1_b32 s{S_BP}, {o.altbit}")
        A("s_cbranch_scc1 L_alt")
        keep, tab[:] = list(tab), []
        items(lst[:len(alt)], stamps=True)
        A("s_branch L_join")
        g.lab("L_alt")
        items(alt, track=False, stamps=True)
        g.lab("L_join")
        tab[:] = keep
        items(lst[len(alt):])
    else:
        items(lst, stamps=True)
    for t in tab:
        for x in t:
            A(x)
    tab[:] = []
    assert not tab
    A(f"s_mov_b32 s{S_T0}, s{S_C4U}")
    if o.diag:
        A("s_waitcnt lgkmcnt(0)")
        A("v_mov_b32 v24, 0")
        for k, sr in ((11, 88), (12, 90), (14, 72), (15, 74)):
            A(f"v_writelane_b32 v24, s{sr}, {k}")
    A(f"s_lshl_b32 s{S_KV}, s{S_BP}, 6")
    A(f"s_add_u32 s{S_KV}, s{S_KV}, s{S_T0}")
    A(f"s_lshl_b32 s{S_KV}, s{S_KV}, 13")
    A(f"s_add_u32 s{S_KV+1}, s{S_KV}, 4096")
    A(f"s_add_u32 s{S_KV+2}, s{S_KV}, 262144")
    A(f"s_add_u32 s{S_KV+3}, s{S_KV}, {262144+4096}")
    A(f"s_lshl_b32 s{S_KLDS}, s{S_W}, 14")
    A(f"s_mov_b32 s{S_PLO}, 0x05040100")
    A(f"s_mov_b32 s{S_PHI}, 0x07060302")
    A(f"s_mov_b32 s{S_SC}, 0x3e0293ee")
    A(f"s_mul_i32 s{S_T0}, s{S_HQ}, {512*1280}")
    A(f"s_lshl_b32 s{S_T1}, s{S_W}, 8")
    A(f"s_add_u32 s{S_T1}, s{S_T1}, s{S_T0}")
    if o.dp:
        A(f"s_lshr_b32 s{S_T1}, s{S_W}, 1")
        A(f"s_lshl_b32 s{S_T1}, s{S_T1}, 8")
        A(f"s_add_u32 s{S_T1}, s{S_T1}, s{S_T0}")
        A(f"s_and_b32 s{S_STMP}, s{S_W}, 1")
        A(f"s_mul_i32 s{S_STMP}, s{S_STMP}, {256*1280}")
        A(f"s_add_u32 s{S_T1}, s{S_T1}, s{S_STMP}")
        for n in range(8):
            A(f"s_add_u32 s{S_STMP}, s{S_BP}, {n}")
            A(f"s_and_b32 s{S_C4U}, s{S_STMP}, 3")
            A(f"s_bfe_u32 s{S_STMP}, s{S_STMP}, 0x10002")
            A(f"s_lshl_b32 s{S_STMP}, s{S_STMP}, 4")
            A(f"s_add_u32 s{S_STMP}, s{S_STMP}, s{S_C4U}")
            A(f"s_mul_i32 s{S_STMP}, s{S_STMP}, {8*1280}")
            A(f"s_add_u32 s{S_CW+n}, s{S_STMP}, s{S_T1}")
            A(f"s_add_u32 s{S_CW+8+n}, s{S_CW+n}, 512")
    for n in range(16 if not o.dp else 0):
        if o.rot:
            A(f"s_add_u32 s{S_STMP}, s{S_BP}, {n}")
            A(f"s_and_b32 s{S_STMP}, s{S_STMP}, 15")
        else:
            A(f"s_mov_b32 s{S_STMP}, {n}")
        A(f"s_and_b32 s{S_C4U}, s{S_STMP}, 3")
        A(f"s_lshr_b32 s{S_STMP}, s{S_STMP}, 2")
        A(f"s_lshl_b32 s{S_STMP}, s{S_STMP}, 4")
        A(f"s_add_u32 s{S_STMP}, s{S_STMP}, s{S_C4U}")
        A(f"s_mul_i32 s{S_STMP}, s{S_STMP}, {8*1280}")
        A(f"s_add_u32 s{S_CW+n}, s{S_STMP}, s{S_T1}")
    A(f"s_mul_i32 s{S_T1}, s{S_W}, {128*1280}")
    A(f"s_add_u32 s{S_T1}, s{S_T1}, s{S_T0}")
    A(f"s_add_u32 s{S_T1}, s{S_T1}, 1024")
    for n in range(4):
        A(f"s_add_u32 s{S_CW+16+n}, s{S_T1}, {n*8*1280}")
    A(f"s_lshr_b32 s{S_T0}, s2, 2")
    A(f"s_and_b32 s{S_T0}, s{S_T0}, 1")
    A(f"s_lshl_b32 s{S_T0}, s{S_T0}, 4")
    A(f"s_add_u32 s{S_T0}, s{S_T0}, s{S_BP}")
    A(f"s_lshl_b32 s{S_T0}, s{S_T0}, 3")
    A(f"s_add_u32 s{S_T0}, s{S_T0}, s{S_HQ}")
    A(f"s_mul_i32 s{S_ST}, s{S_T0}, {81920+o.pad}")
    if o.fuse:
        if o.diag:
            A(f"s_mov_b32 vcc_hi, s2")
        A(f"s_mov_b32 s2, s{S_T0}")
        A(f"s_cmp_lg_u32 s{S_W}, 0")
        A("s_cbranch_scc1 L_noclr")
        if o.fuse >= 2:
            flag_base(g, S_T0, S_STMP)
            A(f"v_mov_b32 v{V_TMP}, 0")
            A(f"v_lshlrev_b32 v{vt}, 7, v{vi}")
            A("s_mov_b64 exec, 15")
            A(f"buffer_store_dword v{V_TMP}, v{vt}, s[{S_WS}:{S_WS+3}], s{S_T0} offen sc1")
        else:
            A(f"s_lshl_b32 s{S_T0}, s2, 7")
            A(f"s_add_u32 s{S_T0}, s{S_T0}, {WS_FLAG}")
            A(f"v_mov_b32 v{V_TMP}, 0")
            A("s_mov_b64 exec, 1")
            A(f"buffer_store_dword v{V_TMP}, off, s[{S_WS}:{S_WS+3}], s{S_T0} sc1")
        A("s_mov_b64 exec, -1")
        g.lab("L_noclr")
    A(f"v_xor_b32 v{vt}, v{vi}, v{vG}")
    A(f"v_lshlrev_b32 v{vt}, 4, v{vt}")
    A(f"v_lshl_add_u32 v{V_KG}, v{vG}, 8, v{vt}")
    A(f"v_lshlrev_b32 v{vt}, 4, v{vi}")
    A(f"v_lshl_add_u32 v{V_VG}, v{vG}, 10, v{vt}")
    A(f"v_mul_u32_u24 v{V_WO0}, {32*1280}, v{vG}")
    A(f"v_add_u32 v{V_WO0}, v{V_WO0}, v{vt}")
    A(f"v_add_u32 v{V_WO1}, {4*1280}, v{V_WO0}")
    A(f"v_lshrrev_b32 v{vt}, 1, v{vi}")
    A(f"v_xor_b32 v{vt}, v{vt}, v{vG}")
    A(f"v_lshlrev_b32 v{vt}, 4, v{vt}")
    A(f"v_lshl_add_u32 v{V_LX}, v{vi}, 7, v{vt}")
    for n in range(20):
        A(f"s_lshr_b32 s{S_STMP}, s{S_KS+n}, 19")
        A(f"s_lshl_b32 s{S_STMP}, s{S_STMP}, 13")
        A(f"s_bfe_u32 s{S_C4U}, s{S_KS+n}, 0x10012")
        A(f"s_lshl_b32 s{S_C4U}, s{S_C4U}, 6")
        A(f"s_add_u32 s{S_STMP}, s{S_STMP}, {LDS_X}")
        A(f"s_or_b32 s{S_XC+n}, s{S_STMP}, s{S_C4U}")
    A(f"s_and_b32 s{S_GRP}, s{S_BP}, {o.ng-1}")
    if o.diag:
        A(f"v_mov_b32 v{V_TID}, v24")
        A(f"v_writelane_b32 v{V_TID}, s{S_TS}, 10")
        A(f"v_writelane_b32 v{V_TID}, s{S_TS+1}, 13")
        g.stamp(0)

    def kload(n):
        bt, m = n // 8, n % 8
        ins = []
        if m % 4 == 0:
            ins.append(f"s_add_u32 m0, s{S_KLDS}, {bt*8192 + (m//4)*4096}")
        ins.append(f"v_xor_b32 v{V_TMP}, {GFUN[m%4] << 6}, v{V_KG}")
        ins.append(("vm", f"buffer_load_dwordx4 v{V_TMP}, s[{S_K}:{S_K+3}], s{S_KV+bt*2+m//4} offen offset:{(m%4)*1024} {o.pk} lds", "k"))
        return ins

    def vload(n):
        bt, r = n // 8, n % 8
        return [("vm", f"buffer_load_dwordx4 {ar(A_V+n*4)}, v{V_VG}, s[{S_V}:{S_V+3}], s{S_KV+bt*2+r//4} offen offset:{(r%4)*256} {o.pv}", "v1" if (o.vlate and bt) else "v")]

    def baddr(s):
        if s < 20:
            return [f"v_xor_b32 v{V_B}, s{S_XC+s}, v{V_LX}"]
        if o.dp:
            if s < 24:
                return []
            return [f"v_add_u32 v{V_B}, s{S_CL}, v{V_KG}", f"v_xor_b32 v{V_VG}, 2048, v{V_B}", f"s_add_u32 s{S_CL}, s{S_CL}, 4096", f"s_and_b32 s{S_CL}, s{S_CL}, 0x7fff"]
        if s < 36:
            return [f"v_add_u32 v{V_B}, s{S_CL}, v{V_LX}", f"s_add_u32 s{S_CL}, s{S_CL}, 4096", f"s_and_b32 s{S_CL}, s{S_CL}, 0xffff"]
        return []

    def breads(s):
        buf = A_B + (s % 2) * 16
        if s < 20:
            return [f"ds_read_b128 {ar(buf+q*4)}, v{V_B} offset:{q*2048}" for q in range(4)]
        if o.dp:
            if s < 24:
                return [f"ds_read_b128 {ar(buf+q*4)}, v{V_W+q} offset:{(s-20)*4096}" for q in range(4)]
            return [f"ds_read_b128 {ar(buf+q*4)}, v{V_B if q < 2 else V_VG} offset:{(q%2)*1024}" for q in range(4)]
        if s < 36:
            return [f"ds_read_b128 {ar(buf+q*4)}, v{V_B} offset:{q*1024}" for q in range(4)]
        return [f"ds_read_b128 {ar(buf+q*4)}, v{V_W+q} offset:{(s-36)*4096}" for q in range(4)]

    def bread(s):
        return baddr(s) + breads(s)

    def emit(ins):
        if isinstance(ins, tuple):
            A(g.vm(ins[1], ins[2]))
        elif callable(ins):
            r = ins()
            if r:
                A(r)
        else:
            A(ins)

    DEF = (20, 21, 22) if o.defer == 3 else (21, 22)
    fq = []

    def cap(s, n):
        if n == 1:
            return 0, o.cape
        if n % 2 == 0:
            return o.capv, o.cape
        return (o.cap, o.cap) if n in (19, 21) else (1, 1)

    def dacc(s, q, j):
        if s < 24:
            return vr(128 + j * 4) if q == 0 else ar((96, 0, 32)[q - 1] + j * 4)
        if s < 32:
            return vr(192 + q * 32 + j * 4) if q < 2 else ar(128 + (q - 2) * 32 + j * 4)
        return ar(q * 32 + j * 4) if q < 2 else ar(192 + (q - 2) * 32 + j * 4)

    def step(s, first, last, extra, preperm=True, prefetchB=True):
        fill = [[] for _ in range(32)]
        rows = slot_rows(s)
        buf = A_B + (s % 2) * 16
        for t in range(3):
            for n, p in enumerate(perms(rows, t + 1, PERM + ((t + 1) % 2) * 8)):
                fill[t * 8 + (n // 2) * 2].append(p)
        late = o.spread
        if late and s >= 1 and s + 2 < 40 and s != 20 and not (o.defer and s + 2 in DEF) and not (o.e39 and s + 2 >= 38):
            for n, r in enumerate(range(8 - late, 8)):
                fill[11 + 2 * n].append(lambda r=r: wload(s + 2, r))
        if not last:
            ba = baddr(s + 1)
            g0 = 1
            if ba:
                fill[g0].append(ba[0])
                fill[g0] += ba[1:2]
                fill[17] += ba[2:]
                g0 += 2
            for n, x in enumerate(breads(s + 1)):
                fill[g0 + n * 2].append(lambda x=x: g.ds(x, f"b{s+1}"))
            fill[21].append(lambda: g.waitvm(f"w{s+1}"))
            for n, p in enumerate(perms(slot_rows(s + 1), 0, PERM)):
                fill[24 + (n // 2) * 2].append(p)
            fill[19].append(lambda: g.waitds(f"b{s+1}"))
        if o.e39 and 32 <= s < 36:
            for n, gp in enumerate((9, 17)):
                fill[gp].append(lambda r=(s - 32) * 2 + n: wload(39, r))
        if o.e39 and s == 35:
            late = 0
        if s + 3 < 40 and not (o.defer and s + 3 in DEF) and not (o.e39 and s == 36):
            gaps = [23, 25, 27, 29, 31] if late >= 3 else [23, 24, 25, 26, 27, 28, 29, 31]
            for r in range(8 - late):
                fill[gaps[r]].append(lambda r=r: wload(s + 3, r))
        if o.diag and o.steps:
            fill[28].append(f"s_memtime s[{S_TS}:{S_TS+1}]")
            fill[31].append(lambda: ("s_waitcnt lgkmcnt(0)", g.dq.clear())[0])
            fill[31].append(f"v_writelane_b32 v{V_TID}, s{S_TS}, {16+s}")
        for k, v in extra.items():
            fill[k] = fill[k] + v
        n = 0
        for t in range(4):
            for e in range(2):
                for q in range(4):
                    j = 2 * t + e
                    if o.dp and s >= 20:
                        d = dacc(s, q, j)
                    elif s < 36:
                        d = vr(ACC + q * 32 + j * 4)
                    else:
                        d = ar(A_C4 + q * 32 + j * 4)
                    A(mfma(d, vr(PERM + (t % 2) * 8 + e * 4), ar(buf + q * 4), "0" if first else d))
                    for x in fill[n]:
                        if o.exp and 24 <= s < 34:
                            if isinstance(x, str) and "noperm" in o.exp and x.startswith("v_perm"):
                                continue
                            if isinstance(x, str) and "nods" in o.exp and x.startswith("ds_read"):
                                continue
                            if callable(x) and "noload" in o.exp:
                                r = x()
                                if not (r and r.startswith("buffer_load")):
                                    A(r)
                                continue
                        emit(x)
                    cv_, co_ = cap(s, n)
                    while fq and fq[0][0] <= s * 32 + n:
                        if fq[0][2] == "v":
                            if cv_ <= 0:
                                break
                        elif co_ <= 0:
                            break
                        cv_ -= 1
                        co_ -= 1
                        emit(fq.pop(0)[1])
                    n += 1

    if o.ph == 3:
        for n in range(4):
            A(f"v_accvgpr_write_b32 a{100+n}, -1")
    A(g.waitvm("x"))
    A("s_barrier")
    for x in bread(0):
        A(x)
    A(g.waitvm("w0"))
    for p in perms(slot_rows(0), 0, PERM):
        A(p)
    A("s_waitcnt lgkmcnt(0)")
    g.stamp(1)
    kvn = 0
    kst = [int(x) for x in o.kst.split(",")] if o.kst else []
    vst = [int(x) for x in o.vst.split(",")] if o.vst else []

    def burst(grp, fn, name):
        def f():
            out = []
            if o.ng > 1:
                out += [f"s_cmp_lg_u32 s{S_GRP}, {grp}", f"s_cbranch_scc1 L_{name}{grp}"]
            for n in range(16 - o.vn if (o.vlate and name == "vb") else 16):
                for x in fn(n):
                    out.append(g.vm(x[1], x[2], grp) if isinstance(x, tuple) else x)
            t = "\n    ".join(out)
            if o.ng > 1:
                t += f"\nL_{name}{grp}:"
            return t
        return f
    for s in range(20):
        extra = {}
        if kst:
            for grp in range(o.ng):
                if kst[grp] == s:
                    extra.setdefault(31, []).append(burst(grp, kload, "kb"))
                if vst[grp] == s:
                    extra.setdefault(31, []).append(burst(grp, vload, "vb"))
        elif o.kv0 <= s and kvn < 16:
            for c in range(o.kvper):
                if kvn < 16:
                    extra.setdefault(10 + c * 6, []).extend(kload(kvn))
                    extra.setdefault(13 + c * 6, []).extend(vload(kvn))
                    kvn += 1
        if o.vlate and s == o.vlate:
            for n in range(o.vn):
                extra.setdefault(17 + 2 * (n % 8), []).extend(vload(16 - o.vn + n))
        if o.wopre and s == o.wopre:
            extra.setdefault(17, []).extend([f"s_lshl_b32 s{S_STMP}, s{S_HQ}, 4", f"s_add_u32 s{S_STMP}, s{S_STMP}, s{S_BP}"])
            extra.setdefault(19, []).extend([f"s_lshl_b32 s{S_STMP}, s{S_STMP}, 2", f"s_add_u32 s{S_STMP}, s{S_STMP}, s{S_W}"])
            extra.setdefault(21, []).extend([f"s_mul_i32 s{S_STMP}, s{S_STMP}, 10240", f"v_mbcnt_lo_u32_b32 v{V_TMP}, -1, 0"])
            extra.setdefault(23, []).extend([f"v_mbcnt_hi_u32_b32 v{V_TMP}, -1, v{V_TMP}"])
            extra.setdefault(25, []).extend([f"v_lshlrev_b32 v{V_TMP}, 7, v{V_TMP}"])
            extra.setdefault(31, []).extend([("vm", f"buffer_load_dword a240, v{V_TMP}, s[{S_WO}:{S_WO+3}], s{S_STMP} offen", "pre"),
                                             f"s_add_u32 s{S_STMP}, s{S_STMP}, 8192", "s_mov_b64 exec, 0xffff",
                                             ("vm", f"buffer_load_dword a241, v{V_TMP}, s[{S_WO}:{S_WO+3}], s{S_STMP} offen", "pre"),
                                             "s_mov_b64 exec, -1"])
        step(s, s == 0, s == 19, extra)
    assert kvn == 16 or kst
    if not o.defer:
        for r in range(8 - o.spread, 8):
            A(wload(22, r))
    g.stamp(2)

    vi, vG, vt, KA = 6, 7, 8, 2
    if o.fuse:
        A(f"s_load_dwordx2 s[{S_OUT}:{S_OUT+1}], s[0:1], 80")
        A(f"s_load_dwordx2 s[{S_DBG}:{S_DBG+1}], s[0:1], 88")
        A(f"s_mov_b32 s{S_OUT+2}, 2621440")
        A(f"s_mov_b32 s{S_DBG+2}, 256")
    A(f"s_movk_i32 s{S_G}, 0x78")
    A(f"v_lshrrev_b32 v{vG}, 10, v{V_VG}")
    A(f"v_bfe_u32 v{vi}, v{V_VG}, 4, 4")
    A(f"v_lshrrev_b32 v{vt}, 2, v{vi}")
    A(f"v_lshlrev_b32 v{vt}, 1, v{vt}")
    A(f"v_lshrrev_b32 v{vt}, v{vt}, s{S_G}")
    A(f"v_xor_b32 v{vt}, v{vt}, v{vG}")
    A(f"v_and_b32 v{vt}, 3, v{vt}")
    A(f"v_lshlrev_b32 v{vt}, 2, v{vt}")
    A(f"v_and_or_b32 v{vt}, v{vi}, 3, v{vt}")
    A(f"v_lshlrev_b32 v{vt}, 4, v{vt}")
    A(f"v_lshl_add_u32 v{vt}, v{vi}, 8, v{vt}")
    A(f"v_add_u32 v{KA}, s{S_KLDS}, v{vt}")
    for u in range(1, 4):
        A(f"v_xor_b32 v{KA+u}, {u*16}, v{KA}")
    A(f"v_lshlrev_b32 v{V_LX}, 8, v{vG}")
    A(f"v_lshl_add_u32 v{V_LX}, v{vi}, 4, v{V_LX}")
    def c4pre_b():
        A(f"s_mul_i32 s{S_T0}, s{S_BP}, {8*1280}")
        A(f"s_add_u32 s{S_T0}, s{S_T0}, s{S_CW+16}")
        A(f"v_mul_u32_u24 v{V_TMP}, {1280-256}, v{vG}")
        A(f"v_add_u32 v{V_TMP}, v{V_TMP}, v{V_LX}")
        A(g.vm(f"buffer_load_dwordx4 {ar(240)}, v{V_TMP}, s[{S_WO}:{S_WO+3}], s{S_T0} offen", "pre"))
        A(f"s_add_u32 s{S_T0}, s{S_T0}, {4*1280}")
        A(g.vm(f"buffer_load_dwordx4 {ar(244)}, v{V_TMP}, s[{S_WO}:{S_WO+3}], s{S_T0} offen", "pre"))
    A(g.waitvm("k"))
    if o.c4pre == 1:
        c4pre_b()
    if o.ph == 3:
        A(f"s_lshl_b32 s{S_T0}, s{S_W}, 12")
        A(f"s_add_u32 s{S_T0}, s{S_T0}, s{S_ST}")
        A(f"s_add_u32 s{S_T0}, s{S_T0}, 65536")
        for r in range(4):
            A(g.vm(f"buffer_store_dwordx4 {ar(100)}, v{V_LX}, s[{S_WS}:{S_WS+3}], s{S_T0} offen offset:{r*1024} sc1", "mark"))
    if o.fuse:
        A("s_waitcnt lgkmcnt(0)")

    def kread(bt):
        for kb in range(2):
            for u in range(4):
                A(f"ds_read_b128 {ar(A_K+((bt*2+kb)*4+u)*4)}, v{KA+u} offset:{bt*8192+kb*4096}")
    QB = [PERM, 128, 144, 160]
    SA = 176
    cv = []
    for q in range(4):
        c = []
        for t in range(4):
            for u in range(4):
                c.append(f"v_cvt_pk_bf16_f32 v{QB[q]+u*4+t}, v{ACC+q*32+(2*t)*4+u}, v{ACC+q*32+(2*t+1)*4+u}")
        cv.append(c)
    kread(0)
    for x in cv[0]:
        A(x)
    A("s_waitcnt lgkmcnt(4)")
    kread(1)
    for x in cv[1]:
        A(x)
    A("s_waitcnt lgkmcnt(8)")

    def smfma(bt):
        r = []
        for u in range(4):
            for kb in range(2):
                for qq in range(2):
                    d = vr(SA + ((bt * 2 + kb) * 2 + qq) * 4)
                    r.append(mfma(d, ar(A_K + ((bt * 2 + kb) * 4 + u) * 4), vr(QB[bt * 2 + qq] + u * 4), "0" if u == 0 else d))
        return r
    s0 = smfma(0)
    rest = cv[2] + cv[3]
    A("s_nop 1")
    for n in range(16):
        A(s0[n])
        A(rest[2 * n])
        A(rest[2 * n + 1])
    A("s_waitcnt lgkmcnt(0)")
    A("s_nop 1")
    s1 = smfma(1)

    PB = 208
    TM = 224

    def softmax(q):
        bt, qq = q // 2, q % 2
        sv = [SA + ((bt * 2 + kb) * 2 + qq) * 4 + r for kb in range(2) for r in range(4)]
        m, t2 = TM + q * 4, TM + q * 4 + 1
        ph = []
        ph.append([f"v_max3_f32 v{m}, v{sv[0]}, v{sv[1]}, v{sv[2]}",
                   f"v_max3_f32 v{t2}, v{sv[3]}, v{sv[4]}, v{sv[5]}",
                   f"v_max3_f32 v{m}, v{m}, v{sv[6]}, v{sv[7]}",
                   f"v_max_f32 v{m}, v{m}, v{t2}",
                   f"v_mov_b32 v{t2}, v{m}"])
        ph.append([f"v_permlane32_swap_b32 v{m}, v{t2}"])
        ph.append([f"v_max_f32 v{m}, v{m}, v{t2}", f"v_mov_b32 v{t2}, v{m}"])
        ph.append([f"v_permlane16_swap_b32 v{m}, v{t2}"])
        ph.append([f"v_max_f32 v{m}, v{m}, v{t2}", f"v_mul_f32 v{m}, s{S_SC}, v{m}"] +
                  [f"v_fma_f32 v{x}, v{x}, s{S_SC}, -v{m}" for x in sv] +
                  [f"v_exp_f32 v{x}, v{x}" for x in sv])
        ph.append([f"v_add_f32 v{m}, v{sv[0]}, v{sv[1]}", f"v_add_f32 v{t2}, v{sv[2]}, v{sv[3]}",
                   f"v_add_f32 v{m}, v{m}, v{sv[4]}", f"v_add_f32 v{t2}, v{t2}, v{sv[5]}",
                   f"v_add_f32 v{m}, v{m}, v{sv[6]}", f"v_add_f32 v{t2}, v{t2}, v{sv[7]}",
                   f"v_add_f32 v{m}, v{m}, v{t2}", f"v_mov_b32 v{t2}, v{m}"])
        ph.append([f"v_permlane32_swap_b32 v{m}, v{t2}"])
        ph.append([f"v_add_f32 v{m}, v{m}, v{t2}", f"v_mov_b32 v{t2}, v{m}"])
        ph.append([f"v_permlane16_swap_b32 v{m}, v{t2}"])
        ph.append([f"v_add_f32 v{m}, v{m}, v{t2}"])
        ph.append([f"v_rcp_f32 v{m}, v{m}"])
        ph.append([f"v_mul_f32 v{x}, v{x}, v{m}" for x in sv])
        ph.append([f"v_cvt_pk_bf16_f32 v{PB+q*4+p}, v{sv[2*p]}, v{sv[2*p+1]}" for p in range(4)])
        return ph

    def softmax_pair(q0):
        a, b = softmax(q0), softmax(q0 + 1)
        out = []
        for pa, pb in zip(a, b):
            if pa[0].startswith("v_permlane"):
                out.append("s_nop 1")
            out += pa + pb
            if pa[0].startswith("v_rcp") or pa[0].startswith("v_permlane"):
                out.append("s_nop 0")
        return out
    sm0 = softmax_pair(0)
    for n in range(16):
        A(s1[n])
        if n >= 4:
            for _ in range(2):
                A(sm0.pop(0))
    for x in sm0:
        A(x)
    sm1 = softmax_pair(2)
    for n, x in enumerate(sm1):
        A(x)
        if o.defer == 2 and n % 12 == 11 and n // 12 < 8:
            A(wload(21, n // 12))
    g.stamp(3)
    A(g.waitvm("v"))
    dl = []
    if o.defer == 1:
        dl = [(21, r) for r in range(8)] + [(22, r) for r in range(8)]
    if o.defer == 2:
        dl = [(22, r) for r in range(8)]
    if o.defer == 3:
        for r in range(8):
            A(wload(20, r))
        dl = [(21, r) for r in range(8)] + [(22, r) for r in range(8)]
    OA = 128
    VT = 192
    VP1 = 224
    STG = 200

    def vperm(bt, t, dst):
        r = [f"v_accvgpr_read_b32 v{VT+x}, a{A_V+bt*32+x*4+t}" for x in range(8)]
        for e in range(2):
            for p in range(4):
                r.append(f"v_perm_b32 v{dst+e*4+p}, v{VT+2*p+1}, v{VT+2*p}, s{S_PLO if e == 0 else S_PHI}")
        return r
    for x in vperm(0, 0, PERM):
        A(x)
    for t in range(4):
        nxt = vperm(0, t + 1, PERM + ((t + 1) % 2) * 8) if t < 3 else vperm(1, 0, VP1)
        A("s_nop 1") if t == 0 else None
        if t == 3:
            A(g.waitvm("v1"))
        k = 0
        for e in range(2):
            for qq in range(2):
                A(mfma(vr(OA + qq * 32 + (2 * t + e) * 4), vr(PERM + (t % 2) * 8 + e * 4), vr(PB + qq * 4), "0"))
                for x in nxt[k * 4:k * 4 + 4]:
                    A(x)
                if dl and (o.defer != 2 or k % 2):
                    A(wload(*dl.pop(0)))
                k += 1
        A("s_nop 0")
    assert not dl
    for t in range(1, 4):
        for x in vperm(1, t, VP1 + t * 8):
            A(x)
    A(f"v_add_u32 v{V_B}, s{S_KLDS}, v{V_LX}")

    def ocvt(bt, qq):
        r = []
        for u in range(4):
            st = STG + (u % 2) * 4
            for t in range(4):
                r.append(f"v_cvt_pk_bf16_f32 v{st+t}, v{OA+qq*32+(2*t)*4+u}, v{OA+qq*32+(2*t+1)*4+u}")
            r.append(f"ds_write_b128 v{V_B}, {vr(st)} offset:{u*4096+(bt*2+qq)*1024}")
        return r

    def pv1(qq):
        return [mfma(vr(OA + qq * 32 + j * 4), vr(VP1 + j * 4), vr(PB + (2 + qq) * 4), "0") for j in range(8)]
    for x in ocvt(0, 0):
        A(x)
    c = ocvt(0, 1)
    for mm in pv1(0):
        A(mm)
        for _ in range(3):
            if c:
                A(c.pop(0))
    assert not c
    m1 = pv1(1)
    c = ocvt(1, 0)
    for n, mm in enumerate(m1):
        A(mm)
    A("s_waitcnt lgkmcnt(4)")
    for x in c:
        A(x)
    for x in ocvt(1, 1):
        A(x)
    A(f"s_lshl_b32 s{S_T0}, s{S_W}, 10")
    A(f"v_add_u32 v{V_W}, s{S_T0}, v{V_B}")
    for x in range(1, 4):
        A(f"v_xor_b32 v{V_W+x}, {x*1024}, v{V_W}")
    A(f"s_lshl_b32 s{S_CL}, s{S_BP}, 12" if o.rot else f"s_mov_b32 s{S_CL}, 0")
    if o.dp:
        A(f"s_and_b32 s{S_CL}, s{S_CL}, 0x7fff")
        A(f"s_and_b32 s{S_T0}, s{S_W}, 1")
        A(f"s_mul_i32 s{S_T0}, s{S_T0}, {32768+2048}")
        A(f"v_add_u32 v{V_KG}, s{S_T0}, v{V_LX}")
        for x in range(1, 4):
            A(f"s_xor_b32 s{S_T0}, s{S_W}, {x}")
            A(f"s_mul_i32 s{S_T0}, s{S_T0}, {3*8192}")
            A(f"s_add_u32 s{S_T0}, s{S_T0}, {LDS_R + (x-1)*8192}")
            A(f"v_add_u32 v{5+x}, s{S_T0}, v{V_LX}")
        A(f"s_mul_i32 s{S_T0}, s{S_W}, {3*8192}")
        A(f"s_add_u32 s{S_T0}, s{S_T0}, {LDS_R}")
        A(f"v_add_u32 v9, s{S_T0}, v{V_LX}")
    A(g.waitvm("w20"))
    def announce():
        A(f"s_cmp_lg_u32 s{S_W}, 0")
        A("s_cbranch_scc1 L_noann")
        A(f"s_lshr_b32 s{S_T0}, s2, 3")
        A(f"s_lshl_b32 s{S_T0}, s{S_T0}, 2")
        A(f"s_add_u32 s{S_T0}, s{S_T0}, 128")
        A(f"v_mov_b32 v{V_TMP}, 1")
        A("s_mov_b64 exec, 1")
        A(f"buffer_atomic_add v{V_TMP}, off, s[{S_DBG}:{S_DBG+3}], s{S_T0} sc1")
        A("s_mov_b64 exec, -1")
        g.lab("L_noann")
    if o.ph == 3:
        A(g.waitvm("mark"))
    elif o.fuse:
        announce()
    for p in perms(slot_rows(20), 0, PERM):
        A(p)
    A("s_waitcnt lgkmcnt(0)")
    if not o.dp:
        A("s_barrier")
    for x in bread(20):
        A(x)
    if o.ph == 3:
        announce()
    A("s_waitcnt lgkmcnt(0)")
    g.stamp(4)
    if o.dp:
        stage_c_dp(g, step, fq, emit)
        finish(g)
        return

    for s in range(20, 36):
        extra = {}
        if o.c4pre and s == o.c4pre:
            extra[17] = [f"s_mul_i32 s{S_T0}, s{S_BP}, {8*1280}", f"s_add_u32 s{S_T0}, s{S_T0}, s{S_CW+16}"]
            extra[19] = [f"v_lshrrev_b32 v{V_TMP}, 8, v{V_LX}", f"v_mul_u32_u24 v{V_TMP}, {1280-256}, v{V_TMP}"]
            extra[21] = [f"v_add_u32 v{V_TMP}, v{V_TMP}, v{V_LX}"]
            extra[31] = [("vm", f"buffer_load_dwordx4 {ar(0)}, v{V_TMP}, s[{S_WO}:{S_WO+3}], s{S_T0} offen", "pre"),
                         f"s_add_u32 s{S_T0}, s{S_T0}, {4*1280}",
                         ("vm", f"buffer_load_dwordx4 {ar(4)}, v{V_TMP}, s[{S_WO}:{S_WO+3}], s{S_T0} offen", "pre")]
        if o.e39 and s == 35:
            extra = {11: [f"s_lshr_b32 s{S_KS+4}, s2, 3"], 13: [f"s_lshl_b32 s{S_KS+4}, s{S_KS+4}, 2"], 15: [f"s_add_u32 s{S_KS+4}, s{S_KS+4}, 128"],
                     19: [("vm", f"buffer_load_dword v{V_B}, off, s[{S_DBG}:{S_DBG+3}], s{S_KS+4} sc1", "clr")]}
        step(s, s == 20, False, extra)
    g.stamp(5)
    ST2 = V_W + 4
    stg = [6, 12]
    outs = []
    A(f"s_lshl_b32 s{S_T0}, s{S_W}, 14")
    A(f"s_add_u32 s{S_T0}, s{S_T0}, s{S_ST}")
    for q in range(4):
        A(f"s_add_u32 s{S_KS+q}, s{S_T0}, {q*4096}")
    T = S_KS
    if o.fuse == 3:
        A(f"v_lshrrev_b32 v{V_B}, 9, v{V_LX}")
        A(f"s_lshr_b32 s{T+9}, s{S_HQ}, 1")
        A(f"v_mul_u32_u24 v{V_B}, 1536, v{V_B}")
        A(f"s_bitcmp1_b32 s{S_HQ}, 0")
        A(f"s_cselect_b32 s{T+16}, 0, {-1 if o.own else 0}")
        A(f"s_cselect_b32 s{T+17}, {-1 if o.own else 0}, 0")
        A(f"v_add_u32 v{V_B}, v{V_B}, v{V_LX}")
    for q in range(4):
        for r in range(4):
            st = stg[r % 2]
            for t in range(4):
                x = f"v_cvt_pk_bf16_f32 v{st+t}, v{ACC+q*32+(2*t)*4+r}, v{ACC+q*32+(2*t+1)*4+r}"
                if o.fuse == 3 and r == 0 and t == 1:
                    x += f"\n    s_cmp_eq_u32 s{T+9}, {q}\n    s_cselect_b64 s[{T+26}:{T+27}], s[{T+16}:{T+17}], 0"
                if o.fuse == 3 and r == 0 and t == 2:
                    x += f"\n    v_cndmask_b32 v{V_TMP}, v{V_B}, 2.0, s[{T+26}:{T+27}]"
                outs.append(x)
            if o.fuse == 3:
                outs.append(("vm", f"buffer_store_dwordx4 {vr(st)}, v{V_TMP}, s[{S_WS}:{S_WS+3}], s{S_KS+q} offen offset:{r*512} {o.pst}", "st"))
            else:
                outs.append(("vm", f"buffer_store_dwordx4 {vr(st)}, v{V_LX}, s[{S_WS}:{S_WS+3}], s{S_KS+q} offen offset:{r*1024} {o.pst}", "st"))
    ex36 = {}
    if o.fuse:
        ex36 = {13: [f"s_lshr_b32 s{S_KS+4}, s2, 3"], 15: [f"s_lshl_b32 s{S_KS+4}, s{S_KS+4}, 2"], 17: [f"s_add_u32 s{S_KS+4}, s{S_KS+4}, 128"],
                31: [("vm", f"buffer_load_dword {'a96' if o.fuse == 3 else f'v{V_B}'}, off, s[{S_DBG}:{S_DBG+3}], s{S_KS+4} sc1", "clr")]}
    if o.e39:
        cps = [f"v_accvgpr_read_b32 v{RING+n}, a{n}" for n in range(32)]
        for s in range(36, 40):
            extra = {}
            for k in range(1 if s == 36 else 0, 32):
                extra[k] = []
                for rep in range(2 if (o.dens and k % 2 == 1) else 1):
                    if outs:
                        extra[k].append(outs.pop(0))
                if s == 36 and k == 23:
                    extra[k].append(lambda: g.waitvm("w39"))
                if cps and (s, k) >= ((37, 0) if not o.dens else (37, 12)):
                    extra[k].append(cps.pop(0))
            if s == 38:
                assert not cps
            step(s, s == 36, s == 39, extra)
    else:
        step(36, True, False, ex36)
    for s in range(37, 40 if not o.e39 else 0):
        extra = {}
        lo = 11 + 2 * o.spread if (s == 37 and o.spread) else 0
        for k in range(lo, 32):
            if outs:
                extra[k] = [outs.pop(0)]
                if s == 39 and k >= 24 and outs:
                    extra[k].append(outs.pop(0))
        step(s, False, s == 39, extra)
    for x in outs:
        emit(x)
    g.stamp(6)
    for x in range(1, 4):
        A(f"s_xor_b32 s{S_T0}, s{S_W}, {x}")
        A(f"s_mul_i32 s{S_T0}, s{S_T0}, {3*8192}")
        A(f"s_add_u32 s{S_T0}, s{S_T0}, {LDS_R + (x-1)*8192}")
        A(f"v_add_u32 v{V_W+x}, s{S_T0}, v{V_LX}")
    A(f"s_mul_i32 s{S_T0}, s{S_W}, {3*8192}")
    A(f"s_add_u32 s{S_T0}, s{S_T0}, {LDS_R}")
    A(f"v_add_u32 v{V_W}, s{S_T0}, v{V_LX}")
    if o.fuse == 3 and o.il:
        mark = len(g.L)
        pick(g, "m", 8, f"s{S_HQ}", own_main)
        blob = g.L[mark:]
        del g.L[mark:]
        for n in range(32):
            A(f"v_accvgpr_read_b32 v{ACC+n}, a{A_C4+n}")
        A(f"s_lshl_b32 s{S_T0}, s{S_W}, 12")
        A(f"s_add_u32 s{S_T0}, s{S_T0}, s{S_ST}")
        A(f"s_add_u32 s{S_T0}, s{S_T0}, 65536")
        tail3_addr(g)
        fl = g.L[mark:]
        del g.L[mark:]
        n = 0
        for j in range(8):
            for x in range(1, 4):
                A(f"ds_write_b128 v{V_W+x}, {ar(A_C4+x*32+j*4)} offset:{j*1024}")
                if n == 1:
                    g.L += blob
                elif n > 1:
                    k = -(-len(fl) // (24 - n))
                    while k < len(fl) and fl[k].split()[0].startswith("s_cselect"):
                        k += 1
                    g.L += fl[:k]
                    del fl[:k]
                if n % 4 == 3:
                    A(f"s_waitcnt lgkmcnt({o.il})")
                n += 1
        assert not fl
    else:
        A("s_nop 7")
        for x in range(1, 4):
            for j in range(8):
                A(f"ds_write_b128 v{V_W+x}, {ar(A_C4+x*32+j*4)} offset:{j*1024}")
            A("s_waitcnt lgkmcnt(6)")
        if o.fuse == 3:
            pick(g, "m", 8, f"s{S_HQ}", own_main)
        for n in range(32):
            A(f"v_accvgpr_read_b32 v{ACC+n}, a{A_C4+n}")
        A(f"s_lshl_b32 s{S_T0}, s{S_W}, 12")
        A(f"s_add_u32 s{S_T0}, s{S_T0}, s{S_ST}")
        A(f"s_add_u32 s{S_T0}, s{S_T0}, 65536")
        if o.fuse == 2:
            tail2_addr(g)
        if o.fuse == 3:
            tail3_addr(g)
    A("s_waitcnt lgkmcnt(0)")
    A("s_barrier")
    for x in range(3):
        for j in range(8):
            A(f"ds_read_b128 {vr(RING+x*32+j*4)}, v{V_W} offset:{x*8192+j*1024}")
            if x >= 1 and j == 3:
                A("s_waitcnt lgkmcnt(4)")
                if o.fuse >= 2 and o.ph >= 2 and o.fa == 3 - x:
                    tail2_flag(g, 1)
                    if o.ph == 3:
                        tail4_poll(g)
                for n in range(32):
                    A(f"v_add_f32 v{ACC+n}, v{ACC+n}, v{RING+(x-1)*32+n}")
    A("s_waitcnt lgkmcnt(0)")
    for n in range(32):
        A(f"v_add_f32 v{ACC+n}, v{ACC+n}, v{RING+64+n}")
    for r in range(4):
        st = (PERM if o.fuse != 3 else ACC + 32) + r * 4
        for t in range(4):
            A(f"v_cvt_pk_bf16_f32 v{st+t}, v{ACC+(2*t)*4+r}, v{ACC+(2*t+1)*4+r}")
        if o.fuse >= 2 and o.ph == 2 and o.fa == 0 and r == 0:
            tail2_flag(g, 1)
        if o.fuse == 3:
            A(g.vm(f"buffer_store_dwordx4 {vr(st)}, v{VS3}, s[{S_WS}:{S_WS+3}], s{S_T0} offen offset:{r*128} {o.pst}", "st"))
        else:
            A(g.vm(f"buffer_store_dwordx4 {vr(st)}, v{V_LX}, s[{S_WS}:{S_WS+3}], s{S_T0} offen offset:{r*1024} {o.pst}", "st"))
    if o.ph == 3:
        tail4(g)
    elif o.fuse == 3:
        tail3(g)
    elif o.fuse == 2:
        tail2(g)
    elif o.fuse:
        fused_tail(g)
    finish(g)


def finish(g):
    o = g.o
    A = g.A
    if o.diag:
        g.stamp(7) if not o.fuse else None
        A("s_waitcnt vmcnt(0)")
        g.stamp(8)
        if o.fuse:
            A("s_mov_b32 s2, vcc_hi")
        A(f"s_memrealtime s[{S_TS}:{S_TS+1}]")
        A("s_waitcnt lgkmcnt(0)")
        A(f"v_writelane_b32 v{V_TID}, s{S_TS}, 9")
        A(f"s_lshl_b32 s{S_T0}, s2, 2")
        A(f"s_add_u32 s{S_T0}, s{S_T0}, s{S_W}")
        A(f"s_lshl_b32 s{S_T0}, s{S_T0}, 8")
        A(f"s_add_u32 s{S_T0}, s{S_T0}, 0x8000000")
        A(f"v_lshrrev_b32 v{V_TMP}, 2, v{V_LX}")
        A(f"buffer_store_dword v{V_TID}, v{V_TMP}, s[{S_WS}:{S_WS+3}], s{S_T0} offen")
        if o.diag == 3 and o.fuse:
            A(f"s_lshl_b32 s{S_T0}, s2, 2")
            A(f"s_add_u32 s{S_T0}, s{S_T0}, s{S_W}")
            A(f"s_cmp_lg_u32 s{S_T0}, {o.sel}")
            A("s_cbranch_scc1 L_main_end")
            A(f"v_readlane_b32 s{S_T0}, v{V_TID}, 56")
            A(f"v_readlane_b32 s{S_T1}, v{V_TID}, 57")
            A(f"v_readlane_b32 s{S_STMP}, v{V_TID}, 58")
            A("s_nop 3")
            A(f"v_writelane_b32 v{V_TID}, s{S_T0}, 12")
            A(f"v_writelane_b32 v{V_TID}, s{S_T1}, 14")
            A(f"v_writelane_b32 v{V_TID}, s{S_STMP}, 15")
            A("s_mov_b64 exec, 0xffff")
            A(f"buffer_store_dword v{V_TID}, v{V_TMP}, s[{S_DBG}:{S_DBG+3}], 0 offen")
        if o.diag == 2:
            A("s_load_dwordx2 s[32:33], s[0:1], 88")
            A("v_readlane_b32 s36, v0, 10")
            A("v_readlane_b32 s37, v0, 8")
            A("s_mov_b32 s34, 64")
            A("s_mov_b32 s35, 0x20000")
            A("s_not_b32 s36, s36")
            A("s_not_b32 s37, s37")
            A("v_writelane_b32 v0, s36, 11")
            A("v_writelane_b32 v0, s37, 12")
            A("s_waitcnt lgkmcnt(0)")
            A(f"buffer_atomic_umax v0, v{V_TMP}, s[32:35], 0 offen sc1")
    g.lab("L_main_end")
    A("s_endpgm")


def fused_tail(g):
    o = g.o
    A = g.A
    T = S_KS
    g.stamp(7)
    A(f"s_lshr_b32 s{T+5}, s2, 3")
    A(f"s_and_b32 s{T+6}, s2, 7")
    A(f"s_mul_i32 s{T+7}, s{T+5}, {8*(81920+o.pad)}")
    A(f"s_lshl_b32 s{T+8}, s{T+6}, 3")
    A(f"s_lshl_b32 s{T+9}, s{S_W}, 1")
    A(f"s_add_u32 s{T+8}, s{T+8}, s{T+9}")
    A(f"s_lshl_b32 s{T+9}, s{T+6}, 1")
    A(f"s_lshr_b32 s{T+10}, s{S_W}, 1")
    A(f"s_add_u32 s{T+9}, s{T+9}, s{T+10}")
    A(f"s_add_u32 s{T+9}, s{T+9}, 64")
    A(f"s_lshl_b32 s{T+10}, s{T+8}, 10")
    A(f"s_add_u32 s{T+10}, s{T+10}, s{T+7}")
    A(f"s_lshl_b32 s{T+11}, s{T+9}, 10")
    A(f"s_add_u32 s{T+11}, s{T+11}, s{T+7}")
    A(f"s_and_b32 s{T+12}, s{T+5}, 15")
    A(f"s_mul_i32 s{T+12}, s{T+12}, {4*40960}")
    A(f"s_lshr_b32 s{T+13}, s{T+5}, 4")
    A(f"s_mul_i32 s{T+13}, s{T+13}, 1280")
    A(f"s_add_u32 s{T+12}, s{T+12}, s{T+13}")
    for blk, dst in ((T+8, T+14), (T+9, T+15)):
        A(f"s_bfe_u32 s{T+13}, s{blk}, 0x20002")
        A(f"s_mul_i32 s{T+13}, s{T+13}, 40960")
        A(f"s_add_u32 s{dst}, s{T+12}, s{T+13}")
        A(f"s_lshr_b32 s{T+13}, s{blk}, 4")
        A(f"s_lshl_b32 s{T+13}, s{T+13}, 8")
        A(f"s_add_u32 s{dst}, s{dst}, s{T+13}")
        A(f"s_and_b32 s{T+13}, s{blk}, 3")
        A(f"s_lshl_b32 s{T+13}, s{T+13}, 4")
        A(f"s_add_u32 s{dst}, s{dst}, s{T+13}")
    A(f"s_bitcmp1_b32 s{S_W}, 0")
    A(f"s_cselect_b32 s{T+16}, 0, -1")
    A(f"s_cselect_b32 s{T+17}, -1, 0")
    A(f"s_mov_b32 s{T+18}, 0x3f80")
    A(f"s_mov_b32 s{T+19}, 0x3f800000")
    A(f"s_mov_b32 s{T+20}, 0xffff0000")
    VO, VF, VP = 2, 3, 4
    A(f"v_bfe_u32 v{VO}, v{V_LX}, 4, 4")
    A(f"v_lshrrev_b32 v{VF}, 8, v{V_LX}")
    A(f"v_mul_u32_u24 v{VO}, 2560, v{VO}")
    A(f"v_lshl_add_u32 v{VO}, v{VF}, 6, v{VO}")
    A(f"v_lshlrev_b32 v{VF}, 3, v{V_LX}")
    A(f"s_lshl_b32 s{T+21}, s2, 7")
    A(f"s_add_u32 s{T+21}, s{T+21}, {WS_FLAG}")
    A(f"s_lshl_b32 s{T+22}, s{T+5}, 10")
    A(f"s_add_u32 s{T+22}, s{T+22}, {WS_FLAG}")
    A(f"s_mov_b32 s{T+23}, {1<<20}")
    A(f"v_mov_b32 v{VP}, 1")
    A("s_waitcnt vmcnt(0)")
    A("s_barrier")
    g.stamp(56)
    A(f"s_cmp_lg_u32 s{S_W}, 0")
    A("s_cbranch_scc1 L_polled")
    A("s_mov_b64 exec, 1")
    A(f"buffer_store_dword v{VP}, off, s[{S_WS}:{S_WS+3}], s{T+21} sc1")
    g.lab("L_clr")
    A(f"v_readfirstlane_b32 s{T+24}, v{V_B}")
    A(f"s_sub_u32 s{T+23}, s{T+23}, 1")
    A("s_cbranch_scc1 L_polled")
    A(f"s_cmp_ge_u32 s{T+24}, 8")
    A("s_cbranch_scc1 L_poll0")
    A(f"buffer_load_dword v{V_B}, off, s[{S_DBG}:{S_DBG+3}], s{S_KS+4} sc1")
    A("s_waitcnt vmcnt(0)")
    A("s_branch L_clr")
    g.lab("L_poll0")
    A("s_mov_b64 exec, 0xff")
    g.lab("L_poll")
    A(f"buffer_load_dword v{VP}, v{VF}, s[{S_WS}:{S_WS+3}], s{T+22} offen sc1")
    A(f"s_sub_u32 s{T+23}, s{T+23}, 1")
    A("s_cbranch_scc1 L_polled")
    A("s_waitcnt vmcnt(0)")
    A(f"v_cmp_ne_u32 s[{T+24}:{T+25}], 1, v{VP}")
    A("s_nop 3")
    A(f"s_cmp_lg_u32 s{T+24}, 0")
    A("s_cbranch_scc1 L_poll")
    g.lab("L_polled")
    A("s_mov_b64 exec, -1")
    A("s_waitcnt vmcnt(0)")
    A("s_barrier")
    g.stamp(57)
    R = RING
    for h in range(8):
        A(f"buffer_load_dwordx4 {vr(R+h*12)}, v{V_LX}, s[{S_WS}:{S_WS+3}], s{T+10} offen sc1")
        A(f"buffer_load_dwordx4 {vr(R+h*12+4)}, v{V_LX}, s[{S_WS}:{S_WS+3}], s{T+10} offen offset:1024 sc1")
        A(f"s_mov_b64 exec, s[{T+16}:{T+17}]")
        A(f"buffer_load_dwordx4 {vr(R+h*12+8)}, v{V_LX}, s[{S_WS}:{S_WS+3}], s{T+11} offen sc1")
        A("s_mov_b64 exec, -1")
        if h < 7:
            A(f"s_add_u32 s{T+10}, s{T+10}, {81920+o.pad}")
            A(f"s_add_u32 s{T+11}, s{T+11}, {81920+o.pad}")
    for h in range(8):
        for b in range(3):
            A(f"s_waitcnt vmcnt({23-h*3-b})")
            for t in range(4):
                src = R + h * 12 + b * 4 + t
                d = ACC + b * 8 + 2 * t
                if h == 0:
                    A(f"v_lshlrev_b32 v{d}, 16, v{src}")
                    A(f"v_and_b32 v{d+1}, s{T+20}, v{src}")
                else:
                    A(f"v_dot2c_f32_bf16 v{d}, s{T+18}, v{src}")
                    A(f"v_dot2c_f32_bf16 v{d+1}, s{T+19}, v{src}")
    g.stamp(58)
    A("s_nop 1")
    for b in range(3):
        for t in range(4):
            A(f"v_cvt_pk_bf16_f32 v{PERM+b*4+t}, v{ACC+b*8+2*t}, v{ACC+b*8+2*t+1}")
        if b == 2:
            A(f"s_mov_b64 exec, s[{T+16}:{T+17}]")
        A(f"buffer_store_dwordx4 {vr(PERM+b*4)}, v{VO}, s[{S_OUT}:{S_OUT+3}], s{T+14+b//2} offen offset:{16*(b%2)} {o.pout}")
    if o.diag:
        A("s_mov_b64 exec, -1")


VO2, VF2, VP2, VQ2 = 6, 7, 8, 9


def flag_base(g, d, t):
    A = g.A
    if g.o.fl:
        A(f"s_lshr_b32 s{d}, s2, 3")
        A(f"s_lshl_b32 s{d}, s{d}, 9")
        A(f"s_and_b32 s{t}, s2, 7")
        A(f"s_lshl_b32 s{t}, s{t}, 2")
        A(f"s_add_u32 s{d}, s{d}, s{t}")
    else:
        A(f"s_lshl_b32 s{d}, s2, 9")
    A(f"s_add_u32 s{d}, s{d}, {WS_FLAG}")


def tail2_addr(g):
    o = g.o
    A = g.A
    T = S_KS
    A(f"s_lshr_b32 s{T+5}, s2, 3")
    A(f"s_and_b32 s{T+6}, s2, 7")
    A(f"s_mul_i32 s{T+7}, s{T+5}, {8*(81920+o.pad)}")
    A(f"s_lshl_b32 s{T+8}, s{T+6}, 3")
    A(f"s_mul_i32 s{T+9}, s{S_W}, 3")
    A(f"s_add_u32 s{T+8}, s{T+8}, s{T+9}")
    A(f"s_lshl_b32 s{T+9}, s{T+6}, 1")
    A(f"s_add_u32 s{T+9}, s{T+9}, 64")
    A(f"s_cmp_eq_u32 s{S_W}, 3")
    A(f"s_cselect_b32 s{T+8}, s{T+9}, s{T+8}")
    A(f"s_cselect_b32 s{T+17}, 2, 1")
    A(f"s_lshl_b32 s{T+10}, s{T+8}, 10")
    A(f"s_add_u32 s{T+10}, s{T+10}, s{T+7}")
    A(f"s_and_b32 s{T+12}, s{T+5}, 15")
    A(f"s_mul_i32 s{T+12}, s{T+12}, {4*40960}")
    A(f"s_lshr_b32 s{T+13}, s{T+5}, 4")
    A(f"s_mul_i32 s{T+13}, s{T+13}, 1280")
    A(f"s_add_u32 s{T+12}, s{T+12}, s{T+13}")
    for b in range(3):
        dst = T + 14 + b
        A(f"s_bfe_u32 s{T+13}, s{T+8}, 0x20002")
        A(f"s_mul_i32 s{T+13}, s{T+13}, 40960")
        A(f"s_add_u32 s{dst}, s{T+12}, s{T+13}")
        A(f"s_lshr_b32 s{T+13}, s{T+8}, 4")
        A(f"s_lshl_b32 s{T+13}, s{T+13}, 8")
        A(f"s_add_u32 s{dst}, s{dst}, s{T+13}")
        A(f"s_and_b32 s{T+13}, s{T+8}, 3")
        A(f"s_lshl_b32 s{T+13}, s{T+13}, 4")
        A(f"s_add_u32 s{dst}, s{dst}, s{T+13}")
        if b < 2:
            A(f"s_add_u32 s{T+8}, s{T+8}, 1")
    A(f"s_mov_b32 s{T+18}, 0x3f80")
    A(f"s_mov_b32 s{T+19}, 0x3f800000")
    A(f"s_mov_b32 s{T+20}, 0xffff0000")
    A(f"v_bfe_u32 v{VO2}, v{V_LX}, 4, 4")
    A(f"v_lshrrev_b32 v{VF2}, 8, v{V_LX}")
    A(f"v_mul_u32_u24 v{VO2}, 2560, v{VO2}")
    A(f"v_lshl_add_u32 v{VO2}, v{VF2}, 6, v{VO2}")
    if o.fl:
        A(f"v_lshrrev_b32 v{VF2}, 2, v{V_LX}")
    else:
        A(f"v_lshlrev_b32 v{VF2}, 5, v{V_LX}")
    flag_base(g, T + 21, T + 13)
    A(f"s_lshl_b32 s{T+13}, s{S_W}, 7")
    A(f"s_add_u32 s{T+21}, s{T+21}, s{T+13}")
    A(f"s_lshl_b32 s{T+22}, s{T+5}, {9 if o.fl else 12}")
    A(f"s_lshr_b32 s{T+13}, s{T+6}, 1")
    A(f"s_lshl_b32 s{T+13}, s{T+13}, 7")
    A(f"s_add_u32 s{T+22}, s{T+22}, s{T+13}")
    A(f"s_add_u32 s{T+22}, s{T+22}, {WS_FLAG}")
    A(f"s_mov_b32 s{T+23}, {1<<20}")
    A(f"v_mov_b32 v{VP2}, 1")
    A(f"v_mov_b32 v{VQ2}, 2")


def tail2_flag(g, val):
    A = g.A
    T = S_KS
    for k in range(len(g.vq)):
        g.vq[k] = []
    A("s_waitcnt vmcnt(0)")
    g.stamp(59)
    A("s_mov_b64 exec, 1")
    A(f"buffer_store_dword v{VP2}, off, s[{S_WS}:{S_WS+3}], s{T+21} sc1")
    A("s_mov_b64 exec, -1")


def tail2(g):
    o = g.o
    A = g.A
    T = S_KS
    g.stamp(7)
    A("s_mov_b64 exec, 1")
    g.lab("L_clr")
    A(f"v_readfirstlane_b32 s{T+24}, v{V_B}")
    A(f"s_sub_u32 s{T+23}, s{T+23}, 1")
    A("s_cbranch_scc1 L_polled")
    A(f"s_cmp_ge_u32 s{T+24}, 8")
    A("s_cbranch_scc1 L_poll0")
    A(f"buffer_load_dword v{V_B}, off, s[{S_DBG}:{S_DBG+3}], s{S_KS+4} sc1")
    A("s_waitcnt vmcnt(0)")
    A("s_branch L_clr")
    g.lab("L_poll0")
    A("s_mov_b64 exec, 0xff")
    A(f"buffer_load_dword v{VP2}, v{VF2}, s[{S_WS}:{S_WS+3}], s{T+22} offen sc1")
    A("s_waitcnt vmcnt(1)")
    g.stamp(56)
    A("s_mov_b64 exec, 1")
    A(f"buffer_store_dword v{VQ2}, off, s[{S_WS}:{S_WS+3}], s{T+21} sc1")
    A("s_mov_b64 exec, 0xff")
    A("s_waitcnt vmcnt(1)")
    g.stamp(61)
    g.lab("L_poll")
    A(f"v_cmp_gt_u32 s[{T+24}:{T+25}], s{T+17}, v{VP2}")
    A(f"s_sub_u32 s{T+23}, s{T+23}, 1")
    A("s_cbranch_scc1 L_polled")
    A("s_nop 2")
    A(f"s_cmp_eq_u32 s{T+24}, 0")
    A("s_cbranch_scc1 L_polled")
    A(f"buffer_load_dword v{VP2}, v{VF2}, s[{S_WS}:{S_WS+3}], s{T+22} offen sc1")
    A("s_waitcnt vmcnt(0)")
    A("s_branch L_poll")
    g.lab("L_polled")
    A("s_mov_b64 exec, -1")
    g.stamp(57)
    R = RING
    A(f"s_cmp_ge_u32 s{S_W}, 2")
    A("s_cbranch_scc1 L_two")
    for nb in (3, 2):
        if nb == 2:
            g.lab("L_two")
        for h in range(8):
            for b in range(nb):
                A(f"buffer_load_dwordx4 {vr(R+h*12+b*4)}, v{V_LX}, s[{S_WS}:{S_WS+3}], s{T+10} offen offset:{b*1024} sc1")
            if h < 7:
                A(f"s_add_u32 s{T+10}, s{T+10}, {81920+o.pad}")
        for h in range(8):
            for b in range(nb):
                A(f"s_waitcnt vmcnt({8*nb-1-h*nb-b})")
                for t in range(4):
                    src = R + h * 12 + b * 4 + t
                    d = ACC + b * 8 + 2 * t
                    if h == 0:
                        A(f"v_lshlrev_b32 v{d}, 16, v{src}")
                        A(f"v_and_b32 v{d+1}, s{T+20}, v{src}")
                    else:
                        A(f"v_dot2c_f32_bf16 v{d}, s{T+18}, v{src}")
                        A(f"v_dot2c_f32_bf16 v{d+1}, s{T+19}, v{src}")
        g.stamp(58)
        A("s_nop 1")
        for b in range(nb):
            for t in range(4):
                A(f"v_cvt_pk_bf16_f32 v{PERM+b*4+t}, v{ACC+b*8+2*t}, v{ACC+b*8+2*t+1}")
            A(f"buffer_store_dwordx4 {vr(PERM+b*4)}, v{VO2}, s[{S_OUT}:{S_OUT+3}], s{T+14+b} offen {o.pout}")
        if nb == 3:
            A("s_branch L_summed" if o.diag else "s_endpgm")
    g.lab("L_summed")


def pick(g, name, n, sel, body):
    A = g.A
    for k in range(n):
        if k < n - 1:
            A(f"s_cmp_lg_u32 {sel}, {k}")
            A(f"s_cbranch_scc1 L_pk{name}{k}")
        for x in body(k):
            A(x)
        if k < n - 1:
            A(f"s_branch L_pk{name}e")
            g.lab(f"L_pk{name}{k}")
    g.lab(f"L_pk{name}e")


VC3, VS3, VD3 = 12, 13, 14


def own_main(h):
    out = []
    for b in range(2):
        for j in range(8):
            x = ACC + (h >> 1) * 32 + j * 4 + 2 * b
            out.append(f"v_permlane32_swap_b32 v{x}, v{x+1}")
    for b in range(2):
        for j in range(8):
            out.append(f"v_mov_b32 v{PERM+b*8+j}, v{ACC+(h>>1)*32+j*4+2*b+(h&1)}")
    return out


def tail3_addr(g):
    o = g.o
    A = g.A
    T = S_KS
    assert o.fl
    A(f"v_accvgpr_read_b32 v{V_B}, a96")
    A(f"s_lshr_b32 s{T+5}, s2, 3")
    A(f"s_mul_i32 s{T+7}, s{T+5}, {8*(81920+o.pad)}")
    A(f"s_lshl_b32 s{T+8}, s{S_W}, 14")
    A(f"s_lshl_b32 s{T+6}, s{S_HQ}, 11")
    A(f"s_add_u32 s{T+8}, s{T+8}, s{T+6}")
    A(f"s_add_u32 s{T+10}, s{T+8}, s{T+7}")
    for k in range(8):
        A(f"s_add_u32 s{T+13}, s{S_HQ}, {k}")
        A(f"s_and_b32 s{T+13}, s{T+13}, 7")
        A(f"s_mul_i32 s{T+13}, s{T+13}, {81920+o.pad}")
        A(f"s_add_u32 s{S_XC+k}, s{T+10}, s{T+13}")
    A(f"s_lshl_b32 s{T+6}, s{S_W}, 12")
    A(f"s_lshl_b32 s{T+13}, s{S_HQ}, 9")
    A(f"s_add_u32 s{T+6}, s{T+6}, s{T+13}")
    A(f"s_add_u32 s{T+6}, s{T+6}, 65536")
    A(f"s_sub_u32 s{T+13}, s{T+6}, s{T+8}")
    A(f"v_add_u32 v{VC3}, s{T+13}, v{V_LX}")
    A(f"v_bfe_u32 v{VS3}, v{V_LX}, 6, 2")
    A(f"v_lshrrev_b32 v{VD3}, 9, v{V_LX}")
    A(f"v_lshl_add_u32 v{VS3}, v{VS3}, 1, v{VD3}")
    A(f"v_bfe_u32 v{VD3}, v{V_LX}, 4, 2")
    A(f"v_bfe_u32 v{VF2}, v{V_LX}, 8, 1")
    A(f"v_lshl_add_u32 v{VD3}, v{VD3}, 1, v{VF2}")
    A(f"v_lshlrev_b32 v{VD3}, 4, v{VD3}")
    A(f"v_lshl_add_u32 v{VS3}, v{VS3}, 9, v{VD3}")
    A(f"s_and_b32 s{T+12}, s{T+5}, 15")
    A(f"s_mul_i32 s{T+12}, s{T+12}, {4*40960}")
    A(f"s_lshr_b32 s{T+13}, s{T+5}, 4")
    A(f"s_mul_i32 s{T+13}, s{T+13}, 1280")
    A(f"s_add_u32 s{T+12}, s{T+12}, s{T+13}")
    A(f"s_and_b32 s{T+13}, s{S_HQ}, 1")
    A(f"s_lshl_b32 s{T+13}, s{T+13}, 7")
    A(f"s_add_u32 s{T+12}, s{T+12}, s{T+13}")
    A(f"s_mul_i32 s{T+13}, s{T+9}, 40960")
    A(f"s_add_u32 s{T+14}, s{T+12}, s{T+13}")
    A(f"s_lshl_b32 s{T+13}, s{S_W}, 8")
    A(f"s_add_u32 s{T+14}, s{T+14}, s{T+13}")
    A(f"s_lshl_b32 s{T+13}, s{S_W}, 2")
    A(f"s_add_u32 s{T+13}, s{T+13}, s{T+9}")
    A(f"s_mul_i32 s{T+13}, s{T+13}, 10240")
    A(f"s_add_u32 s{T+15}, s{T+12}, s{T+13}")
    A(f"s_add_u32 s{T+15}, s{T+15}, 1024")
    A(f"s_mov_b32 s{T+18}, 0x3f80")
    A(f"s_mov_b32 s{T+19}, 0x3f800000")
    A(f"s_mov_b32 s{T+20}, 0xffff0000")
    A(f"v_bfe_u32 v{VO2}, v{V_LX}, 4, 4")
    A(f"v_bfe_u32 v{VF2}, v{V_LX}, 8, 1")
    A(f"v_mul_u32_u24 v{VO2}, 2560, v{VO2}")
    A(f"v_lshl_add_u32 v{VO2}, v{VF2}, 6, v{VO2}")
    A(f"v_lshrrev_b32 v{VF2}, 9, v{V_LX}")
    A(f"v_lshl_add_u32 v{VO2}, v{VF2}, 4, v{VO2}")
    if o.full:
        A(f"v_bfe_u32 v{VF2}, v{V_LX}, 7, 1")
        A(f"v_mul_u32_u24 v{VF2}, {8*2560-32}, v{VF2}")
        A(f"v_sub_u32 v{VO2}, v{VO2}, v{VF2}")
    A(f"v_bfe_u32 v{VD3}, v{V_LX}, 5, 2")
    A(f"v_bfe_u32 v{VF2}, v{V_LX}, 4, 1")
    A(f"v_mul_u32_u24 v{VD3}, 2560, v{VD3}")
    A(f"v_lshl_add_u32 v{VD3}, v{VF2}, 6, v{VD3}")
    A(f"v_lshrrev_b32 v{VF2}, 7, v{V_LX}")
    A(f"v_lshl_add_u32 v{VD3}, v{VF2}, 4, v{VD3}")
    A(f"v_lshrrev_b32 v{VF2}, 2, v{V_LX}")
    A(f"s_lshl_b32 s{T+22}, s{T+5}, 9")
    A(f"s_lshl_b32 s{T+13}, s{S_W}, 7")
    A(f"s_add_u32 s{T+22}, s{T+22}, s{T+13}")
    A(f"s_add_u32 s{T+22}, s{T+22}, {WS_FLAG}")
    A(f"s_lshl_b32 s{T+13}, s{S_HQ}, 2")
    A(f"s_add_u32 s{T+21}, s{T+22}, s{T+13}")
    A(f"s_lshl_b32 s{T+13}, 1, s{S_HQ}")
    A(f"s_andn2_b32 s{T+28}, 0xff, s{T+13}")
    A(f"s_mov_b32 s{T+29}, 0")
    A(f"s_mov_b32 s{T+16}, -1")
    A(f"s_mov_b32 s{T+17}, 0")
    A(f"s_mov_b32 s{T+23}, {1<<20}")
    A(f"v_mov_b32 v{VP2}, 1")
    A(f"v_mov_b32 v{VQ2}, 2")


def tail3(g):
    o = g.o
    A = g.A
    T = S_KS
    WS = f"s[{S_WS}:{S_WS+3}]"
    PM = f"s[{T+28}:{T+29}]"
    HALF = f"s[{T+16}:{T+17}]"
    SM, SC, ST = PERM, ACC + 48, ACC + 64
    poll = f"buffer_load_dword v{VP2}, v{VF2}, {WS}, s{T+22} offen sc1"
    g.stamp(7)
    A("s_mov_b64 exec, 1")
    g.lab("L_clr")
    A(f"v_readfirstlane_b32 s{T+24}, v{V_B}")
    A(f"s_sub_u32 s{T+23}, s{T+23}, 1")
    A("s_cbranch_scc1 L_poll0")
    A(f"s_cmp_ge_u32 s{T+24}, 8")
    A("s_cbranch_scc1 L_poll0")
    A(f"buffer_load_dword v{V_B}, off, s[{S_DBG}:{S_DBG+3}], s{S_KS+4} sc1")
    A("s_waitcnt vmcnt(0)")
    A("s_branch L_clr")
    g.lab("L_poll0")
    A(f"s_max_i32 s{T+23}, s{T+23}, 0")
    A(f"s_mov_b64 exec, {PM}")
    A(poll)
    A("s_waitcnt vmcnt(1)")
    g.stamp(56)
    A("s_mov_b64 exec, 1")
    A(f"buffer_store_dword v{VQ2}, off, {WS}, s{T+21} sc1")
    A(f"s_mov_b64 exec, {PM}")
    A("s_waitcnt vmcnt(1)")
    g.stamp(61)

    def wait(val, lab):
        g.lab(lab)
        A(f"v_cmp_gt_u32 s[{T+24}:{T+25}], {val}, v{VP2}")
        A(f"s_sub_u32 s{T+23}, s{T+23}, 1")
        A(f"s_cbranch_scc1 {lab}e")
        A("s_nop 2")
        A(f"s_cmp_eq_u32 s{T+24}, 0")
        A(f"s_cbranch_scc1 {lab}e")
        A(poll)
        A("s_waitcnt vmcnt(0)")
        A(f"s_branch {lab}")
        g.lab(lab + "e")
        A(f"s_max_i32 s{T+23}, s{T+23}, 0")

    def summ(dst, src):
        for t in range(4):
            A(f"v_dot2c_f32_bf16 v{dst+2*t}, s{T+18}, v{src+t}")
            A(f"v_dot2c_f32_bf16 v{dst+2*t+1}, s{T+19}, v{src+t}")

    def main_sum(younger):
        for k in range(7):
            for b in range(2):
                A(f"s_waitcnt vmcnt({13-2*k-b+younger})")
                summ(SM + b * 8, RING + k * 12 + b * 4)

    def c4_loads():
        A(f"s_mov_b64 exec, {HALF}")
        for k in range(8):
            A(f"buffer_load_dwordx4 {vr(RING+k*12+8)}, v{VC3}, {WS}, s{S_XC+k} offen sc1")
        A("s_mov_b64 exec, -1")

    def rest():
        A("s_nop 1")
        if o.full:
            for b in range(2):
                for t in range(4):
                    A(f"v_cvt_pk_bf16_f32 v{ST+b*4+t}, v{SM+b*8+2*t}, v{SM+b*8+2*t+1}")
            for t in range(4):
                A(f"v_mov_b32 v{ST+12+t}, v{ST+t}")
            A(f"s_add_u32 s{T+13}, s{T+14}, {8*2560}")
            for t in range(4):
                A(f"v_mov_b32_dpp v{ST+t}, v{ST+4+t} row_ror:8 row_mask:0xf bank_mask:0xc")
            for t in range(4):
                A(f"v_mov_b32_dpp v{ST+4+t}, v{ST+12+t} row_ror:8 row_mask:0xf bank_mask:0x3")
            A(f"buffer_store_dwordx4 {vr(ST)}, v{VO2}, s[{S_OUT}:{S_OUT+3}], s{T+14} offen {o.pout}")
            A(f"buffer_store_dwordx4 {vr(ST+4)}, v{VO2}, s[{S_OUT}:{S_OUT+3}], s{T+13} offen {o.pout}")
        for b in range(2 if not o.full else 0):
            for t in range(4):
                A(f"v_cvt_pk_bf16_f32 v{ST+b*4+t}, v{SM+b*8+2*t}, v{SM+b*8+2*t+1}")
            A(f"buffer_store_dwordx4 {vr(ST+b*4)}, v{VO2}, s[{S_OUT}:{S_OUT+3}], s{T+14} offen offset:{32*b} {o.pout}")
        for k in range(8):
            A(f"s_waitcnt vmcnt({7-k+2})")
            if k == 0:
                for t in range(4):
                    A(f"v_lshlrev_b32 v{SC+2*t}, 16, v{RING+8+t}")
                    A(f"v_and_b32 v{SC+2*t+1}, s{T+20}, v{RING+8+t}")
            else:
                summ(SC, RING + k * 12 + 8)
        g.stamp(58)
        A("s_nop 1")
        for t in range(4):
            A(f"v_cvt_pk_bf16_f32 v{ST+8+t}, v{SC+2*t}, v{SC+2*t+1}")
        A(f"s_mov_b64 exec, {HALF}")
        A(f"buffer_store_dwordx4 {vr(ST+8)}, v{VD3}, s[{S_OUT}:{S_OUT+3}], s{T+15} offen {o.pout}")
        if o.diag:
            A("s_mov_b64 exec, -1")

    wait(1 if o.ph == 2 else 2, "L_p1")
    if o.ph == 2:
        A(f"v_cmp_gt_u32 s[{T+24}:{T+25}], 2, v{VP2}")
    A("s_mov_b64 exec, -1")
    g.stamp(57)
    for k in range(7):
        for b in range(2):
            A(f"buffer_load_dwordx4 {vr(RING+k*12+b*4)}, v{V_LX}, {WS}, s{S_XC+1+k} offen offset:{b*1024} sc1")
    if o.ph == 2:
        A(f"s_cmp_eq_u32 s{T+24}, 0")
        A("s_cbranch_scc1 L_fast")
        A(f"s_mov_b64 exec, {PM}")
        A(poll)
        A("s_mov_b64 exec, -1")
        main_sum(1)
        A("s_waitcnt vmcnt(0)")
        A(f"s_mov_b64 exec, {PM}")
        wait(2, "L_p2")
        c4_loads()
        rest()
        A("s_branch L_summed" if o.diag else "s_endpgm")
        g.lab("L_fast")
    c4_loads()
    main_sum(8)
    rest()
    g.lab("L_summed")


def tail4_poll(g):
    A = g.A
    T = S_KS
    A("s_mov_b64 exec, 1")
    g.lab("L_clr")
    A(f"v_readfirstlane_b32 s{T+24}, v{V_B}")
    A(f"s_sub_u32 s{T+23}, s{T+23}, 1")
    A("s_cbranch_scc1 L_poll0")
    A(f"s_cmp_ge_u32 s{T+24}, 8")
    A("s_cbranch_scc1 L_poll0")
    A(f"buffer_load_dword v{V_B}, off, s[{S_DBG}:{S_DBG+3}], s{S_KS+4} sc1")
    A("s_waitcnt vmcnt(0)")
    A("s_branch L_clr")
    g.lab("L_poll0")
    A(f"s_max_i32 s{T+23}, s{T+23}, 0")
    A(f"s_mov_b64 exec, s[{T+28}:{T+29}]")
    A(f"buffer_load_dword v15, v{VF2}, s[{S_WS}:{S_WS+3}], s{T+22} offen sc1")
    A("s_mov_b64 exec, -1")


def tail4(g):
    o = g.o
    A = g.A
    T = S_KS
    WS = f"s[{S_WS}:{S_WS+3}]"
    PM = f"s[{T+28}:{T+29}]"
    HALF = f"s[{T+16}:{T+17}]"
    SM, SC, ST, VP, VM = PERM, ACC + 48, ACC + 64, 15, ACC + 80
    PEND, OK2 = T + 11, T + 10
    poll = f"buffer_load_dword v{VP}, v{VF2}, {WS}, s{T+22} offen sc1"
    g.stamp(7)
    A(f"s_mov_b64 exec, {PM}")
    A("s_waitcnt vmcnt(4)")
    g.stamp(61)
    g.lab("L_p1")
    A(f"v_cmp_gt_u32 s[{T+24}:{T+25}], 1, v{VP}")
    A(f"s_sub_u32 s{T+23}, s{T+23}, 1")
    A("s_cbranch_scc1 L_p1e")
    A("s_nop 2")
    A(f"s_cmp_eq_u32 s{T+24}, 0")
    A("s_cbranch_scc1 L_p1e")
    A(poll)
    A("s_waitcnt vmcnt(0)")
    A("s_branch L_p1")
    g.lab("L_p1e")
    A(f"s_max_i32 s{T+23}, s{T+23}, 0")
    A("s_mov_b64 exec, -1")
    g.stamp(57)
    for k in range(7):
        for b in range(2):
            A(f"buffer_load_dwordx4 {vr(RING+k*12+b*4)}, v{V_LX}, {WS}, s{S_XC+1+k} offen offset:{b*1024} sc1")
    A(f"s_mov_b64 exec, {HALF}")
    order = [1, 2, 3, 4, 5, 6, 7, 0]
    for k in order:
        A(f"buffer_load_dwordx4 {vr(RING+k*12+8)}, v{VC3}, {WS}, s{S_XC+k} offen sc1")
    A("s_mov_b64 exec, -1")

    def summ(dst, src):
        for t in range(4):
            A(f"v_dot2c_f32_bf16 v{dst+2*t}, s{T+18}, v{src+t}")
            A(f"v_dot2c_f32_bf16 v{dst+2*t+1}, s{T+19}, v{src+t}")

    for k in range(7):
        for b in range(2):
            A(f"s_waitcnt vmcnt({13-2*k-b+8+(1 if (k, b) > (0, 0) else 0)})")
            if (k, b) == (0, 0):
                g.stamp(56)
                A("s_mov_b64 exec, 1")
                A(f"buffer_store_dword v{VQ2}, off, {WS}, s{T+21} sc1")
                A("s_mov_b64 exec, -1")
            summ(SM + b * 8, RING + k * 12 + b * 4)
    A("s_nop 1")
    assert o.full
    for b in range(2):
        for t in range(4):
            A(f"v_cvt_pk_bf16_f32 v{ST+b*4+t}, v{SM+b*8+2*t}, v{SM+b*8+2*t+1}")
    for t in range(4):
        A(f"v_mov_b32 v{ST+12+t}, v{ST+t}")
    A(f"s_add_u32 s{T+13}, s{T+14}, {8*2560}")
    for t in range(4):
        A(f"v_mov_b32_dpp v{ST+t}, v{ST+4+t} row_ror:8 row_mask:0xf bank_mask:0xc")
    for t in range(4):
        A(f"v_mov_b32_dpp v{ST+4+t}, v{ST+12+t} row_ror:8 row_mask:0xf bank_mask:0x3")
    A(f"buffer_store_dwordx4 {vr(ST)}, v{VO2}, s[{S_OUT}:{S_OUT+3}], s{T+14} offen {o.pout}")
    A(f"buffer_store_dwordx4 {vr(ST+4)}, v{VO2}, s[{S_OUT}:{S_OUT+3}], s{T+13} offen {o.pout}")
    A(f"s_mov_b64 exec, {HALF}")
    A(f"s_mov_b32 s{OK2}, 1")
    A("s_waitcnt vmcnt(3)")
    g.lab("L_chk")
    for k in range(8):
        x = RING + k * 12 + 8
        A(f"v_max3_u32 v{VM+k}, v{x}, v{x+1}, v{x+2}")
    for k in range(8):
        A(f"v_max_u32 v{VM+k}, v{VM+k}, v{RING+k*12+11}")
    for k in range(8):
        A(f"v_cmp_eq_u32 s[{S_XC+8+2*(k%4)}:{S_XC+9+2*(k%4)}], -1, v{VM+k}")
        if k % 4 == 3:
            if k == 3:
                A(f"s_mov_b32 s{PEND}, 0")
            A("s_nop 3")
            for kk in range(k - 3, k + 1):
                A(f"s_cmp_lg_u32 s{S_XC+8+2*(kk%4)}, 0")
                A(f"s_cselect_b32 s{T+13}, {1 << kk}, 0")
                A(f"s_or_b32 s{PEND}, s{PEND}, s{T+13}")
    A("s_cbranch_scc0 L_chke")
    A(f"s_cmp_eq_u32 s{OK2}, 0")
    A("s_cbranch_scc1 L_chke")
    A(f"s_sub_u32 s{T+23}, s{T+23}, 1")
    A("s_cbranch_scc1 L_chke")
    A("s_mov_b64 exec, 0xff")
    A(f"v_cmp_gt_u32 s[{T+24}:{T+25}], 2, v8")
    A(f"buffer_load_dword v8, v{VF2}, {WS}, s{T+22} offen sc1")
    A(f"s_mov_b64 exec, {HALF}")
    for k in range(8):
        A(f"s_bitcmp0_b32 s{PEND}, {k}")
        A(f"s_cbranch_scc1 L_nr{k}")
        A(f"buffer_load_dwordx4 {vr(RING+k*12+8)}, v{VC3}, {WS}, s{S_XC+k} offen sc1")
        g.lab(f"L_nr{k}")
    A(f"s_mov_b32 s{OK2}, s{T+24}")
    A("s_waitcnt vmcnt(0)")
    A("s_branch L_chk")
    g.lab("L_chke")
    for t in range(4):
        A(f"v_lshlrev_b32 v{SC+2*t}, 16, v{RING+8+t}")
        A(f"v_and_b32 v{SC+2*t+1}, s{T+20}, v{RING+8+t}")
    for k in range(1, 8):
        summ(SC, RING + k * 12 + 8)
    g.stamp(58)
    A("s_nop 1")
    for t in range(4):
        A(f"v_cvt_pk_bf16_f32 v{ST+8+t}, v{SC+2*t}, v{SC+2*t+1}")
    A(f"buffer_store_dwordx4 {vr(ST+8)}, v{VD3}, s[{S_OUT}:{S_OUT+3}], s{T+15} offen {o.pout}")
    if o.diag:
        A("s_mov_b64 exec, -1")


def stage_c_dp(g, step, fq, emit):
    o = g.o
    A = g.A
    T = S_KS
    WS = f"s[{S_WS}:{S_WS+3}]"

    def q(gap, ins, kind):
        fq.append((gap, ins, kind))

    def dsop(x, tag):
        return lambda: g.ds(x, tag)

    def waitall():
        for k in range(len(g.vq)):
            g.vq[k] = []
        return "s_waitcnt vmcnt(0)"

    def store(reg, soff, r):
        return ("vm", f"buffer_store_dwordx4 {vr(reg)}, v{V_LX}, {WS}, s{soff} offen offset:{r*1024} {o.pst}", "st")

    def pkadd(d, a):
        return f"v_pk_add_f32 v[{d}:{d+1}], v[{d}:{d+1}], v[{a}:{a+1}]"

    def cvts(dst, acc, r):
        return [f"v_cvt_pk_bf16_f32 v{dst+t}, v{acc+(2*t)*4+r}, v{acc+(2*t+1)*4+r}" for t in range(4)]
    A(f"s_lshl_b32 s{T}, s{S_W}, 13")
    A(f"s_add_u32 s{T}, s{T}, s{S_ST}")
    A(f"s_add_u32 s{T+1}, s{T}, 4096")
    A(f"s_add_u32 s{T+2}, s{T}, 32768")
    A(f"s_add_u32 s{T+3}, s{T}, {32768+4096}")
    A(f"s_lshl_b32 s{T+5}, s{S_W}, 12")
    A(f"s_add_u32 s{T+5}, s{T+5}, s{S_ST}")
    A(f"s_add_u32 s{T+5}, s{T+5}, 65536")
    A(f"s_lshr_b32 s{T+4}, s2, 3")
    A(f"s_lshl_b32 s{T+4}, s{T+4}, 2")
    A(f"s_add_u32 s{T+4}, s{T+4}, 128")
    A(f"s_xor_b32 s{T+6}, s{S_W}, 1")
    A(f"s_lshl_b32 s{T+6}, s{T+6}, 14")
    A(f"s_add_u32 s{T+6}, s{T+6}, {LDS_R}")
    A(f"s_lshl_b32 s{T+7}, s{S_W}, 14")
    A(f"s_add_u32 s{T+7}, s{T+7}, {LDS_R}")
    U = S_XC
    pre = []
    P = pre.append
    P(f"s_lshr_b32 s{U}, s2, 3")
    P(f"s_and_b32 s{U+1}, s2, 7")
    P(f"s_mul_i32 s{U+2}, s{U}, {8*(81920+o.pad)}")
    P(f"s_lshl_b32 s{U+3}, s{U+1}, 2")
    P(f"s_add_u32 s{U+3}, s{U+3}, s{S_W}")
    P(f"s_lshl_b32 s{U+4}, s{U+1}, 1")
    P(f"s_lshr_b32 s{U+5}, s{S_W}, 1")
    P(f"s_add_u32 s{U+4}, s{U+4}, s{U+5}")
    P(f"s_add_u32 s{U+4}, s{U+4}, 64")
    P(f"s_lshl_b32 s{U+5}, s{U+3}, 10")
    P(f"s_add_u32 s{U+5}, s{U+5}, s{U+2}")
    P(f"s_lshl_b32 s{U+6}, s{U+4}, 10")
    P(f"s_add_u32 s{U+6}, s{U+6}, s{U+2}")
    P(f"s_add_u32 s{U+7}, s{U+5}, 32768")
    P(f"s_and_b32 s{U+8}, s{U}, 15")
    P(f"s_mul_i32 s{U+8}, s{U+8}, {4*40960}")
    P(f"s_lshr_b32 s{U+9}, s{U}, 4")
    P(f"s_mul_i32 s{U+9}, s{U+9}, 1280")
    P(f"s_add_u32 s{U+8}, s{U+8}, s{U+9}")
    for blk, dst in ((U+3, U+10), (U+4, U+11)):
        P(f"s_bfe_u32 s{U+9}, s{blk}, 0x20002")
        P(f"s_mul_i32 s{U+9}, s{U+9}, 40960")
        P(f"s_add_u32 s{dst}, s{U+8}, s{U+9}")
        P(f"s_lshr_b32 s{U+9}, s{blk}, 4")
        P(f"s_lshl_b32 s{U+9}, s{U+9}, 8")
        P(f"s_add_u32 s{dst}, s{dst}, s{U+9}")
        P(f"s_and_b32 s{U+9}, s{blk}, 3")
        P(f"s_lshl_b32 s{U+9}, s{U+9}, 4")
        P(f"s_add_u32 s{dst}, s{dst}, s{U+9}")
    P(f"s_bitcmp1_b32 s{S_W}, 0\n    s_cselect_b32 s{U+12}, 0, -1\n    s_cselect_b32 s{U+13}, -1, 0")
    P(f"s_mov_b32 s{U+14}, 0x3f80")
    P(f"s_mov_b32 s{U+15}, 0x3f800000")
    P(f"s_mov_b32 s{U+16}, 0xffff0000")
    P(f"s_lshl_b32 s{U+17}, s{U}, 10")
    P(f"s_add_u32 s{U+17}, s{U+17}, {WS_FLAG}")
    P(f"s_mov_b32 s{U+18}, {1<<20}")
    for x in pre:
        A(x)
    pre = []
    for s in range(20, 23):
        step(s, s == 20, False, {})
    step(23, False, False, {0: ["s_barrier"]})
    g.stamp(5)
    G0 = 24 * 32 + 2
    C4 = (96, 0, 32)
    for j in range(8):
        for x in range(3):
            q(G0 + (j * 3 + x) * o.wpace, dsop(f"ds_write_b128 v{6+x}, {ar(C4[x]+j*4)} offset:{j*1024}", "cw"), "o")
    q(G0, lambda: g.waitds("cw"), "o")
    q(G0, "s_barrier", "o")
    rd = [(x, j) for x in range(3) for j in range(8)]

    def c4read(k):
        x, j = rd[k]
        q(G0, dsop(f"ds_read_b128 {vr(160+j*4)}, v9 offset:{x*8192+j*1024}", f"cr{k//4}"), "o")
    for k in range(8):
        c4read(k)
    for grp in range(6):
        q(G0, lambda grp=grp: g.waitds(f"cr{grp}"), "o")
        for k in range(grp * 4, grp * 4 + 4):
            j = rd[k][1]
            q(G0, pkadd(128 + j * 4, 160 + j * 4), "v")
            q(G0, pkadd(128 + j * 4 + 2, 160 + j * 4 + 2), "v")
        for k in range(grp * 4 + 8, min(grp * 4 + 12, 24)):
            c4read(k)
    q(G0, "s_barrier", "o")
    q(G0, f"v_add_u32 v6, s{T+6}, v{V_LX}", "v")
    q(G0, f"v_add_u32 v7, s{T+7}, v{V_LX}", "v")
    for r in range(4):
        for x in cvts(160 + r * 4, 128, r):
            q(G0, x, "v")
        q(G0, store(160 + r * 4, T + 5, r), "o")
    G1 = 32 * 32 + 2
    for j in range(8):
        for x in range(2):
            q(G1 + (j * 2 + x) * o.wpace, dsop(f"ds_write_b128 v6, {ar(128+x*32+j*4)} offset:{x*8192+j*1024}", "pw"), "o")
    q(G1, lambda: g.waitds("pw"), "o")
    q(G1, "s_barrier", "o")
    for x in range(2):
        for j in range(8):
            q(G1, dsop(f"ds_read_b128 {vr(128+x*32+j*4)}, v7 offset:{x*8192+j*1024}", f"pr{x}"), "o")
    for x in range(2):
        q(G1, lambda x=x: g.waitds(f"pr{x}"), "o")
        for n in range(16):
            q(G1, pkadd(192 + x * 32 + n * 2, 128 + x * 32 + n * 2), "v")
        for r in range(4):
            for c in cvts(128 + x * 32 + r * 4, 192 + x * 32, r):
                q(G1, c, "v")
            q(G1, store(128 + x * 32 + r * 4, T + x, r), "o")
    for s in range(24, 39):
        ex = {}
        if s == 36:
            ex[31] = [("vm", f"buffer_load_dword v5, off, s[{S_DBG}:{S_DBG+3}], s{T+4} sc1", "clr")]
        step(s, s in (24, 32), False, ex)
        if s == 31:
            g.stamp(6)
        g.left = getattr(g, "left", []) + [len(fq)]
    assert not fq, g.left
    VO, VF, VP, VC = 2, 3, 4, 5
    prev = [f"v_bfe_u32 v{VO}, v{V_LX}, 4, 4", f"v_lshrrev_b32 v{VF}, 8, v{V_LX}", f"v_mul_u32_u24 v{VO}, 2560, v{VO}",
            f"v_lshl_add_u32 v{VO}, v{VF}, 6, v{VO}", f"v_lshlrev_b32 v{VF}, 3, v{V_LX}"]
    FL = T + 8

    def flag(val, lab):
        return "\n    ".join([f"s_cmp_lg_u32 s{S_W}, 0", f"s_cbranch_scc1 {lab}", f"v_mov_b32 v{V_TMP}, {val}", "s_mov_b64 exec, 1",
                               f"buffer_store_dword v{V_TMP}, off, {WS}, s{FL} sc1", "s_mov_b64 exec, -1"]) + f"\n{lab}:"
    ex = {0: [f"s_lshl_b32 s{FL}, s2, 7"], 1: [f"s_add_u32 s{FL}, s{FL}, {WS_FLAG}", waitall], 3: ["s_barrier"], 5: [flag(1, "L_f1")]}
    acr = [f"v_accvgpr_read_b32 v{192+x*32+j*4+r}, a{x*32+j*4+r}" for j in range(8) for x in range(2) for r in range(4)]
    wr = [dsop(f"ds_write_b128 v6, {ar(192+x*32+j*4)} offset:{x*8192+j*1024}", "qw") for j in range(8) for x in range(2)]
    nw = na = 0
    for n in range(6, 32):
        ex.setdefault(n, [])
        if nw < 16 and n >= (nw // 2) * 4 + 7 and n % 4 in (3, 0):
            ex[n].append(wr[nw])
            nw += 1
        elif pre:
            ex[n].append(pre.pop(0))
        for _ in range(2 if (n % 2 or n >= 24) else 0):
            if prev:
                ex[n].append(prev.pop(0))
            elif na < 64 and n >= (na // 8) * 4 + 7:
                ex[n].append(acr[na])
                na += 1
    step(39, False, True, ex)
    g.stamp(7)
    for x in pre:
        A(x)
    if o.early:
        A("s_mov_b64 exec, 0xff")
        A(g.vm(f"buffer_load_dword v{VP}, v{VF}, {WS}, s{U+17} offen sc1", "poll"))
        A("s_mov_b64 exec, -1")
    cut = 48
    for x in acr[na:cut]:
        A(x)
    if o.verbose:
        print("left", g.left, "na", na, "nw", nw, "pre", len(pre), file=sys.stderr)
    A("s_nop 7")
    A("s_nop 3")
    for x in wr[nw:]:
        emit(x)
    for x in acr[max(na, cut):]:
        A(x)
    A(g.waitds("qw"))
    A("s_barrier")
    for x in range(2):
        for j in range(8):
            A(g.ds(f"ds_read_b128 {vr(128+x*32+j*4)}, v7 offset:{x*8192+j*1024}", f"qr{x*2+j//4}"))
    for x in range(2):
        for hj in range(2):
            A(g.waitds(f"qr{x*2+hj}"))
            for n in range(8):
                A(pkadd(192 + x * 32 + hj * 16 + n * 2, 128 + x * 32 + hj * 16 + n * 2))
        for r in range(4):
            for c in cvts(128 + x * 32 + r * 4, 192 + x * 32, r):
                A(c)
            emit(store(128 + x * 32 + r * 4, T + 2 + x, r))
    g.stamp(59)
    R, SUM = RING, 192

    def loads(early):
        for h in range(8):
            if early:
                A(f"buffer_load_dwordx4 {vr(R+h*8)}, v{V_LX}, {WS}, s{U+5} offen sc1")
                A(f"s_mov_b64 exec, s[{U+12}:{U+13}]")
                A(f"buffer_load_dwordx4 {vr(R+h*8+4)}, v{V_LX}, {WS}, s{U+6} offen sc1")
                A("s_mov_b64 exec, -1")
                if h < 7:
                    A(f"s_add_u32 s{U+5}, s{U+5}, {81920+o.pad}")
                    A(f"s_add_u32 s{U+6}, s{U+6}, {81920+o.pad}")
            else:
                A(f"buffer_load_dwordx4 {vr(R+64+h*4)}, v{V_LX}, {WS}, s{U+7} offen sc1")
                if h < 7:
                    A(f"s_add_u32 s{U+7}, s{U+7}, {81920+o.pad}")

    def sums(early, younger):
        nb = 2 if early else 1
        for h in range(8):
            for b in range(nb):
                A(f"s_waitcnt vmcnt({(8-h)*nb-b-1+younger})")
                for t in range(4):
                    src = (R + h * 8 + b * 4 + t) if early else (R + 64 + h * 4 + t)
                    d = SUM + (b if early else 2) * 8 + 2 * t
                    if h == 0:
                        A(f"v_lshlrev_b32 v{d}, 16, v{src}")
                        A(f"v_and_b32 v{d+1}, s{U+16}, v{src}")
                    else:
                        A(f"v_dot2c_f32_bf16 v{d}, s{U+14}, v{src}")
                        A(f"v_dot2c_f32_bf16 v{d+1}, s{U+15}, v{src}")
        A("s_nop 1")
        for b in ((0, 1) if early else (2,)):
            for t in range(4):
                A(f"v_cvt_pk_bf16_f32 v{SUM+24+b*4+t}, v{SUM+b*8+2*t}, v{SUM+b*8+2*t+1}")
            if b == 1:
                A(f"s_mov_b64 exec, s[{U+12}:{U+13}]")
            A(f"buffer_store_dwordx4 {vr(SUM+24+b*4)}, v{VO}, s[{S_OUT}:{S_OUT+3}], s{U+10+b%2} offen offset:{512*(b//2)} {o.pout}")
            if b == 1:
                A("s_mov_b64 exec, -1")
    E = U + 19

    def poll(lab, cmp_, val):
        A("s_mov_b64 exec, 1")
        g.lab(f"{lab}_clr")
        A(f"v_readfirstlane_b32 s{T+10}, v{VC}")
        A(f"s_sub_u32 s{U+18}, s{U+18}, 1")
        A(f"s_cbranch_scc1 {lab}_out")
        A(f"s_cmp_ge_u32 s{T+10}, 8")
        A(f"s_cbranch_scc1 {lab}_go")
        A(f"buffer_load_dword v{VC}, off, s[{S_DBG}:{S_DBG+3}], s{T+4} sc1")
        A("s_waitcnt vmcnt(0)")
        A(f"s_branch {lab}_clr")
        g.lab(f"{lab}_go")
        A("s_mov_b64 exec, 0xff")
        g.lab(f"{lab}_loop")
        A(f"buffer_load_dword v{VP}, v{VF}, {WS}, s{U+17} offen sc1")
        A("s_waitcnt vmcnt(0)")
        A(f"s_sub_u32 s{U+18}, s{U+18}, 1")
        A(f"s_cbranch_scc1 {lab}_out")
        A(f"v_cmp_{cmp_}_u32 s[{T+12}:{T+13}], {val}, v{VP}")
        A("s_nop 3")
        A(f"s_cmp_lg_u32 s{T+12}, 0")
        A(f"s_cbranch_scc1 {lab}_loop")
        g.lab(f"{lab}_out")
        A("s_mov_b64 exec, -1")
    if o.diag:
        A(f"s_mov_b32 s{E}, 0")
    if o.early:
        A(g.waitvm("poll"))
        A(f"v_readfirstlane_b32 s{T+10}, v{VC}")
        A("s_mov_b64 exec, 0xff")
        A(f"v_cmp_eq_u32 s[{T+12}:{T+13}], 0, v{VP}")
        A("s_mov_b64 exec, -1")
        A(f"s_cmp_lt_u32 s{T+10}, 8")
        A("s_cbranch_scc1 L_late")
        A(f"s_cmp_lg_u32 s{T+12}, 0")
        A("s_cbranch_scc1 L_late")
        if o.diag:
            A(f"s_mov_b32 s{E}, 1")
        loads(True)
        A("s_waitcnt vmcnt(16)")
        A("s_barrier")
        A(flag(2, "L_f2a"))
        g.stamp(56)
        A(f"s_cmp_lg_u32 s{S_W}, 0")
        A("s_cbranch_scc1 L_s0")
        sums(True, 1)
        A("s_branch L_wait")
    g.lab("L_late")
    A(waitall())
    A("s_barrier")
    A(flag(2, "L_f2b"))
    g.stamp(56)
    poll("L_p1", "eq", 0)
    loads(True)
    g.lab("L_s0")
    sums(True, 0)
    A(f"s_cmp_lg_u32 s{S_W}, 0")
    A("s_cbranch_scc1 L_polled")
    g.lab("L_wait")
    poll("L_p2", "ne", 2)
    g.lab("L_polled")
    A("s_barrier")
    g.stamp(57)
    loads(False)
    sums(False, 0)
    g.stamp(58)
    if o.diag:
        A(f"v_writelane_b32 v{V_TID}, s{E}, 60")


def gen_reduce(g):
    o = g.o
    A = g.A
    K = "reduce_kernel"
    g.L.append(f".globl {K}\n.p2align 8\n.type {K},@function")
    g.lab(K)
    A("s_cmp_ge_u32 s2, 640")
    A("s_cbranch_scc1 L_red_end")
    if o.diag >= 2:
        A("s_memrealtime s[20:21]")
    A("s_load_dwordx2 s[4:5], s[0:1], 80")
    A("s_load_dwordx2 s[8:9], s[0:1], 96")
    A("v_lshrrev_b32 v1, 6, v0")
    A("v_and_b32 v0, 63, v0")
    A("v_readfirstlane_b32 s3, v1")
    A("s_lshl_b32 s12, s2, 2")
    A("s_mov_b32 s6, 2621440")
    A("s_mov_b32 s7, 0x20000")
    A("s_mov_b32 s10, 268435456")
    A("s_mov_b32 s11, 0x20000")
    A("s_add_u32 s12, s12, s3")
    A("s_mul_i32 s13, s12, 52429")
    A("s_lshr_b32 s13, s13, 22")
    A("s_mul_i32 s14, s13, 80")
    A("s_sub_u32 s14, s12, s14")
    A("s_mul_i32 s15, s13, 655360")
    A("s_lshl_b32 s16, s14, 10")
    A("s_add_u32 s15, s15, s16")
    A("v_lshlrev_b32 v1, 4, v0")
    A("s_waitcnt lgkmcnt(0)")
    for h in range(8):
        A(f"buffer_load_dwordx4 {vr(4+h*4)}, v1, s[8:11], s15 offen {o.pld}")
        if h < 7:
            A("s_add_u32 s15, s15, 81920")
    A("s_and_b32 s16, s13, 15")
    A("s_lshl_b32 s16, s16, 2")
    A("s_bfe_u32 s17, s14, 0x20002")
    A("s_add_u32 s16, s16, s17")
    A("s_mul_i32 s16, s16, 40960")
    A("s_lshr_b32 s17, s13, 4")
    A("s_mul_i32 s17, s17, 1280")
    A("s_add_u32 s16, s16, s17")
    A("s_lshr_b32 s17, s14, 4")
    A("s_lshl_b32 s17, s17, 8")
    A("s_add_u32 s16, s16, s17")
    A("s_and_b32 s17, s14, 3")
    A("s_lshl_b32 s17, s17, 4")
    A("s_add_u32 s16, s16, s17")
    A("v_and_b32 v2, 15, v0")
    A("v_lshrrev_b32 v3, 4, v0")
    A("v_mul_u32_u24 v2, 2560, v2")
    A("v_lshl_add_u32 v2, v3, 6, v2")
    A("s_mov_b32 s18, 0xffff0000")
    for h in range(8):
        A(f"s_waitcnt vmcnt({7-h})")
        for t in range(4):
            src = 4 + h * 4 + t
            if h == 0:
                A(f"v_lshlrev_b32 v{40+2*t}, 16, v{src}")
                A(f"v_and_b32 v{41+2*t}, s18, v{src}")
            else:
                A(f"v_lshlrev_b32 v{48+2*t}, 16, v{src}")
                A(f"v_and_b32 v{49+2*t}, s18, v{src}")
        if h:
            for n in range(8):
                A(f"v_add_f32 v{40+n}, v{40+n}, v{48+n}")
    for t in range(4):
        A(f"v_cvt_pk_bf16_f32 v{4+t}, v{40+2*t}, v{41+2*t}")
    A(f"buffer_store_dwordx4 {vr(4)}, v2, s[4:7], s16 offen")
    if o.diag == 2:
        A("s_waitcnt vmcnt(0)")
        A("s_memrealtime s[22:23]")
        A("s_load_dwordx2 s[24:25], s[0:1], 88")
        A("s_mov_b32 s26, 64")
        A("s_mov_b32 s27, 0x20000")
        A("s_waitcnt lgkmcnt(0)")
        A("v_mov_b32 v8, 0")
        A("s_not_b32 s21, s20")
        A("v_writelane_b32 v8, s20, 13")
        A("v_writelane_b32 v8, s21, 14")
        A("v_writelane_b32 v8, s22, 15")
        A("v_lshlrev_b32 v9, 2, v0")
        A("buffer_atomic_umax v8, v9, s[24:27], 0 offen sc1")
    if o.diag == 3:
        A("s_cmp_lg_u32 s12, 2000")
        A("s_cbranch_scc1 L_red_end")
        A("s_waitcnt vmcnt(0)")
        A("s_memrealtime s[22:23]")
        A("s_load_dwordx2 s[24:25], s[0:1], 88")
        A("s_mov_b32 s26, 64")
        A("s_mov_b32 s27, 0x20000")
        A("v_lshlrev_b32 v9, 2, v0")
        A(f"s_mov_b32 s15, {0x8000000 + o.sel*256}")
        A("buffer_load_dword v8, v9, s[8:11], s15 offen sc1")
        A("s_waitcnt vmcnt(0) lgkmcnt(0)")
        A("v_writelane_b32 v8, s20, 14")
        A("v_writelane_b32 v8, s22, 15")
        A("buffer_store_dword v8, v9, s[24:27], 0 offen")
    g.lab("L_red_end")
    A("s_endpgm")


def desc(name, vg, acc, sg):
    return f""".amdhsa_kernel {name}
  .amdhsa_next_free_vgpr {vg}
  .amdhsa_next_free_sgpr {sg}
  .amdhsa_accum_offset {acc}
  .amdhsa_group_segment_fixed_size 0
  .amdhsa_kernarg_size 104
  .amdhsa_user_sgpr_count 2
  .amdhsa_user_sgpr_kernarg_segment_ptr 1
  .amdhsa_system_sgpr_workgroup_id_x 1
.end_amdhsa_kernel"""


def build(o):
    g = Gen(o)
    head = [l.rstrip("\n") for l in open(f"cdna_kernels/{NAME}.s.ref") if l.startswith(";   offset") or l.startswith("; Kernarg")]
    if o.fuse:
        head.append(f"; @launch grid=(256,1,1) block=(256,1,1) lds={LDS_BYTES}")
    else:
        head.append(f"; @launch kernel={NAME}_kernel grid=(256,1,1) block=(256,1,1) lds={LDS_BYTES}")
        head.append(f"; @launch kernel=reduce_kernel grid=(640,1,1) block=(256,1,1) lds=0")
    for _ in range(o.noop):
        head.append(f"; @launch kernel=noop_kernel grid=(1,1,1) block=(64,1,1) lds=0")
    head.append('.amdgcn_target "amdgcn-amd-amdhsa--gfx950"')
    head.append(".text")
    gen_main(g)
    if not o.fuse:
        gen_reduce(g)
    g.lab("L_code_end")
    if o.noop:
        g.L.append(".globl noop_kernel\n.p2align 8\n.type noop_kernel,@function\nnoop_kernel:\n    s_endpgm")
    tail = ['.section .rodata,"a"', ".p2align 6", desc(f"{NAME}_kernel", 512, 256, 102)]
    if not o.fuse:
        tail += [".p2align 6", desc("reduce_kernel", 64, 64, 32)]
    if o.noop:
        tail += [".p2align 6", desc("noop_kernel", 64, 64, 32)]
    return "\n".join(head + g.L + tail) + "\n"


def opts(argv=None):
    p = argparse.ArgumentParser()
    p.add_argument("-o", default=f"cdna_kernels/{NAME}.s")
    p.add_argument("--diag", type=int, default=0)
    p.add_argument("--warm", type=int, default=1)
    p.add_argument("--noop", type=int, default=0)
    p.add_argument("--fuse", type=int, default=0)
    p.add_argument("--dp", type=int, default=0)
    p.add_argument("--verbose", type=int, default=0)
    p.add_argument("--cap", type=int, default=2)
    p.add_argument("--wpace", type=int, default=4)
    p.add_argument("--cape", type=int, default=1)
    p.add_argument("--capv", type=int, default=0)
    p.add_argument("--early", type=int, default=1)
    p.add_argument("--wopre", type=int, default=0)
    p.add_argument("--e39", type=int, default=0)
    p.add_argument("--fa", type=int, default=0)
    p.add_argument("--ph", type=int, default=2)
    p.add_argument("--vlate", type=int, default=0)
    p.add_argument("--vn", type=int, default=8)
    p.add_argument("--full", type=int, default=0)
    p.add_argument("--il", type=int, default=0)
    p.add_argument("--own", type=int, default=1)
    p.add_argument("--fl", type=int, default=0)
    p.add_argument("--dens", type=int, default=0)
    p.add_argument("--defer", type=int, default=0)
    p.add_argument("--xrot", type=int, default=1)
    p.add_argument("--alt", default="")
    p.add_argument("--altbit", type=int, default=0)
    p.add_argument("--pad", type=int, default=0)
    p.add_argument("--c4pre", type=int, default=0)
    p.add_argument("--exp", default="")
    p.add_argument("--steps", type=int, default=0)
    p.add_argument("--ng", type=int, default=1)
    p.add_argument("--kst", default="")
    p.add_argument("--vst", default="")
    p.add_argument("--order", default="xa,xb,w0,w1,w2")
    p.add_argument("--coop", type=int, default=0)
    p.add_argument("--nfirst", type=int, default=0)
    p.add_argument("--c4first", type=int, default=0)
    p.add_argument("--sel", type=int, default=401)
    p.add_argument("--rot", type=int, default=1)
    p.add_argument("--spread", type=int, default=3)
    p.add_argument("--kv0", type=int, default=0)
    p.add_argument("--kvper", type=int, default=1)
    for k, d in (("px", ""), ("pxb", ""), ("pw0", "nt"), ("pwq", ""), ("pwo", ""), ("pk", "nt"), ("pv", "nt"), ("pst", "sc1"), ("pld", ""), ("pout", "")):
        p.add_argument("--" + k, default=d)
    return p.parse_args(argv)


if __name__ == "__main__":
    o = opts()
    open(o.o, "w").write(build(o))
```

```python
import sys, argparse

NAME = "concat_heads__gqa_block_cached__mha_block_cached__near_ridge"

V_TID = 0
V_TMP = 1
V_W = 2
V_B = 10
V_LX = 11
V_KG = 12
V_VG = 13
V_WO0 = 14
V_WO1 = 15
PERM = 16
RING = 32
ACC = 128
A_V = 0
A_B = 64
A_K = 128
A_C4 = 128

S_X, S_K, S_V, S_WQ, S_WO, S_WS = 8, 12, 16, 20, 24, 28
S_W = 3
S_BP = 4
S_HQ = 5
S_T0, S_T1 = 6, 7
S_KS = 32
S_CW = 52
S_XC = 72
S_KV = 8
S_CL = 95
S_ST = 92
S_PLO, S_PHI = 93, 94
S_KLDS = 96
S_SC = 97
S_C4U = 98
S_GRP = 7
S_STMP = 99
S_TS = 100
S_G = 95

S_OUT, S_DBG = 12, 16
WS_FLAG = 0x2000000
LDS_O = 0
LDS_X = 65536
LDS_R = 65536
LDS_BYTES = 163840
GFUN = [0, 2, 3, 1]


class Gen:
    def __init__(self, o):
        self.o = o
        self.L = []
        self.ng = o.ng
        self.vq = [[] for _ in range(self.ng)]
        self.nlab = 0
        self.dq = []

    def A(self, s):
        if s:
            self.L.append("    " + s)

    def lab(self, s):
        self.L.append(s + ":")

    def vm(self, s, tag, grp=None):
        for k, q in enumerate(self.vq):
            if grp is None or grp == k:
                q.append(tag)
                assert len(q) <= 63, "vmcnt overflow"
        return s

    def waitvm(self, tag):
        ns = []
        for k, q in enumerate(self.vq):
            idx = max((i for i, t in enumerate(q) if t == tag), default=-1)
            ns.append(None if idx < 0 else len(q) - 1 - idx)
            self.vq[k] = q[idx + 1:]
        vals = sorted(set(n for n in ns if n is not None))
        if not vals:
            return None
        lo = vals[0]
        big = [k for k, n in enumerate(ns) if n is not None and n > lo]
        if len(big) != 1:
            return f"s_waitcnt vmcnt({lo})"
        self.nlab += 1
        return (f"s_cmp_eq_u32 s{S_GRP}, {big[0]}\n    s_cbranch_scc1 L_w{self.nlab}\n    s_waitcnt vmcnt({lo})\n"
                f"L_w{self.nlab}:\n    s_waitcnt vmcnt({ns[big[0]]})")

    def ds(self, s, tag):
        self.dq.append(tag)
        return s

    def waitds(self, tag):
        idx = max((i for i, t in enumerate(self.dq) if t == tag), default=-1)
        if idx < 0:
            return None
        n = len(self.dq) - 1 - idx
        self.dq = self.dq[idx + 1:]
        return f"s_waitcnt lgkmcnt({min(n, 15)})"

    def stamp(self, k):
        if not self.o.diag:
            return
        A = self.A
        A(f"{'s_memtime' if self.o.diag != 2 else 's_memrealtime'} s[{S_TS}:{S_TS+1}]")
        A("s_waitcnt lgkmcnt(0)")
        A(f"v_writelane_b32 v{V_TID}, s{S_TS}, {k}")


def mfma(d, a, b, c):
    return f"v_mfma_f32_16x16x32_bf16 {d}, {a}, {b}, {c}"


def vr(n, k=4):
    return f"v[{n}:{n+k-1}]"


def ar(n, k=4):
    return f"a[{n}:{n+k-1}]"


def perms(src_rows, t, dst):
    out = []
    for e in range(2):
        for p in range(4):
            sel = S_PLO if e == 0 else S_PHI
            out.append(f"v_perm_b32 v{dst+e*4+p}, v{src_rows[2*p+1]+t}, v{src_rows[2*p]+t}, s{sel}")
    return out


def slot_rows(s):
    return [RING + (s % 3) * 32 + r * 4 for r in range(8)]


def gen_main(g):
    o = g.o
    A = g.A
    K = f"{NAME}_kernel"
    g.L.append(f".globl {K}\n.p2align 8\n.type {K},@function")
    g.lab(K)
    A("s_cmp_ge_u32 s2, 256")
    A("s_cbranch_scc1 L_main_end")
    if o.diag:
        A(f"{'s_memtime' if o.diag != 2 else 's_memrealtime'} s[54:55]")
        A(f"s_memrealtime s[56:57]")
    A("s_load_dwordx16 s[32:47], s[0:1], 0")
    A("s_load_dwordx4 s[48:51], s[0:1], 64")
    A("s_load_dwordx2 s[28:29], s[0:1], 96")
    A(f"v_lshrrev_b32 v{V_TMP}, 6, v0")
    A(f"v_and_b32 v0, 63, v0")
    A(f"v_readfirstlane_b32 s{S_W}, v{V_TMP}")
    A(f"s_lshr_b32 s{S_T0}, s2, 3")
    if o.warm:
        A("s_getpc_b64 s[52:53]")
        g.lab("L_pc")
        A(f"s_sub_u32 s52, s52, L_pc-{K}")
        A("s_subb_u32 s53, s53, 0")
        A(f"s_lshl_b32 s{S_T1}, s{S_T0}, 2")
        A(f"s_add_u32 s{S_T1}, s{S_T1}, s{S_W}")
        A(f"s_lshl_b32 s{S_T1}, s{S_T1}, 10")
        A(f"s_min_u32 s{S_T1}, s{S_T1}, (L_code_end-{K})/16*16-1024")
        A(f"v_lshl_add_u32 v{V_TMP}, v0, 4, s{S_T1}")
        A(g.vm(f"global_load_dwordx4 {vr(PERM)}, v{V_TMP}, s[52:53]", "warm"))
    A(f"s_lshr_b32 s{S_BP}, s{S_T0}, 1")
    A(f"s_and_b32 s{S_T0}, s{S_T0}, 1")
    A(f"s_and_b32 s{S_HQ}, s2, 3")
    A(f"s_lshl_b32 s{S_HQ}, s{S_HQ}, 1")
    A(f"s_add_u32 s{S_HQ}, s{S_HQ}, s{S_T0}")
    vi, vG, vt, vt2 = 20, 21, 22, 23
    A(f"s_movk_i32 s{S_G}, 0x78")
    A(f"v_and_b32 v{vi}, 15, v0")
    A(f"v_lshrrev_b32 v{vG}, 4, v0")
    A(f"v_xor_b32 v{vt}, v{vG}, v0")
    A(f"v_and_b32 v{vt}, 7, v{vt}")
    A(f"v_lshlrev_b32 v{vt}, 4, v{vt}")
    A(f"v_lshrrev_b32 v{vt2}, 3, v0")
    A(f"v_mul_u32_u24 v{vt2}, 1280, v{vt2}")
    A(f"v_add_u32 v{V_B}, v{vt}, v{vt2}")
    A(f"v_xor_b32 v{vt}, 64, v{vt}")
    A(f"v_add_u32 v{vt2}, {8*1280}, v{vt2}")
    A(f"v_add_u32 v{V_LX}, v{vt}, v{vt2}")
    A(f"v_lshlrev_b32 v{vt}, 4, v{vi}")
    A(f"v_lshl_add_u32 v{V_W}, v{vG}, 16, v{vt}")
    for r in range(1, 8):
        A(f"v_add_u32 v{V_W+r}, {r*8192}, v{V_W}")
    if o.fast:
        for dst, n in ((S_X, 1310720), (S_K, 8388608), (S_V, 8388608), (S_WQ, 5242880), (S_WO, 5242880), (S_WS, 268435456)):
            A(f"s_mov_b32 s{dst+2}, {n}")
            A(f"s_mov_b32 s{dst+3}, 0x20000")
        A(f"s_lshl_b32 s{S_C4U}, s{S_HQ}, 2")
        A(f"s_add_u32 s{S_C4U}, s{S_C4U}, s{S_W}")
        A(f"s_lshl_b32 s{S_T1}, s{S_C4U}, 8")
        for r in range(8):
            A(f"v_add_u32 v{V_W+r}, s{S_T1}, v{V_W+r}")
        A(f"s_lshl_b32 s{S_G}, s{S_BP}, 2")
        A(f"s_add_u32 s{S_G}, s{S_G}, s{S_W}")
        A(f"s_mul_i32 s{S_G}, s{S_G}, {16*1280}")
        A(f"s_lshl_b32 s{S_SC}, s{S_W}, 11")
        A(f"s_add_u32 s{S_SC}, s{S_SC}, {LDS_X}")
        A(f"s_mul_i32 s{S_T1}, s{S_BP}, 5")
        A(f"s_lshr_b32 vcc_lo, s{S_T1}, 3")
        A(f"s_lshl_b32 vcc_lo, vcc_lo, 7")
        A(f"s_lshr_b32 s{S_T1}, s{S_T1}, 2")
        A(f"s_lshl_b32 s{S_T1}, s{S_T1}, 18")
    A("s_bitcmp1_b32 s2, 2")
    A("s_waitcnt lgkmcnt(0)")
    if o.diag:
        A(f"s_mov_b32 s{S_TS}, s54")
        A(f"s_mov_b32 s{S_TS+1}, s56")
        A("s_memtime s[88:89]")
    for dst, a, b in ((S_X, 32, 42), (S_K, 34, 44), (S_V, 36, 46), (S_WQ, 38, 48), (S_WO, 40, 50)):
        A(f"s_cselect_b32 s{dst}, s{b}, s{a}")
        A(f"s_cselect_b32 s{dst+1}, s{b+1}, s{a+1}")
    if o.fast:
        assert o.rot and o.xs
        A(f"s_mov_b32 s{S_KS}, s{S_T1}")
    else:
        for dst, n in ((S_X, 1310720), (S_K, 8388608), (S_V, 8388608), (S_WQ, 5242880), (S_WO, 5242880), (S_WS, 268435456)):
            A(f"s_mov_b32 s{dst+2}, {n}")
            A(f"s_mov_b32 s{dst+3}, 0x20000")
        A(f"s_lshl_b32 s{S_C4U}, s{S_HQ}, 2")
        A(f"s_add_u32 s{S_C4U}, s{S_C4U}, s{S_W}")
        A(f"s_lshl_b32 s{S_T1}, s{S_C4U}, 8")
        for r in range(8):
            A(f"v_add_u32 v{V_W+r}, s{S_T1}, v{V_W+r}")
        A(f"s_mul_i32 s{S_KS}, s{S_BP}, 5")
        A(f"s_lshr_b32 s{S_KS}, s{S_KS}, 2")
        if not o.rot:
            A(f"s_mov_b32 s{S_KS}, 0")
        A(f"s_lshl_b32 s{S_KS}, s{S_KS}, 18")
    tab = []
    for ks in range(19):
        tab.append([f"s_add_u32 s{S_KS+ks+1}, s{S_KS+ks}, {1<<18}", f"s_cmp_eq_u32 s{S_KS+ks+1}, {20<<18}", f"s_cselect_b32 s{S_KS+ks+1}, 0, s{S_KS+ks+1}"])
    if not o.fast:
        for t in tab[:2]:
            for x in t:
                A(x)
        tab = tab[2:]

    def wload(s, r):
        dst = vr(slot_rows(s)[r])
        if s == 39 and o.e39:
            dst = ar(r * 4)
        if s < 20:
            pol = o.pw0 if s < o.nfirst else o.pwq
            return g.vm(f"buffer_load_dwordx4 {dst}, v{V_W+r}, s[{S_WQ}:{S_WQ+3}], s{S_KS+s} offen {pol}", f"w{s}")
        v = V_WO0 if r < 4 else V_WO1
        pol = o.pw0 if (s - 20 < o.nfirst or (s >= 36 and o.c4first)) else o.pwo
        ci = s - 20 if not o.dp else (s - 4 if s < 24 else s - 24)
        return g.vm(f"buffer_load_dwordx4 {dst}, v{v}, s[{S_WO}:{S_WO+3}], s{S_CW+ci} offen offset:{(r%4)*1280} {pol}", f"w{s}")

    def wsoff(s):
        return None

    def xhalf(second):
        A(f"s_and_b32 s{S_T1}, s{S_HQ}, 1")
        if second:
            A(f"s_xor_b32 s{S_T1}, s{S_T1}, 1")
        if not o.coop:
            A(f"s_mov_b32 s{S_T1}, {second}")
        A(f"s_lshl_b32 s{S_T0}, s{S_BP}, 2")
        A(f"s_add_u32 s{S_T0}, s{S_T0}, s{S_W}")
        A(f"s_mul_i32 s{S_T0}, s{S_T0}, {16*1280}")
        A(f"s_mul_i32 s{S_STMP}, s{S_T1}, 640")
        A(f"s_add_u32 s{S_T0}, s{S_T0}, s{S_STMP}")
        A(f"s_mul_i32 s{S_T1}, s{S_T1}, 20")
        A(f"s_add_u32 s{S_T1}, s{S_T1}, s{S_W}")
        A(f"s_lshl_b32 s{S_T1}, s{S_T1}, 11")
        A(f"s_add_u32 m0, s{S_T1}, {LDS_X}")
        A("s_nop 0")
        for n in range(10):
            kb, m = n // 2, n % 2
            A(g.vm(f"buffer_load_dwordx4 v{V_LX if m else V_B}, s[{S_X}:{S_X+3}], s{S_T0} offen offset:{kb*128} {o.pxb if second else o.px} lds", "x"))
            if n < 9:
                A(f"s_add_u32 m0, m0, {1024 if m == 0 else 8192-128-1024}")
                if tab:
                    for x in tab.pop(0):
                        A(x)
                else:
                    A("s_nop 0")
    split = "s" in o.order.split(",")
    XB, XR, XL = (f"s{S_G}", "vcc_lo", f"s{S_SC}") if split else (f"s{S_T0}", f"s{S_T1}", f"s{S_KLDS}")

    def xinit():
        A(f"s_lshl_b32 {XB}, s{S_BP}, 2")
        A(f"s_add_u32 {XB}, {XB}, s{S_W}")
        A(f"s_mul_i32 {XB}, {XB}, {16*1280}")
        A(f"s_lshl_b32 {XL}, s{S_W}, 11")
        A(f"s_add_u32 {XL}, {XL}, {LDS_X}")
        A(f"s_and_b32 {XR}, s{S_HQ}, 1")
        A(f"s_mul_i32 {XR}, {XR}, 5")
        if o.xrot:
            A(f"s_lshr_b32 s{S_STMP}, s{S_HQ}, 1")
            A(f"s_add_u32 {XR}, {XR}, s{S_STMP}")
        if o.xs:
            A(f"s_lshr_b32 {XR}, s{S_KS}, 19")
        A(f"s_lshl_b32 {XR}, {XR}, 7")

    def xblk(n, track=True):
        tg = "x2" if (o.xs and n >= o.xs) else "x"
        pol = o.px if n < 5 else o.pxb
        A(f"s_lshl_b32 s{S_STMP}, {XR}, 6")
        A(f"s_add_u32 m0, s{S_STMP}, {XL}")
        A(f"s_add_u32 s{S_STMP}, {XB}, {XR}")
        x = f"buffer_load_dwordx4 v{V_B}, s[{S_X}:{S_X+3}], s{S_STMP} offen {pol} lds"
        A(g.vm(x, tg) if track else x)
        A(f"s_add_u32 m0, m0, 1024")
        A(f"s_add_u32 {XR}, {XR}, 128")
        x = f"buffer_load_dwordx4 v{V_LX}, s[{S_X}:{S_X+3}], s{S_STMP} offen {pol} lds"
        A(g.vm(x, tg) if track else x)
        A(f"s_cmp_eq_u32 {XR}, 1280")
        A(f"s_cselect_b32 {XR}, 0, {XR}")
        if track and not o.fast:
            for _ in range(2):
                if tab:
                    for t in tab.pop(0):
                        A(t)

    def pre(track=True):
        A(f"s_lshr_b32 s{S_ST}, s{S_BP}, 2")
        A(f"s_mul_i32 s{S_ST}, s{S_ST}, 5")
        A(f"s_add_u32 s{S_ST}, s{S_ST}, 4")
        A(f"s_lshl_b32 s{S_ST}, s{S_ST}, 4")
        A(f"s_and_b32 s{S_SC}, s{S_BP}, 3")
        A(f"s_add_u32 s{S_ST}, s{S_ST}, s{S_SC}")
        A(f"s_lshl_b32 s{S_ST}, s{S_ST}, 14")
        for r in range(2):
            x = f"buffer_load_dwordx4 {ar(248+4*r)}, v{V_W+r}, s[{S_WQ}:{S_WQ+3}], s{S_ST} offen"
            A(g.vm(x, "pre") if track else x)

    def items(lst, track=True, stamps=False):
        for ni, item in enumerate(lst):
            if o.diag and stamps and ni in (1, 2, 3):
                A(f"s_memtime s[{88+2*ni}:{89+2*ni}]") if ni < 2 else A(f"s_memtime s[{68+2*ni}:{69+2*ni}]")
            if item[0] == "c":
                A(f"s_waitcnt vmcnt({item[1:]})")
            elif item == "xa":
                xhalf(0)
            elif item == "xb":
                xhalf(1)
            elif item == "p":
                pre(track)
            elif item[0] == "j":
                A(f"s_bitcmp1_b32 s{S_HQ}, 0")
                A(f"s_cselect_b32 s{S_STMP}, {int(item[1:])*128}, 0")
                A(f"s_add_u32 {XR}, {XR}, s{S_STMP}")
                A(f"s_cmp_ge_u32 {XR}, 1280")
                A(f"s_cselect_b32 s{S_STMP}, 1280, 0")
                A(f"s_sub_u32 {XR}, {XR}, s{S_STMP}")
            elif item[0] == "x":
                for n in range(int(item[1]), int(item[2]) + 1):
                    xblk(n, track)
            else:
                sw = int(item[1:])
                for r in range(8):
                    if track:
                        A(wload(sw, r))
                    else:
                        sv = [list(q) for q in g.vq]
                        A(wload(sw, r))
                        g.vq = sv
    lst = o.order.split(",")
    late_units, late_x = {}, [-1]
    if o.fast:
        assert split and all(x[0] == "x" or x == "w0" for x in lst[:lst.index("s")])
    elif any(x[0] == "x" and len(x) == 3 for x in lst):
        xinit()
    if o.alt:
        alt = o.alt.split(",")
        assert sorted(alt) == sorted(lst[:len(alt)])
        A(f"s_bitcmp1_b32 s{S_BP}, {o.altbit}")
        A("s_cbranch_scc1 L_alt")
        keep, tab[:] = list(tab), []
        items(lst[:len(alt)], stamps=True)
        A("s_branch L_join")
        g.lab("L_alt")
        items(alt, track=False, stamps=True)
        g.lab("L_join")
        tab[:] = keep
        items(lst[len(alt):])
    elif split:
        lst2 = [x for x in lst[lst.index("s") + 1:] if "@" not in x]
        for x in lst:
            if "@" in x:
                it, at = x.split("@")
                un = late_units.setdefault(int(at), [])
                if it[0] == "w":
                    for r in range(8):
                        un.append([lambda r=r, sw=int(it[1:]): wload(sw, r)])
                else:
                    late_x[0] = max(late_x[0], int(at))
                    for n in range(int(it[1]), int(it[2]) + 1):
                        ld = lambda v: ("vm", f"buffer_load_dwordx4 v{v}, s[{S_X}:{S_X+3}], s{S_STMP} offen {o.pxb} lds", "x2")
                        un.append([f"s_lshl_b32 s{S_STMP}, {XR}, 6", f"s_add_u32 m0, s{S_STMP}, {XL}", f"s_add_u32 s{S_STMP}, {XB}, {XR}", ld(V_TMP)])
                        un.append([f"s_add_u32 m0, m0, 1024", f"s_add_u32 {XR}, {XR}, 128", ld(V_KG), f"s_cmp_eq_u32 {XR}, 1280", f"s_cselect_b32 {XR}, 0, {XR}"])
        items(lst[:lst.index("s")], stamps=True)
    else:
        items(lst, stamps=True)
    for t in tab:
        for x in t:
            A(x)
    tab[:] = []
    assert not tab
    A(f"s_mov_b32 s{S_T0}, s{S_C4U}")
    if o.diag:
        A("s_waitcnt lgkmcnt(0)")
        A("v_mov_b32 v24, 0")
        for k, sr in ((11, 88), (12, 90), (14, 72), (15, 74)):
            A(f"v_writelane_b32 v24, s{sr}, {k}")
    def kvbase():
        A(f"s_lshl_b32 s{S_KV}, s{S_BP}, 6")
        A(f"s_add_u32 s{S_KV}, s{S_KV}, s{S_T0}")
        A(f"s_lshl_b32 s{S_KV}, s{S_KV}, 13")
        A(f"s_add_u32 s{S_KV+1}, s{S_KV}, 4096")
        A(f"s_add_u32 s{S_KV+2}, s{S_KV}, 262144")
        A(f"s_add_u32 s{S_KV+3}, s{S_KV}, {262144+4096}")
        A(f"s_lshl_b32 s{S_KLDS}, s{S_W}, 14")
        A(f"s_mov_b32 s{S_SC}, 0x3e0293ee")
    if not split:
        kvbase()
    A(f"s_mov_b32 s{S_PLO}, 0x05040100")
    A(f"s_mov_b32 s{S_PHI}, 0x07060302")
    A(f"s_mul_i32 s{S_T0}, s{S_HQ}, {512*1280}")
    A(f"s_lshl_b32 s{S_T1}, s{S_W}, 8")
    A(f"s_add_u32 s{S_T1}, s{S_T1}, s{S_T0}")
    if o.dp:
        A(f"s_lshr_b32 s{S_T1}, s{S_W}, 1")
        A(f"s_lshl_b32 s{S_T1}, s{S_T1}, 8")
        A(f"s_add_u32 s{S_T1}, s{S_T1}, s{S_T0}")
        A(f"s_and_b32 s{S_STMP}, s{S_W}, 1")
        A(f"s_mul_i32 s{S_STMP}, s{S_STMP}, {256*1280}")
        A(f"s_add_u32 s{S_T1}, s{S_T1}, s{S_STMP}")
        for n in range(8):
            A(f"s_add_u32 s{S_STMP}, s{S_BP}, {n}")
            A(f"s_and_b32 s{S_C4U}, s{S_STMP}, 3")
            A(f"s_bfe_u32 s{S_STMP}, s{S_STMP}, 0x10002")
            A(f"s_lshl_b32 s{S_STMP}, s{S_STMP}, 4")
            A(f"s_add_u32 s{S_STMP}, s{S_STMP}, s{S_C4U}")
            A(f"s_mul_i32 s{S_STMP}, s{S_STMP}, {8*1280}")
            A(f"s_add_u32 s{S_CW+n}, s{S_STMP}, s{S_T1}")
            A(f"s_add_u32 s{S_CW+8+n}, s{S_CW+n}, 512")
    for n in range(16 if not o.dp else 0):
        if o.rot:
            A(f"s_add_u32 s{S_STMP}, s{S_BP}, {n}")
            A(f"s_and_b32 s{S_STMP}, s{S_STMP}, 15")
        else:
            A(f"s_mov_b32 s{S_STMP}, {n}")
        A(f"s_and_b32 s{S_C4U}, s{S_STMP}, 3")
        A(f"s_lshr_b32 s{S_STMP}, s{S_STMP}, 2")
        A(f"s_lshl_b32 s{S_STMP}, s{S_STMP}, 4")
        A(f"s_add_u32 s{S_STMP}, s{S_STMP}, s{S_C4U}")
        A(f"s_mul_i32 s{S_STMP}, s{S_STMP}, {8*1280}")
        A(f"s_add_u32 s{S_CW+n}, s{S_STMP}, s{S_T1}")
    A(f"s_mul_i32 s{S_T1}, s{S_W}, {128*1280}")
    A(f"s_add_u32 s{S_T1}, s{S_T1}, s{S_T0}")
    A(f"s_add_u32 s{S_T1}, s{S_T1}, 1024")
    for n in range(4):
        A(f"s_add_u32 s{S_CW+16+n}, s{S_T1}, {n*8*1280}")
    A(f"s_lshr_b32 s{S_T0}, s2, 2")
    A(f"s_and_b32 s{S_T0}, s{S_T0}, 1")
    A(f"s_lshl_b32 s{S_T0}, s{S_T0}, 4")
    A(f"s_add_u32 s{S_T0}, s{S_T0}, s{S_BP}")
    A(f"s_lshl_b32 s{S_T0}, s{S_T0}, 3")
    A(f"s_add_u32 s{S_T0}, s{S_T0}, s{S_HQ}")
    A(f"s_mul_i32 s{S_ST}, s{S_T0}, {81920+o.pad}")
    if o.fuse:
        if o.diag:
            A(f"s_mov_b32 vcc_hi, s2")
        A(f"s_mov_b32 s2, s{S_T0}")
    def clear():
        A(f"s_cmp_lg_u32 s{S_W}, 0")
        A("s_cbranch_scc1 L_noclr")
        if o.fuse >= 2:
            flag_base(g, S_T0, S_STMP)
            A(f"v_mov_b32 v{V_TMP}, 0")
            A(f"v_lshlrev_b32 v{vt}, 7, v{vi}")
            A("s_mov_b64 exec, 15")
            A(f"buffer_store_dword v{V_TMP}, v{vt}, s[{S_WS}:{S_WS+3}], s{S_T0} offen sc1")
        else:
            A(f"s_lshl_b32 s{S_T0}, s2, 7")
            A(f"s_add_u32 s{S_T0}, s{S_T0}, {WS_FLAG}")
            A(f"v_mov_b32 v{V_TMP}, 0")
            A("s_mov_b64 exec, 1")
            A(f"buffer_store_dword v{V_TMP}, off, s[{S_WS}:{S_WS+3}], s{S_T0} sc1")
        A("s_mov_b64 exec, -1")
        g.lab("L_noclr")
    if o.fuse and not split:
        clear()
    A(f"v_xor_b32 v{vt}, v{vi}, v{vG}")
    A(f"v_lshlrev_b32 v{vt}, 4, v{vt}")
    A(f"v_lshl_add_u32 v{V_KG}, v{vG}, 8, v{vt}")
    A(f"v_lshlrev_b32 v{vt}, 4, v{vi}")
    A(f"v_lshl_add_u32 v{V_VG}, v{vG}, 10, v{vt}")
    A(f"v_mul_u32_u24 v{V_WO0}, {32*1280}, v{vG}")
    A(f"v_add_u32 v{V_WO0}, v{V_WO0}, v{vt}")
    A(f"v_add_u32 v{V_WO1}, {4*1280}, v{V_WO0}")
    def lxbase():
        A(f"v_lshrrev_b32 v{vt}, 1, v{vi}")
        A(f"v_xor_b32 v{vt}, v{vt}, v{vG}")
        A(f"v_lshlrev_b32 v{vt}, 4, v{vt}")
        A(f"v_lshl_add_u32 v{V_LX}, v{vi}, 7, v{vt}")
    if not split:
        lxbase()
    for n in range(20):
        A(f"s_lshr_b32 s{S_STMP}, s{S_KS+n}, 19")
        A(f"s_lshl_b32 s{S_STMP}, s{S_STMP}, 13")
        A(f"s_bfe_u32 s{S_C4U}, s{S_KS+n}, 0x10012")
        A(f"s_lshl_b32 s{S_C4U}, s{S_C4U}, 6")
        A(f"s_add_u32 s{S_STMP}, s{S_STMP}, {LDS_X}")
        A(f"s_or_b32 s{S_XC+n}, s{S_STMP}, s{S_C4U}")
    if split:
        items(lst2)
        A(f"s_lshl_b32 s{S_T0}, s{S_HQ}, 2")
        A(f"s_add_u32 s{S_T0}, s{S_T0}, s{S_W}")
        if late_x[0] < 0:
            kvbase()
        if o.fuse:
            t0, S_T0_ = S_T0, None
            if late_x[0] >= 0:
                A(f"s_mov_b32 s{S_C4U}, s{S_T0}")
            clear()
            if late_x[0] >= 0:
                A(f"s_mov_b32 s{S_T0}, s{S_C4U}")
        if late_x[0] >= 0:
            A(f"v_accvgpr_write_b32 a96, v{V_KG}")
            A(f"v_mov_b32 v{V_TMP}, v{V_B}")
            A(f"v_mov_b32 v{V_KG}, v{V_LX}")
        lxbase()
    A(f"s_and_b32 s{S_GRP}, s{S_BP}, {o.ng-1}")
    if o.diag:
        A(f"v_mov_b32 v{V_TID}, v24")
        A(f"v_writelane_b32 v{V_TID}, s{S_TS}, 10")
        A(f"v_writelane_b32 v{V_TID}, s{S_TS+1}, 13")
        g.stamp(0)

    def kload(n):
        bt, m = n // 8, n % 8
        ins = []
        if m % 4 == 0:
            ins.append(f"s_add_u32 m0, s{S_KLDS}, {bt*8192 + (m//4)*4096}")
        ins.append(f"v_xor_b32 v{V_TMP}, {GFUN[m%4] << 6}, v{V_KG}")
        ins.append(("vm", f"buffer_load_dwordx4 v{V_TMP}, s[{S_K}:{S_K+3}], s{S_KV+bt*2+m//4} offen offset:{(m%4)*1024} {o.pk} lds", "k"))
        return ins

    def vload(n):
        bt, r = n // 8, n % 8
        return [("vm", f"buffer_load_dwordx4 {ar(A_V+n*4)}, v{V_VG}, s[{S_V}:{S_V+3}], s{S_KV+bt*2+r//4} offen offset:{(r%4)*256} {o.pv}", "v1" if (o.vlate and bt) else "v")]

    def baddr(s):
        if s < 20:
            return [f"v_xor_b32 v{V_B}, s{S_XC+s}, v{V_LX}"]
        if o.dp:
            if s < 24:
                return []
            return [f"v_add_u32 v{V_B}, s{S_CL}, v{V_KG}", f"v_xor_b32 v{V_VG}, 2048, v{V_B}", f"s_add_u32 s{S_CL}, s{S_CL}, 4096", f"s_and_b32 s{S_CL}, s{S_CL}, 0x7fff"]
        if s < 36:
            return [f"v_add_u32 v{V_B}, s{S_CL}, v{V_LX}", f"s_add_u32 s{S_CL}, s{S_CL}, 4096", f"s_and_b32 s{S_CL}, s{S_CL}, 0xffff"]
        return []

    def breads(s):
        buf = A_B + (s % 2) * 16
        if s < 20:
            return [f"ds_read_b128 {ar(buf+q*4)}, v{V_B} offset:{q*2048}" for q in range(4)]
        if o.dp:
            if s < 24:
                return [f"ds_read_b128 {ar(buf+q*4)}, v{V_W+q} offset:{(s-20)*4096}" for q in range(4)]
            return [f"ds_read_b128 {ar(buf+q*4)}, v{V_B if q < 2 else V_VG} offset:{(q%2)*1024}" for q in range(4)]
        if s < 36:
            return [f"ds_read_b128 {ar(buf+q*4)}, v{V_B} offset:{q*1024}" for q in range(4)]
        return [f"ds_read_b128 {ar(buf+q*4)}, v{V_W+q} offset:{(s-36)*4096}" for q in range(4)]

    def bread(s):
        return baddr(s) + breads(s)

    def emit(ins):
        if isinstance(ins, tuple):
            A(g.vm(ins[1], ins[2]))
        elif callable(ins):
            r = ins()
            if r:
                A(r)
        else:
            A(ins)

    DEF = (20, 21, 22) if o.defer == 3 else (21, 22)
    fq = []

    def cap(s, n):
        if n == 1:
            return 0, o.cape
        if n % 2 == 0:
            return o.capv, o.cape
        return (o.cap, o.cap) if n in (19, 21) else (1, 1)

    def dacc(s, q, j):
        if s < 24:
            return vr(128 + j * 4) if q == 0 else ar((96, 0, 32)[q - 1] + j * 4)
        if s < 32:
            return vr(192 + q * 32 + j * 4) if q < 2 else ar(128 + (q - 2) * 32 + j * 4)
        return ar(q * 32 + j * 4) if q < 2 else ar(192 + (q - 2) * 32 + j * 4)

    def step(s, first, last, extra, preperm=True, prefetchB=True):
        fill = [[] for _ in range(32)]
        rows = slot_rows(s)
        buf = A_B + (s % 2) * 16
        for t in range(3):
            for n, p in enumerate(perms(rows, t + 1, PERM + ((t + 1) % 2) * 8)):
                fill[t * 8 + (n // 2) * 2].append(p)
        late = o.spread
        if late and s >= 1 and s + 2 < 40 and s != 20 and not (o.defer and s + 2 in DEF) and not (o.e39 and s + 2 >= 38):
            for n, r in enumerate(range(8 - late, 8)):
                fill[11 + 2 * n].append(lambda r=r: wload(s + 2, r))
        if not last:
            ba = baddr(s + 1)
            g0 = 1
            if ba:
                fill[g0].append(ba[0])
                fill[g0] += ba[1:2]
                fill[17] += ba[2:]
                g0 += 2
            for n, x in enumerate(breads(s + 1)):
                fill[g0 + n * 2].append(lambda x=x: g.ds(x, f"b{s+1}"))
            fill[21].append(lambda: g.waitvm(f"w{s+1}"))
            for n, p in enumerate(perms(slot_rows(s + 1), 0, PERM)):
                fill[24 + (n // 2) * 2].append(p)
            fill[19].append(lambda: g.waitds(f"b{s+1}"))
        if o.e39 and 32 <= s < 36:
            for n, gp in enumerate((9, 17)):
                fill[gp].append(lambda r=(s - 32) * 2 + n: wload(39, r))
        if o.e39 and s == 35:
            late = 0
        if s + 3 < 40 and not (o.defer and s + 3 in DEF) and not (o.e39 and s == 36):
            gaps = [23, 25, 27, 29, 31] if late >= 3 else [23, 24, 25, 26, 27, 28, 29, 31]
            for r in range(8 - late):
                fill[gaps[r]].append(lambda r=r: wload(s + 3, r))
        if o.diag and o.steps:
            fill[28].append(f"s_memtime s[{S_TS}:{S_TS+1}]")
            fill[31].append(lambda: ("s_waitcnt lgkmcnt(0)", g.dq.clear())[0])
            fill[31].append(f"v_writelane_b32 v{V_TID}, s{S_TS}, {16+s}")
        for k, v in extra.items():
            fill[k] = fill[k] + v
        n = 0
        for t in range(4):
            for e in range(2):
                for q in range(4):
                    j = 2 * t + e
                    if o.dp and s >= 20:
                        d = dacc(s, q, j)
                    elif s < 36:
                        d = vr(ACC + q * 32 + j * 4)
                    else:
                        d = ar(A_C4 + q * 32 + j * 4)
                    A(mfma(d, vr(PERM + (t % 2) * 8 + e * 4), ar(buf + q * 4), "0" if first else d))
                    for x in fill[n]:
                        if o.exp and 24 <= s < 34:
                            if isinstance(x, str) and "noperm" in o.exp and x.startswith("v_perm"):
                                continue
                            if isinstance(x, str) and "nods" in o.exp and x.startswith("ds_read"):
                                continue
                            if callable(x) and "noload" in o.exp:
                                r = x()
                                if not (r and r.startswith("buffer_load")):
                                    A(r)
                                continue
                        emit(x)
                    cv_, co_ = cap(s, n)
                    while fq and fq[0][0] <= s * 32 + n:
                        if fq[0][2] == "v":
                            if cv_ <= 0:
                                break
                        elif co_ <= 0:
                            break
                        cv_ -= 1
                        co_ -= 1
                        emit(fq.pop(0)[1])
                    n += 1

    if o.ph == 3:
        for n in range(4):
            A(f"v_accvgpr_write_b32 a{100+n}, -1")
    A(g.waitvm("x"))
    A("s_barrier")
    for x in bread(0):
        A(x)
    A(g.waitvm("w0"))
    for p in perms(slot_rows(0), 0, PERM):
        A(p)
    A("s_waitcnt lgkmcnt(0)")
    g.stamp(1)
    kvn = 0
    kst = [int(x) for x in o.kst.split(",")] if o.kst else []
    vst = [int(x) for x in o.vst.split(",")] if o.vst else []

    def burst(grp, fn, name):
        def f():
            out = []
            if o.ng > 1:
                out += [f"s_cmp_lg_u32 s{S_GRP}, {grp}", f"s_cbranch_scc1 L_{name}{grp}"]
            for n in range(16 - o.vn if (o.vlate and name == "vb") else 16):
                for x in fn(n):
                    out.append(g.vm(x[1], x[2], grp) if isinstance(x, tuple) else x)
            t = "\n    ".join(out)
            if o.ng > 1:
                t += f"\nL_{name}{grp}:"
            return t
        return f
    for s in range(20):
        extra = {}
        if kst:
            for grp in range(o.ng):
                if kst[grp] == s:
                    extra.setdefault(31, []).append(burst(grp, kload, "kb"))
                if vst[grp] == s:
                    extra.setdefault(31, []).append(burst(grp, vload, "vb"))
        elif o.kv0 <= s and kvn < 16:
            for c in range(o.kvper):
                if kvn < 16:
                    extra.setdefault(10 + c * 6, []).extend(kload(kvn))
                    extra.setdefault(13 + c * 6, []).extend(vload(kvn))
                    kvn += 1
        if s in late_units:
            un = late_units[s]
            gaps = [1 + 2 * ((k * 15) // len(un)) for k in range(len(un))]
            for gp, u in zip(gaps, un):
                extra.setdefault(gp, []).extend(u)
            if s == late_x[0]:
                mark = len(g.L)
                kvbase()
                seq = [x.strip() for x in g.L[mark:]] + [f"v_accvgpr_read_b32 v{V_KG}, a96"]
                del g.L[mark:]
                extra.setdefault(30, []).extend(seq)
                assert min(kst + vst) > s or gaps[-1] < 30
        if o.xs and s == o.xbar:
            assert (1 + o.xbar + 1) >> 1 < o.xs
            extra.setdefault(29, []).extend([lambda: g.waitvm("x2"), "s_barrier"])
        if o.vlate and s == o.vlate:
            for n in range(o.vn):
                extra.setdefault(17 + 2 * (n % 8), []).extend(vload(16 - o.vn + n))
        if o.wopre and s == o.wopre:
            extra.setdefault(17, []).extend([f"s_lshl_b32 s{S_STMP}, s{S_HQ}, 4", f"s_add_u32 s{S_STMP}, s{S_STMP}, s{S_BP}"])
            extra.setdefault(19, []).extend([f"s_lshl_b32 s{S_STMP}, s{S_STMP}, 2", f"s_add_u32 s{S_STMP}, s{S_STMP}, s{S_W}"])
            extra.setdefault(21, []).extend([f"s_mul_i32 s{S_STMP}, s{S_STMP}, 10240", f"v_mbcnt_lo_u32_b32 v{V_TMP}, -1, 0"])
            extra.setdefault(23, []).extend([f"v_mbcnt_hi_u32_b32 v{V_TMP}, -1, v{V_TMP}"])
            extra.setdefault(25, []).extend([f"v_lshlrev_b32 v{V_TMP}, 7, v{V_TMP}"])
            extra.setdefault(31, []).extend([("vm", f"buffer_load_dword a240, v{V_TMP}, s[{S_WO}:{S_WO+3}], s{S_STMP} offen", "pre"),
                                             f"s_add_u32 s{S_STMP}, s{S_STMP}, 8192", "s_mov_b64 exec, 0xffff",
                                             ("vm", f"buffer_load_dword a241, v{V_TMP}, s[{S_WO}:{S_WO+3}], s{S_STMP} offen", "pre"),
                                             "s_mov_b64 exec, -1"])
        step(s, s == 0, s == 19, extra)
    assert kvn == 16 or kst
    if not o.defer:
        for r in range(8 - o.spread, 8):
            A(wload(22, r))
    g.stamp(2)

    vi, vG, vt, KA = 6, 7, 8, 2
    if o.fuse:
        A(f"s_load_dwordx2 s[{S_OUT}:{S_OUT+1}], s[0:1], 80")
        A(f"s_load_dwordx2 s[{S_DBG}:{S_DBG+1}], s[0:1], 88")
        A(f"s_mov_b32 s{S_OUT+2}, 2621440")
        A(f"s_mov_b32 s{S_DBG+2}, 256")
    A(f"s_movk_i32 s{S_G}, 0x78")
    A(f"v_lshrrev_b32 v{vG}, 10, v{V_VG}")
    A(f"v_bfe_u32 v{vi}, v{V_VG}, 4, 4")
    A(f"v_lshrrev_b32 v{vt}, 2, v{vi}")
    A(f"v_lshlrev_b32 v{vt}, 1, v{vt}")
    A(f"v_lshrrev_b32 v{vt}, v{vt}, s{S_G}")
    A(f"v_xor_b32 v{vt}, v{vt}, v{vG}")
    A(f"v_and_b32 v{vt}, 3, v{vt}")
    A(f"v_lshlrev_b32 v{vt}, 2, v{vt}")
    A(f"v_and_or_b32 v{vt}, v{vi}, 3, v{vt}")
    A(f"v_lshlrev_b32 v{vt}, 4, v{vt}")
    A(f"v_lshl_add_u32 v{vt}, v{vi}, 8, v{vt}")
    A(f"v_add_u32 v{KA}, s{S_KLDS}, v{vt}")
    for u in range(1, 4):
        A(f"v_xor_b32 v{KA+u}, {u*16}, v{KA}")
    A(f"v_lshlrev_b32 v{V_LX}, 8, v{vG}")
    A(f"v_lshl_add_u32 v{V_LX}, v{vi}, 4, v{V_LX}")
    def c4pre_b():
        A(f"s_mul_i32 s{S_T0}, s{S_BP}, {8*1280}")
        A(f"s_add_u32 s{S_T0}, s{S_T0}, s{S_CW+16}")
        A(f"v_mul_u32_u24 v{V_TMP}, {1280-256}, v{vG}")
        A(f"v_add_u32 v{V_TMP}, v{V_TMP}, v{V_LX}")
        A(g.vm(f"buffer_load_dwordx4 {ar(240)}, v{V_TMP}, s[{S_WO}:{S_WO+3}], s{S_T0} offen", "pre"))
        A(f"s_add_u32 s{S_T0}, s{S_T0}, {4*1280}")
        A(g.vm(f"buffer_load_dwordx4 {ar(244)}, v{V_TMP}, s[{S_WO}:{S_WO+3}], s{S_T0} offen", "pre"))
    A(g.waitvm("k"))
    if o.c4pre == 1:
        c4pre_b()
    if o.ph == 3:
        A(f"s_lshl_b32 s{S_T0}, s{S_W}, 12")
        A(f"s_add_u32 s{S_T0}, s{S_T0}, s{S_ST}")
        A(f"s_add_u32 s{S_T0}, s{S_T0}, 65536")
        for r in range(4):
            A(g.vm(f"buffer_store_dwordx4 {ar(100)}, v{V_LX}, s[{S_WS}:{S_WS+3}], s{S_T0} offen offset:{r*1024} sc1", "mark"))
    if o.fuse:
        A("s_waitcnt lgkmcnt(0)")

    def kread(bt):
        for kb in range(2):
            for u in range(4):
                A(f"ds_read_b128 {ar(A_K+((bt*2+kb)*4+u)*4)}, v{KA+u} offset:{bt*8192+kb*4096}")
    QB = [PERM, 128, 144, 160]
    SA = 176
    cv = []
    for q in range(4):
        c = []
        for t in range(4):
            for u in range(4):
                c.append(f"v_cvt_pk_bf16_f32 v{QB[q]+u*4+t}, v{ACC+q*32+(2*t)*4+u}, v{ACC+q*32+(2*t+1)*4+u}")
        cv.append(c)
    kread(0)
    for x in cv[0]:
        A(x)
    A("s_waitcnt lgkmcnt(4)")
    kread(1)
    for x in cv[1]:
        A(x)
    A("s_waitcnt lgkmcnt(8)")

    def smfma(bt):
        r = []
        for u in range(4):
            for kb in range(2):
                for qq in range(2):
                    d = vr(SA + ((bt * 2 + kb) * 2 + qq) * 4)
                    r.append(mfma(d, ar(A_K + ((bt * 2 + kb) * 4 + u) * 4), vr(QB[bt * 2 + qq] + u * 4), "0" if u == 0 else d))
        return r
    s0 = smfma(0)
    rest = cv[2] + cv[3]
    A("s_nop 1")
    for n in range(16):
        A(s0[n])
        A(rest[2 * n])
        A(rest[2 * n + 1])
    A("s_waitcnt lgkmcnt(0)")
    A("s_nop 1")
    s1 = smfma(1)

    PB = 208
    TM = 224

    def softmax(q):
        bt, qq = q // 2, q % 2
        sv = [SA + ((bt * 2 + kb) * 2 + qq) * 4 + r for kb in range(2) for r in range(4)]
        m, t2 = TM + q * 4, TM + q * 4 + 1
        ph = []
        ph.append([f"v_max3_f32 v{m}, v{sv[0]}, v{sv[1]}, v{sv[2]}",
                   f"v_max3_f32 v{t2}, v{sv[3]}, v{sv[4]}, v{sv[5]}",
                   f"v_max3_f32 v{m}, v{m}, v{sv[6]}, v{sv[7]}",
                   f"v_max_f32 v{m}, v{m}, v{t2}",
                   f"v_mov_b32 v{t2}, v{m}"])
        ph.append([f"v_permlane32_swap_b32 v{m}, v{t2}"])
        ph.append([f"v_max_f32 v{m}, v{m}, v{t2}", f"v_mov_b32 v{t2}, v{m}"])
        ph.append([f"v_permlane16_swap_b32 v{m}, v{t2}"])
        ph.append([f"v_max_f32 v{m}, v{m}, v{t2}", f"v_mul_f32 v{m}, s{S_SC}, v{m}"] +
                  [f"v_fma_f32 v{x}, v{x}, s{S_SC}, -v{m}" for x in sv] +
                  [f"v_exp_f32 v{x}, v{x}" for x in sv])
        ph.append([f"v_add_f32 v{m}, v{sv[0]}, v{sv[1]}", f"v_add_f32 v{t2}, v{sv[2]}, v{sv[3]}",
                   f"v_add_f32 v{m}, v{m}, v{sv[4]}", f"v_add_f32 v{t2}, v{t2}, v{sv[5]}",
                   f"v_add_f32 v{m}, v{m}, v{sv[6]}", f"v_add_f32 v{t2}, v{t2}, v{sv[7]}",
                   f"v_add_f32 v{m}, v{m}, v{t2}", f"v_mov_b32 v{t2}, v{m}"])
        ph.append([f"v_permlane32_swap_b32 v{m}, v{t2}"])
        ph.append([f"v_add_f32 v{m}, v{m}, v{t2}", f"v_mov_b32 v{t2}, v{m}"])
        ph.append([f"v_permlane16_swap_b32 v{m}, v{t2}"])
        ph.append([f"v_add_f32 v{m}, v{m}, v{t2}"])
        ph.append([f"v_rcp_f32 v{m}, v{m}"])
        ph.append([f"v_mul_f32 v{x}, v{x}, v{m}" for x in sv])
        ph.append([f"v_cvt_pk_bf16_f32 v{PB+q*4+p}, v{sv[2*p]}, v{sv[2*p+1]}" for p in range(4)])
        return ph

    def softmax_pair(q0):
        a, b = softmax(q0), softmax(q0 + 1)
        out = []
        for pa, pb in zip(a, b):
            if pa[0].startswith("v_permlane"):
                out.append("s_nop 1")
            out += pa + pb
            if pa[0].startswith("v_rcp") or pa[0].startswith("v_permlane"):
                out.append("s_nop 0")
        return out
    sm0 = softmax_pair(0)
    for n in range(16):
        A(s1[n])
        if n >= 4:
            for _ in range(2):
                A(sm0.pop(0))
    for x in sm0:
        A(x)
    sm1 = softmax_pair(2)
    for n, x in enumerate(sm1):
        A(x)
        if o.defer == 2 and n % 12 == 11 and n // 12 < 8:
            A(wload(21, n // 12))
    g.stamp(3)
    A(g.waitvm("v"))
    dl = []
    if o.defer == 1:
        dl = [(21, r) for r in range(8)] + [(22, r) for r in range(8)]
    if o.defer == 2:
        dl = [(22, r) for r in range(8)]
    if o.defer == 3:
        for r in range(8):
            A(wload(20, r))
        dl = [(21, r) for r in range(8)] + [(22, r) for r in range(8)]
    OA = 128
    VT = 192
    VP1 = 224
    STG = 200

    def vperm(bt, t, dst):
        r = [f"v_accvgpr_read_b32 v{VT+x}, a{A_V+bt*32+x*4+t}" for x in range(8)]
        for e in range(2):
            for p in range(4):
                r.append(f"v_perm_b32 v{dst+e*4+p}, v{VT+2*p+1}, v{VT+2*p}, s{S_PLO if e == 0 else S_PHI}")
        return r
    for x in vperm(0, 0, PERM):
        A(x)
    for t in range(4):
        nxt = vperm(0, t + 1, PERM + ((t + 1) % 2) * 8) if t < 3 else vperm(1, 0, VP1)
        A("s_nop 1") if t == 0 else None
        if t == 3:
            A(g.waitvm("v1"))
        k = 0
        for e in range(2):
            for qq in range(2):
                A(mfma(vr(OA + qq * 32 + (2 * t + e) * 4), vr(PERM + (t % 2) * 8 + e * 4), vr(PB + qq * 4), "0"))
                for x in nxt[k * 4:k * 4 + 4]:
                    A(x)
                if dl and (o.defer != 2 or k % 2):
                    A(wload(*dl.pop(0)))
                k += 1
        A("s_nop 0")
    assert not dl
    for t in range(1, 4):
        for x in vperm(1, t, VP1 + t * 8):
            A(x)
    A(f"v_add_u32 v{V_B}, s{S_KLDS}, v{V_LX}")

    def ocvt(bt, qq):
        r = []
        for u in range(4):
            st = STG + (u % 2) * 4
            for t in range(4):
                r.append(f"v_cvt_pk_bf16_f32 v{st+t}, v{OA+qq*32+(2*t)*4+u}, v{OA+qq*32+(2*t+1)*4+u}")
            r.append(f"ds_write_b128 v{V_B}, {vr(st)} offset:{u*4096+(bt*2+qq)*1024}")
        return r

    def pv1(qq):
        return [mfma(vr(OA + qq * 32 + j * 4), vr(VP1 + j * 4), vr(PB + (2 + qq) * 4), "0") for j in range(8)]
    for x in ocvt(0, 0):
        A(x)
    c = ocvt(0, 1)
    for mm in pv1(0):
        A(mm)
        for _ in range(3):
            if c:
                A(c.pop(0))
    assert not c
    m1 = pv1(1)
    c = ocvt(1, 0)
    for n, mm in enumerate(m1):
        A(mm)
    A("s_waitcnt lgkmcnt(4)")
    for x in c:
        A(x)
    for x in ocvt(1, 1):
        A(x)
    A(f"s_lshl_b32 s{S_T0}, s{S_W}, 10")
    A(f"v_add_u32 v{V_W}, s{S_T0}, v{V_B}")
    for x in range(1, 4):
        A(f"v_xor_b32 v{V_W+x}, {x*1024}, v{V_W}")
    A(f"s_lshl_b32 s{S_CL}, s{S_BP}, 12" if o.rot else f"s_mov_b32 s{S_CL}, 0")
    if o.dp:
        A(f"s_and_b32 s{S_CL}, s{S_CL}, 0x7fff")
        A(f"s_and_b32 s{S_T0}, s{S_W}, 1")
        A(f"s_mul_i32 s{S_T0}, s{S_T0}, {32768+2048}")
        A(f"v_add_u32 v{V_KG}, s{S_T0}, v{V_LX}")
        for x in range(1, 4):
            A(f"s_xor_b32 s{S_T0}, s{S_W}, {x}")
            A(f"s_mul_i32 s{S_T0}, s{S_T0}, {3*8192}")
            A(f"s_add_u32 s{S_T0}, s{S_T0}, {LDS_R + (x-1)*8192}")
            A(f"v_add_u32 v{5+x}, s{S_T0}, v{V_LX}")
        A(f"s_mul_i32 s{S_T0}, s{S_W}, {3*8192}")
        A(f"s_add_u32 s{S_T0}, s{S_T0}, {LDS_R}")
        A(f"v_add_u32 v9, s{S_T0}, v{V_LX}")
    A(g.waitvm("w20"))
    def announce():
        A(f"s_cmp_lg_u32 s{S_W}, 0")
        A("s_cbranch_scc1 L_noann")
        A(f"s_lshr_b32 s{S_T0}, s2, 3")
        A(f"s_lshl_b32 s{S_T0}, s{S_T0}, 2")
        A(f"s_add_u32 s{S_T0}, s{S_T0}, 128")
        A(f"v_mov_b32 v{V_TMP}, 1")
        A("s_mov_b64 exec, 1")
        A(f"buffer_atomic_add v{V_TMP}, off, s[{S_DBG}:{S_DBG+3}], s{S_T0} sc1")
        A("s_mov_b64 exec, -1")
        g.lab("L_noann")
    if o.ph == 3:
        A(g.waitvm("mark"))
    elif o.fuse:
        announce()
    for p in perms(slot_rows(20), 0, PERM):
        A(p)
    A("s_waitcnt lgkmcnt(0)")
    if not o.dp:
        A("s_barrier")
    for x in bread(20):
        A(x)
    if o.ph == 3:
        announce()
    A("s_waitcnt lgkmcnt(0)")
    g.stamp(4)
    if o.dp:
        stage_c_dp(g, step, fq, emit)
        finish(g)
        return

    for s in range(20, 36):
        extra = {}
        if o.c4pre and s == o.c4pre:
            extra[17] = [f"s_mul_i32 s{S_T0}, s{S_BP}, {8*1280}", f"s_add_u32 s{S_T0}, s{S_T0}, s{S_CW+16}"]
            extra[19] = [f"v_lshrrev_b32 v{V_TMP}, 8, v{V_LX}", f"v_mul_u32_u24 v{V_TMP}, {1280-256}, v{V_TMP}"]
            extra[21] = [f"v_add_u32 v{V_TMP}, v{V_TMP}, v{V_LX}"]
            extra[31] = [("vm", f"buffer_load_dwordx4 {ar(0)}, v{V_TMP}, s[{S_WO}:{S_WO+3}], s{S_T0} offen", "pre"),
                         f"s_add_u32 s{S_T0}, s{S_T0}, {4*1280}",
                         ("vm", f"buffer_load_dwordx4 {ar(4)}, v{V_TMP}, s[{S_WO}:{S_WO+3}], s{S_T0} offen", "pre")]
        if o.e39 and s == 35:
            extra = {11: [f"s_lshr_b32 s{S_KS+4}, s2, 3"], 13: [f"s_lshl_b32 s{S_KS+4}, s{S_KS+4}, 2"], 15: [f"s_add_u32 s{S_KS+4}, s{S_KS+4}, 128"],
                     19: [("vm", f"buffer_load_dword v{V_B}, off, s[{S_DBG}:{S_DBG+3}], s{S_KS+4} sc1", "clr")]}
        step(s, s == 20, False, extra)
    g.stamp(5)
    ST2 = V_W + 4
    stg = [6, 12]
    outs = []
    A(f"s_lshl_b32 s{S_T0}, s{S_W}, 14")
    A(f"s_add_u32 s{S_T0}, s{S_T0}, s{S_ST}")
    for q in range(4):
        A(f"s_add_u32 s{S_KS+q}, s{S_T0}, {q*4096}")
    T = S_KS
    if o.fuse == 3:
        A(f"v_lshrrev_b32 v{V_B}, 9, v{V_LX}")
        A(f"s_lshr_b32 s{T+9}, s{S_HQ}, 1")
        A(f"v_mul_u32_u24 v{V_B}, 1536, v{V_B}")
        A(f"s_bitcmp1_b32 s{S_HQ}, 0")
        A(f"s_cselect_b32 s{T+16}, 0, {-1 if o.own else 0}")
        A(f"s_cselect_b32 s{T+17}, {-1 if o.own else 0}, 0")
        A(f"v_add_u32 v{V_B}, v{V_B}, v{V_LX}")
    for q in range(4):
        for r in range(4):
            st = stg[r % 2]
            for t in range(4):
                x = f"v_cvt_pk_bf16_f32 v{st+t}, v{ACC+q*32+(2*t)*4+r}, v{ACC+q*32+(2*t+1)*4+r}"
                if o.fuse == 3 and r == 0 and t == 1:
                    x += f"\n    s_cmp_eq_u32 s{T+9}, {q}\n    s_cselect_b64 s[{T+26}:{T+27}], s[{T+16}:{T+17}], 0"
                if o.fuse == 3 and r == 0 and t == 2:
                    x += f"\n    v_cndmask_b32 v{V_TMP}, v{V_B}, 2.0, s[{T+26}:{T+27}]"
                outs.append(x)
            if o.fuse == 3:
                outs.append(("vm", f"buffer_store_dwordx4 {vr(st)}, v{V_TMP}, s[{S_WS}:{S_WS+3}], s{S_KS+q} offen offset:{r*512} {o.pst}", "st"))
            else:
                outs.append(("vm", f"buffer_store_dwordx4 {vr(st)}, v{V_LX}, s[{S_WS}:{S_WS+3}], s{S_KS+q} offen offset:{r*1024} {o.pst}", "st"))
    ex36 = {}
    if o.fuse:
        ex36 = {13: [f"s_lshr_b32 s{S_KS+4}, s2, 3"], 15: [f"s_lshl_b32 s{S_KS+4}, s{S_KS+4}, 2"], 17: [f"s_add_u32 s{S_KS+4}, s{S_KS+4}, 128"],
                31: [("vm", f"buffer_load_dword {'a96' if o.fuse == 3 else f'v{V_B}'}, off, s[{S_DBG}:{S_DBG+3}], s{S_KS+4} sc1", "clr")]}
    if o.e39:
        cps = [f"v_accvgpr_read_b32 v{RING+n}, a{n}" for n in range(32)]
        for s in range(36, 40):
            extra = {}
            for k in range(1 if s == 36 else 0, 32):
                extra[k] = []
                for rep in range(2 if (o.dens and k % 2 == 1) else 1):
                    if outs:
                        extra[k].append(outs.pop(0))
                if s == 36 and k == 23:
                    extra[k].append(lambda: g.waitvm("w39"))
                if cps and (s, k) >= ((37, 0) if not o.dens else (37, 12)):
                    extra[k].append(cps.pop(0))
            if s == 38:
                assert not cps
            step(s, s == 36, s == 39, extra)
    else:
        step(36, True, False, ex36)
    for s in range(37, 40 if not o.e39 else 0):
        extra = {}
        lo = 11 + 2 * o.spread if (s == 37 and o.spread) else 0
        for k in range(lo, 32):
            if outs:
                extra[k] = [outs.pop(0)]
                if s == 39 and k >= 24 and outs:
                    extra[k].append(outs.pop(0))
        step(s, False, s == 39, extra)
    for x in outs:
        emit(x)
    g.stamp(6)
    for x in range(1, 4):
        A(f"s_xor_b32 s{S_T0}, s{S_W}, {x}")
        A(f"s_mul_i32 s{S_T0}, s{S_T0}, {3*8192}")
        A(f"s_add_u32 s{S_T0}, s{S_T0}, {LDS_R + (x-1)*8192}")
        A(f"v_add_u32 v{V_W+x}, s{S_T0}, v{V_LX}")
    A(f"s_mul_i32 s{S_T0}, s{S_W}, {3*8192}")
    A(f"s_add_u32 s{S_T0}, s{S_T0}, {LDS_R}")
    A(f"v_add_u32 v{V_W}, s{S_T0}, v{V_LX}")
    if o.fuse == 3 and o.il:
        mark = len(g.L)
        pick(g, "m", 8, f"s{S_HQ}", own_main)
        blob = g.L[mark:]
        del g.L[mark:]
        for n in range(32):
            A(f"v_accvgpr_read_b32 v{ACC+n}, a{A_C4+n}")
        A(f"s_lshl_b32 s{S_T0}, s{S_W}, 12")
        A(f"s_add_u32 s{S_T0}, s{S_T0}, s{S_ST}")
        A(f"s_add_u32 s{S_T0}, s{S_T0}, 65536")
        tail3_addr(g)
        fl = g.L[mark:]
        del g.L[mark:]
        n = 0
        for j in range(8):
            for x in range(1, 4):
                A(f"ds_write_b128 v{V_W+x}, {ar(A_C4+x*32+j*4)} offset:{j*1024}")
                if n == 1:
                    g.L += blob
                elif n > 1:
                    k = -(-len(fl) // (24 - n))
                    while k < len(fl) and fl[k].split()[0].startswith("s_cselect"):
                        k += 1
                    g.L += fl[:k]
                    del fl[:k]
                if n % 4 == 3:
                    A(f"s_waitcnt lgkmcnt({o.il})")
                n += 1
        assert not fl
    else:
        A("s_nop 7")
        for x in range(1, 4):
            for j in range(8):
                A(f"ds_write_b128 v{V_W+x}, {ar(A_C4+x*32+j*4)} offset:{j*1024}")
            A("s_waitcnt lgkmcnt(6)")
        if o.fuse == 3:
            pick(g, "m", 8, f"s{S_HQ}", own_main)
        for n in range(32):
            A(f"v_accvgpr_read_b32 v{ACC+n}, a{A_C4+n}")
        A(f"s_lshl_b32 s{S_T0}, s{S_W}, 12")
        A(f"s_add_u32 s{S_T0}, s{S_T0}, s{S_ST}")
        A(f"s_add_u32 s{S_T0}, s{S_T0}, 65536")
        if o.fuse == 2:
            tail2_addr(g)
        if o.fuse == 3:
            tail3_addr(g)
    A("s_waitcnt lgkmcnt(0)")
    A("s_barrier")
    for x in range(3):
        for j in range(8):
            A(f"ds_read_b128 {vr(RING+x*32+j*4)}, v{V_W} offset:{x*8192+j*1024}")
            if x >= 1 and j == 3:
                A("s_waitcnt lgkmcnt(4)")
                if o.fuse >= 2 and o.ph >= 2 and o.fa == 3 - x:
                    tail2_flag(g, 1)
                    if o.ph == 3:
                        tail4_poll(g)
                for n in range(32):
                    A(f"v_add_f32 v{ACC+n}, v{ACC+n}, v{RING+(x-1)*32+n}")
    A("s_waitcnt lgkmcnt(0)")
    for n in range(32):
        A(f"v_add_f32 v{ACC+n}, v{ACC+n}, v{RING+64+n}")
    for r in range(4):
        st = (PERM if o.fuse != 3 else ACC + 32) + r * 4
        for t in range(4):
            A(f"v_cvt_pk_bf16_f32 v{st+t}, v{ACC+(2*t)*4+r}, v{ACC+(2*t+1)*4+r}")
        if o.fuse >= 2 and o.ph == 2 and o.fa == 0 and r == 0:
            tail2_flag(g, 1)
        if o.fuse == 3:
            A(g.vm(f"buffer_store_dwordx4 {vr(st)}, v{VS3}, s[{S_WS}:{S_WS+3}], s{S_T0} offen offset:{r*128} {o.pst}", "st"))
        else:
            A(g.vm(f"buffer_store_dwordx4 {vr(st)}, v{V_LX}, s[{S_WS}:{S_WS+3}], s{S_T0} offen offset:{r*1024} {o.pst}", "st"))
    if o.ph == 3:
        tail4(g)
    elif o.fuse == 3:
        tail3(g)
    elif o.fuse == 2:
        tail2(g)
    elif o.fuse:
        fused_tail(g)
    finish(g)


def finish(g):
    o = g.o
    A = g.A
    if o.diag:
        g.stamp(7) if not o.fuse else None
        A("s_waitcnt vmcnt(0)")
        g.stamp(8)
        if o.fuse:
            A("s_mov_b32 s2, vcc_hi")
        A(f"s_memrealtime s[{S_TS}:{S_TS+1}]")
        A("s_waitcnt lgkmcnt(0)")
        A(f"v_writelane_b32 v{V_TID}, s{S_TS}, 9")
        A(f"s_lshl_b32 s{S_T0}, s2, 2")
        A(f"s_add_u32 s{S_T0}, s{S_T0}, s{S_W}")
        A(f"s_lshl_b32 s{S_T0}, s{S_T0}, 8")
        A(f"s_add_u32 s{S_T0}, s{S_T0}, 0x8000000")
        A(f"v_lshrrev_b32 v{V_TMP}, 2, v{V_LX}")
        A(f"buffer_store_dword v{V_TID}, v{V_TMP}, s[{S_WS}:{S_WS+3}], s{S_T0} offen")
        if o.diag == 3 and o.fuse:
            A(f"s_lshl_b32 s{S_T0}, s2, 2")
            A(f"s_add_u32 s{S_T0}, s{S_T0}, s{S_W}")
            A(f"s_cmp_lg_u32 s{S_T0}, {o.sel}")
            A("s_cbranch_scc1 L_main_end")
            A(f"v_readlane_b32 s{S_T0}, v{V_TID}, 56")
            A(f"v_readlane_b32 s{S_T1}, v{V_TID}, 57")
            A(f"v_readlane_b32 s{S_STMP}, v{V_TID}, 58")
            A("s_nop 3")
            A(f"v_writelane_b32 v{V_TID}, s{S_T0}, 12")
            A(f"v_writelane_b32 v{V_TID}, s{S_T1}, 14")
            A(f"v_writelane_b32 v{V_TID}, s{S_STMP}, 15")
            A("s_mov_b64 exec, 0xffff")
            A(f"buffer_store_dword v{V_TID}, v{V_TMP}, s[{S_DBG}:{S_DBG+3}], 0 offen")
        if o.diag == 2:
            A("s_load_dwordx2 s[32:33], s[0:1], 88")
            A("v_readlane_b32 s36, v0, 10")
            A("v_readlane_b32 s37, v0, 8")
            A("s_mov_b32 s34, 64")
            A("s_mov_b32 s35, 0x20000")
            A("s_not_b32 s36, s36")
            A("s_not_b32 s37, s37")
            A("v_writelane_b32 v0, s36, 11")
            A("v_writelane_b32 v0, s37, 12")
            A("s_waitcnt lgkmcnt(0)")
            A(f"buffer_atomic_umax v0, v{V_TMP}, s[32:35], 0 offen sc1")
    g.lab("L_main_end")
    A("s_endpgm")


def fused_tail(g):
    o = g.o
    A = g.A
    T = S_KS
    g.stamp(7)
    A(f"s_lshr_b32 s{T+5}, s2, 3")
    A(f"s_and_b32 s{T+6}, s2, 7")
    A(f"s_mul_i32 s{T+7}, s{T+5}, {8*(81920+o.pad)}")
    A(f"s_lshl_b32 s{T+8}, s{T+6}, 3")
    A(f"s_lshl_b32 s{T+9}, s{S_W}, 1")
    A(f"s_add_u32 s{T+8}, s{T+8}, s{T+9}")
    A(f"s_lshl_b32 s{T+9}, s{T+6}, 1")
    A(f"s_lshr_b32 s{T+10}, s{S_W}, 1")
    A(f"s_add_u32 s{T+9}, s{T+9}, s{T+10}")
    A(f"s_add_u32 s{T+9}, s{T+9}, 64")
    A(f"s_lshl_b32 s{T+10}, s{T+8}, 10")
    A(f"s_add_u32 s{T+10}, s{T+10}, s{T+7}")
    A(f"s_lshl_b32 s{T+11}, s{T+9}, 10")
    A(f"s_add_u32 s{T+11}, s{T+11}, s{T+7}")
    A(f"s_and_b32 s{T+12}, s{T+5}, 15")
    A(f"s_mul_i32 s{T+12}, s{T+12}, {4*40960}")
    A(f"s_lshr_b32 s{T+13}, s{T+5}, 4")
    A(f"s_mul_i32 s{T+13}, s{T+13}, 1280")
    A(f"s_add_u32 s{T+12}, s{T+12}, s{T+13}")
    for blk, dst in ((T+8, T+14), (T+9, T+15)):
        A(f"s_bfe_u32 s{T+13}, s{blk}, 0x20002")
        A(f"s_mul_i32 s{T+13}, s{T+13}, 40960")
        A(f"s_add_u32 s{dst}, s{T+12}, s{T+13}")
        A(f"s_lshr_b32 s{T+13}, s{blk}, 4")
        A(f"s_lshl_b32 s{T+13}, s{T+13}, 8")
        A(f"s_add_u32 s{dst}, s{dst}, s{T+13}")
        A(f"s_and_b32 s{T+13}, s{blk}, 3")
        A(f"s_lshl_b32 s{T+13}, s{T+13}, 4")
        A(f"s_add_u32 s{dst}, s{dst}, s{T+13}")
    A(f"s_bitcmp1_b32 s{S_W}, 0")
    A(f"s_cselect_b32 s{T+16}, 0, -1")
    A(f"s_cselect_b32 s{T+17}, -1, 0")
    A(f"s_mov_b32 s{T+18}, 0x3f80")
    A(f"s_mov_b32 s{T+19}, 0x3f800000")
    A(f"s_mov_b32 s{T+20}, 0xffff0000")
    VO, VF, VP = 2, 3, 4
    A(f"v_bfe_u32 v{VO}, v{V_LX}, 4, 4")
    A(f"v_lshrrev_b32 v{VF}, 8, v{V_LX}")
    A(f"v_mul_u32_u24 v{VO}, 2560, v{VO}")
    A(f"v_lshl_add_u32 v{VO}, v{VF}, 6, v{VO}")
    A(f"v_lshlrev_b32 v{VF}, 3, v{V_LX}")
    A(f"s_lshl_b32 s{T+21}, s2, 7")
    A(f"s_add_u32 s{T+21}, s{T+21}, {WS_FLAG}")
    A(f"s_lshl_b32 s{T+22}, s{T+5}, 10")
    A(f"s_add_u32 s{T+22}, s{T+22}, {WS_FLAG}")
    A(f"s_mov_b32 s{T+23}, {1<<20}")
    A(f"v_mov_b32 v{VP}, 1")
    A("s_waitcnt vmcnt(0)")
    A("s_barrier")
    g.stamp(56)
    A(f"s_cmp_lg_u32 s{S_W}, 0")
    A("s_cbranch_scc1 L_polled")
    A("s_mov_b64 exec, 1")
    A(f"buffer_store_dword v{VP}, off, s[{S_WS}:{S_WS+3}], s{T+21} sc1")
    g.lab("L_clr")
    A(f"v_readfirstlane_b32 s{T+24}, v{V_B}")
    A(f"s_sub_u32 s{T+23}, s{T+23}, 1")
    A("s_cbranch_scc1 L_polled")
    A(f"s_cmp_ge_u32 s{T+24}, 8")
    A("s_cbranch_scc1 L_poll0")
    A(f"buffer_load_dword v{V_B}, off, s[{S_DBG}:{S_DBG+3}], s{S_KS+4} sc1")
    A("s_waitcnt vmcnt(0)")
    A("s_branch L_clr")
    g.lab("L_poll0")
    A("s_mov_b64 exec, 0xff")
    g.lab("L_poll")
    A(f"buffer_load_dword v{VP}, v{VF}, s[{S_WS}:{S_WS+3}], s{T+22} offen sc1")
    A(f"s_sub_u32 s{T+23}, s{T+23}, 1")
    A("s_cbranch_scc1 L_polled")
    A("s_waitcnt vmcnt(0)")
    A(f"v_cmp_ne_u32 s[{T+24}:{T+25}], 1, v{VP}")
    A("s_nop 3")
    A(f"s_cmp_lg_u32 s{T+24}, 0")
    A("s_cbranch_scc1 L_poll")
    g.lab("L_polled")
    A("s_mov_b64 exec, -1")
    A("s_waitcnt vmcnt(0)")
    A("s_barrier")
    g.stamp(57)
    R = RING
    for h in range(8):
        A(f"buffer_load_dwordx4 {vr(R+h*12)}, v{V_LX}, s[{S_WS}:{S_WS+3}], s{T+10} offen sc1")
        A(f"buffer_load_dwordx4 {vr(R+h*12+4)}, v{V_LX}, s[{S_WS}:{S_WS+3}], s{T+10} offen offset:1024 sc1")
        A(f"s_mov_b64 exec, s[{T+16}:{T+17}]")
        A(f"buffer_load_dwordx4 {vr(R+h*12+8)}, v{V_LX}, s[{S_WS}:{S_WS+3}], s{T+11} offen sc1")
        A("s_mov_b64 exec, -1")
        if h < 7:
            A(f"s_add_u32 s{T+10}, s{T+10}, {81920+o.pad}")
            A(f"s_add_u32 s{T+11}, s{T+11}, {81920+o.pad}")
    for h in range(8):
        for b in range(3):
            A(f"s_waitcnt vmcnt({23-h*3-b})")
            for t in range(4):
                src = R + h * 12 + b * 4 + t
                d = ACC + b * 8 + 2 * t
                if h == 0:
                    A(f"v_lshlrev_b32 v{d}, 16, v{src}")
                    A(f"v_and_b32 v{d+1}, s{T+20}, v{src}")
                else:
                    A(f"v_dot2c_f32_bf16 v{d}, s{T+18}, v{src}")
                    A(f"v_dot2c_f32_bf16 v{d+1}, s{T+19}, v{src}")
    g.stamp(58)
    A("s_nop 1")
    for b in range(3):
        for t in range(4):
            A(f"v_cvt_pk_bf16_f32 v{PERM+b*4+t}, v{ACC+b*8+2*t}, v{ACC+b*8+2*t+1}")
        if b == 2:
            A(f"s_mov_b64 exec, s[{T+16}:{T+17}]")
        A(f"buffer_store_dwordx4 {vr(PERM+b*4)}, v{VO}, s[{S_OUT}:{S_OUT+3}], s{T+14+b//2} offen offset:{16*(b%2)} {o.pout}")
    if o.diag:
        A("s_mov_b64 exec, -1")


VO2, VF2, VP2, VQ2 = 6, 7, 8, 9


def flag_base(g, d, t):
    A = g.A
    if g.o.fl:
        A(f"s_lshr_b32 s{d}, s2, 3")
        A(f"s_lshl_b32 s{d}, s{d}, 9")
        A(f"s_and_b32 s{t}, s2, 7")
        A(f"s_lshl_b32 s{t}, s{t}, 2")
        A(f"s_add_u32 s{d}, s{d}, s{t}")
    else:
        A(f"s_lshl_b32 s{d}, s2, 9")
    A(f"s_add_u32 s{d}, s{d}, {WS_FLAG}")


def tail2_addr(g):
    o = g.o
    A = g.A
    T = S_KS
    A(f"s_lshr_b32 s{T+5}, s2, 3")
    A(f"s_and_b32 s{T+6}, s2, 7")
    A(f"s_mul_i32 s{T+7}, s{T+5}, {8*(81920+o.pad)}")
    A(f"s_lshl_b32 s{T+8}, s{T+6}, 3")
    A(f"s_mul_i32 s{T+9}, s{S_W}, 3")
    A(f"s_add_u32 s{T+8}, s{T+8}, s{T+9}")
    A(f"s_lshl_b32 s{T+9}, s{T+6}, 1")
    A(f"s_add_u32 s{T+9}, s{T+9}, 64")
    A(f"s_cmp_eq_u32 s{S_W}, 3")
    A(f"s_cselect_b32 s{T+8}, s{T+9}, s{T+8}")
    A(f"s_cselect_b32 s{T+17}, 2, 1")
    A(f"s_lshl_b32 s{T+10}, s{T+8}, 10")
    A(f"s_add_u32 s{T+10}, s{T+10}, s{T+7}")
    A(f"s_and_b32 s{T+12}, s{T+5}, 15")
    A(f"s_mul_i32 s{T+12}, s{T+12}, {4*40960}")
    A(f"s_lshr_b32 s{T+13}, s{T+5}, 4")
    A(f"s_mul_i32 s{T+13}, s{T+13}, 1280")
    A(f"s_add_u32 s{T+12}, s{T+12}, s{T+13}")
    for b in range(3):
        dst = T + 14 + b
        A(f"s_bfe_u32 s{T+13}, s{T+8}, 0x20002")
        A(f"s_mul_i32 s{T+13}, s{T+13}, 40960")
        A(f"s_add_u32 s{dst}, s{T+12}, s{T+13}")
        A(f"s_lshr_b32 s{T+13}, s{T+8}, 4")
        A(f"s_lshl_b32 s{T+13}, s{T+13}, 8")
        A(f"s_add_u32 s{dst}, s{dst}, s{T+13}")
        A(f"s_and_b32 s{T+13}, s{T+8}, 3")
        A(f"s_lshl_b32 s{T+13}, s{T+13}, 4")
        A(f"s_add_u32 s{dst}, s{dst}, s{T+13}")
        if b < 2:
            A(f"s_add_u32 s{T+8}, s{T+8}, 1")
    A(f"s_mov_b32 s{T+18}, 0x3f80")
    A(f"s_mov_b32 s{T+19}, 0x3f800000")
    A(f"s_mov_b32 s{T+20}, 0xffff0000")
    A(f"v_bfe_u32 v{VO2}, v{V_LX}, 4, 4")
    A(f"v_lshrrev_b32 v{VF2}, 8, v{V_LX}")
    A(f"v_mul_u32_u24 v{VO2}, 2560, v{VO2}")
    A(f"v_lshl_add_u32 v{VO2}, v{VF2}, 6, v{VO2}")
    if o.fl:
        A(f"v_lshrrev_b32 v{VF2}, 2, v{V_LX}")
    else:
        A(f"v_lshlrev_b32 v{VF2}, 5, v{V_LX}")
    flag_base(g, T + 21, T + 13)
    A(f"s_lshl_b32 s{T+13}, s{S_W}, 7")
    A(f"s_add_u32 s{T+21}, s{T+21}, s{T+13}")
    A(f"s_lshl_b32 s{T+22}, s{T+5}, {9 if o.fl else 12}")
    A(f"s_lshr_b32 s{T+13}, s{T+6}, 1")
    A(f"s_lshl_b32 s{T+13}, s{T+13}, 7")
    A(f"s_add_u32 s{T+22}, s{T+22}, s{T+13}")
    A(f"s_add_u32 s{T+22}, s{T+22}, {WS_FLAG}")
    A(f"s_mov_b32 s{T+23}, {1<<20}")
    A(f"v_mov_b32 v{VP2}, 1")
    A(f"v_mov_b32 v{VQ2}, 2")


def tail2_flag(g, val):
    A = g.A
    T = S_KS
    for k in range(len(g.vq)):
        g.vq[k] = []
    A("s_waitcnt vmcnt(0)")
    g.stamp(59)
    A("s_mov_b64 exec, 1")
    A(f"buffer_store_dword v{VP2}, off, s[{S_WS}:{S_WS+3}], s{T+21} sc1")
    A("s_mov_b64 exec, -1")


def tail2(g):
    o = g.o
    A = g.A
    T = S_KS
    g.stamp(7)
    A("s_mov_b64 exec, 1")
    g.lab("L_clr")
    A(f"v_readfirstlane_b32 s{T+24}, v{V_B}")
    A(f"s_sub_u32 s{T+23}, s{T+23}, 1")
    A("s_cbranch_scc1 L_polled")
    A(f"s_cmp_ge_u32 s{T+24}, 8")
    A("s_cbranch_scc1 L_poll0")
    A(f"buffer_load_dword v{V_B}, off, s[{S_DBG}:{S_DBG+3}], s{S_KS+4} sc1")
    A("s_waitcnt vmcnt(0)")
    A("s_branch L_clr")
    g.lab("L_poll0")
    A("s_mov_b64 exec, 0xff")
    A(f"buffer_load_dword v{VP2}, v{VF2}, s[{S_WS}:{S_WS+3}], s{T+22} offen sc1")
    A("s_waitcnt vmcnt(1)")
    g.stamp(56)
    A("s_mov_b64 exec, 1")
    A(f"buffer_store_dword v{VQ2}, off, s[{S_WS}:{S_WS+3}], s{T+21} sc1")
    A("s_mov_b64 exec, 0xff")
    A("s_waitcnt vmcnt(1)")
    g.stamp(61)
    g.lab("L_poll")
    A(f"v_cmp_gt_u32 s[{T+24}:{T+25}], s{T+17}, v{VP2}")
    A(f"s_sub_u32 s{T+23}, s{T+23}, 1")
    A("s_cbranch_scc1 L_polled")
    A("s_nop 2")
    A(f"s_cmp_eq_u32 s{T+24}, 0")
    A("s_cbranch_scc1 L_polled")
    A(f"buffer_load_dword v{VP2}, v{VF2}, s[{S_WS}:{S_WS+3}], s{T+22} offen sc1")
    A("s_waitcnt vmcnt(0)")
    A("s_branch L_poll")
    g.lab("L_polled")
    A("s_mov_b64 exec, -1")
    g.stamp(57)
    R = RING
    A(f"s_cmp_ge_u32 s{S_W}, 2")
    A("s_cbranch_scc1 L_two")
    for nb in (3, 2):
        if nb == 2:
            g.lab("L_two")
        for h in range(8):
            for b in range(nb):
                A(f"buffer_load_dwordx4 {vr(R+h*12+b*4)}, v{V_LX}, s[{S_WS}:{S_WS+3}], s{T+10} offen offset:{b*1024} sc1")
            if h < 7:
                A(f"s_add_u32 s{T+10}, s{T+10}, {81920+o.pad}")
        for h in range(8):
            for b in range(nb):
                A(f"s_waitcnt vmcnt({8*nb-1-h*nb-b})")
                for t in range(4):
                    src = R + h * 12 + b * 4 + t
                    d = ACC + b * 8 + 2 * t
                    if h == 0:
                        A(f"v_lshlrev_b32 v{d}, 16, v{src}")
                        A(f"v_and_b32 v{d+1}, s{T+20}, v{src}")
                    else:
                        A(f"v_dot2c_f32_bf16 v{d}, s{T+18}, v{src}")
                        A(f"v_dot2c_f32_bf16 v{d+1}, s{T+19}, v{src}")
        g.stamp(58)
        A("s_nop 1")
        for b in range(nb):
            for t in range(4):
                A(f"v_cvt_pk_bf16_f32 v{PERM+b*4+t}, v{ACC+b*8+2*t}, v{ACC+b*8+2*t+1}")
            A(f"buffer_store_dwordx4 {vr(PERM+b*4)}, v{VO2}, s[{S_OUT}:{S_OUT+3}], s{T+14+b} offen {o.pout}")
        if nb == 3:
            A("s_branch L_summed" if o.diag else "s_endpgm")
    g.lab("L_summed")


def pick(g, name, n, sel, body):
    A = g.A
    for k in range(n):
        if k < n - 1:
            A(f"s_cmp_lg_u32 {sel}, {k}")
            A(f"s_cbranch_scc1 L_pk{name}{k}")
        for x in body(k):
            A(x)
        if k < n - 1:
            A(f"s_branch L_pk{name}e")
            g.lab(f"L_pk{name}{k}")
    g.lab(f"L_pk{name}e")


VC3, VS3, VD3 = 12, 13, 14


def own_main(h):
    out = []
    for b in range(2):
        for j in range(8):
            x = ACC + (h >> 1) * 32 + j * 4 + 2 * b
            out.append(f"v_permlane32_swap_b32 v{x}, v{x+1}")
    for b in range(2):
        for j in range(8):
            out.append(f"v_mov_b32 v{PERM+b*8+j}, v{ACC+(h>>1)*32+j*4+2*b+(h&1)}")
    return out


def tail3_addr(g):
    o = g.o
    A = g.A
    T = S_KS
    assert o.fl
    A(f"v_accvgpr_read_b32 v{V_B}, a96")
    A(f"s_lshr_b32 s{T+5}, s2, 3")
    A(f"s_mul_i32 s{T+7}, s{T+5}, {8*(81920+o.pad)}")
    A(f"s_lshl_b32 s{T+8}, s{S_W}, 14")
    A(f"s_lshl_b32 s{T+6}, s{S_HQ}, 11")
    A(f"s_add_u32 s{T+8}, s{T+8}, s{T+6}")
    A(f"s_add_u32 s{T+10}, s{T+8}, s{T+7}")
    for k in range(8):
        A(f"s_add_u32 s{T+13}, s{S_HQ}, {k}")
        A(f"s_and_b32 s{T+13}, s{T+13}, 7")
        A(f"s_mul_i32 s{T+13}, s{T+13}, {81920+o.pad}")
        A(f"s_add_u32 s{S_XC+k}, s{T+10}, s{T+13}")
    A(f"s_lshl_b32 s{T+6}, s{S_W}, 12")
    A(f"s_lshl_b32 s{T+13}, s{S_HQ}, 9")
    A(f"s_add_u32 s{T+6}, s{T+6}, s{T+13}")
    A(f"s_add_u32 s{T+6}, s{T+6}, 65536")
    A(f"s_sub_u32 s{T+13}, s{T+6}, s{T+8}")
    A(f"v_add_u32 v{VC3}, s{T+13}, v{V_LX}")
    A(f"v_bfe_u32 v{VS3}, v{V_LX}, 6, 2")
    A(f"v_lshrrev_b32 v{VD3}, 9, v{V_LX}")
    A(f"v_lshl_add_u32 v{VS3}, v{VS3}, 1, v{VD3}")
    A(f"v_bfe_u32 v{VD3}, v{V_LX}, 4, 2")
    A(f"v_bfe_u32 v{VF2}, v{V_LX}, 8, 1")
    A(f"v_lshl_add_u32 v{VD3}, v{VD3}, 1, v{VF2}")
    A(f"v_lshlrev_b32 v{VD3}, 4, v{VD3}")
    A(f"v_lshl_add_u32 v{VS3}, v{VS3}, 9, v{VD3}")
    A(f"s_and_b32 s{T+12}, s{T+5}, 15")
    A(f"s_mul_i32 s{T+12}, s{T+12}, {4*40960}")
    A(f"s_lshr_b32 s{T+13}, s{T+5}, 4")
    A(f"s_mul_i32 s{T+13}, s{T+13}, 1280")
    A(f"s_add_u32 s{T+12}, s{T+12}, s{T+13}")
    A(f"s_and_b32 s{T+13}, s{S_HQ}, 1")
    A(f"s_lshl_b32 s{T+13}, s{T+13}, 7")
    A(f"s_add_u32 s{T+12}, s{T+12}, s{T+13}")
    A(f"s_mul_i32 s{T+13}, s{T+9}, 40960")
    A(f"s_add_u32 s{T+14}, s{T+12}, s{T+13}")
    A(f"s_lshl_b32 s{T+13}, s{S_W}, 8")
    A(f"s_add_u32 s{T+14}, s{T+14}, s{T+13}")
    A(f"s_lshl_b32 s{T+13}, s{S_W}, 2")
    A(f"s_add_u32 s{T+13}, s{T+13}, s{T+9}")
    A(f"s_mul_i32 s{T+13}, s{T+13}, 10240")
    A(f"s_add_u32 s{T+15}, s{T+12}, s{T+13}")
    A(f"s_add_u32 s{T+15}, s{T+15}, 1024")
    A(f"s_mov_b32 s{T+18}, 0x3f80")
    A(f"s_mov_b32 s{T+19}, 0x3f800000")
    A(f"s_mov_b32 s{T+20}, 0xffff0000")
    A(f"v_bfe_u32 v{VO2}, v{V_LX}, 4, 4")
    A(f"v_bfe_u32 v{VF2}, v{V_LX}, 8, 1")
    A(f"v_mul_u32_u24 v{VO2}, 2560, v{VO2}")
    A(f"v_lshl_add_u32 v{VO2}, v{VF2}, 6, v{VO2}")
    A(f"v_lshrrev_b32 v{VF2}, 9, v{V_LX}")
    A(f"v_lshl_add_u32 v{VO2}, v{VF2}, 4, v{VO2}")
    if o.full:
        A(f"v_bfe_u32 v{VF2}, v{V_LX}, 7, 1")
        A(f"v_mul_u32_u24 v{VF2}, {8*2560-32}, v{VF2}")
        A(f"v_sub_u32 v{VO2}, v{VO2}, v{VF2}")
    A(f"v_bfe_u32 v{VD3}, v{V_LX}, 5, 2")
    A(f"v_bfe_u32 v{VF2}, v{V_LX}, 4, 1")
    A(f"v_mul_u32_u24 v{VD3}, 2560, v{VD3}")
    A(f"v_lshl_add_u32 v{VD3}, v{VF2}, 6, v{VD3}")
    A(f"v_lshrrev_b32 v{VF2}, 7, v{V_LX}")
    A(f"v_lshl_add_u32 v{VD3}, v{VF2}, 4, v{VD3}")
    A(f"v_lshrrev_b32 v{VF2}, 2, v{V_LX}")
    A(f"s_lshl_b32 s{T+22}, s{T+5}, 9")
    A(f"s_lshl_b32 s{T+13}, s{S_W}, 7")
    A(f"s_add_u32 s{T+22}, s{T+22}, s{T+13}")
    A(f"s_add_u32 s{T+22}, s{T+22}, {WS_FLAG}")
    A(f"s_lshl_b32 s{T+13}, s{S_HQ}, 2")
    A(f"s_add_u32 s{T+21}, s{T+22}, s{T+13}")
    A(f"s_lshl_b32 s{T+13}, 1, s{S_HQ}")
    A(f"s_andn2_b32 s{T+28}, 0xff, s{T+13}")
    A(f"s_mov_b32 s{T+29}, 0")
    A(f"s_mov_b32 s{T+16}, -1")
    A(f"s_mov_b32 s{T+17}, 0")
    A(f"s_mov_b32 s{T+23}, {1<<20}")
    A(f"v_mov_b32 v{VP2}, 1")
    A(f"v_mov_b32 v{VQ2}, 2")


def tail3(g):
    o = g.o
    A = g.A
    T = S_KS
    WS = f"s[{S_WS}:{S_WS+3}]"
    PM = f"s[{T+28}:{T+29}]"
    HALF = f"s[{T+16}:{T+17}]"
    SM, SC, ST = PERM, ACC + 48, ACC + 64
    poll = f"buffer_load_dword v{VP2}, v{VF2}, {WS}, s{T+22} offen sc1"
    g.stamp(7)
    A("s_mov_b64 exec, 1")
    g.lab("L_clr")
    A(f"v_readfirstlane_b32 s{T+24}, v{V_B}")
    A(f"s_sub_u32 s{T+23}, s{T+23}, 1")
    A("s_cbranch_scc1 L_poll0")
    A(f"s_cmp_ge_u32 s{T+24}, 8")
    A("s_cbranch_scc1 L_poll0")
    A(f"buffer_load_dword v{V_B}, off, s[{S_DBG}:{S_DBG+3}], s{S_KS+4} sc1")
    A("s_waitcnt vmcnt(0)")
    A("s_branch L_clr")
    g.lab("L_poll0")
    A(f"s_max_i32 s{T+23}, s{T+23}, 0")
    A(f"s_mov_b64 exec, {PM}")
    A(poll)
    A("s_waitcnt vmcnt(1)")
    g.stamp(56)
    A("s_mov_b64 exec, 1")
    A(f"buffer_store_dword v{VQ2}, off, {WS}, s{T+21} sc1")
    A(f"s_mov_b64 exec, {PM}")
    A("s_waitcnt vmcnt(1)")
    g.stamp(61)

    def wait(val, lab):
        g.lab(lab)
        A(f"v_cmp_gt_u32 s[{T+24}:{T+25}], {val}, v{VP2}")
        A(f"s_sub_u32 s{T+23}, s{T+23}, 1")
        A(f"s_cbranch_scc1 {lab}e")
        A("s_nop 2")
        A(f"s_cmp_eq_u32 s{T+24}, 0")
        A(f"s_cbranch_scc1 {lab}e")
        A(poll)
        A("s_waitcnt vmcnt(0)")
        A(f"s_branch {lab}")
        g.lab(lab + "e")
        A(f"s_max_i32 s{T+23}, s{T+23}, 0")

    def summ(dst, src):
        for t in range(4):
            A(f"v_dot2c_f32_bf16 v{dst+2*t}, s{T+18}, v{src+t}")
            A(f"v_dot2c_f32_bf16 v{dst+2*t+1}, s{T+19}, v{src+t}")

    def main_sum(younger):
        for k in range(7):
            for b in range(2):
                A(f"s_waitcnt vmcnt({13-2*k-b+younger})")
                summ(SM + b * 8, RING + k * 12 + b * 4)

    def c4_loads():
        A(f"s_mov_b64 exec, {HALF}")
        for k in range(8):
            A(f"buffer_load_dwordx4 {vr(RING+k*12+8)}, v{VC3}, {WS}, s{S_XC+k} offen sc1")
        A("s_mov_b64 exec, -1")

    def rest():
        A("s_nop 1")
        if o.full:
            for b in range(2):
                for t in range(4):
                    A(f"v_cvt_pk_bf16_f32 v{ST+b*4+t}, v{SM+b*8+2*t}, v{SM+b*8+2*t+1}")
            for t in range(4):
                A(f"v_mov_b32 v{ST+12+t}, v{ST+t}")
            A(f"s_add_u32 s{T+13}, s{T+14}, {8*2560}")
            for t in range(4):
                A(f"v_mov_b32_dpp v{ST+t}, v{ST+4+t} row_ror:8 row_mask:0xf bank_mask:0xc")
            for t in range(4):
                A(f"v_mov_b32_dpp v{ST+4+t}, v{ST+12+t} row_ror:8 row_mask:0xf bank_mask:0x3")
            A(f"buffer_store_dwordx4 {vr(ST)}, v{VO2}, s[{S_OUT}:{S_OUT+3}], s{T+14} offen {o.pout}")
            A(f"buffer_store_dwordx4 {vr(ST+4)}, v{VO2}, s[{S_OUT}:{S_OUT+3}], s{T+13} offen {o.pout}")
        for b in range(2 if not o.full else 0):
            for t in range(4):
                A(f"v_cvt_pk_bf16_f32 v{ST+b*4+t}, v{SM+b*8+2*t}, v{SM+b*8+2*t+1}")
            A(f"buffer_store_dwordx4 {vr(ST+b*4)}, v{VO2}, s[{S_OUT}:{S_OUT+3}], s{T+14} offen offset:{32*b} {o.pout}")
        for k in range(8):
            A(f"s_waitcnt vmcnt({7-k+2})")
            if k == 0:
                for t in range(4):
                    A(f"v_lshlrev_b32 v{SC+2*t}, 16, v{RING+8+t}")
                    A(f"v_and_b32 v{SC+2*t+1}, s{T+20}, v{RING+8+t}")
            else:
                summ(SC, RING + k * 12 + 8)
        g.stamp(58)
        A("s_nop 1")
        for t in range(4):
            A(f"v_cvt_pk_bf16_f32 v{ST+8+t}, v{SC+2*t}, v{SC+2*t+1}")
        A(f"s_mov_b64 exec, {HALF}")
        A(f"buffer_store_dwordx4 {vr(ST+8)}, v{VD3}, s[{S_OUT}:{S_OUT+3}], s{T+15} offen {o.pout}")
        if o.diag:
            A("s_mov_b64 exec, -1")

    wait(1 if o.ph == 2 else 2, "L_p1")
    if o.ph == 2:
        A(f"v_cmp_gt_u32 s[{T+24}:{T+25}], 2, v{VP2}")
    A("s_mov_b64 exec, -1")
    g.stamp(57)
    def mloads(lo, hi):
        for n in range(lo, hi):
            k, b = n // 2, n % 2
            A(f"buffer_load_dwordx4 {vr(RING+k*12+b*4)}, v{V_LX}, {WS}, s{S_XC+1+k} offen offset:{b*1024} sc1")

    def msum(lo, hi, younger):
        for n in range(lo, hi):
            k, b = n // 2, n % 2
            A(f"s_waitcnt vmcnt({hi-1-n+younger})")
            summ(SM + b * 8, RING + k * 12 + b * 4)

    if o.mid:
        M = o.mid
        end = "s_branch L_summed" if o.diag else "s_endpgm"
        mloads(0, M)
        A(f"s_cmp_eq_u32 s{T+24}, 0")
        A("s_cbranch_scc1 L_fast")
        A(f"s_mov_b64 exec, {PM}")
        A(poll)
        A("s_mov_b64 exec, -1")
        mloads(M, 14)
        msum(0, M, 14 - M + 1)
        A(f"s_waitcnt vmcnt({14-M})")
        A(f"s_mov_b64 exec, {PM}")
        A(f"v_cmp_gt_u32 s[{T+24}:{T+25}], 2, v{VP2}")
        A("s_nop 3")
        A(f"s_cmp_eq_u32 s{T+24}, 0")
        A("s_cbranch_scc1 L_mid")
        A(poll)
        A("s_mov_b64 exec, -1")
        msum(M, 14, 1)
        A("s_waitcnt vmcnt(0)")
        A(f"s_mov_b64 exec, {PM}")
        wait(2, "L_p2")
        c4_loads()
        rest()
        A(end)
        g.lab("L_mid")
        c4_loads()
        msum(M, 14, 8)
        rest()
        A(end)
        g.lab("L_fast")
        mloads(M, 14)
        c4_loads()
        main_sum(8)
        rest()
        g.lab("L_summed")
        return
    for k in range(7):
        for b in range(2):
            A(f"buffer_load_dwordx4 {vr(RING+k*12+b*4)}, v{V_LX}, {WS}, s{S_XC+1+k} offen offset:{b*1024} sc1")
    if o.ph == 2:
        A(f"s_cmp_eq_u32 s{T+24}, 0")
        A("s_cbranch_scc1 L_fast")
        A(f"s_mov_b64 exec, {PM}")
        A(poll)
        A("s_mov_b64 exec, -1")
        main_sum(1)
        A("s_waitcnt vmcnt(0)")
        A(f"s_mov_b64 exec, {PM}")
        wait(2, "L_p2")
        c4_loads()
        rest()
        A("s_branch L_summed" if o.diag else "s_endpgm")
        g.lab("L_fast")
    c4_loads()
    main_sum(8)
    rest()
    g.lab("L_summed")


def tail4_poll(g):
    A = g.A
    T = S_KS
    A("s_mov_b64 exec, 1")
    g.lab("L_clr")
    A(f"v_readfirstlane_b32 s{T+24}, v{V_B}")
    A(f"s_sub_u32 s{T+23}, s{T+23}, 1")
    A("s_cbranch_scc1 L_poll0")
    A(f"s_cmp_ge_u32 s{T+24}, 8")
    A("s_cbranch_scc1 L_poll0")
    A(f"buffer_load_dword v{V_B}, off, s[{S_DBG}:{S_DBG+3}], s{S_KS+4} sc1")
    A("s_waitcnt vmcnt(0)")
    A("s_branch L_clr")
    g.lab("L_poll0")
    A(f"s_max_i32 s{T+23}, s{T+23}, 0")
    A(f"s_mov_b64 exec, s[{T+28}:{T+29}]")
    A(f"buffer_load_dword v15, v{VF2}, s[{S_WS}:{S_WS+3}], s{T+22} offen sc1")
    A("s_mov_b64 exec, -1")


def tail4(g):
    o = g.o
    A = g.A
    T = S_KS
    WS = f"s[{S_WS}:{S_WS+3}]"
    PM = f"s[{T+28}:{T+29}]"
    HALF = f"s[{T+16}:{T+17}]"
    SM, SC, ST, VP, VM = PERM, ACC + 48, ACC + 64, 15, ACC + 80
    PEND, OK2 = T + 11, T + 10
    poll = f"buffer_load_dword v{VP}, v{VF2}, {WS}, s{T+22} offen sc1"
    g.stamp(7)
    A(f"s_mov_b64 exec, {PM}")
    A("s_waitcnt vmcnt(4)")
    g.stamp(61)
    g.lab("L_p1")
    A(f"v_cmp_gt_u32 s[{T+24}:{T+25}], 1, v{VP}")
    A(f"s_sub_u32 s{T+23}, s{T+23}, 1")
    A("s_cbranch_scc1 L_p1e")
    A("s_nop 2")
    A(f"s_cmp_eq_u32 s{T+24}, 0")
    A("s_cbranch_scc1 L_p1e")
    A(poll)
    A("s_waitcnt vmcnt(0)")
    A("s_branch L_p1")
    g.lab("L_p1e")
    A(f"s_max_i32 s{T+23}, s{T+23}, 0")
    A("s_mov_b64 exec, -1")
    g.stamp(57)
    for k in range(7):
        for b in range(2):
            A(f"buffer_load_dwordx4 {vr(RING+k*12+b*4)}, v{V_LX}, {WS}, s{S_XC+1+k} offen offset:{b*1024} sc1")
    A(f"s_mov_b64 exec, {HALF}")
    order = [1, 2, 3, 4, 5, 6, 7, 0]
    for k in order:
        A(f"buffer_load_dwordx4 {vr(RING+k*12+8)}, v{VC3}, {WS}, s{S_XC+k} offen sc1")
    A("s_mov_b64 exec, -1")

    def summ(dst, src):
        for t in range(4):
            A(f"v_dot2c_f32_bf16 v{dst+2*t}, s{T+18}, v{src+t}")
            A(f"v_dot2c_f32_bf16 v{dst+2*t+1}, s{T+19}, v{src+t}")

    for k in range(7):
        for b in range(2):
            A(f"s_waitcnt vmcnt({13-2*k-b+8+(1 if (k, b) > (0, 0) else 0)})")
            if (k, b) == (0, 0):
                g.stamp(56)
                A("s_mov_b64 exec, 1")
                A(f"buffer_store_dword v{VQ2}, off, {WS}, s{T+21} sc1")
                A("s_mov_b64 exec, -1")
            summ(SM + b * 8, RING + k * 12 + b * 4)
    A("s_nop 1")
    assert o.full
    for b in range(2):
        for t in range(4):
            A(f"v_cvt_pk_bf16_f32 v{ST+b*4+t}, v{SM+b*8+2*t}, v{SM+b*8+2*t+1}")
    for t in range(4):
        A(f"v_mov_b32 v{ST+12+t}, v{ST+t}")
    A(f"s_add_u32 s{T+13}, s{T+14}, {8*2560}")
    for t in range(4):
        A(f"v_mov_b32_dpp v{ST+t}, v{ST+4+t} row_ror:8 row_mask:0xf bank_mask:0xc")
    for t in range(4):
        A(f"v_mov_b32_dpp v{ST+4+t}, v{ST+12+t} row_ror:8 row_mask:0xf bank_mask:0x3")
    A(f"buffer_store_dwordx4 {vr(ST)}, v{VO2}, s[{S_OUT}:{S_OUT+3}], s{T+14} offen {o.pout}")
    A(f"buffer_store_dwordx4 {vr(ST+4)}, v{VO2}, s[{S_OUT}:{S_OUT+3}], s{T+13} offen {o.pout}")
    A(f"s_mov_b64 exec, {HALF}")
    A(f"s_mov_b32 s{OK2}, 1")
    A("s_waitcnt vmcnt(3)")
    g.lab("L_chk")
    for k in range(8):
        x = RING + k * 12 + 8
        A(f"v_max3_u32 v{VM+k}, v{x}, v{x+1}, v{x+2}")
    for k in range(8):
        A(f"v_max_u32 v{VM+k}, v{VM+k}, v{RING+k*12+11}")
    for k in range(8):
        A(f"v_cmp_eq_u32 s[{S_XC+8+2*(k%4)}:{S_XC+9+2*(k%4)}], -1, v{VM+k}")
        if k % 4 == 3:
            if k == 3:
                A(f"s_mov_b32 s{PEND}, 0")
            A("s_nop 3")
            for kk in range(k - 3, k + 1):
                A(f"s_cmp_lg_u32 s{S_XC+8+2*(kk%4)}, 0")
                A(f"s_cselect_b32 s{T+13}, {1 << kk}, 0")
                A(f"s_or_b32 s{PEND}, s{PEND}, s{T+13}")
    A("s_cbranch_scc0 L_chke")
    A(f"s_cmp_eq_u32 s{OK2}, 0")
    A("s_cbranch_scc1 L_chke")
    A(f"s_sub_u32 s{T+23}, s{T+23}, 1")
    A("s_cbranch_scc1 L_chke")
    A("s_mov_b64 exec, 0xff")
    A(f"v_cmp_gt_u32 s[{T+24}:{T+25}], 2, v8")
    A(f"buffer_load_dword v8, v{VF2}, {WS}, s{T+22} offen sc1")
    A(f"s_mov_b64 exec, {HALF}")
    for k in range(8):
        A(f"s_bitcmp0_b32 s{PEND}, {k}")
        A(f"s_cbranch_scc1 L_nr{k}")
        A(f"buffer_load_dwordx4 {vr(RING+k*12+8)}, v{VC3}, {WS}, s{S_XC+k} offen sc1")
        g.lab(f"L_nr{k}")
    A(f"s_mov_b32 s{OK2}, s{T+24}")
    A("s_waitcnt vmcnt(0)")
    A("s_branch L_chk")
    g.lab("L_chke")
    for t in range(4):
        A(f"v_lshlrev_b32 v{SC+2*t}, 16, v{RING+8+t}")
        A(f"v_and_b32 v{SC+2*t+1}, s{T+20}, v{RING+8+t}")
    for k in range(1, 8):
        summ(SC, RING + k * 12 + 8)
    g.stamp(58)
    A("s_nop 1")
    for t in range(4):
        A(f"v_cvt_pk_bf16_f32 v{ST+8+t}, v{SC+2*t}, v{SC+2*t+1}")
    A(f"buffer_store_dwordx4 {vr(ST+8)}, v{VD3}, s[{S_OUT}:{S_OUT+3}], s{T+15} offen {o.pout}")
    if o.diag:
        A("s_mov_b64 exec, -1")


def stage_c_dp(g, step, fq, emit):
    o = g.o
    A = g.A
    T = S_KS
    WS = f"s[{S_WS}:{S_WS+3}]"

    def q(gap, ins, kind):
        fq.append((gap, ins, kind))

    def dsop(x, tag):
        return lambda: g.ds(x, tag)

    def waitall():
        for k in range(len(g.vq)):
            g.vq[k] = []
        return "s_waitcnt vmcnt(0)"

    def store(reg, soff, r):
        return ("vm", f"buffer_store_dwordx4 {vr(reg)}, v{V_LX}, {WS}, s{soff} offen offset:{r*1024} {o.pst}", "st")

    def pkadd(d, a):
        return f"v_pk_add_f32 v[{d}:{d+1}], v[{d}:{d+1}], v[{a}:{a+1}]"

    def cvts(dst, acc, r):
        return [f"v_cvt_pk_bf16_f32 v{dst+t}, v{acc+(2*t)*4+r}, v{acc+(2*t+1)*4+r}" for t in range(4)]
    A(f"s_lshl_b32 s{T}, s{S_W}, 13")
    A(f"s_add_u32 s{T}, s{T}, s{S_ST}")
    A(f"s_add_u32 s{T+1}, s{T}, 4096")
    A(f"s_add_u32 s{T+2}, s{T}, 32768")
    A(f"s_add_u32 s{T+3}, s{T}, {32768+4096}")
    A(f"s_lshl_b32 s{T+5}, s{S_W}, 12")
    A(f"s_add_u32 s{T+5}, s{T+5}, s{S_ST}")
    A(f"s_add_u32 s{T+5}, s{T+5}, 65536")
    A(f"s_lshr_b32 s{T+4}, s2, 3")
    A(f"s_lshl_b32 s{T+4}, s{T+4}, 2")
    A(f"s_add_u32 s{T+4}, s{T+4}, 128")
    A(f"s_xor_b32 s{T+6}, s{S_W}, 1")
    A(f"s_lshl_b32 s{T+6}, s{T+6}, 14")
    A(f"s_add_u32 s{T+6}, s{T+6}, {LDS_R}")
    A(f"s_lshl_b32 s{T+7}, s{S_W}, 14")
    A(f"s_add_u32 s{T+7}, s{T+7}, {LDS_R}")
    U = S_XC
    pre = []
    P = pre.append
    P(f"s_lshr_b32 s{U}, s2, 3")
    P(f"s_and_b32 s{U+1}, s2, 7")
    P(f"s_mul_i32 s{U+2}, s{U}, {8*(81920+o.pad)}")
    P(f"s_lshl_b32 s{U+3}, s{U+1}, 2")
    P(f"s_add_u32 s{U+3}, s{U+3}, s{S_W}")
    P(f"s_lshl_b32 s{U+4}, s{U+1}, 1")
    P(f"s_lshr_b32 s{U+5}, s{S_W}, 1")
    P(f"s_add_u32 s{U+4}, s{U+4}, s{U+5}")
    P(f"s_add_u32 s{U+4}, s{U+4}, 64")
    P(f"s_lshl_b32 s{U+5}, s{U+3}, 10")
    P(f"s_add_u32 s{U+5}, s{U+5}, s{U+2}")
    P(f"s_lshl_b32 s{U+6}, s{U+4}, 10")
    P(f"s_add_u32 s{U+6}, s{U+6}, s{U+2}")
    P(f"s_add_u32 s{U+7}, s{U+5}, 32768")
    P(f"s_and_b32 s{U+8}, s{U}, 15")
    P(f"s_mul_i32 s{U+8}, s{U+8}, {4*40960}")
    P(f"s_lshr_b32 s{U+9}, s{U}, 4")
    P(f"s_mul_i32 s{U+9}, s{U+9}, 1280")
    P(f"s_add_u32 s{U+8}, s{U+8}, s{U+9}")
    for blk, dst in ((U+3, U+10), (U+4, U+11)):
        P(f"s_bfe_u32 s{U+9}, s{blk}, 0x20002")
        P(f"s_mul_i32 s{U+9}, s{U+9}, 40960")
        P(f"s_add_u32 s{dst}, s{U+8}, s{U+9}")
        P(f"s_lshr_b32 s{U+9}, s{blk}, 4")
        P(f"s_lshl_b32 s{U+9}, s{U+9}, 8")
        P(f"s_add_u32 s{dst}, s{dst}, s{U+9}")
        P(f"s_and_b32 s{U+9}, s{blk}, 3")
        P(f"s_lshl_b32 s{U+9}, s{U+9}, 4")
        P(f"s_add_u32 s{dst}, s{dst}, s{U+9}")
    P(f"s_bitcmp1_b32 s{S_W}, 0\n    s_cselect_b32 s{U+12}, 0, -1\n    s_cselect_b32 s{U+13}, -1, 0")
    P(f"s_mov_b32 s{U+14}, 0x3f80")
    P(f"s_mov_b32 s{U+15}, 0x3f800000")
    P(f"s_mov_b32 s{U+16}, 0xffff0000")
    P(f"s_lshl_b32 s{U+17}, s{U}, 10")
    P(f"s_add_u32 s{U+17}, s{U+17}, {WS_FLAG}")
    P(f"s_mov_b32 s{U+18}, {1<<20}")
    for x in pre:
        A(x)
    pre = []
    for s in range(20, 23):
        step(s, s == 20, False, {})
    step(23, False, False, {0: ["s_barrier"]})
    g.stamp(5)
    G0 = 24 * 32 + 2
    C4 = (96, 0, 32)
    for j in range(8):
        for x in range(3):
            q(G0 + (j * 3 + x) * o.wpace, dsop(f"ds_write_b128 v{6+x}, {ar(C4[x]+j*4)} offset:{j*1024}", "cw"), "o")
    q(G0, lambda: g.waitds("cw"), "o")
    q(G0, "s_barrier", "o")
    rd = [(x, j) for x in range(3) for j in range(8)]

    def c4read(k):
        x, j = rd[k]
        q(G0, dsop(f"ds_read_b128 {vr(160+j*4)}, v9 offset:{x*8192+j*1024}", f"cr{k//4}"), "o")
    for k in range(8):
        c4read(k)
    for grp in range(6):
        q(G0, lambda grp=grp: g.waitds(f"cr{grp}"), "o")
        for k in range(grp * 4, grp * 4 + 4):
            j = rd[k][1]
            q(G0, pkadd(128 + j * 4, 160 + j * 4), "v")
            q(G0, pkadd(128 + j * 4 + 2, 160 + j * 4 + 2), "v")
        for k in range(grp * 4 + 8, min(grp * 4 + 12, 24)):
            c4read(k)
    q(G0, "s_barrier", "o")
    q(G0, f"v_add_u32 v6, s{T+6}, v{V_LX}", "v")
    q(G0, f"v_add_u32 v7, s{T+7}, v{V_LX}", "v")
    for r in range(4):
        for x in cvts(160 + r * 4, 128, r):
            q(G0, x, "v")
        q(G0, store(160 + r * 4, T + 5, r), "o")
    G1 = 32 * 32 + 2
    for j in range(8):
        for x in range(2):
            q(G1 + (j * 2 + x) * o.wpace, dsop(f"ds_write_b128 v6, {ar(128+x*32+j*4)} offset:{x*8192+j*1024}", "pw"), "o")
    q(G1, lambda: g.waitds("pw"), "o")
    q(G1, "s_barrier", "o")
    for x in range(2):
        for j in range(8):
            q(G1, dsop(f"ds_read_b128 {vr(128+x*32+j*4)}, v7 offset:{x*8192+j*1024}", f"pr{x}"), "o")
    for x in range(2):
        q(G1, lambda x=x: g.waitds(f"pr{x}"), "o")
        for n in range(16):
            q(G1, pkadd(192 + x * 32 + n * 2, 128 + x * 32 + n * 2), "v")
        for r in range(4):
            for c in cvts(128 + x * 32 + r * 4, 192 + x * 32, r):
                q(G1, c, "v")
            q(G1, store(128 + x * 32 + r * 4, T + x, r), "o")
    for s in range(24, 39):
        ex = {}
        if s == 36:
            ex[31] = [("vm", f"buffer_load_dword v5, off, s[{S_DBG}:{S_DBG+3}], s{T+4} sc1", "clr")]
        step(s, s in (24, 32), False, ex)
        if s == 31:
            g.stamp(6)
        g.left = getattr(g, "left", []) + [len(fq)]
    assert not fq, g.left
    VO, VF, VP, VC = 2, 3, 4, 5
    prev = [f"v_bfe_u32 v{VO}, v{V_LX}, 4, 4", f"v_lshrrev_b32 v{VF}, 8, v{V_LX}", f"v_mul_u32_u24 v{VO}, 2560, v{VO}",
            f"v_lshl_add_u32 v{VO}, v{VF}, 6, v{VO}", f"v_lshlrev_b32 v{VF}, 3, v{V_LX}"]
    FL = T + 8

    def flag(val, lab):
        return "\n    ".join([f"s_cmp_lg_u32 s{S_W}, 0", f"s_cbranch_scc1 {lab}", f"v_mov_b32 v{V_TMP}, {val}", "s_mov_b64 exec, 1",
                               f"buffer_store_dword v{V_TMP}, off, {WS}, s{FL} sc1", "s_mov_b64 exec, -1"]) + f"\n{lab}:"
    ex = {0: [f"s_lshl_b32 s{FL}, s2, 7"], 1: [f"s_add_u32 s{FL}, s{FL}, {WS_FLAG}", waitall], 3: ["s_barrier"], 5: [flag(1, "L_f1")]}
    acr = [f"v_accvgpr_read_b32 v{192+x*32+j*4+r}, a{x*32+j*4+r}" for j in range(8) for x in range(2) for r in range(4)]
    wr = [dsop(f"ds_write_b128 v6, {ar(192+x*32+j*4)} offset:{x*8192+j*1024}", "qw") for j in range(8) for x in range(2)]
    nw = na = 0
    for n in range(6, 32):
        ex.setdefault(n, [])
        if nw < 16 and n >= (nw // 2) * 4 + 7 and n % 4 in (3, 0):
            ex[n].append(wr[nw])
            nw += 1
        elif pre:
            ex[n].append(pre.pop(0))
        for _ in range(2 if (n % 2 or n >= 24) else 0):
            if prev:
                ex[n].append(prev.pop(0))
            elif na < 64 and n >= (na // 8) * 4 + 7:
                ex[n].append(acr[na])
                na += 1
    step(39, False, True, ex)
    g.stamp(7)
    for x in pre:
        A(x)
    if o.early:
        A("s_mov_b64 exec, 0xff")
        A(g.vm(f"buffer_load_dword v{VP}, v{VF}, {WS}, s{U+17} offen sc1", "poll"))
        A("s_mov_b64 exec, -1")
    cut = 48
    for x in acr[na:cut]:
        A(x)
    if o.verbose:
        print("left", g.left, "na", na, "nw", nw, "pre", len(pre), file=sys.stderr)
    A("s_nop 7")
    A("s_nop 3")
    for x in wr[nw:]:
        emit(x)
    for x in acr[max(na, cut):]:
        A(x)
    A(g.waitds("qw"))
    A("s_barrier")
    for x in range(2):
        for j in range(8):
            A(g.ds(f"ds_read_b128 {vr(128+x*32+j*4)}, v7 offset:{x*8192+j*1024}", f"qr{x*2+j//4}"))
    for x in range(2):
        for hj in range(2):
            A(g.waitds(f"qr{x*2+hj}"))
            for n in range(8):
                A(pkadd(192 + x * 32 + hj * 16 + n * 2, 128 + x * 32 + hj * 16 + n * 2))
        for r in range(4):
            for c in cvts(128 + x * 32 + r * 4, 192 + x * 32, r):
                A(c)
            emit(store(128 + x * 32 + r * 4, T + 2 + x, r))
    g.stamp(59)
    R, SUM = RING, 192

    def loads(early):
        for h in range(8):
            if early:
                A(f"buffer_load_dwordx4 {vr(R+h*8)}, v{V_LX}, {WS}, s{U+5} offen sc1")
                A(f"s_mov_b64 exec, s[{U+12}:{U+13}]")
                A(f"buffer_load_dwordx4 {vr(R+h*8+4)}, v{V_LX}, {WS}, s{U+6} offen sc1")
                A("s_mov_b64 exec, -1")
                if h < 7:
                    A(f"s_add_u32 s{U+5}, s{U+5}, {81920+o.pad}")
                    A(f"s_add_u32 s{U+6}, s{U+6}, {81920+o.pad}")
            else:
                A(f"buffer_load_dwordx4 {vr(R+64+h*4)}, v{V_LX}, {WS}, s{U+7} offen sc1")
                if h < 7:
                    A(f"s_add_u32 s{U+7}, s{U+7}, {81920+o.pad}")

    def sums(early, younger):
        nb = 2 if early else 1
        for h in range(8):
            for b in range(nb):
                A(f"s_waitcnt vmcnt({(8-h)*nb-b-1+younger})")
                for t in range(4):
                    src = (R + h * 8 + b * 4 + t) if early else (R + 64 + h * 4 + t)
                    d = SUM + (b if early else 2) * 8 + 2 * t
                    if h == 0:
                        A(f"v_lshlrev_b32 v{d}, 16, v{src}")
                        A(f"v_and_b32 v{d+1}, s{U+16}, v{src}")
                    else:
                        A(f"v_dot2c_f32_bf16 v{d}, s{U+14}, v{src}")
                        A(f"v_dot2c_f32_bf16 v{d+1}, s{U+15}, v{src}")
        A("s_nop 1")
        for b in ((0, 1) if early else (2,)):
            for t in range(4):
                A(f"v_cvt_pk_bf16_f32 v{SUM+24+b*4+t}, v{SUM+b*8+2*t}, v{SUM+b*8+2*t+1}")
            if b == 1:
                A(f"s_mov_b64 exec, s[{U+12}:{U+13}]")
            A(f"buffer_store_dwordx4 {vr(SUM+24+b*4)}, v{VO}, s[{S_OUT}:{S_OUT+3}], s{U+10+b%2} offen offset:{512*(b//2)} {o.pout}")
            if b == 1:
                A("s_mov_b64 exec, -1")
    E = U + 19

    def poll(lab, cmp_, val):
        A("s_mov_b64 exec, 1")
        g.lab(f"{lab}_clr")
        A(f"v_readfirstlane_b32 s{T+10}, v{VC}")
        A(f"s_sub_u32 s{U+18}, s{U+18}, 1")
        A(f"s_cbranch_scc1 {lab}_out")
        A(f"s_cmp_ge_u32 s{T+10}, 8")
        A(f"s_cbranch_scc1 {lab}_go")
        A(f"buffer_load_dword v{VC}, off, s[{S_DBG}:{S_DBG+3}], s{T+4} sc1")
        A("s_waitcnt vmcnt(0)")
        A(f"s_branch {lab}_clr")
        g.lab(f"{lab}_go")
        A("s_mov_b64 exec, 0xff")
        g.lab(f"{lab}_loop")
        A(f"buffer_load_dword v{VP}, v{VF}, {WS}, s{U+17} offen sc1")
        A("s_waitcnt vmcnt(0)")
        A(f"s_sub_u32 s{U+18}, s{U+18}, 1")
        A(f"s_cbranch_scc1 {lab}_out")
        A(f"v_cmp_{cmp_}_u32 s[{T+12}:{T+13}], {val}, v{VP}")
        A("s_nop 3")
        A(f"s_cmp_lg_u32 s{T+12}, 0")
        A(f"s_cbranch_scc1 {lab}_loop")
        g.lab(f"{lab}_out")
        A("s_mov_b64 exec, -1")
    if o.diag:
        A(f"s_mov_b32 s{E}, 0")
    if o.early:
        A(g.waitvm("poll"))
        A(f"v_readfirstlane_b32 s{T+10}, v{VC}")
        A("s_mov_b64 exec, 0xff")
        A(f"v_cmp_eq_u32 s[{T+12}:{T+13}], 0, v{VP}")
        A("s_mov_b64 exec, -1")
        A(f"s_cmp_lt_u32 s{T+10}, 8")
        A("s_cbranch_scc1 L_late")
        A(f"s_cmp_lg_u32 s{T+12}, 0")
        A("s_cbranch_scc1 L_late")
        if o.diag:
            A(f"s_mov_b32 s{E}, 1")
        loads(True)
        A("s_waitcnt vmcnt(16)")
        A("s_barrier")
        A(flag(2, "L_f2a"))
        g.stamp(56)
        A(f"s_cmp_lg_u32 s{S_W}, 0")
        A("s_cbranch_scc1 L_s0")
        sums(True, 1)
        A("s_branch L_wait")
    g.lab("L_late")
    A(waitall())
    A("s_barrier")
    A(flag(2, "L_f2b"))
    g.stamp(56)
    poll("L_p1", "eq", 0)
    loads(True)
    g.lab("L_s0")
    sums(True, 0)
    A(f"s_cmp_lg_u32 s{S_W}, 0")
    A("s_cbranch_scc1 L_polled")
    g.lab("L_wait")
    poll("L_p2", "ne", 2)
    g.lab("L_polled")
    A("s_barrier")
    g.stamp(57)
    loads(False)
    sums(False, 0)
    g.stamp(58)
    if o.diag:
        A(f"v_writelane_b32 v{V_TID}, s{E}, 60")


def gen_reduce(g):
    o = g.o
    A = g.A
    K = "reduce_kernel"
    g.L.append(f".globl {K}\n.p2align 8\n.type {K},@function")
    g.lab(K)
    A("s_cmp_ge_u32 s2, 640")
    A("s_cbranch_scc1 L_red_end")
    if o.diag >= 2:
        A("s_memrealtime s[20:21]")
    A("s_load_dwordx2 s[4:5], s[0:1], 80")
    A("s_load_dwordx2 s[8:9], s[0:1], 96")
    A("v_lshrrev_b32 v1, 6, v0")
    A("v_and_b32 v0, 63, v0")
    A("v_readfirstlane_b32 s3, v1")
    A("s_lshl_b32 s12, s2, 2")
    A("s_mov_b32 s6, 2621440")
    A("s_mov_b32 s7, 0x20000")
    A("s_mov_b32 s10, 268435456")
    A("s_mov_b32 s11, 0x20000")
    A("s_add_u32 s12, s12, s3")
    A("s_mul_i32 s13, s12, 52429")
    A("s_lshr_b32 s13, s13, 22")
    A("s_mul_i32 s14, s13, 80")
    A("s_sub_u32 s14, s12, s14")
    A("s_mul_i32 s15, s13, 655360")
    A("s_lshl_b32 s16, s14, 10")
    A("s_add_u32 s15, s15, s16")
    A("v_lshlrev_b32 v1, 4, v0")
    A("s_waitcnt lgkmcnt(0)")
    for h in range(8):
        A(f"buffer_load_dwordx4 {vr(4+h*4)}, v1, s[8:11], s15 offen {o.pld}")
        if h < 7:
            A("s_add_u32 s15, s15, 81920")
    A("s_and_b32 s16, s13, 15")
    A("s_lshl_b32 s16, s16, 2")
    A("s_bfe_u32 s17, s14, 0x20002")
    A("s_add_u32 s16, s16, s17")
    A("s_mul_i32 s16, s16, 40960")
    A("s_lshr_b32 s17, s13, 4")
    A("s_mul_i32 s17, s17, 1280")
    A("s_add_u32 s16, s16, s17")
    A("s_lshr_b32 s17, s14, 4")
    A("s_lshl_b32 s17, s17, 8")
    A("s_add_u32 s16, s16, s17")
    A("s_and_b32 s17, s14, 3")
    A("s_lshl_b32 s17, s17, 4")
    A("s_add_u32 s16, s16, s17")
    A("v_and_b32 v2, 15, v0")
    A("v_lshrrev_b32 v3, 4, v0")
    A("v_mul_u32_u24 v2, 2560, v2")
    A("v_lshl_add_u32 v2, v3, 6, v2")
    A("s_mov_b32 s18, 0xffff0000")
    for h in range(8):
        A(f"s_waitcnt vmcnt({7-h})")
        for t in range(4):
            src = 4 + h * 4 + t
            if h == 0:
                A(f"v_lshlrev_b32 v{40+2*t}, 16, v{src}")
                A(f"v_and_b32 v{41+2*t}, s18, v{src}")
            else:
                A(f"v_lshlrev_b32 v{48+2*t}, 16, v{src}")
                A(f"v_and_b32 v{49+2*t}, s18, v{src}")
        if h:
            for n in range(8):
                A(f"v_add_f32 v{40+n}, v{40+n}, v{48+n}")
    for t in range(4):
        A(f"v_cvt_pk_bf16_f32 v{4+t}, v{40+2*t}, v{41+2*t}")
    A(f"buffer_store_dwordx4 {vr(4)}, v2, s[4:7], s16 offen")
    if o.diag == 2:
        A("s_waitcnt vmcnt(0)")
        A("s_memrealtime s[22:23]")
        A("s_load_dwordx2 s[24:25], s[0:1], 88")
        A("s_mov_b32 s26, 64")
        A("s_mov_b32 s27, 0x20000")
        A("s_waitcnt lgkmcnt(0)")
        A("v_mov_b32 v8, 0")
        A("s_not_b32 s21, s20")
        A("v_writelane_b32 v8, s20, 13")
        A("v_writelane_b32 v8, s21, 14")
        A("v_writelane_b32 v8, s22, 15")
        A("v_lshlrev_b32 v9, 2, v0")
        A("buffer_atomic_umax v8, v9, s[24:27], 0 offen sc1")
    if o.diag == 3:
        A("s_cmp_lg_u32 s12, 2000")
        A("s_cbranch_scc1 L_red_end")
        A("s_waitcnt vmcnt(0)")
        A("s_memrealtime s[22:23]")
        A("s_load_dwordx2 s[24:25], s[0:1], 88")
        A("s_mov_b32 s26, 64")
        A("s_mov_b32 s27, 0x20000")
        A("v_lshlrev_b32 v9, 2, v0")
        A(f"s_mov_b32 s15, {0x8000000 + o.sel*256}")
        A("buffer_load_dword v8, v9, s[8:11], s15 offen sc1")
        A("s_waitcnt vmcnt(0) lgkmcnt(0)")
        A("v_writelane_b32 v8, s20, 14")
        A("v_writelane_b32 v8, s22, 15")
        A("buffer_store_dword v8, v9, s[24:27], 0 offen")
    g.lab("L_red_end")
    A("s_endpgm")


def desc(name, vg, acc, sg):
    return f""".amdhsa_kernel {name}
  .amdhsa_next_free_vgpr {vg}
  .amdhsa_next_free_sgpr {sg}
  .amdhsa_accum_offset {acc}
  .amdhsa_group_segment_fixed_size 0
  .amdhsa_kernarg_size 104
  .amdhsa_user_sgpr_count 2
  .amdhsa_user_sgpr_kernarg_segment_ptr 1
  .amdhsa_system_sgpr_workgroup_id_x 1
.end_amdhsa_kernel"""


def build(o):
    g = Gen(o)
    head = [l.rstrip("\n") for l in open(f"cdna_kernels/{NAME}.s.ref") if l.startswith(";   offset") or l.startswith("; Kernarg")]
    if o.fuse:
        head.append(f"; @launch grid=(256,1,1) block=(256,1,1) lds={LDS_BYTES}")
    else:
        head.append(f"; @launch kernel={NAME}_kernel grid=(256,1,1) block=(256,1,1) lds={LDS_BYTES}")
        head.append(f"; @launch kernel=reduce_kernel grid=(640,1,1) block=(256,1,1) lds=0")
    for _ in range(o.noop):
        head.append(f"; @launch kernel=noop_kernel grid=(1,1,1) block=(64,1,1) lds=0")
    head.append('.amdgcn_target "amdgcn-amd-amdhsa--gfx950"')
    head.append(".text")
    gen_main(g)
    if not o.fuse:
        gen_reduce(g)
    g.lab("L_code_end")
    if o.noop:
        g.L.append(".globl noop_kernel\n.p2align 8\n.type noop_kernel,@function\nnoop_kernel:\n    s_endpgm")
    tail = ['.section .rodata,"a"', ".p2align 6", desc(f"{NAME}_kernel", 512, 256, 102)]
    if not o.fuse:
        tail += [".p2align 6", desc("reduce_kernel", 64, 64, 32)]
    if o.noop:
        tail += [".p2align 6", desc("noop_kernel", 64, 64, 32)]
    return "\n".join(head + g.L + tail) + "\n"


def opts(argv=None):
    p = argparse.ArgumentParser()
    p.add_argument("-o", default=f"cdna_kernels/{NAME}.s")
    p.add_argument("--diag", type=int, default=0)
    p.add_argument("--warm", type=int, default=1)
    p.add_argument("--noop", type=int, default=0)
    p.add_argument("--fuse", type=int, default=0)
    p.add_argument("--dp", type=int, default=0)
    p.add_argument("--verbose", type=int, default=0)
    p.add_argument("--cap", type=int, default=2)
    p.add_argument("--wpace", type=int, default=4)
    p.add_argument("--cape", type=int, default=1)
    p.add_argument("--capv", type=int, default=0)
    p.add_argument("--early", type=int, default=1)
    p.add_argument("--wopre", type=int, default=0)
    p.add_argument("--e39", type=int, default=0)
    p.add_argument("--fa", type=int, default=0)
    p.add_argument("--ph", type=int, default=2)
    p.add_argument("--mid", type=int, default=0)
    p.add_argument("--fast", type=int, default=0)
    p.add_argument("--xs", type=int, default=0)
    p.add_argument("--xbar", type=int, default=2)
    p.add_argument("--vlate", type=int, default=0)
    p.add_argument("--vn", type=int, default=8)
    p.add_argument("--full", type=int, default=0)
    p.add_argument("--il", type=int, default=0)
    p.add_argument("--own", type=int, default=1)
    p.add_argument("--fl", type=int, default=0)
    p.add_argument("--dens", type=int, default=0)
    p.add_argument("--defer", type=int, default=0)
    p.add_argument("--xrot", type=int, default=1)
    p.add_argument("--alt", default="")
    p.add_argument("--altbit", type=int, default=0)
    p.add_argument("--pad", type=int, default=0)
    p.add_argument("--c4pre", type=int, default=0)
    p.add_argument("--exp", default="")
    p.add_argument("--steps", type=int, default=0)
    p.add_argument("--ng", type=int, default=1)
    p.add_argument("--kst", default="")
    p.add_argument("--vst", default="")
    p.add_argument("--order", default="xa,xb,w0,w1,w2")
    p.add_argument("--coop", type=int, default=0)
    p.add_argument("--nfirst", type=int, default=0)
    p.add_argument("--c4first", type=int, default=0)
    p.add_argument("--sel", type=int, default=401)
    p.add_argument("--rot", type=int, default=1)
    p.add_argument("--spread", type=int, default=3)
    p.add_argument("--kv0", type=int, default=0)
    p.add_argument("--kvper", type=int, default=1)
    for k, d in (("px", ""), ("pxb", ""), ("pw0", "nt"), ("pwq", ""), ("pwo", ""), ("pk", "nt"), ("pv", "nt"), ("pst", "sc1"), ("pld", ""), ("pout", "")):
        p.add_argument("--" + k, default=d)
    return p.parse_args(argv)


if __name__ == "__main__":
    o = opts()
    open(o.o, "w").write(build(o))
```
